```python
import torch

def _softmax(x, axis=-1):
    return torch.softmax(x, dim=axis)
def _gelu(x):
    return torch.nn.functional.gelu(x, approximate="tanh")
def _silu(x):
    return torch.nn.functional.silu(x)
def _sigmoid(x):
    return torch.sigmoid(x)
def _layernorm(x, axis=-1, eps=1e-5):
    m = x.mean(dim=axis, keepdim=True)
    v = x.var(dim=axis, keepdim=True, unbiased=False)
    return (x - m) / torch.sqrt(v + eps)
def _scatter_add(tgt, idx, src, axis=0):
    return tgt.clone().index_add_(axis, idx, src)
def _segment_sum(src, seg, n):
    out = torch.zeros((n,) + src.shape[1:], dtype=src.dtype)
    return out.index_add_(0, seg, src)
def _pad(x, pw):
    flat = tuple(v for pair in reversed(pw) for v in pair)
    return torch.nn.functional.pad(x, flat)

kernel_name = 'parallel_sum__ssm_conv_s5__dense_activation_relu__prompt'

def setup_inputs():

    _w = (lambda a: (lambda t: t.to(torch.bfloat16) if t.is_floating_point() else t)(torch.as_tensor(a)))
    def _A_setup():
        B, S, D = 1, 2048, 640
        P = D
        Lambda_re = -0.5 * (lambda _x: torch.exp(torch.as_tensor(_x)))((lambda *s: torch.randn(*s, dtype=torch.bfloat16) * 0.8)(P))
        Lambda_im = (lambda *s: torch.randn(*s, dtype=torch.bfloat16) * 0.8)(P) * 1.0
        B_re = (lambda *s: torch.randn(*s, dtype=torch.bfloat16) * 0.8)(P, D) * (D ** -0.5)
        B_im = (lambda *s: torch.randn(*s, dtype=torch.bfloat16) * 0.8)(P, D) * (D ** -0.5)
        C_re = (lambda *s: torch.randn(*s, dtype=torch.bfloat16) * 0.8)(D, P) * (P ** -0.5)
        C_im = (lambda *s: torch.randn(*s, dtype=torch.bfloat16) * 0.8)(D, P) * (P ** -0.5)
        log_dt = (lambda *s: torch.randn(*s, dtype=torch.bfloat16) * 0.8)(P) * 0.3 - 2.0
        Dskip = (lambda *s: torch.randn(*s, dtype=torch.bfloat16) * 0.8)(D)
        return {
            "x": _w((lambda *s: torch.randn(*s, dtype=torch.bfloat16) * 0.05)(B, S, D)),
            "Lambda_re": _w(Lambda_re),
            "Lambda_im": _w(Lambda_im),
            "B_re": _w(B_re),
            "B_im": _w(B_im),
            "C_re": _w(C_re),
            "C_im": _w(C_im),
            "log_dt": _w(log_dt),
            "Dskip": _w(Dskip),
        }
    _A_in = _A_setup()

    def _B_setup():
        B, S, D, Dff = 1, 2048, 640, 1536
        return {
            "x": _w((lambda *s: torch.randn(*s, dtype=torch.bfloat16) * 0.05)(B, S, D)),
            "w1": _w((lambda *s: torch.randn(*s, dtype=torch.bfloat16) * 0.05)(D, Dff)),
            "w2": _w((lambda *s: torch.randn(*s, dtype=torch.bfloat16) * 0.05)(Dff, D)),
        }
    _B_in = _B_setup()

    return {
        "A_x": _A_in["x"],
        "A_Lambda_re": _A_in["Lambda_re"],
        "A_Lambda_im": _A_in["Lambda_im"],
        "A_B_re": _A_in["B_re"],
        "A_B_im": _A_in["B_im"],
        "A_C_re": _A_in["C_re"],
        "A_C_im": _A_in["C_im"],
        "A_log_dt": _A_in["log_dt"],
        "A_Dskip": _A_in["Dskip"],
        "B_x": _B_in["x"],
        "B_w1": _B_in["w1"],
        "B_w2": _B_in["w2"],
    }

def reference(A_x, A_Lambda_re, A_Lambda_im, A_B_re, A_B_im, A_C_re, A_C_im, A_log_dt, A_Dskip, B_x, B_w1, B_w2):
    def _A_ref(x, Lambda_re, Lambda_im, B_re, B_im, C_re, C_im, log_dt, Dskip):
        Bsz, L, H = x.shape
        Lam = Lambda_re + 1j * Lambda_im
        Bmat = B_re + 1j * B_im
        Cmat = C_re + 1j * C_im
        dt = torch.exp(log_dt)
        Lam_bar = torch.exp(dt * Lam)
        B_bar = ((Lam_bar - 1.0) / Lam)[:, None] * Bmat
        Bu = torch.einsum("bld,pd->blp", x + 0j, B_bar)
        h = torch.zeros_like(Bu[:, 0, :])
        hs = []
        for t in range(L):
            h = Lam_bar[None, :] * h + Bu[:, t, :]
            hs.append(h)
        hseq = torch.stack(hs, 1)
        y = 2.0 * torch.einsum("blp,dp->bld", hseq, Cmat).real + x * Dskip[None, None, :]
        return y

    def _B_ref(x, w1, w2):
        h = torch.einsum("bsd,df->bsf", x, w1)
        zero = torch.zeros_like(h)
        h = torch.maximum(h, zero)
        return torch.einsum("bsf,fd->bsd", h, w2)

    x = A_x
    xn = _layernorm(x, axis=-1)
    return x + _A_ref(xn, A_Lambda_re, A_Lambda_im, A_B_re, A_B_im, A_C_re, A_C_im, A_log_dt, A_Dskip) + _B_ref(xn, B_w1, B_w2)
```

```python
import re

_REG = re.compile(r"(?<![\w.])(-?\|?)([vas])(\d+|\[(\d+):(\d+)\])")
TRANS = ("v_exp_f32", "v_log_f32", "v_rcp_f32", "v_rsq_f32", "v_sqrt_f32", "v_sin_f32", "v_cos_f32")


def regs_of(op):
    op = op.strip()
    out = set()
    if op in ("vcc", "vcc_lo", "vcc_hi"):
        return {"vcc"}
    if op in ("exec", "m0"):
        return {op}
    m = _REG.match(op)
    if m:
        k = m.group(2)
        if m.group(4) is not None:
            out |= {f"{k}{i}" for i in range(int(m.group(4)), int(m.group(5)) + 1)}
        else:
            out.add(f"{k}{m.group(3)}")
    return out


def split_ops(rest):
    ops, depth, cur = [], 0, ""
    for ch in rest:
        if ch in "[(":
            depth += 1
        if ch in "])":
            depth -= 1
        if ch == "," and depth == 0:
            ops.append(cur.strip())
            cur = ""
        else:
            cur += ch
    if cur.strip():
        ops.append(cur.strip())
    mods = ""
    if ops:
        parts = ops[-1].split(None, 1)
        ops[-1] = parts[0]
        mods = parts[1] if len(parts) > 1 else ""
    return ops, mods


class Ins:
    def __init__(self, text):
        self.text = text
        p = text.split(None, 1)
        self.m = m = p[0]
        ops, mods = split_ops(p[1]) if len(p) > 1 else ([], "")
        self.ops, self.mods = ops, mods
        R = [regs_of(o) for o in ops]
        U = lambda l: set().union(*l) if l else set()
        self.mfma = m.startswith("v_mfma")
        self.valu = m.startswith("v_") and not self.mfma
        self.vmem = m.startswith(("buffer_", "global_"))
        self.ds = m.startswith("ds_")
        self.smem = m.startswith(("s_load", "s_memtime", "s_memrealtime"))
        self.salu = m.startswith("s_") and not self.smem
        self.dpp = "row_" in mods or "quad_perm" in mods
        self.trans = m.replace("_e32", "").replace("_e64", "") in TRANS
        self.passes = 0
        self.srcc = set()
        self.srcab = set()
        self.store_data = set()
        self.lds_dma = False
        w, r = set(), set()
        if self.mfma:
            self.passes = 8 if "32x32" in m else 4
            w, r = R[0], U(R[1:])
            self.srcab, self.srcc = R[1] | R[2], R[3]
        elif self.valu:
            if m.startswith("v_permlane"):
                w = r = U(R)
            elif m.startswith(("v_add_co", "v_sub_co", "v_addc_co", "v_subb_co")):
                w, r = R[0] | R[1], U(R[2:])
            else:
                w, r = R[0], U(R[1:])
                if m.startswith(("v_fmac", "v_dot2c", "v_writelane")) or self.dpp:
                    r = r | R[0]
        elif self.vmem:
            self.lds_dma = " lds" in " " + mods
            if self.lds_dma:
                r = U(R) | {"m0"}
            elif "_load" in m:
                w, r = R[0], U(R[1:])
            else:
                r = U(R)
                if m.endswith(("x3", "x4")):
                    self.store_data = R[0]
        elif self.ds:
            if m.startswith(("ds_read", "ds_bpermute", "ds_permute", "ds_swizzle")):
                w, r = R[0], U(R[1:])
            else:
                r = U(R)
        elif self.smem:
            w, r = R[0], U(R[1:])
        elif self.salu:
            if m.startswith(("s_cmp", "s_cbranch", "s_branch", "s_waitcnt", "s_nop", "s_barrier",
                             "s_endpgm", "s_sleep", "s_setprio", "s_bitcmp")):
                r = U(R)
            else:
                w, r = R[0], U(R[1:])
                if "saveexec" in m:
                    w, r = w | {"exec"}, r | {"exec"}
                if m.startswith(("s_addk", "s_mulk", "s_bitset")):
                    r = r | R[0]
        self.w, self.r = w, r


def is_s(x):
    return x[0] == "s" or x == "vcc"


class Emitter:
    def __init__(self):
        self.lines = []
        self.slot = 0
        self.hist = []
        self.vm = []
        self.lg = []
        self.nlab = 0
        self.nops = 0

    def raw(self, text):
        self.lines.append(text)

    def comment(self, text):
        self.lines.append("    ; " + text)

    def label(self, name):
        self.lines.append(name + ":")

    def newlabel(self, stem):
        self.nlab += 1
        return f"L_{stem}_{self.nlab}"

    def _need(self, c):
        need = 0
        for slot, p in self.hist:
            ws = 0
            if p.valu:
                pv = {x for x in p.w if not is_s(x) and x not in ("exec", "m0")}
                ps = {x for x in p.w if is_s(x)}
                if c.mfma and pv & c.r:
                    ws = max(ws, 2)
                if c.valu and pv & c.r:
                    if c.dpp or c.m.startswith("v_permlane"):
                        ws = max(ws, 2)
                    if c.m.startswith(("v_readlane", "v_readfirstlane")):
                        ws = max(ws, 1)
                    if p.trans:
                        ws = max(ws, 1)
                if ps & c.r:
                    if c.vmem:
                        ws = max(ws, 5)
                    elif c.m.startswith(("v_readlane", "v_writelane")):
                        ws = max(ws, 4)
                    elif c.valu:
                        ws = max(ws, 2)
                    else:
                        ws = max(ws, 1)
            if p.mfma:
                far = 12 if p.passes == 8 else 8
                if c.mfma:
                    if p.w & c.srcab:
                        ws = max(ws, far)
                    if p.w & c.srcc and not (p.w == c.srcc and p.passes == c.passes):
                        ws = max(ws, far - 2)
                    if p.w & c.w and not (p.w == c.srcc and p.passes == c.passes):
                        ws = max(ws, far)
                elif p.w & (c.r | c.w):
                    ws = max(ws, far)
                if c.valu and p.srcc & c.w:
                    ws = max(ws, 7 if p.passes == 8 else 3)
            if p.salu and "m0" in p.w and c.lds_dma:
                ws = max(ws, 1)
            if p.store_data & c.w:
                ws = max(ws, 2 if c.valu else 1)
            if ws:
                need = max(need, slot + 1 + ws - self.slot)
        return need

    def _out(self, ins, slots=1):
        self.lines.append("    " + ins.text)
        self.hist.append((self.slot + slots - 1, ins))
        self.slot += slots
        self.hist = [h for h in self.hist if self.slot - h[0] <= 14]

    @staticmethod
    def _younger(q, idx):
        return sum(1 for o in q[idx + 1:] if not o["maybe"])

    def _wait(self, vm=None, lg=None):
        parts = []
        if vm is not None:
            n = min(self._younger(self.vm, vm), 63)
            parts.append(f"vmcnt({n})")
            self.vm = self.vm[vm + 1:]
        if lg is not None:
            if any(o["smem"] for o in self.lg):
                n, self.lg = 0, []
            else:
                n = min(self._younger(self.lg, lg), 15)
                self.lg = self.lg[lg + 1:]
            parts.append(f"lgkmcnt({n})")
        if parts:
            self._out(Ins("s_waitcnt " + " ".join(parts)))

    @staticmethod
    def _last(q, pred):
        idx = None
        for i, o in enumerate(q):
            if pred(o):
                idx = i
        return idx

    def __call__(self, text, tok=None):
        for line in text.split("\n"):
            line = line.strip()
            if line:
                self._one(line, tok)

    def _one(self, text, tok):
        c = Ins(text)
        touch = c.r | c.w
        self._wait(self._last(self.vm, lambda o: o["dst"] & touch),
                   self._last(self.lg, lambda o: o["dst"] & touch))
        need = self._need(c)
        while need > 0:
            k = min(need, 16)
            self._out(Ins(f"s_nop {k-1}"), k)
            self.nops += k
            need -= k
        slots = 1
        if c.m == "s_nop":
            slots = int(c.ops[0]) + 1
        self._out(c, slots)
        if c.vmem:
            self.vm.append({"dst": c.w, "tok": tok, "maybe": False})
        elif c.ds or c.smem:
            self.lg.append({"dst": c.w, "tok": tok, "maybe": False, "smem": c.smem})

    def wait_tok(self, *toks):
        self._wait(self._last(self.vm, lambda o: o["tok"] in toks),
                   self._last(self.lg, lambda o: o["tok"] in toks))

    def wait_all(self, vm=True, lg=True):
        parts = []
        if vm:
            parts.append("vmcnt(0)")
            self.vm = []
        if lg:
            parts.append("lgkmcnt(0)")
            self.lg = []
        self._out(Ins("s_waitcnt " + " ".join(parts)))

    def wait_lg(self):
        if self.lg:
            self.wait_all(vm=False)

    def begin_region(self):
        return {"slot": self.slot, "hist": list(self.hist),
                "vm": [o for o in self.vm], "lg": [o for o in self.lg]}

    def end_region(self, snap, label):
        for name in ("vm", "lg"):
            before = snap[name]
            ids = {id(o) for o in before}
            inside = [o for o in getattr(self, name) if id(o) not in ids]
            for o in inside:
                assert not o["dst"], f"load result pending at region end: {o}"
                o["maybe"] = True
            setattr(self, name, before + inside)
        shift = self.slot - snap["slot"]
        self.hist = [(s + shift, i) for s, i in snap["hist"]] + self.hist
        self.label(label)

    def text(self):
        return "\n".join(self.lines) + "\n"
```

```python
import os
import sys

sys.path.insert(0, os.path.dirname(os.path.abspath(__file__)))
from emit import Emitter

NAME = "parallel_sum__ssm_conv_s5__dense_activation_relu__prompt"
KERNEL = NAME + "_kernel"

INBOX = 0x0
CARRY = 0x40000
XNS = 0x300000
XNM = 0x580000
HS = 0x800000
HM = 0xD00000
PART = 0x1300000
STAMP = 0x1700000
WS_USED = 0x1800000

LDS_BYTES = 163840
SCR = 143360
SPIN_LIMIT = 1 << 15

TAG_HELLO, TAG_XN, TAG_HID, TAG_PART, TAG_CARRY = 16, 32, 48, 64, 80

DEFAULTS = dict(
    diag=False,
    chain_bit=2,
    rot1_s=0, rot2_s=0, rot1_m=0, rot2_m=0,
    pre_a=2, pre_b=2,
    force_slow=False,
)

P_X, P_LRE, P_LIM, P_BRE, P_BIM, P_CRE, P_CIM, P_LDT = 16, 18, 20, 22, 24, 26, 28, 30
P_DSK, P_BX, P_W1, P_W2, P_OUT, P_DBG, P_WS = 32, 34, 36, 38, 40, 42, 44
R_X, R_WS, R_1A, R_1B, R_2A, R_2B, R_OUT, R_TMP = 48, 52, 56, 60, 64, 68, 72, 76
sRB, sJ, sW, sXCC, sE, sFAST, sOWN, sSPIN = "s3", "s4", "s5", "s6", "s7", "s8", "s9", "s10"
sT0, sT1, sT2, sT3 = "s11", "s12", "s13", "s14"
sWO1, sWO2, sWO1B = "s80", "s81", "s82"
sA, sABEG, sAEND = "s83", "s84", "s85"
sM0A, sM0B = "s86", "s87"
sEX = "s[88:89]"
sMSK = [f"s[{90+2*k}:{91+2*k}]" for k in range(4)]
sST = ["s[98:99]", "s[100:101]"]


def v(a, n=1):
    return f"v{a}" if n == 1 else f"v[{a}:{a+n-1}]"


def a(b, n=1):
    return f"a{b}" if n == 1 else f"a[{b}:{b+n-1}]"


def srd(b):
    return f"s[{b}:{b+3}]"


vTID, vLANE, vL16B, vE, vINB, vFLG, vSTAMP = 0, 1, 2, 3, 4, 5, 6


class Gen:
    def __init__(self, **cfg):
        self.c = dict(DEFAULTS)
        self.c.update(cfg)
        self.e = Emitter()
        self.nstamp = 0
        self.pending_stamp = None

    def stamp(self, k):
        if not self.c["diag"]:
            return
        e = self.e
        self.flush_stamp()
        reg = sST[self.nstamp & 1]
        self.nstamp += 1
        e(f"s_memrealtime {reg}")
        self.pending_stamp = (k, reg)

    def flush_stamp(self):
        if self.pending_stamp:
            k, reg = self.pending_stamp
            lo = reg[2:].split(":")[0]
            self.e(f"v_writelane_b32 {v(vSTAMP)}, s{lo}, {k}")
            self.pending_stamp = None

    def mk_srd(self, r, ptr, nbytes):
        e = self.e
        e(f"s_mov_b32 s{r}, s{ptr}\ns_mov_b32 s{r+1}, s{ptr+1}")
        e(f"s_mov_b32 s{r+2}, {nbytes}\ns_mov_b32 s{r+3}, 0x20000")

    def mk_srd_sel(self, r, p_lo, p_hi, nbytes):
        e = self.e
        e(f"s_cselect_b32 s{r}, s{p_lo}, s{p_hi}\ns_cselect_b32 s{r+1}, s{p_lo+1}, s{p_hi+1}")
        e(f"s_mov_b32 s{r+2}, {nbytes}\ns_mov_b32 s{r+3}, 0x20000")

    def cmul(self, d, x, y):
        e = self.e
        e(f"v_pk_mul_f32 {v(d,2)}, {v(x,2)}, {v(y,2)} op_sel:[0,0] op_sel_hi:[0,1]")
        e(f"v_pk_fma_f32 {v(d,2)}, {v(x,2)}, {v(y,2)}, {v(d,2)} op_sel:[1,1,0] op_sel_hi:[1,0,1] neg_lo:[1,0,0]")

    def cfma(self, d, x, y, z):
        e = self.e
        e(f"v_pk_fma_f32 {v(d,2)}, {v(x,2)}, {v(y,2)}, {v(z,2)} op_sel:[0,0,0] op_sel_hi:[0,1,1]")
        e(f"v_pk_fma_f32 {v(d,2)}, {v(x,2)}, {v(y,2)}, {v(d,2)} op_sel:[1,1,0] op_sel_hi:[1,0,1] neg_lo:[1,0,0]")

    def round_bf16(self, r):
        e = self.e
        e(f"v_cvt_pk_bf16_f32 {v(r)}, {v(r)}, {v(r)}\nv_lshlrev_b32 {v(r)}, 16, {v(r)}")

    def rot_init(self, dst, mult, nb, stride):
        e = self.e
        if mult == 0:
            e(f"s_mov_b32 {dst}, 0")
            return
        e(f"s_mul_i32 {sT0}, {sRB}, {mult}")
        e(f"s_mul_hi_u32 {sT1}, {sT0}, {(2**32 + nb - 1)//nb}")
        e(f"s_mul_i32 {sT1}, {sT1}, {nb}\ns_sub_u32 {sT0}, {sT0}, {sT1}")
        e(f"s_mul_i32 {dst}, {sT0}, {stride}")

    @staticmethod
    def adv(reg, stride, end, beg):
        return [f"s_add_u32 {reg}, {reg}, {stride}", f"s_cmp_eq_u32 {reg}, {end}",
                f"s_cselect_b32 {reg}, {beg}, {reg}"]

    def two_flavours(self, body):
        e = self.e
        l_slow, l_end = e.newlabel("slow"), e.newlabel("join")
        e(f"s_cmp_eq_u32 {sFAST}, 0\ns_cbranch_scc1 {l_slow}")
        s0 = e.begin_region()
        body("")
        e(f"s_branch {l_end}")
        e.end_region(s0, l_slow)
        s1 = e.begin_region()
        body("sc1")
        e.end_region(s1, l_end)

    def send_flags(self, line, tag, lanes, word, flavour):
        e = self.e
        skip = e.newlabel("nosend")
        e(f"s_cmp_lg_u32 {sW}, 0\ns_cbranch_scc1 {skip}")
        s0 = e.begin_region()
        e(f"v_add_u32 {v(vFLG)}, {tag}, {v(vE)}")
        e(f"s_lshl_b32 {sT0}, {word}, 2\ns_add_u32 {sT0}, {sT0}, {INBOX + 128*line}")
        e(f"s_mov_b64 exec, {lanes}")
        st = lambda fl: e(f"buffer_store_dword {v(vFLG)}, {v(vINB)}, {srd(R_WS)}, {sT0} offen {fl}")
        if flavour is None:
            self.two_flavours(st)
        else:
            st(flavour)
        e("s_mov_b64 exec, -1")
        e.end_region(s0, skip)

    def poll(self, line, tag, nwords, tmp, tmp2):
        e = self.e
        lp, out = e.newlabel("poll"), e.newlabel("polled")
        e(f"v_and_b32 {v(tmp2)}, {nwords-1}, {v(vLANE)}\nv_lshlrev_b32 {v(tmp2)}, 2, {v(tmp2)}")
        e(f"s_add_u32 {sT0}, {sOWN}, {INBOX + 128*line}\ns_add_u32 {sT1}, {sE}, {tag}")
        e.label(lp)
        e(f"buffer_load_dword {v(tmp)}, {v(tmp2)}, {srd(R_WS)}, {sT0} offen sc1")
        e(f"s_cmp_eq_u32 {sSPIN}, 0")
        e.wait_all(lg=False)
        e(f"s_cbranch_scc1 {out}\ns_sub_u32 {sSPIN}, {sSPIN}, 1")
        e(f"v_subrev_u32 {v(tmp)}, {sT1}, {v(tmp)}")
        e(f"v_cmp_gt_u32 vcc, 16, {v(tmp)}")
        e(f"s_cmp_eq_u64 vcc, exec\ns_cbranch_scc0 {lp}")
        e.label(out)

    def entry(self):
        e, c = self.e, self.c
        e("s_cmp_ge_u32 s2, 256\ns_cbranch_scc1 L_end")
        e("s_load_dwordx16 s[16:31], s[0:1], 0\ns_load_dwordx8 s[32:39], s[0:1], 64")
        e("s_load_dwordx4 s[40:43], s[0:1], 96\ns_load_dwordx2 s[44:45], s[0:1], 112")
        if c["diag"]:
            e(f"v_mov_b32 {v(vSTAMP)}, 0")
        self.stamp(0)
        e(f"v_lshrrev_b32 v7, 6, v0\nv_and_b32 {v(vLANE)}, 63, v0")
        e(f"v_readfirstlane_b32 {sW}, v7")
        e(f"v_lshlrev_b32 {v(vL16B)}, 4, {v(vLANE)}")
        e(f"s_getreg_b32 {sXCC}, hwreg(HW_REG_XCC_ID)\ns_and_b32 {sXCC}, {sXCC}, 15")
        e(f"s_lshr_b32 {sT0}, s2, 3\ns_and_b32 {sJ}, {sT0}, 7\ns_lshr_b32 {sT0}, {sT0}, 3")
        if c["chain_bit"] == 2:
            e(f"s_and_b32 {sT1}, s2, 3\ns_bfe_u32 {sT2}, s2, 0x10002")
        else:
            e(f"s_bfe_u32 {sT1}, s2, 0x20001\ns_and_b32 {sT2}, s2, 1")
        e(f"s_lshl_b32 {sT1}, {sT1}, 2\ns_add_u32 {sRB}, {sT1}, {sT0}")
        e(f"s_lshl_b32 {sOWN}, {sT2}, 4\ns_add_u32 {sOWN}, {sOWN}, {sRB}")
        e(f"s_lshl_b32 {sOWN}, {sOWN}, 3\ns_add_u32 {sOWN}, {sOWN}, {sJ}\ns_lshl_b32 {sOWN}, {sOWN}, 10")
        e(f"s_mov_b32 {sSPIN}, {SPIN_LIMIT}")
        self.mk_srd(R_X, P_X, 2048 * 1280)
        self.mk_srd(R_WS, P_WS, WS_USED)
        e(f"s_cmp_eq_u32 {sT2}, 0\ns_cbranch_scc0 L_mlp")

    def ln_loads(self, ssm, X):
        e = self.e
        e("v_lshrrev_b32 v8, 4, v0\nv_and_b32 v9, 15, v0")
        e("v_and_b32 v10, 1, v8\nv_lshlrev_b32 v10, 2, v10\nv_bfe_u32 v11, v8, 1, 1\nv_add_u32 v10, v10, v11")
        if ssm:
            e("v_lshrrev_b32 v11, 2, v8\nv_lshl_add_u32 v10, v11, 3, v10")
        else:
            e("v_bfe_u32 v11, v8, 2, 1\nv_lshl_add_u32 v10, v11, 3, v10")
            e("v_lshrrev_b32 v11, 3, v8\nv_lshl_add_u32 v10, v11, 1, v10")
        e("v_mul_u32_u24 v10, 0x500, v10\nv_lshl_add_u32 v10, v9, 4, v10")
        e(f"s_lshr_b32 {sT0}, {sJ}, 1\ns_lshl_b32 {sT0}, {sT0}, 5\ns_and_b32 {sT1}, {sJ}, 1")
        e(f"s_lshl_b32 {sT1}, {sT1}, {1 if ssm else 4}\ns_add_u32 {sT0}, {sT0}, {sT1}")
        e(f"s_lshl_b32 {sT1}, {sRB}, 7\ns_add_u32 {sT0}, {sT0}, {sT1}\ns_mul_i32 {sT0}, {sT0}, 1280")
        for n in range(5):
            e(f"buffer_load_dwordx4 {v(X+4*n,4)}, v10, {srd(R_X)}, {sT0} offen offset:{256*n}")

    def epoch_loads(self, ssm):
        e = self.e
        e(f"s_and_b32 {sT0}, {sOWN}, {~0x1FFF & 0xFFFFFFFF}")
        e(f"v_and_b32 v11, 7, {v(vLANE)}\nv_lshl_add_u32 {v(vINB)}, v11, 10, {sT0}")
        e(f"v_and_b32 v11, 15, {v(vLANE)}")
        if ssm:
            e(f"s_lshl_b32 {sT0}, {sJ}, 10\nv_lshl_add_u32 v11, v11, 13, {sT0}")
        else:
            e(f"s_lshl_b32 {sT0}, {sRB}, 3\ns_and_b32 {sT1}, {sJ}, 4\ns_add_u32 {sT0}, {sT0}, {sT1}")
            e(f"s_lshl_b32 {sT0}, {sT0}, 10\nv_and_b32 v11, 3, v11\nv_lshl_add_u32 v11, v11, 10, {sT0}")
        e(f"v_cmp_gt_u32 vcc, 16, {v(vLANE)}")
        e(f"v_cndmask_b32 {v(vINB)}, v11, {v(vINB)}, vcc")
        e(f"buffer_load_dword {v(vE)}, {v(vINB)}, {srd(R_WS)}, 0 offen sc1")

    def hello(self):
        e = self.e
        e(f"v_readlane_b32 {sE}, {v(vE)}, {sJ}")
        e(f"s_add_u32 {sT3}, {sXCC}, {TAG_HELLO}")
        self.send_flags(1, sT3, "0xff", sJ, "sc1")

    def ln_compute(self, ssm, X, U):
        e = self.e
        for k in range(20):
            e(f"v_lshlrev_b32 {v(U+2*k)}, 16, {v(X+k)}\nv_and_b32 {v(U+2*k+1)}, 0xffff0000, {v(X+k)}")
            if k == 1:
                e(f"v_pk_add_f32 v[12:13], {v(U,2)}, {v(U+2,2)}")
            elif k > 1:
                e(f"v_pk_add_f32 v[12:13], v[12:13], {v(U+2*k,2)}")

        def rowsum(r):
            for sh in (8, 4, 2, 1):
                e(f"v_add_f32_dpp {v(r)}, {v(r)}, {v(r)} row_ror:{sh} row_mask:0xf bank_mask:0xf")

        inv_d = "0x3acccccd"
        e("v_add_f32 v12, v12, v13")
        rowsum(12)
        e(f"v_mul_f32 v12, {inv_d}, v12\nv_mov_b32 v14, v12")
        self.round_bf16(14)
        e("v_sub_f32 v15, v12, v14")
        for k in range(20):
            e(f"v_pk_add_f32 {v(U+2*k,2)}, {v(U+2*k,2)}, v[14:15] op_sel_hi:[1,0] neg_lo:[0,1] neg_hi:[0,1]")
        for k in range(20):
            if k == 0:
                e(f"v_pk_mul_f32 v[12:13], {v(U,2)}, {v(U,2)}")
            else:
                e(f"v_pk_fma_f32 v[12:13], {v(U+2*k,2)}, {v(U+2*k,2)}, v[12:13]")
        e("v_add_f32 v12, v12, v13")
        rowsum(12)
        e(f"v_mul_f32 v12, {inv_d}, v12\nv_fma_f32 v12, -v15, v15, v12\nv_max_f32 v12, 0, v12")
        self.round_bf16(12)
        e("v_add_f32 v12, 0x3727c5ac, v12")
        self.round_bf16(12)
        e("v_sqrt_f32 v12, v12")
        self.round_bf16(12)
        e("v_rcp_f32 v12, v12")
        scr = SCR
        e("v_xor_b32 v10, v8, v9\nv_lshlrev_b32 v10, 4, v10\nv_lshl_add_u32 v10, v9, 8, v10")
        e(f"v_add_u32 v10, {scr}, v10")
        for n in range(5):
            for k in range(4 * n, 4 * n + 4):
                e(f"v_pk_mul_f32 {v(U+2*k,2)}, {v(U+2*k,2)}, v[12:13] op_sel_hi:[1,0]")
            for k in range(4 * n, 4 * n + 4):
                e(f"v_cvt_pk_bf16_f32 {v(X+k)}, {v(U+2*k)}, {v(U+2*k+1)}")
            e(f"ds_write_b128 v10, {v(X+4*n,4)} offset:{4096*n}")
        e(f"v_lshrrev_b32 v11, 4, {v(vLANE)}\nv_lshl_add_u32 v11, {sW}, 2, v11")
        e(f"v_and_b32 v13, 15, {v(vLANE)}\nv_xor_b32 v14, v13, v11\nv_lshlrev_b32 v14, 4, v14")
        e(f"v_lshl_add_u32 v14, v11, 8, v14\nv_add_u32 v14, {scr}, v14")
        if ssm:
            e("v_lshlrev_b32 v11, 8, v11")
        else:
            e("v_lshlrev_b32 v11, 9, v11")
        e("v_lshl_add_u32 v11, v13, 4, v11")
        e(f"s_mul_i32 {sT2}, {sRB}, 163840\ns_lshr_b32 {sT1}, {sJ}, 1\ns_mul_i32 {sT1}, {sT1}, 40960")
        e(f"s_add_u32 {sT2}, {sT2}, {sT1}\ns_and_b32 {sT1}, {sJ}, 1\ns_mul_i32 {sT1}, {sT1}, {20480 if ssm else 256}")
        e(f"s_add_u32 {sT2}, {sT2}, {sT1}\ns_add_u32 {sT2}, {sT2}, {XNS if ssm else XNM}")
        e.wait_lg()
        e("s_barrier")
        for k in range(5):
            e(f"ds_read_b128 {v(X+4*k,4)}, v14 offset:{4096*k}")
        self.poll(1, TAG_HELLO, 8, 12, 13)
        e(f"v_cmp_eq_u32 vcc, {sXCC}, v12")
        e(f"s_cmp_eq_u64 vcc, exec\ns_cselect_b32 {sFAST}, {0 if self.c['force_slow'] else 1}, 0")
        e.wait_lg()

        def st(fl):
            for k in range(5):
                e(f"s_add_u32 {sT3}, {sT2}, {k * (4096 if ssm else 8192)}")
                e(f"buffer_store_dwordx4 {v(X+4*k,4)}, v11, {srd(R_WS)}, {sT3} offen {fl}")
        self.two_flavours(st)
        e.wait_all()
        e("s_barrier")
        self.send_flags(2, TAG_XN, "0xff", sJ, None)

    def gemm(self, nblk, nst, first_blk, mfmas, breads, aloads, adepth, dma, dma_plan, visible):
        e = self.e
        total = nblk * nst
        for ins in breads(0, 0):
            e(ins)
        for n in range(nblk):
            for st in range(nst):
                gs = n * nst + st
                fill = []
                if st == nst - 1:
                    todo = dma_plan.get(n, [])
                    nxt = first_blk + n + 1
                    need_vis = n + 1 < nblk and nxt not in visible
                    if todo or need_vis:
                        if need_vis:
                            e.wait_tok(("dma", nxt))
                            visible.add(nxt)
                        e("s_barrier")
                if gs + 1 < total:
                    n2, st2 = divmod(gs + 1, nst)
                    fill += [(i, None) for i in breads(n2, st2)]
                if gs >= 1 and gs - 1 + adepth < total:
                    fill += [(i, None) for i in aloads(gs - 1 + adepth)]
                if st == nst - 1:
                    for b in dma_plan.get(n, []):
                        fill += [(i, ("dma", b)) for i in dma(b)]
                mm = mfmas(n, st)
                done = 0
                for k, ins in enumerate(mm):
                    e(ins)
                    upto = -(-len(fill) * (k + 1) // len(mm))
                    while done < upto:
                        e(fill[done][0], tok=fill[done][1])
                        done += 1

    def issue_dma(self, dma, blocks):
        for b in blocks:
            for ins in dma(b):
                self.e(ins, tok=("dma", b))

    def ssm(self):
        e, c = self.e, self.c
        NS, SLOT = 7, 20480
        vDB, vDC = 16, 21
        vRB, vRC = 26, 32
        vA1, vCH8, vTC, vTW, vTRW, vTRR = 44, 45, 46, 47, 7, 8
        vL, vL4, vSC, vWP = 48, 58, 68, 78
        vL8, vL128, vSCL = 88, 90, 92
        ACC, SP, WK = 96, 176, 196
        X, U = 96, 116
        AR, BB, SK = 0, 64, 144

        self.epoch_loads(True)
        self.ln_loads(True, X)
        e(f"v_lshl_add_u32 {v(vCH8)}, {sW}, 6, {v(vLANE)}")
        e(f"s_mul_i32 {sT0}, {sJ}, 160\nv_lshl_add_u32 v12, {v(vCH8)}, 1, {sT0}")
        for k, p in enumerate((P_LRE, P_LIM, P_LDT)):
            self.mk_srd(R_TMP, p, 1280)
            e(f"buffer_load_ushort {v(WK+k)}, v12, {srd(R_TMP)}, 0 offen")
        e(f"s_cmp_lt_u32 {sW}, 2")
        self.mk_srd_sel(R_1A, P_BRE, P_BIM, 819200)
        self.mk_srd_sel(R_1B, P_BIM, P_BRE, 819200)
        self.mk_srd_sel(R_2A, P_CRE, P_CIM, 819200)
        self.mk_srd_sel(R_2B, P_CIM, P_CRE, 819200)
        e(f"s_and_b32 {sT0}, {sW}, 1\ns_lshr_b32 {sT1}, {sW}, 1")
        e(f"s_mul_i32 {sM0A}, {sT1}, 10240\ns_mul_i32 {sT2}, {sT0}, 3072\ns_add_u32 {sM0A}, {sM0A}, {sT2}")
        e(f"s_xor_b32 {sT1}, {sT1}, 1\ns_mul_i32 {sM0B}, {sT1}, 10240\ns_lshl_b32 {sT2}, {sT0}, 11")
        e(f"s_add_u32 {sM0B}, {sM0B}, {sT2}\ns_add_u32 {sM0B}, {sM0B}, 6144")
        e(f"v_lshrrev_b32 v12, 3, {v(vLANE)}\nv_and_b32 v13, 7, {v(vLANE)}\nv_lshrrev_b32 v14, 1, v12")
        e("v_xor_b32 v13, v13, v14\nv_lshlrev_b32 v13, 4, v13\nv_mul_u32_u24 v12, 0x500, v12\nv_add_u32 v12, v12, v13")
        for i in range(5):
            imm = 1024 * (i if i < 3 else i - 3)
            if i < 3:
                e(f"s_mul_i32 {sT1}, {sT0}, 3\ns_add_u32 {sT1}, {sT1}, {i}")
            else:
                e(f"s_lshl_b32 {sT1}, {sT0}, 1\ns_add_u32 {sT1}, {sT1}, {3 + i}")
            e(f"s_and_b32 {sT2}, {sT1}, 1\ns_lshl_b32 {sT2}, {sT2}, 6\nv_xor_b32 v13, {sT2}, v12")
            e(f"s_mul_i32 {sT2}, {sJ}, 10\ns_add_u32 {sT2}, {sT2}, {sT1}\ns_mul_i32 {sT2}, {sT2}, 10240")
            e(f"s_sub_u32 {sT2}, {sT2}, {imm}\nv_add_u32 {v(vDB+i)}, {sT2}, v13")
            e(f"s_lshl_b32 {sT2}, {sJ}, 3\ns_add_u32 {sT2}, {sT2}, {sT1}")
            e(f"s_lshl_b32 {sT3}, {sJ}, 1\ns_add_u32 {sT3}, {sT3}, {sT1}\ns_add_u32 {sT3}, {sT3}, 56")
            e(f"s_cmp_lt_u32 {sT1}, 8\ns_cselect_b32 {sT2}, {sT2}, {sT3}\ns_mul_i32 {sT2}, {sT2}, 10240")
            e(f"s_sub_u32 {sT2}, {sT2}, {imm}\nv_add_u32 {v(vDC+i)}, {sT2}, v13")
        self.rot_init(sWO1, c["rot1_s"], 10, 128)
        self.rot_init(sWO2, c["rot2_s"], 10, 128)

        def dma(b):
            ph2 = b >= 10
            ra, rb_, vb, so = (R_2A, R_2B, vDC, sWO2) if ph2 else (R_1A, R_1B, vDB, sWO1)
            base = (b % NS) * SLOT
            out = [f"s_add_u32 m0, {sM0A}, {base}"]
            out += [f"buffer_load_dwordx4 {v(vb+i)}, {srd(ra)}, {so} offen offset:{1024*i} lds" for i in range(3)]
            out += [f"s_add_u32 m0, {sM0B}, {base}"]
            out += [f"buffer_load_dwordx4 {v(vb+3+i)}, {srd(rb_)}, {so} offen offset:{1024*i} lds" for i in range(2)]
            return out + self.adv(so, 128, 1280, 0)

        pa, pb = c["pre_a"], c["pre_b"]
        self.issue_dma(dma, range(pa))
        self.hello()
        self.stamp(1)
        self.ln_compute(True, X, U)
        self.stamp(2)
        self.issue_dma(dma, range(pa, pa + pb))

        skip = e.newlabel("noconst")
        e(f"s_cmp_gt_u32 {sW}, 1\ns_cbranch_scc1 {skip}")
        s0 = e.begin_region()
        e(f"v_cmp_gt_u32 vcc, 80, {v(vCH8)}\ns_and_saveexec_b64 {sEX}, vcc")
        lre, lim, ldt = WK, WK + 1, WK + 2
        t = WK + 4
        for r in (lre, lim, ldt):
            e(f"v_lshlrev_b32 {v(r)}, 16, {v(r)}")
        log2e = "0x3fb8aa3b"
        e(f"v_mul_f32 {v(ldt)}, {log2e}, {v(ldt)}\nv_exp_f32 {v(ldt)}, {v(ldt)}")
        self.round_bf16(ldt)
        e(f"v_mul_f32 {v(t)}, {v(ldt)}, {v(lre)}\nv_mul_f32 {v(t+1)}, {v(ldt)}, {v(lim)}")
        e(f"v_mul_f32 {v(t)}, {log2e}, {v(t)}\nv_exp_f32 {v(t)}, {v(t)}")
        e(f"v_mul_f32 {v(t+1)}, 0.15915494, {v(t+1)}\nv_rndne_f32 {v(t+2)}, {v(t+1)}")
        e(f"v_sub_f32 {v(t+1)}, {v(t+1)}, {v(t+2)}")
        e(f"v_cos_f32 {v(t+2)}, {v(t+1)}\nv_sin_f32 {v(t+3)}, {v(t+1)}")
        L1 = WK + 8
        e(f"v_mul_f32 {v(L1)}, {v(t)}, {v(t+2)}\nv_mul_f32 {v(L1+1)}, {v(t)}, {v(t+3)}")
        e(f"v_mul_f32 {v(t)}, {v(lre)}, {v(lre)}\nv_fma_f32 {v(t)}, {v(lim)}, {v(lim)}, {v(t)}")
        e(f"v_rcp_f32 {v(t)}, {v(t)}\nv_add_f32 {v(t+1)}, -1.0, {v(L1)}\nv_add_f32 {v(t)}, {v(t)}, {v(t)}")
        e(f"v_mul_f32 {v(t+2)}, {v(t+1)}, {v(lre)}\nv_fma_f32 {v(t+2)}, {v(L1+1)}, {v(lim)}, {v(t+2)}")
        e(f"v_mul_f32 {v(t+3)}, {v(L1+1)}, {v(lre)}\nv_fma_f32 {v(t+3)}, -{v(t+1)}, {v(lim)}, {v(t+3)}")
        e(f"v_mul_f32 {v(vSCL)}, {v(t+2)}, {v(t)}\nv_mul_f32 {v(vSCL+1)}, {v(t+3)}, {v(t)}")
        L2, L4 = WK + 10, WK + 12
        self.cmul(L2, L1, L1)
        self.cmul(L4, L2, L2)
        self.cmul(vL8, L4, L4)
        e(f"v_lshlrev_b32 {v(vCH8)}, 3, {v(vCH8)}\nv_add_u32 {v(vCH8)}, {SCR}, {v(vCH8)}")
        e(f"ds_write_b64 {v(vCH8)}, {v(L1,2)} offset:10240")
        e(f"ds_write_b64 {v(vCH8)}, {v(L4,2)} offset:10880")
        e(f"ds_write_b64 {v(vCH8)}, {v(vSCL,2)} offset:11520")
        e(f"ds_write_b64 {v(vCH8)}, {v(vSCL,2)}")
        prev = vSCL
        for s in range(1, 16):
            d = WK + 14 + 2 * (s & 1)
            self.cmul(d, vL8, prev)
            e(f"ds_write_b64 {v(vCH8)}, {v(d,2)} offset:{640*s}")
            prev = d
        self.cmul(L1, vL8, vL8)
        self.cmul(L2, L1, L1)
        self.cmul(L1, L2, L2)
        self.cmul(vL128, L1, L1)
        e(f"s_mov_b64 exec, {sEX}")
        e.wait_lg()
        e.end_region(s0, skip)
        e(f"v_and_b32 v12, 15, {v(vLANE)}\nv_lshrrev_b32 v13, 4, {v(vLANE)}\nv_lshrrev_b32 v14, 1, v12")
        e("v_xor_b32 v15, v13, v14\nv_lshlrev_b32 v15, 4, v15\nv_lshl_add_u32 v15, v12, 7, v15")
        for k in range(3):
            e(f"v_add_u32 {v(vRB+2*k)}, {61440*k}, v15\nv_xor_b32 {v(vRB+2*k+1)}, 64, {v(vRB+2*k)}")
        e("v_and_b32 v15, 1, v13\nv_xor_b32 v15, v15, v14\nv_lshlrev_b32 v15, 4, v15\nv_lshl_add_u32 v15, v12, 7, v15")
        e("v_lshrrev_b32 v14, 1, v13\nv_mul_u32_u24 v14, 0x2800, v14\nv_add_u32 v15, v15, v14")
        for k in range(3):
            e(f"v_add_u32 {v(vRC+4*k)}, {61440*k}, v15")
            for st in range(1, 4):
                e(f"v_xor_b32 {v(vRC+4*k+st)}, {32*st}, {v(vRC+4*k)}")
        e(f"v_lshlrev_b32 {v(vTC)}, 3, v12\nv_add_u32 {v(vTC)}, {SCR}, {v(vTC)}")
        e(f"v_lshl_add_u32 v14, {sW}, 2, v13\nv_mul_u32_u24 v14, 0x280, v14\nv_add_u32 {v(vTW)}, v14, {v(vTC)}")
        e(f"v_add_u32 {v(vA1)}, 20480, {v(vL16B)}")
        e(f"s_mul_i32 {sABEG}, {sRB}, 163840\ns_mul_i32 {sT0}, {sW}, 40960\ns_add_u32 {sABEG}, {sABEG}, {sT0}")
        e(f"s_add_u32 {sABEG}, {sABEG}, {XNS}\ns_add_u32 {sAEND}, {sABEG}, 20480")
        self.rot_init(sA, c["rot1_s"], 10, 2048)
        e(f"s_add_u32 {sA}, {sA}, {sABEG}")
        e.wait_tok(("dma", 0))
        e("s_barrier")
        visible = {0}
        for g in range(5):
            e(f"ds_read_b64 {v(vL+2*g,2)}, {v(vTC)} offset:{10240 + 128*g}")
            e(f"ds_read_b64 {v(vL4+2*g,2)}, {v(vTC)} offset:{10880 + 128*g}")
            e(f"ds_read_b64 {v(vSC+2*g,2)}, {v(vTC)} offset:{11520 + 128*g}")
            e(f"ds_read_b64 {v(vWP+2*g,2)}, {v(vTW)} offset:{128*g}")
        self.stamp(3)
        self.poll(2, TAG_XN, 8, 12, 13)
        self.stamp(4)

        acc = lambda g, cp, m: ACC + ((g * 2 + cp) * 2 + m) * 4

        def aload1(gs):
            st = gs & 1
            r = AR + (gs % 8) * 8
            out = [f"buffer_load_dwordx4 {a(r,4)}, {v(vL16B)}, {srd(R_WS)}, {sA} offen offset:{1024*st} sc1",
                   f"buffer_load_dwordx4 {a(r+4,4)}, {v(vA1)}, {srd(R_WS)}, {sA} offen offset:{1024*st} sc1"]
            return out + (self.adv(sA, 2048, sAEND, sABEG) if st else [])

        def bread1(n, st):
            slot = n % NS
            base, off = vRB + 2 * (slot // 3) + st, (slot % 3) * SLOT
            return [f"ds_read_b128 {a(BB + 40*st + 4*(2*g+cp),4)}, {v(base)} offset:{off + cp*10240 + g*2048}"
                    for g in range(5) for cp in range(2)]

        def mfma1(n, st):
            gs = 2 * n + st
            return [f"v_mfma_f32_16x16x32_bf16 {v(acc(g,cp,m),4)}, {a(AR + (gs%8)*8 + 4*m,4)}, "
                    f"{a(BB + 40*st + 4*(2*g+cp),4)}, {v(acc(g,cp,m),4) if gs else 0}"
                    for g in range(5) for cp in range(2) for m in range(2)]

        rest = list(range(pa + pb, NS))
        for gs in range(8):
            for ins in aload1(gs):
                e(ins)
            if gs % 2 == 1 and gs >= 3 and rest:
                self.issue_dma(dma, [rest.pop(0)])
        self.issue_dma(dma, rest)
        plan = {n: [n - 1 + NS] for n in range(1, 10)}
        self.gemm(10, 2, 0, mfma1, bread1, aload1, 8, dma, plan, visible)
        self.stamp(5)

        pair = lambda g, cp, jj: acc(g, cp, jj >> 1) + 2 * (jj & 1)
        LR = "op_sel:[0,0,0] op_sel_hi:[0,1,1]"
        LI = "op_sel:[1,0,0] op_sel_hi:[1,1,1]"
        NEG = "neg_lo:[1,0,0] neg_hi:[1,0,0]"
        for g in range(5):
            Lg = v(vL + 2 * g, 2)
            sre, sim = pair(g, 0, 0), pair(g, 1, 0)
            for jj in range(1, 4):
                dre, dim = (WK, WK + 2) if jj == 2 else (SP + 4 * g, SP + 4 * g + 2)
                e(f"v_pk_fma_f32 {v(dre,2)}, {Lg}, {v(sre,2)}, {v(pair(g,0,jj),2)} {LR}")
                e(f"v_pk_fma_f32 {v(dim,2)}, {Lg}, {v(sim,2)}, {v(pair(g,1,jj),2)} {LR}")
                e(f"v_pk_fma_f32 {v(dre,2)}, {Lg}, {v(sim,2)}, {v(dre,2)} {LI} {NEG}")
                e(f"v_pk_fma_f32 {v(dim,2)}, {Lg}, {v(sre,2)}, {v(dim,2)} {LI}")
                sre, sim = dre, dim
            l4r, l4i, d = vL4 + 2 * g, vL4 + 2 * g + 1, WK + 4 + 2 * (g & 1)
            e(f"v_fma_f32 {v(d)}, {v(l4r)}, {v(sre)}, {v(sre+1)}")
            e(f"v_fma_f32 {v(d+1)}, {v(l4r)}, {v(sim)}, {v(sim+1)}")
            e(f"v_fma_f32 {v(d)}, -{v(l4i)}, {v(sim)}, {v(d)}")
            e(f"v_fma_f32 {v(d+1)}, {v(l4i)}, {v(sre)}, {v(d+1)}")
            e(f"ds_write_b64 {v(vTW)}, {v(d,2)} offset:{128*g}")
        e.wait_lg()
        e("s_barrier")
        self.stamp(6)

        skip = e.newlabel("nocomb")
        e(f"s_cmp_gt_u32 {sW}, 1\ns_cbranch_scc1 {skip}")
        s0 = e.begin_region()
        e(f"s_cmp_eq_u32 {sW}, 0\ns_cselect_b32 s88, -1, 0xffff\ns_cselect_b32 s89, -1, 0\ns_mov_b64 exec, {sEX}")
        SL = WK
        for s in range(16):
            e(f"ds_read_b64 {v(SL+2*s,2)}, {v(vCH8)} offset:{640*s}")
        for s in range(1, 16):
            e(f"v_pk_fma_f32 {v(SL+2*s,2)}, {v(vL8,2)}, {v(SL+2*s-2,2)}, {v(SL+2*s,2)} {LR}")
            e(f"v_pk_fma_f32 {v(SL+2*s,2)}, {v(vL8,2)}, {v(SL+2*s-2,2)}, {v(SL+2*s,2)} "
              "op_sel:[1,1,0] op_sel_hi:[1,0,1] neg_lo:[1,0,0]")
        MSG = SL + 30
        e(f"v_subrev_u32 v12, {SCR}, {v(vCH8)}\nv_lshlrev_b32 v12, 1, v12")
        e(f"s_add_u32 {sT0}, {sRB}, 17\ns_lshl_b32 {sT1}, {sRB}, 3\ns_add_u32 {sT1}, {sT1}, {sJ}")
        e(f"s_mul_i32 {sT1}, {sT1}, 20480\ns_add_u32 {sT1}, {sT1}, {CARRY + 8*20480}")
        lp, lend = e.newlabel("send"), e.newlabel("sent")
        e(f"s_cmp_ge_u32 {sT0}, 32\ns_cbranch_scc1 {lend}")
        s1 = e.begin_region()
        e.label(lp)
        e(f"v_readlane_b32 {sT2}, {v(vE)}, {sT0}")
        e(f"s_add_u32 {sT2}, {sT2}, {TAG_CARRY}")
        e(f"v_mov_b32 {v(MSG+2)}, {sT2}\nv_mov_b32 {v(MSG+3)}, {sT2}")
        e(f"buffer_store_dwordx4 {v(MSG,4)}, v12, {srd(R_WS)}, {sT1} offen sc1")
        e(f"s_add_u32 {sT1}, {sT1}, {8*20480 + 1280}\ns_add_u32 {sT0}, {sT0}, 1")
        e(f"s_cmp_lt_u32 {sT0}, 32\ns_cbranch_scc1 {lp}")
        e.end_region(s1, lend)
        e(f"v_mov_b32 v14, 0\nv_mov_b32 v15, 0\nds_write_b64 {v(vCH8)}, v[14:15]")
        for s in range(1, 16):
            d = WK + 36 + 2 * (s & 1)
            self.cmul(d, vSCL, SL + 2 * s - 2)
            e(f"ds_write_b64 {v(vCH8)}, {v(d,2)} offset:{640*s}")
        e("s_mov_b64 exec, -1")
        e.end_region(s0, skip)
        self.issue_dma(dma, [9 + NS])
        self.stamp(7)

        e(f"s_mul_i32 {sT0}, {sRB}, 163840\ns_mul_i32 {sT1}, {sW}, 40960\ns_add_u32 {sT0}, {sT0}, {sT1}")
        e(f"s_add_u32 {sT0}, {sT0}, {XNS}\ns_lshl_b32 {sT1}, {sJ}, 11\ns_add_u32 {sT1}, {sT1}, {sT0}")
        e(f"s_lshl_b32 {sT2}, {sJ}, 9\ns_add_u32 {sT2}, {sT2}, {sT0}\ns_add_u32 {sT2}, {sT2}, 16384")
        e("s_mov_b32 exec_hi, 0")
        for T in range(5):
            for m in range(2):
                so, imm = (sT1, 512 * T) if T < 4 else (sT2, 0)
                e(f"buffer_load_dwordx4 {a(SK + 8*T + 4*m,4)}, {v(vA1 if m else vL16B)}, {srd(R_WS)}, {so} offen offset:{imm} sc1")
        e("s_mov_b64 exec, -1")
        held = e.vm[-10:]
        dsts = [o["dst"] for o in held]
        for o in held:
            o["dst"] = set()
        e(f"v_and_b32 v12, 15, {v(vLANE)}\nv_lshrrev_b32 v13, 2, v12\nv_lshlrev_b32 v13, 3, v13")
        e("v_and_b32 v14, 1, v12\nv_lshl_add_u32 v13, v14, 2, v13\nv_bfe_u32 v14, v12, 1, 1\nv_add_u32 v13, v13, v14")
        e(f"v_mul_u32_u24 v13, 0x500, v13\nv_bfe_u32 v14, {v(vLANE)}, 4, 1\nv_lshl_add_u32 v13, v14, 4, v13")
        e("v_add_u32 v14, 2560, v13")
        e(f"s_lshl_b32 {sT0}, {sRB}, 2\ns_add_u32 {sT0}, {sT0}, {sW}\ns_mul_i32 {sT0}, {sT0}, 40960")
        e(f"s_lshl_b32 {sT1}, {sJ}, 7\ns_add_u32 {sT1}, {sT1}, {sT0}")
        e(f"s_lshl_b32 {sT2}, {sJ}, 5\ns_add_u32 {sT2}, {sT2}, {sT0}\ns_add_u32 {sT2}, {sT2}, 1024")
        e("s_mov_b32 exec_lo, 0")
        for T in range(5):
            for m in range(2):
                so, imm = (sT1, 32 * T) if T < 4 else (sT2, 0)
                e(f"buffer_load_dwordx4 {a(SK + 8*T + 4*m,4)}, v{13+m}, {srd(R_X)}, {so} offen offset:{imm}")
        e("s_mov_b64 exec, -1")
        for o, d in zip(held, dsts):
            o["dst"] = d
        self.mk_srd(R_TMP, P_DSK, 1280)
        e(f"v_lshlrev_b32 v12, 1, v12\ns_lshl_b32 {sT1}, {sJ}, 7\ns_lshl_b32 {sT2}, {sJ}, 5\ns_add_u32 {sT2}, {sT2}, 1024")
        vDS = 250
        for T in range(5):
            so, imm = (sT1, 32 * T) if T < 4 else (sT2, 0)
            e(f"buffer_load_ushort {v(vDS+T)}, v12, {srd(R_TMP)}, {so} offen offset:{imm}")

        def scale_pairs(g, re, im):
            Sg = v(vSC + 2 * g, 2)
            e(f"v_pk_mul_f32 v[14:15], {Sg}, {v(im,2)} op_sel:[1,0] op_sel_hi:[1,1] neg_lo:[1,0] neg_hi:[1,0]")
            e(f"v_pk_mul_f32 {v(im,2)}, {Sg}, {v(im,2)} op_sel:[0,0] op_sel_hi:[0,1]")
            e(f"v_pk_fma_f32 {v(im,2)}, {Sg}, {v(re,2)}, {v(im,2)} {LI}")
            e(f"v_pk_fma_f32 {v(re,2)}, {Sg}, {v(re,2)}, v[14:15] {LR}")
        for g in range(5):
            scale_pairs(g, SP + 4 * g, SP + 4 * g + 2)
            for jj in range(4):
                scale_pairs(g, pair(g, 0, jj), pair(g, 1, jj))
        e(f"v_and_b32 v12, 15, {v(vLANE)}\nv_lshrrev_b32 v13, 4, {v(vLANE)}")
        e("v_lshrrev_b32 v14, 3, v12\nv_lshlrev_b32 v14, 2, v14\nv_xor_b32 v14, v14, v12\nv_lshlrev_b32 v14, 5, v14")
        e("v_lshrrev_b32 v15, 2, v12\nv_xor_b32 v15, v15, v13\nv_lshl_add_u32 v14, v15, 3, v14")
        e(f"s_lshl_b32 {sT0}, {sW}, 11\ns_add_u32 {sT0}, {sT0}, {SCR + 12288}\nv_add_u32 {v(vTRW)}, {sT0}, v14")
        for j2 in range(2):
            e(f"v_and_b32 v14, 1, v13\nv_xor_b32 v14, {j2}, v14\nv_lshlrev_b32 v14, 2, v14")
            e(f"v_lshl_add_u32 v14, v13, 3, v14\nv_bfe_u32 v15, {v(vLANE)}, 2, 2\nv_add_u32 v14, v14, v15")
            e(f"v_lshlrev_b32 v14, 5, v14\nv_lshlrev_b32 v15, 1, v13\nv_add_u32 v15, {j2}, v15")
            e(f"v_xor_b32 v15, v15, {v(vLANE)}\nv_and_b32 v15, 3, v15\nv_lshl_add_u32 v14, v15, 3, v14")
            e(f"v_add_u32 {v(vTRR+j2)}, {sT0}, v14")
        self.stamp(8)

        skip = e.newlabel("nocarry")
        e(f"s_cmp_gt_u32 {sW}, 1\ns_cbranch_scc1 {skip}")
        s0 = e.begin_region()
        e(f"s_lshr_b32 {sT0}, {sOWN}, 10\ns_mul_i32 {sT0}, {sT0}, 20480\ns_add_u32 {sT0}, {sT0}, {CARRY}")
        e(f"s_add_u32 s{R_TMP}, s{P_WS}, {sT0}\ns_addc_u32 s{R_TMP+1}, s{P_WS+1}, 0")
        e(f"s_mul_i32 s{R_TMP+2}, {sRB}, 1280\ns_mov_b32 s{R_TMP+3}, 0x20000")
        e(f"s_add_u32 {sT1}, {sE}, {TAG_CARRY}\ns_mul_i32 {sT1}, {sT1}, {sRB}")
        e(f"s_mov_b64 exec, {sEX}")
        MG = 196
        vMA = [10, 11, 12, 13, 14]
        e(f"v_subrev_u32 v10, {SCR}, {v(vCH8)}\nv_lshlrev_b32 v10, 1, v10")
        for k in range(1, 5):
            e(f"v_add_u32 v{10+k}, {3840*k}, v10")
        lp, out = e.newlabel("cpoll"), e.newlabel("cpolled")
        e.label(lp)
        mreg = lambda dl: MG + 4 * dl if dl < 13 else (vDB, vRB)[dl - 13]
        for dl in range(15):
            e(f"buffer_load_dwordx3 {v(mreg(dl),3)}, v{vMA[dl//3]}, {srd(R_TMP)}, 0 offen offset:{1280*(dl%3)} sc1")
        e(f"s_cmp_eq_u32 {sSPIN}, 0")
        e.wait_all(lg=False)
        e(f"s_cbranch_scc1 {out}\ns_sub_u32 {sSPIN}, {sSPIN}, 1")
        e(f"v_add3_u32 v15, {v(mreg(0)+2)}, {v(mreg(1)+2)}, {v(mreg(2)+2)}")
        for k in range(3, 15, 2):
            e(f"v_add3_u32 v15, v15, {v(mreg(k)+2)}, {v(mreg(k+1)+2)}")
        e(f"v_cmp_eq_u32 vcc, {sT1}, v15")
        e(f"s_cmp_eq_u64 vcc, exec\ns_cbranch_scc0 {lp}")
        e.label(out)
        for dl in range(13, -1, -1):
            x, y = mreg(dl), mreg(dl + 1)
            e(f"v_pk_fma_f32 {v(x,2)}, {v(vL128,2)}, {v(y,2)}, {v(x,2)} {LR}")
            e(f"v_pk_fma_f32 {v(x,2)}, {v(vL128,2)}, {v(y,2)}, {v(x,2)} op_sel:[1,1,0] op_sel_hi:[1,0,1] neg_lo:[1,0,0]")
        e(f"ds_write_b64 {v(vCH8)}, {v(mreg(0),2)} offset:10240")
        e("s_mov_b64 exec, -1")
        e.end_region(s0, skip)
        e.wait_all(vm=False)
        e("s_barrier")
        self.stamp(9)

        PG = WK
        for g in range(5):
            e(f"ds_read_b64 {v(PG+4*g,2)}, {v(vTW)} offset:{128*g}")
            e(f"ds_read_b64 {v(PG+4*g+2,2)}, {v(vTC)} offset:{10240 + 128*g}")
        e(f"s_mul_i32 {sABEG}, {sRB}, 327680\ns_mul_i32 {sT0}, {sW}, 81920\ns_add_u32 {sABEG}, {sABEG}, {sT0}")
        e(f"s_add_u32 {sABEG}, {sABEG}, {HS}\ns_add_u32 {sAEND}, {sABEG}, 40960")
        e(f"s_mul_i32 {sT2}, {sJ}, 5120\ns_add_u32 {sT2}, {sT2}, {sABEG}")
        e(f"v_add_u32 {v(vA1)}, 40960, {v(vL16B)}")
        HF = WK + 20
        CV = 12

        def pass2(fl):
            for g in range(5):
                p, gg, w_ = PG + 4 * g, PG + 4 * g + 2, vWP + 2 * g
                hre, him = SP + 4 * g, SP + 4 * g + 2
                l4r, l4i = vL4 + 2 * g, vL4 + 2 * g + 1
                e(f"v_fma_f32 {v(p)}, {v(w_)}, {v(gg)}, {v(p)}\nv_fma_f32 {v(p+1)}, {v(w_)}, {v(gg+1)}, {v(p+1)}")
                e(f"v_fma_f32 {v(p)}, -{v(w_+1)}, {v(gg+1)}, {v(p)}\nv_fma_f32 {v(p+1)}, {v(w_+1)}, {v(gg)}, {v(p+1)}")
                e(f"v_fma_f32 {v(hre+1)}, {v(l4r)}, {v(p)}, {v(hre)}\nv_fma_f32 {v(him+1)}, {v(l4r)}, {v(p+1)}, {v(him)}")
                e(f"v_fma_f32 {v(hre+1)}, -{v(l4i)}, {v(p+1)}, {v(hre+1)}\nv_fma_f32 {v(him+1)}, {v(l4i)}, {v(p)}, {v(him+1)}")
                e(f"v_mov_b32 {v(hre)}, {v(p)}\nv_mov_b32 {v(him)}, {v(p+1)}")
                Lg = v(vL + 2 * g, 2)
                for jj in range(4):
                    ur, ui = pair(g, 0, jj), pair(g, 1, jj)
                    e(f"v_pk_fma_f32 {v(ur,2)}, {Lg}, {v(hre,2)}, {v(ur,2)} {LR}")
                    e(f"v_pk_fma_f32 {v(ui,2)}, {Lg}, {v(him,2)}, {v(ui,2)} {LR}")
                    e(f"v_pk_fma_f32 {v(ur,2)}, {Lg}, {v(him,2)}, {v(ur,2)} {LI} {NEG}")
                    e(f"v_pk_fma_f32 {v(ui,2)}, {Lg}, {v(hre,2)}, {v(ui,2)} {LI}")
                    hre, him = ur, ui
                for m in range(2):
                    for cp in range(2):
                        r, sg, d = acc(g, cp, m), "-" if cp else "", CV + 2 * cp
                        e(f"v_cvt_pk_bf16_f32 {v(d)}, {sg}{v(r)}, {sg}{v(r+1)}")
                        e(f"v_cvt_pk_bf16_f32 {v(d+1)}, {sg}{v(r+2)}, {sg}{v(r+3)}")
                        e(f"ds_write_b64 {v(vTRW)}, {v(d,2)} offset:{1024*m + 512*cp}")
                hf = HF + 8 * (g & 1)
                for m in range(2):
                    for j2 in range(2):
                        e(f"ds_read_b64_tr_b16 {v(hf + 4*m + 2*j2,2)}, {v(vTRR+j2)} offset:{1024*m}")
                if g:
                    store_h(g - 1, fl)
            store_h(4, fl)

        def store_h(g, fl):
            hf = HF + 8 * (g & 1)
            if g == 4:
                e(f"s_add_u32 {sT2}, {sT2}, 4096")
            for m in range(2):
                e(f"buffer_store_dwordx4 {v(hf+4*m,4)}, {v(vA1 if m else vL16B)}, {srd(R_WS)}, {sT2} offen offset:{1024*(g&3)} {fl}")
        e.wait_lg()
        self.two_flavours(pass2)
        self.stamp(10)
        e.wait_all()
        e("s_barrier")
        self.send_flags(3, TAG_HID, "0xff", sJ, None)
        visible |= set(range(10, 10 + NS))

        acc2 = lambda T, m: ACC + (T * 2 + m) * 4
        e(f"v_and_b32 v12, 15, {v(vLANE)}\nv_lshrrev_b32 v13, 1, v12\nv_bfe_u32 v14, {v(vLANE)}, 4, 1")
        e("v_lshlrev_b32 v14, 2, v14\nv_sub_u32 v13, v13, v14\nv_and_b32 v12, 1, v12\nv_lshlrev_b32 v12, 4, v12")
        for k in range(4):
            e(f"v_cmp_eq_u32 {sMSK[k]}, {k}, v13")
        e(f"v_cmp_gt_u32 vcc, 32, {v(vLANE)}\nv_mov_b32 v15, 0x3f80")
        SEL = WK
        for T in range(5):
            e(f"v_cndmask_b32 v14, v15, {v(vDS+T)}, vcc\nv_lshlrev_b32 v14, v12, v14")
            for k in range(4):
                e(f"v_cndmask_b32 {v(SEL+4*T+k)}, 0, v14, {sMSK[k]}")
        for T in range(5):
            for m in range(2):
                e(f"v_mfma_f32_16x16x32_bf16 {v(acc2(T,m),4)}, {a(SK + 8*T + 4*m,4)}, {v(SEL+4*T,4)}, 0")
        self.rot_init(sA, c["rot2_s"], 10, 4096)
        e(f"s_add_u32 {sA}, {sA}, {sABEG}")
        self.poll(3, TAG_HID, 8, 12, 13)
        self.stamp(11)

        def aload2(gs):
            st = gs & 3
            r = AR + (gs % 8) * 8
            out = [f"buffer_load_dwordx4 {a(r,4)}, {v(vL16B)}, {srd(R_WS)}, {sA} offen offset:{1024*st} sc1",
                   f"buffer_load_dwordx4 {a(r+4,4)}, {v(vA1)}, {srd(R_WS)}, {sA} offen offset:{1024*st} sc1"]
            return out + (self.adv(sA, 4096, sAEND, sABEG) if st == 3 else [])

        def bread2(n, st):
            slot = (10 + n) % NS
            base, off = vRC + 4 * (slot // 3) + st, (slot % 3) * SLOT
            return [f"ds_read_b128 {a(BB + 20*(st&1) + 4*T,4)}, {v(base)} offset:{off + T*2048}" for T in range(5)]

        def mfma2(n, st):
            gs = 4 * n + st
            return [f"v_mfma_f32_16x16x32_bf16 {v(acc2(T,m),4)}, {a(AR + (gs%8)*8 + 4*m,4)}, "
                    f"{a(BB + 20*(st&1) + 4*T,4)}, {v(acc2(T,m),4)}" for T in range(5) for m in range(2)]

        for gs in range(8):
            for ins in aload2(gs):
                e(ins)
        plan = {n: [10 + n - 1 + NS] for n in range(1, 10) if 10 + n - 1 + NS < 20}
        self.gemm(10, 4, 10, mfma2, bread2, aload2, 8, dma, plan, visible)
        self.stamp(12)

        self.mk_srd(R_OUT, P_OUT, 2048 * 2560)
        e(f"v_lshrrev_b32 v10, 4, {v(vLANE)}\nv_mul_u32_u24 v10, 0x5000, v10\nv_and_b32 v11, 15, {v(vLANE)}")
        e(f"v_lshl_add_u32 v10, v11, 2, v10\ns_mul_i32 {sT0}, {sJ}, 192\ns_sub_u32 {sT0}, 2048, {sT0}")
        e(f"v_add_u32 v11, {sT0}, v10")
        self.poll(4, TAG_PART, 4, 12, 13)
        self.stamp(13)
        e(f"s_lshl_b32 {sT2}, {sOWN}, 5\ns_lshl_b32 {sT0}, {sW}, 13\ns_add_u32 {sT2}, {sT2}, {sT0}")
        e(f"s_add_u32 {sT2}, {sT2}, {PART}\ns_add_u32 {sT3}, {sT2}, 4096")
        PL = 176
        for k in range(8):
            e(f"buffer_load_dwordx4 {v(PL+4*k,4)}, {v(vL16B)}, {srd(R_WS)}, {sT3 if k >= 4 else sT2} offen offset:{1024*(k&3)} sc1")
        self.epoch_bump()
        e(f"s_lshl_b32 {sT0}, {sRB}, 2\ns_add_u32 {sT0}, {sT0}, {sW}\ns_mul_i32 {sT0}, {sT0}, 81920")
        e(f"s_lshl_b32 {sT1}, {sJ}, 8\ns_add_u32 {sT0}, {sT0}, {sT1}")
        rows = [f"s{90+k}" for k in range(8)]
        for m in range(2):
            for r in range(4):
                e(f"s_add_u32 {rows[4*m+r]}, {sT0}, {(4*(r&1) + 2*m + (r>>1)) * 2560}")
        for k in range(8):
            T = min(k, 4)
            for i in range(4):
                d = acc2(T, i >> 1) + 2 * (i & 1)
                t0 = 12 + 2 * (i & 1)
                e(f"v_lshlrev_b32 {v(t0)}, 16, {v(PL+4*k+i)}\nv_and_b32 {v(t0+1)}, 0xffff0000, {v(PL+4*k+i)}")
                e(f"v_pk_add_f32 {v(d,2)}, {v(d,2)}, {v(t0,2)}")
            if k < 4 or k == 7:
                for m in range(2):
                    for r in range(4):
                        e(f"buffer_store_dword {v(acc2(T,m)+r)}, {'v10' if T < 4 else 'v11'}, {srd(R_OUT)}, "
                          f"{rows[4*m+r]} offen offset:{64*T if T < 4 else 0}")
        self.stamp(14)
        self.finish()

    def epoch_bump(self):
        e = self.e
        skip = e.newlabel("nobump")
        e(f"s_cmp_lg_u32 {sW}, 0\ns_cbranch_scc1 {skip}")
        s0 = e.begin_region()
        e(f"s_add_u32 {sT0}, {sE}, 0x100\nv_mov_b32 v12, {sT0}\nv_mov_b32 v13, 0\ns_mov_b64 exec, 1")
        e(f"buffer_store_dword v12, v13, {srd(R_WS)}, {sOWN} offen sc1")
        e("s_mov_b64 exec, -1")
        e.end_region(s0, skip)

    def finish(self):
        e = self.e
        if self.c["diag"]:
            e.wait_all()
            self.stamp(15)
            self.flush_stamp()
            e(f"s_lshr_b32 {sT0}, {sOWN}, 10\ns_lshl_b32 {sT0}, {sT0}, 2\ns_add_u32 {sT0}, {sT0}, {sW}")
            e(f"s_lshl_b32 {sT0}, {sT0}, 6\ns_add_u32 {sT0}, {sT0}, {STAMP}")
            e(f"v_lshlrev_b32 v12, 2, {v(vLANE)}\ns_mov_b64 exec, 0xffff")
            e(f"buffer_store_dword {v(vSTAMP)}, v12, {srd(R_WS)}, {sT0} offen")
        e("s_endpgm")

    def mlp(self):
        e, c = self.e, self.c
        NS, SLOT = 6, 24576
        vD1, vD2 = 16, 19
        vR1, vR2, vA2 = 24, 30, 36
        ACC, WK = 96, 192
        X, U = 96, 116
        AR, BB = 0, 64

        self.epoch_loads(False)
        self.ln_loads(False, X)
        self.mk_srd(R_1A, P_W1, 640 * 3072)
        self.mk_srd(R_2A, P_W2, 1536 * 1280)
        e(f"s_mul_i32 {sM0A}, {sW}, 6144\ns_lshl_b32 {sM0B}, {sW}, 12")
        e(f"s_mul_i32 {sT0}, {sW}, 49152\ns_mul_i32 {sT1}, {sJ}, 384\ns_add_u32 {sT0}, {sT0}, {sT1}")
        e(f"s_mov_b32 {sT2}, 0xaaaaaab")
        for i in range(3):
            e(f"v_add_u32 v12, {64*i}, {v(vLANE)}\nv_mul_hi_u32 v13, v12, {sT2}")
            e("v_mul_u32_u24 v14, 24, v13\nv_sub_u32 v12, v12, v14\nv_bfe_u32 v14, v13, 1, 1")
            e("v_lshlrev_b32 v14, 2, v14\nv_xor_b32 v12, v12, v14\nv_lshlrev_b32 v12, 4, v12")
            e("v_mul_u32_u24 v13, 0xc00, v13\nv_add_u32 v12, v12, v13")
            e(f"s_sub_u32 {sT1}, {sT0}, {1024*i}\nv_add_u32 {v(vD1+i)}, {sT1}, v12")
        e(f"v_lshrrev_b32 v12, 3, {v(vLANE)}\nv_and_b32 v13, 7, {v(vLANE)}\nv_bfe_u32 v14, v12, 1, 1")
        e("v_lshlrev_b32 v14, 2, v14\nv_xor_b32 v13, v13, v14\nv_lshlrev_b32 v13, 4, v13")
        e("v_mul_u32_u24 v12, 0x500, v12\nv_add_u32 v12, v12, v13")
        e(f"s_add_u32 {sT0}, {sJ}, {sW}\ns_and_b32 {sT0}, {sT0}, 3\ns_mul_i32 {sT0}, {sT0}, 40960")
        e(f"s_lshl_b32 {sT1}, {sJ}, 7\ns_add_u32 {sT0}, {sT0}, {sT1}")
        for i in range(4):
            e(f"s_add_u32 {sT1}, {sT0}, {9216*i}\nv_add_u32 {v(vD2+i)}, {sT1}, v12")
        e(f"s_and_b32 {sT0}, {sJ}, 3\ns_lshl_b32 {sT0}, {sT0}, 2\ns_add_u32 {sT0}, {sT0}, {sW}")
        e(f"s_mul_i32 {sT0}, {sT0}, 10240\ns_lshr_b32 {sT1}, {sJ}, 2\ns_lshl_b32 {sT1}, {sT1}, 7")
        e(f"s_add_u32 {sT0}, {sT0}, {sT1}\ns_add_u32 {sT0}, {sT0}, 1024\nv_add_u32 {v(vD2+4)}, {sT0}, v12")
        sM0C = "s15"
        e(f"s_lshl_b32 {sM0C}, {sW}, 10\ns_add_u32 {sM0C}, {sM0C}, 16384")
        self.rot_init(sWO1, c["rot1_m"], 10, 196608)
        self.rot_init(sWO2, c["rot2_m"], 12, 163840)

        def dma(b):
            base = (b % NS) * SLOT
            if b < 10:
                out = [f"s_add_u32 m0, {sM0A}, {base}", f"s_add_u32 {sWO1B}, {sWO1}, 24576"]
                out += [f"buffer_load_dwordx4 {v(vD1+i)}, {srd(R_1A)}, {sWO1} offen offset:{1024*i} lds" for i in range(3)]
                out += [f"s_add_u32 m0, {sM0A}, {base + 3072}"]
                out += self.adv(sWO1, 196608, 1966080, 0)
                out += [f"buffer_load_dwordx4 {v(vD1+i)}, {srd(R_1A)}, {sWO1B} offen offset:{1024*i} lds" for i in range(3)]
                return out
            out = [f"s_add_u32 m0, {sM0B}, {base}"]
            out += [f"buffer_load_dwordx4 {v(vD2+i)}, {srd(R_2A)}, {sWO2} offen offset:{1024*i} lds" for i in range(4)]
            out += [f"s_add_u32 m0, {sM0C}, {base}"]
            out += [f"buffer_load_dwordx4 {v(vD2+4)}, {srd(R_2A)}, {sWO2} offen lds"]
            return out + self.adv(sWO2, 163840, 1966080, 0)

        pa, pb = c["pre_a"], c["pre_b"]
        self.issue_dma(dma, range(pa))
        self.hello()
        self.stamp(1)
        self.ln_compute(False, X, U)
        self.stamp(2)
        self.issue_dma(dma, range(pa, pa + pb))
        e(f"v_bfe_u32 v12, {v(vLANE)}, 2, 2\nv_lshrrev_b32 v13, 5, {v(vLANE)}")
        e(f"v_bfe_u32 v14, {v(vLANE)}, 4, 1\nv_lshlrev_b32 v14, 5, v14\nv_and_b32 v15, 3, {v(vLANE)}")
        e("v_lshl_add_u32 v14, v15, 3, v14\nv_lshrrev_b32 v15, 1, v12\nv_lshlrev_b32 v15, 6, v15")
        e("v_lshl_add_u32 v10, v13, 3, v12\nv_mul_u32_u24 v10, 0x180, v10\nv_add_u32 v10, v10, v14")
        e("v_add_u32 v11, 64, v10\nv_sub_u32 v11, v11, v15\nv_add_u32 v10, v10, v15")
        for k in range(3):
            e(f"v_add_u32 {v(vR1+2*k)}, {49152*k}, v10\nv_add_u32 {v(vR1+2*k+1)}, {49152*k}, v11")
        e("v_lshl_add_u32 v10, v13, 2, v12\nv_lshlrev_b32 v10, 7, v10\nv_add_u32 v10, v10, v14\nv_add_u32 v10, v10, v15")
        for k in range(3):
            e(f"v_add_u32 {v(vR2+2*k)}, {49152*k}, v10\nv_xor_b32 {v(vR2+2*k+1)}, 64, {v(vR2+2*k)}")
        for p in range(4):
            e(f"s_add_u32 {sT0}, {sJ}, {p}\ns_and_b32 {sT0}, {sT0}, 3\ns_lshl_b32 {sT0}, {sT0}, 11")
            e(f"v_add_u32 {v(vA2+p)}, {sT0}, {v(vL16B)}")
        e(f"s_mul_i32 {sABEG}, {sRB}, 163840\ns_mul_i32 {sT0}, {sW}, 40960\ns_add_u32 {sABEG}, {sABEG}, {sT0}")
        e(f"s_add_u32 {sABEG}, {sABEG}, {XNM}\ns_add_u32 {sAEND}, {sABEG}, 40960")
        self.rot_init(sA, c["rot1_m"], 10, 4096)
        e(f"s_add_u32 {sA}, {sA}, {sABEG}")
        e.wait_tok(("dma", 0))
        e("s_barrier")
        visible = {0}
        self.stamp(3)
        self.poll(2, TAG_XN, 8, 12, 13)
        self.stamp(4)

        def aload1(gs):
            st = gs & 3
            out = [f"buffer_load_dwordx4 {a(AR + (gs%16)*4,4)}, {v(vL16B)}, {srd(R_WS)}, {sA} offen offset:{1024*st} sc1"]
            return out + (self.adv(sA, 4096, sAEND, sABEG) if st == 3 else [])

        def bread1(n, st):
            slot = n % NS
            off = (slot % 2) * SLOT + st * 6144
            return [f"ds_read_b64_tr_b16 {a(BB + 24*(st&1) + 4*F + 2*j2,2)}, {v(vR1 + 2*(slot//2) + (F&1))} "
                    f"offset:{off + j2*1536 + (F>>1)*128}" for F in range(6) for j2 in range(2)]

        def mfma1(n, st):
            gs = 4 * n + st
            return [f"v_mfma_f32_32x32x16_bf16 {v(ACC+16*F,16)}, {a(BB + 24*(st&1) + 4*F,4)}, "
                    f"{a(AR + (gs%16)*4,4)}, {v(ACC+16*F,16) if gs else 0}" for F in range(6)]

        rest = list(range(pa + pb, NS))
        for gs in range(16):
            for ins in aload1(gs):
                e(ins)
            if gs % 4 == 3 and gs >= 7 and rest:
                self.issue_dma(dma, [rest.pop(0)])
        self.issue_dma(dma, rest)
        plan = {n: [n - 1 + NS] for n in range(1, 10)}
        self.gemm(10, 4, 0, mfma1, bread1, aload1, 16, dma, plan, visible)
        self.stamp(5)

        e(f"s_mul_i32 {sABEG}, {sRB}, 393216\ns_mul_i32 {sT0}, {sW}, 98304\ns_add_u32 {sABEG}, {sABEG}, {sT0}")
        e(f"s_add_u32 {sABEG}, {sABEG}, {HM}\ns_add_u32 {sAEND}, {sABEG}, 98304")
        e(f"s_mul_i32 {sT2}, {sJ}, 12288\ns_add_u32 {sT2}, {sT2}, {sABEG}")

        def relu_store(fl):
            for F in range(6):
                if F in (2, 4):
                    e(f"s_add_u32 {sT2}, {sT2}, 4096")
                for h in range(2):
                    d = WK + 4 * ((2 * F + h) & 3)
                    for k in range(4):
                        r = ACC + 16 * F + 8 * h + 2 * k
                        e(f"v_cvt_pk_bf16_f32 {v(d+k)}, {v(r)}, {v(r+1)}")
                    for k in range(4):
                        e(f"v_pk_max_i16 {v(d+k)}, {v(d+k)}, 0")
                    e(f"buffer_store_dwordx4 {v(d,4)}, {v(vL16B)}, {srd(R_WS)}, {sT2} offen offset:{1024*((2*F+h)&3)} {fl}")
        self.two_flavours(relu_store)
        self.stamp(10)
        e.wait_all()
        e("s_barrier")
        self.send_flags(3, TAG_HID, "0xff", sJ, None)
        visible |= set(range(10, 9 + NS))
        self.issue_dma(dma, [9 + NS])
        self.rot_init(sA, c["rot2_m"], 12, 8192)
        e(f"s_add_u32 {sA}, {sA}, {sABEG}")
        self.poll(3, TAG_HID, 8, 12, 13)
        self.stamp(11)

        def aload2(gs):
            st = gs & 7
            out = [f"buffer_load_dwordx4 {a(AR + (gs%16)*4,4)}, {v(vA2 + (st>>1))}, {srd(R_WS)}, {sA} offen offset:{1024*(st&1)} sc1"]
            return out + (self.adv(sA, 8192, sAEND, sABEG) if st == 7 else [])

        def tiles2(st):
            return range(4 if st < 2 else 2)

        def bread2(n, st):
            slot = (10 + n) % NS
            off = (slot % 2) * SLOT + st * 2048
            return [f"ds_read_b64_tr_b16 {a(BB + 16*(st&1) + 4*t + 2*j2,2)}, {v(vR2 + 2*(slot//2) + (t&1))} "
                    f"offset:{off + j2*1024 + (t>>1)*16384}" for t in tiles2(st) for j2 in range(2)]

        def mfma2(n, st):
            gs = 8 * n + st
            return [f"v_mfma_f32_32x32x16_bf16 {v(ACC+16*t,16)}, {a(AR + (gs%16)*4,4)}, "
                    f"{a(BB + 16*(st&1) + 4*t,4)}, {v(ACC+16*t,16) if gs else 0}" for t in tiles2(st)]

        for gs in range(16):
            for ins in aload2(gs):
                e(ins)
        plan = {n: [10 + n - 1 + NS] for n in range(1, 12) if 10 + n - 1 + NS < 22}
        self.gemm(12, 8, 10, mfma2, bread2, aload2, 16, dma, plan, visible)
        self.stamp(12)

        e(f"v_lshrrev_b32 v10, 5, {v(vLANE)}\nv_lshlrev_b32 v10, 8, v10\nv_and_b32 v11, 15, {v(vLANE)}")
        e(f"v_lshl_add_u32 v10, v11, 4, v10\nv_bfe_u32 v12, {v(vLANE)}, 4, 1")
        e("v_lshl_add_u32 v11, v12, 15, v10\nv_lshl_add_u32 v10, v12, 10, v10")
        e(f"s_lshl_b32 {sT0}, {sRB}, 18\ns_lshl_b32 {sT1}, {sW}, 13\ns_add_u32 {sT0}, {sT0}, {sT1}\ns_add_u32 {sT0}, {sT0}, {PART}")
        e(f"s_lshl_b32 {sT1}, {sJ}, 15\ns_add_u32 {sT1}, {sT1}, {sT0}")
        e(f"s_and_b32 {sT2}, {sJ}, 4\ns_lshl_b32 {sT2}, {sT2}, 15\ns_add_u32 {sT2}, {sT2}, {sT0}")
        e(f"s_and_b32 {sT3}, {sJ}, 3\ns_lshl_b32 {sT3}, {sT3}, 10\ns_add_u32 {sT2}, {sT2}, {sT3}")
        e(f"s_add_u32 {sT2}, {sT2}, 4096\ns_add_u32 {sT3}, {sT2}, 65536")
        for t in range(4):
            for Pp in range(2):
                d = WK + 4 * ((2 * t + Pp) & 3)
                for k in range(4):
                    r = ACC + 16 * t + 8 * Pp + 2 * k
                    e(f"v_cvt_pk_bf16_f32 {v(d+k)}, {v(r)}, {v(r+1)}")
                if t < 2:
                    e(f"buffer_store_dwordx4 {v(d,4)}, v10, {srd(R_WS)}, {sT1} offen offset:{2048*t + 512*Pp} sc1")
                else:
                    e(f"buffer_store_dwordx4 {v(d,4)}, v11, {srd(R_WS)}, {sT2 if t == 2 else sT3} offen offset:{512*Pp} sc1")
        self.stamp(13)
        e.wait_all()
        e("s_barrier")
        e(f"s_and_b32 {sT3}, {sJ}, 3")
        self.send_flags(4, TAG_PART, "0xf0000", sT3, "sc1")
        self.epoch_bump()
        self.stamp(14)
        self.finish()

    def build(self):
        e = self.e
        self.entry()
        snap = e.begin_region()
        pend, nst = self.pending_stamp, self.nstamp
        self.ssm()
        e.vm, e.lg, e.hist = list(snap["vm"]), list(snap["lg"]), []
        self.pending_stamp, self.nstamp = pend, nst
        e.label("L_mlp")
        self.mlp()
        e.label("L_end")
        e("s_endpgm")
        ref = open(f"cdna_kernels/{NAME}.s.ref").read()
        head = ref.split("; Override launch")[0]
        out = head
        out += "; Persistent kernel: one workgroup per CU, SSM chain and MLP chain on separate workgroup sets.\n"
        out += f"; @launch grid=(256,1,1) block=(256,1,1) lds={LDS_BYTES}\n"
        out += '.amdgcn_target "amdgcn-amd-amdhsa--gfx950"\n.text\n'
        out += f".globl {KERNEL}\n.p2align 8\n.type {KERNEL},@function\n{KERNEL}:\n"
        out += e.text()
        out += f""".section .rodata,"a"
.p2align 6
.amdhsa_kernel {KERNEL}
  .amdhsa_next_free_vgpr 512
  .amdhsa_next_free_sgpr 102
  .amdhsa_accum_offset 256
  .amdhsa_group_segment_fixed_size 0
  .amdhsa_kernarg_size 120
  .amdhsa_user_sgpr_count 2
  .amdhsa_user_sgpr_kernarg_segment_ptr 1
  .amdhsa_system_sgpr_workgroup_id_x 1
  .amdhsa_float_denorm_mode_32 3
.end_amdhsa_kernel
"""
        return out


def parse_cfg(args):
    cfg = {}
    for s in args:
        k, val = s.split("=")
        cfg[k] = type(DEFAULTS[k])(int(val))
    return cfg


if __name__ == "__main__":
    path = sys.argv[1]
    g = Gen(**parse_cfg(sys.argv[2:]))
    open(path, "w").write(g.build())
    print(path, "lines", len(g.e.lines), "nop slots", g.e.nops)
```

```python
import os
import sys

sys.path.insert(0, os.path.dirname(os.path.abspath(__file__)))
from emit import Emitter

NAME = "parallel_sum__ssm_conv_s5__dense_activation_relu__prompt"
KERNEL = NAME + "_kernel"

INBOX = 0x0
CARRY = 0x40000
XNS = 0x300000
XNM = 0x580000
HS = 0x800000
HM = 0xD00000
PART = 0x1300000
STAMP = 0x1700000
WS_USED = 0x1800000

LDS_BYTES = 163840
SCR = 143360
SPIN_LIMIT = 1 << 15

TAG_HELLO, TAG_XN, TAG_HID, TAG_PART, TAG_CARRY = 16, 32, 48, 64, 80

DEFAULTS = dict(
    diag=False,
    chain_bit=2,
    swap=True, rot=True, rot_x=1, codepf=True,
    pre_a=1, pre_ln=1, pre_b=1, a_pre=4,
    force_slow=False,
    ab_nomfma=False, ab_nobread=False, ab_noaload=False, ab_nodma=False, a_flag=1, blkstamp=False, clk=False,
)

P_X, P_LRE, P_LIM, P_BRE, P_BIM, P_CRE, P_CIM, P_LDT = 16, 18, 20, 22, 24, 26, 28, 30
P_DSK, P_BX, P_W1, P_W2, P_OUT, P_DBG, P_WS = 32, 34, 36, 38, 40, 42, 44
R_X, R_WS, R_1A, R_1B, R_2A, R_2B, R_OUT, R_TMP = 48, 52, 56, 60, 64, 68, 72, 76
sRB, sJ, sW, sXCC, sE, sFAST, sOWN, sSPIN = "s3", "s4", "s5", "s6", "s7", "s8", "s9", "s10"
sT0, sT1, sT2, sT3 = "s11", "s12", "s13", "s14"
sWO1, sWO2, sWO1B = "s80", "s81", "s82"
sA, sABEG, sAEND = "s83", "s84", "s85"
sM0A, sM0B = "s86", "s87"
sEX = "s[88:89]"
sMSK = [f"s[{90+2*k}:{91+2*k}]" for k in range(4)]
sST = ["s[98:99]", "s[100:101]"]


def v(a, n=1):
    return f"v{a}" if n == 1 else f"v[{a}:{a+n-1}]"


def a(b, n=1):
    return f"a{b}" if n == 1 else f"a[{b}:{b+n-1}]"


def srd(b):
    return f"s[{b}:{b+3}]"


vTID, vLANE, vL16B, vE, vINB, vFLG, vSTAMP = 0, 1, 2, 3, 4, 5, 6


class Gen:
    def __init__(self, **cfg):
        self.c = dict(DEFAULTS)
        self.c.update(cfg)
        self.e = Emitter()
        self.nstamp = 0
        self.pending_stamp = None
        self.afl = {0: "", 1: "sc1", 2: "nt", 3: "sc0"}[self.c["a_flag"]]

    def stamp(self, k):
        if not self.c["diag"]:
            return
        e = self.e
        self.flush_stamp()
        reg = sST[self.nstamp & 1]
        self.nstamp += 1
        e(f"s_memrealtime {reg}")
        self.pending_stamp = (k, reg)
        if k < 16 and self.c["clk"]:
            self.flush_stamp()
            e(f"s_memtime {reg}")
            self.pending_stamp = (k + 48, reg)

    def flush_stamp(self):
        if self.pending_stamp:
            k, reg = self.pending_stamp
            lo = reg[2:].split(":")[0]
            self.e(f"v_writelane_b32 {v(vSTAMP)}, s{lo}, {k}")
            self.pending_stamp = None

    def mk_srd(self, r, ptr, nbytes):
        e = self.e
        e(f"s_mov_b32 s{r}, s{ptr}\ns_mov_b32 s{r+1}, s{ptr+1}")
        e(f"s_mov_b32 s{r+2}, {nbytes}\ns_mov_b32 s{r+3}, 0x20000")

    def mk_srd_sel(self, r, p_lo, p_hi, nbytes):
        e = self.e
        e(f"s_cselect_b32 s{r}, s{p_lo}, s{p_hi}\ns_cselect_b32 s{r+1}, s{p_lo+1}, s{p_hi+1}")
        e(f"s_mov_b32 s{r+2}, {nbytes}\ns_mov_b32 s{r+3}, 0x20000")

    def cmul(self, d, x, y):
        e = self.e
        e(f"v_pk_mul_f32 {v(d,2)}, {v(x,2)}, {v(y,2)} op_sel:[0,0] op_sel_hi:[0,1]")
        e(f"v_pk_fma_f32 {v(d,2)}, {v(x,2)}, {v(y,2)}, {v(d,2)} op_sel:[1,1,0] op_sel_hi:[1,0,1] neg_lo:[1,0,0]")

    def cfma(self, d, x, y, z):
        e = self.e
        e(f"v_pk_fma_f32 {v(d,2)}, {v(x,2)}, {v(y,2)}, {v(z,2)} op_sel:[0,0,0] op_sel_hi:[0,1,1]")
        e(f"v_pk_fma_f32 {v(d,2)}, {v(x,2)}, {v(y,2)}, {v(d,2)} op_sel:[1,1,0] op_sel_hi:[1,0,1] neg_lo:[1,0,0]")

    def round_bf16(self, r):
        e = self.e
        e(f"v_cvt_pk_bf16_f32 {v(r)}, {v(r)}, {v(r)}\nv_lshlrev_b32 {v(r)}, 16, {v(r)}")

    def rot_init(self, dst, nb, stride):
        e = self.e
        if not self.c["rot"]:
            e(f"s_mov_b32 {dst}, 0")
            return
        e(f"s_and_b32 {sT0}, {sRB}, 3\ns_mul_i32 {sT0}, {sT0}, {nb}\ns_lshr_b32 {sT0}, {sT0}, 2")
        e(f"s_lshr_b32 {sT1}, {sRB}, 2\ns_mul_i32 {sT1}, {sT1}, {self.c['rot_x']}\ns_add_u32 {sT0}, {sT0}, {sT1}")
        e(f"s_sub_u32 {sT1}, {sT0}, {nb}\ns_cselect_b32 {sT0}, {sT0}, {sT1}")
        e(f"s_mul_i32 {dst}, {sT0}, {stride}")

    @staticmethod
    def adv(reg, stride, end, beg):
        return [f"s_add_u32 {reg}, {reg}, {stride}", f"s_cmp_eq_u32 {reg}, {end}",
                f"s_cselect_b32 {reg}, {beg}, {reg}"]

    def two_flavours(self, body):
        e = self.e
        l_slow, l_end = e.newlabel("slow"), e.newlabel("join")
        e(f"s_cmp_eq_u32 {sFAST}, 0\ns_cbranch_scc1 {l_slow}")
        s0 = e.begin_region()
        body("")
        e(f"s_branch {l_end}")
        e.end_region(s0, l_slow)
        s1 = e.begin_region()
        body("sc1")
        e.end_region(s1, l_end)

    def send_flags(self, line, tag, lanes, word, flavour):
        e = self.e
        skip = e.newlabel("nosend")
        e(f"s_cmp_lg_u32 {sW}, 0\ns_cbranch_scc1 {skip}")
        s0 = e.begin_region()
        e(f"v_add_u32 {v(vFLG)}, {tag}, {v(vE)}")
        e(f"s_lshl_b32 {sT0}, {word}, 2\ns_add_u32 {sT0}, {sT0}, {INBOX + 128*line}")
        e(f"s_mov_b64 exec, {lanes}")
        st = lambda fl: e(f"buffer_store_dword {v(vFLG)}, {v(vINB)}, {srd(R_WS)}, {sT0} offen {fl}")
        if flavour is None:
            self.two_flavours(st)
        else:
            st(flavour)
        e("s_mov_b64 exec, -1")
        e.end_region(s0, skip)

    def poll(self, line, tag, nwords, tmp, tmp2):
        e = self.e
        lp, out = e.newlabel("poll"), e.newlabel("polled")
        e(f"v_and_b32 {v(tmp2)}, {nwords-1}, {v(vLANE)}\nv_lshlrev_b32 {v(tmp2)}, 2, {v(tmp2)}")
        e(f"s_add_u32 {sT0}, {sOWN}, {INBOX + 128*line}\ns_add_u32 {sT1}, {sE}, {tag}")
        e.label(lp)
        e(f"buffer_load_dword {v(tmp)}, {v(tmp2)}, {srd(R_WS)}, {sT0} offen sc1")
        e(f"s_cmp_eq_u32 {sSPIN}, 0")
        e.wait_all(lg=False)
        e(f"s_cbranch_scc1 {out}\ns_sub_u32 {sSPIN}, {sSPIN}, 1")
        e(f"v_subrev_u32 {v(tmp)}, {sT1}, {v(tmp)}")
        e(f"v_cmp_gt_u32 vcc, 16, {v(tmp)}")
        e(f"s_cmp_eq_u64 vcc, exec\ns_cbranch_scc0 {lp}")
        e.label(out)

    def entry(self):
        e, c = self.e, self.c
        e("s_cmp_ge_u32 s2, 256\ns_cbranch_scc1 L_end")
        e("s_load_dwordx16 s[16:31], s[0:1], 0\ns_load_dwordx8 s[32:39], s[0:1], 64")
        e("s_load_dwordx4 s[40:43], s[0:1], 96\ns_load_dwordx2 s[44:45], s[0:1], 112")
        if c["diag"]:
            e(f"v_mov_b32 {v(vSTAMP)}, 0")
        self.stamp(0)
        e(f"v_lshrrev_b32 v7, 6, v0\nv_and_b32 {v(vLANE)}, 63, v0")
        e(f"v_readfirstlane_b32 {sW}, v7")
        e(f"v_lshlrev_b32 {v(vL16B)}, 4, {v(vLANE)}")
        e(f"s_getreg_b32 {sXCC}, hwreg(HW_REG_XCC_ID)\ns_and_b32 {sXCC}, {sXCC}, 15")
        e(f"s_lshr_b32 {sT0}, s2, 3\ns_and_b32 {sJ}, {sT0}, 7\ns_lshr_b32 {sT0}, {sT0}, 3")
        if c["chain_bit"] == 2:
            e(f"s_and_b32 {sT1}, s2, 3\ns_bfe_u32 {sT2}, s2, 0x10002")
        else:
            e(f"s_bfe_u32 {sT1}, s2, 0x20001\ns_and_b32 {sT2}, s2, 1")
        if c["swap"]:
            e(f"s_xor_b32 {sT2}, {sT2}, 1")
        e(f"s_lshl_b32 {sT1}, {sT1}, 2\ns_add_u32 {sRB}, {sT1}, {sT0}")
        e(f"s_lshl_b32 {sOWN}, {sT2}, 4\ns_add_u32 {sOWN}, {sOWN}, {sRB}")
        e(f"s_lshl_b32 {sOWN}, {sOWN}, 3\ns_add_u32 {sOWN}, {sOWN}, {sJ}\ns_lshl_b32 {sOWN}, {sOWN}, 10")
        e(f"s_mov_b32 {sSPIN}, {SPIN_LIMIT}")
        self.mk_srd(R_X, P_X, 2048 * 1280)
        self.mk_srd(R_WS, P_WS, WS_USED)
        e(f"s_cmp_eq_u32 {sT2}, 0\ns_cbranch_scc0 L_mlp")

    def ln_loads(self, ssm, X):
        e = self.e
        e("v_lshrrev_b32 v8, 4, v0\nv_and_b32 v9, 15, v0")
        e("v_and_b32 v10, 1, v8\nv_lshlrev_b32 v10, 2, v10\nv_bfe_u32 v11, v8, 1, 1\nv_add_u32 v10, v10, v11")
        if ssm:
            e("v_lshrrev_b32 v11, 2, v8\nv_lshl_add_u32 v10, v11, 3, v10")
        else:
            e("v_bfe_u32 v11, v8, 2, 1\nv_lshl_add_u32 v10, v11, 3, v10")
            e("v_lshrrev_b32 v11, 3, v8\nv_lshl_add_u32 v10, v11, 1, v10")
        e("v_mul_u32_u24 v10, 0x500, v10\nv_lshl_add_u32 v10, v9, 4, v10")
        e(f"s_lshr_b32 {sT0}, {sJ}, 1\ns_lshl_b32 {sT0}, {sT0}, 5\ns_and_b32 {sT1}, {sJ}, 1")
        e(f"s_lshl_b32 {sT1}, {sT1}, {1 if ssm else 4}\ns_add_u32 {sT0}, {sT0}, {sT1}")
        e(f"s_lshl_b32 {sT1}, {sRB}, 7\ns_add_u32 {sT0}, {sT0}, {sT1}\ns_mul_i32 {sT0}, {sT0}, 1280")
        for n in range(5):
            e(f"buffer_load_dwordx4 {v(X+4*n,4)}, v10, {srd(R_X)}, {sT0} offen offset:{256*n}")

    def epoch_loads(self, ssm):
        e = self.e
        e(f"s_and_b32 {sT0}, {sOWN}, {~0x1FFF & 0xFFFFFFFF}")
        e(f"v_and_b32 v11, 7, {v(vLANE)}\nv_lshl_add_u32 {v(vINB)}, v11, 10, {sT0}")
        e(f"v_and_b32 v11, 15, {v(vLANE)}")
        if ssm:
            e(f"s_lshl_b32 {sT0}, {sJ}, 10\nv_lshl_add_u32 v11, v11, 13, {sT0}")
        else:
            e(f"s_lshl_b32 {sT0}, {sRB}, 3\ns_and_b32 {sT1}, {sJ}, 4\ns_add_u32 {sT0}, {sT0}, {sT1}")
            e(f"s_lshl_b32 {sT0}, {sT0}, 10\nv_and_b32 v11, 3, v11\nv_lshl_add_u32 v11, v11, 10, {sT0}")
        e(f"v_cmp_gt_u32 vcc, 16, {v(vLANE)}")
        e(f"v_cndmask_b32 {v(vINB)}, v11, {v(vINB)}, vcc")
        e(f"buffer_load_dword {v(vE)}, {v(vINB)}, {srd(R_WS)}, 0 offen sc1")

    def code_prefetch(self, beg, end):
        e = self.e
        if not self.c["codepf"]:
            return
        skip, here = e.newlabel("nopf"), e.newlabel("pc")
        e(f"s_cmp_lg_u32 {sW}, 3\ns_cbranch_scc1 {skip}")
        s0 = e.begin_region()
        e("s_getpc_b64 s[88:89]")
        e.label(here)
        e(f"s_lshr_b32 {sT0}, s2, 3\ns_lshl_b32 {sT0}, {sT0}, 7")
        e(f"v_lshlrev_b32 v12, 12, {v(vLANE)}\nv_add_u32 v12, {sT0}, v12")
        e(f"v_cmp_gt_u32 vcc, {end}-{here}, v12")
        e(f"s_and_saveexec_b64 s[90:91], vcc")
        e("v_mov_b32 v13, s89\nv_add_co_u32 v12, vcc, s88, v12\nv_addc_co_u32 v13, vcc, 0, v13, vcc")
        e("global_load_dword v255, v[12:13], off")
        e.vm[-1]["dst"] = set()
        e("s_mov_b64 exec, -1")
        e.end_region(s0, skip)

    def hello(self):
        e = self.e
        e(f"v_readlane_b32 {sE}, {v(vE)}, {sJ}")
        e(f"s_add_u32 {sT3}, {sXCC}, {TAG_HELLO}")
        self.send_flags(1, sT3, "0xff", sJ, "sc1")

    def ln_compute(self, ssm, X, U, fill):
        e = self.e
        for k in range(20):
            e(f"v_lshlrev_b32 {v(U+2*k)}, 16, {v(X+k)}\nv_and_b32 {v(U+2*k+1)}, 0xffff0000, {v(X+k)}")
            if k >= 16:
                for ins, tok in fill[(k - 16) * len(fill) // 4:(k - 15) * len(fill) // 4]:
                    e(ins, tok=tok)
            if k == 1:
                e(f"v_pk_add_f32 v[12:13], {v(U,2)}, {v(U+2,2)}")
            elif k > 1:
                e(f"v_pk_add_f32 v[12:13], v[12:13], {v(U+2*k,2)}")

        def rowsum(r):
            for sh in (8, 4, 2, 1):
                e(f"v_add_f32_dpp {v(r)}, {v(r)}, {v(r)} row_ror:{sh} row_mask:0xf bank_mask:0xf")

        inv_d = "0x3acccccd"
        e("v_add_f32 v12, v12, v13")
        rowsum(12)
        e(f"v_mul_f32 v12, {inv_d}, v12\nv_mov_b32 v14, v12")
        self.round_bf16(14)
        e("v_sub_f32 v15, v12, v14")
        for k in range(20):
            e(f"v_pk_add_f32 {v(U+2*k,2)}, {v(U+2*k,2)}, v[14:15] op_sel_hi:[1,0] neg_lo:[0,1] neg_hi:[0,1]")
        for k in range(20):
            if k == 0:
                e(f"v_pk_mul_f32 v[12:13], {v(U,2)}, {v(U,2)}")
            else:
                e(f"v_pk_fma_f32 v[12:13], {v(U+2*k,2)}, {v(U+2*k,2)}, v[12:13]")
        e("v_add_f32 v12, v12, v13")
        rowsum(12)
        e(f"v_mul_f32 v12, {inv_d}, v12\nv_fma_f32 v12, -v15, v15, v12\nv_max_f32 v12, 0, v12")
        self.round_bf16(12)
        e("v_add_f32 v12, 0x3727c5ac, v12")
        self.round_bf16(12)
        e("v_sqrt_f32 v12, v12")
        self.round_bf16(12)
        e("v_rcp_f32 v12, v12")
        scr = SCR
        e("v_xor_b32 v10, v8, v9\nv_lshlrev_b32 v10, 4, v10\nv_lshl_add_u32 v10, v9, 8, v10")
        e(f"v_add_u32 v10, {scr}, v10")
        for n in range(5):
            for k in range(4 * n, 4 * n + 4):
                e(f"v_pk_mul_f32 {v(U+2*k,2)}, {v(U+2*k,2)}, v[12:13] op_sel_hi:[1,0]")
            for k in range(4 * n, 4 * n + 4):
                e(f"v_cvt_pk_bf16_f32 {v(X+k)}, {v(U+2*k)}, {v(U+2*k+1)}")
            e(f"ds_write_b128 v10, {v(X+4*n,4)} offset:{4096*n}")
        e(f"v_lshrrev_b32 v11, 4, {v(vLANE)}\nv_lshl_add_u32 v11, {sW}, 2, v11")
        e(f"v_and_b32 v13, 15, {v(vLANE)}\nv_xor_b32 v14, v13, v11\nv_lshlrev_b32 v14, 4, v14")
        e(f"v_lshl_add_u32 v14, v11, 8, v14\nv_add_u32 v14, {scr}, v14")
        if ssm:
            e("v_lshlrev_b32 v11, 8, v11")
        else:
            e("v_lshlrev_b32 v11, 9, v11")
        e("v_lshl_add_u32 v11, v13, 4, v11")
        e(f"s_mul_i32 {sT2}, {sRB}, 163840\ns_lshr_b32 {sT1}, {sJ}, 1\ns_mul_i32 {sT1}, {sT1}, 40960")
        e(f"s_add_u32 {sT2}, {sT2}, {sT1}\ns_and_b32 {sT1}, {sJ}, 1\ns_mul_i32 {sT1}, {sT1}, {20480 if ssm else 256}")
        e(f"s_add_u32 {sT2}, {sT2}, {sT1}\ns_add_u32 {sT2}, {sT2}, {XNS if ssm else XNM}")
        e.wait_lg()
        e("s_barrier")
        for k in range(5):
            e(f"ds_read_b128 {v(X+4*k,4)}, v14 offset:{4096*k}")
        self.poll(1, TAG_HELLO, 8, 12, 13)
        e(f"v_cmp_eq_u32 vcc, {sXCC}, v12")
        e(f"s_cmp_eq_u64 vcc, exec\ns_cselect_b32 {sFAST}, {0 if self.c['force_slow'] else 1}, 0")
        e.wait_lg()

        def st(fl):
            for k in range(5):
                e(f"s_add_u32 {sT3}, {sT2}, {k * (4096 if ssm else 8192)}")
                e(f"buffer_store_dwordx4 {v(X+4*k,4)}, v11, {srd(R_WS)}, {sT3} offen {fl}")
        self.two_flavours(st)
        e.wait_all()
        e("s_barrier")
        self.send_flags(2, TAG_XN, "0xff", sJ, None)

    def gemm(self, nblk, nst, first_blk, mfmas, breads, aloads, adepth, a_pre, dma, early, dma_plan, visible):
        e, c = self.e, self.c
        total = nblk * nst
        if c["ab_nobread"]:
            breads = lambda n, st: []
        if c["ab_noaload"]:
            aloads = lambda gs: []
        if c["ab_nomfma"]:
            real = mfmas
            mfmas = lambda n, st: [i if k in (0, len(real(n, st)) - 1) else "s_nop 0" for k, i in enumerate(real(n, st))]
        if c["ab_nodma"]:
            dma = lambda b: []
        for gs in range(a_pre):
            for ins in aloads(gs):
                e(ins)
        a_next = a_pre
        for ins in breads(0, 0):
            e(ins)
        for n in range(nblk):
            if c["blkstamp"]:
                self.stamp(16 + first_blk + n)
            for st in range(nst):
                gs = n * nst + st
                fill = []
                if st == nst - 1:
                    todo = dma_plan.get(n, [])
                    nxt = first_blk + n + 1
                    need_vis = n + 1 < nblk and nxt not in visible
                    if todo or need_vis:
                        if need_vis:
                            e.wait_tok(("dma", nxt))
                            visible.add(nxt)
                        e("s_barrier")
                if gs + 1 < total:
                    n2, st2 = divmod(gs + 1, nst)
                    fill += [(i, None) for i in breads(n2, st2)]
                while a_next < min(total, gs + adepth, a_pre + 2 * gs + 2):
                    fill += [(i, None) for i in aloads(a_next)]
                    a_next += 1
                for b in early.get(gs, []):
                    fill += [(i, ("dma", b)) for i in dma(b)]
                if st == nst - 1:
                    for b in dma_plan.get(n, []):
                        fill += [(i, ("dma", b)) for i in dma(b)]
                mm = mfmas(n, st)
                done = 0
                for k, ins in enumerate(mm):
                    e(ins)
                    upto = -(-len(fill) * (k + 1) // len(mm))
                    while done < upto:
                        e(fill[done][0], tok=fill[done][1])
                        done += 1

    def issue_dma(self, dma, blocks):
        for b in blocks:
            for ins in dma(b):
                self.e(ins, tok=("dma", b))

    def ssm(self):
        e, c = self.e, self.c
        NS, SLOT = 7, 20480
        vDB, vDC = 16, 21
        vRB, vRC = 26, 32
        vA1, vCH8, vTC, vTW, vTRW, vTRR = 44, 45, 46, 47, 7, 8
        vL, vL4, vSC, vWP = 48, 58, 68, 78
        vL8, vL128, vSCL = 88, 90, 92
        ACC, SP, WK = 96, 176, 196
        X, U = 96, 116
        AR, BB, SK = 0, 64, 144

        self.epoch_loads(True)
        self.ln_loads(True, X)
        self.code_prefetch("L_ssm", "L_mlp")
        e(f"v_lshl_add_u32 {v(vCH8)}, {sW}, 6, {v(vLANE)}")
        e(f"s_mul_i32 {sT0}, {sJ}, 160\nv_lshl_add_u32 v12, {v(vCH8)}, 1, {sT0}")
        for k, p in enumerate((P_LRE, P_LIM, P_LDT)):
            self.mk_srd(R_TMP, p, 1280)
            e(f"buffer_load_ushort {v(WK+k)}, v12, {srd(R_TMP)}, 0 offen")
        e(f"s_cmp_lt_u32 {sW}, 2")
        self.mk_srd_sel(R_1A, P_BRE, P_BIM, 819200)
        self.mk_srd_sel(R_1B, P_BIM, P_BRE, 819200)
        self.mk_srd_sel(R_2A, P_CRE, P_CIM, 819200)
        self.mk_srd_sel(R_2B, P_CIM, P_CRE, 819200)
        e(f"s_and_b32 {sT0}, {sW}, 1\ns_lshr_b32 {sT1}, {sW}, 1")
        e(f"s_mul_i32 {sM0A}, {sT1}, 10240\ns_mul_i32 {sT2}, {sT0}, 3072\ns_add_u32 {sM0A}, {sM0A}, {sT2}")
        e(f"s_xor_b32 {sT1}, {sT1}, 1\ns_mul_i32 {sM0B}, {sT1}, 10240\ns_lshl_b32 {sT2}, {sT0}, 11")
        e(f"s_add_u32 {sM0B}, {sM0B}, {sT2}\ns_add_u32 {sM0B}, {sM0B}, 6144")
        e(f"v_lshrrev_b32 v12, 3, {v(vLANE)}\nv_and_b32 v13, 7, {v(vLANE)}\nv_lshrrev_b32 v14, 1, v12")
        e("v_xor_b32 v13, v13, v14\nv_lshlrev_b32 v13, 4, v13\nv_mul_u32_u24 v12, 0x500, v12\nv_add_u32 v12, v12, v13")
        for i in range(5):
            imm = 1024 * (i if i < 3 else i - 3)
            if i < 3:
                e(f"s_mul_i32 {sT1}, {sT0}, 3\ns_add_u32 {sT1}, {sT1}, {i}")
            else:
                e(f"s_lshl_b32 {sT1}, {sT0}, 1\ns_add_u32 {sT1}, {sT1}, {3 + i}")
            e(f"s_and_b32 {sT2}, {sT1}, 1\ns_lshl_b32 {sT2}, {sT2}, 6\nv_xor_b32 v13, {sT2}, v12")
            e(f"s_mul_i32 {sT2}, {sJ}, 10\ns_add_u32 {sT2}, {sT2}, {sT1}\ns_mul_i32 {sT2}, {sT2}, 10240")
            e(f"s_sub_u32 {sT2}, {sT2}, {imm}\nv_add_u32 {v(vDB+i)}, {sT2}, v13")
            e(f"s_lshl_b32 {sT2}, {sJ}, 3\ns_add_u32 {sT2}, {sT2}, {sT1}")
            e(f"s_lshl_b32 {sT3}, {sJ}, 1\ns_add_u32 {sT3}, {sT3}, {sT1}\ns_add_u32 {sT3}, {sT3}, 56")
            e(f"s_cmp_lt_u32 {sT1}, 8\ns_cselect_b32 {sT2}, {sT2}, {sT3}\ns_mul_i32 {sT2}, {sT2}, 10240")
            e(f"s_sub_u32 {sT2}, {sT2}, {imm}\nv_add_u32 {v(vDC+i)}, {sT2}, v13")
        self.rot_init(sWO1, 10, 128)
        self.rot_init(sWO2, 10, 128)

        def dma(b):
            ph2 = b >= 10
            ra, rb_, vb, so = (R_2A, R_2B, vDC, sWO2) if ph2 else (R_1A, R_1B, vDB, sWO1)
            base = (b % NS) * SLOT
            out = [f"s_add_u32 m0, {sM0A}, {base}"]
            out += [f"buffer_load_dwordx4 {v(vb+i)}, {srd(ra)}, {so} offen offset:{1024*i} lds" for i in range(3)]
            out += [f"s_add_u32 m0, {sM0B}, {base}"]
            out += [f"buffer_load_dwordx4 {v(vb+3+i)}, {srd(rb_)}, {so} offen offset:{1024*i} lds" for i in range(2)]
            return out + self.adv(so, 128, 1280, 0)

        pa, pl, pb = c["pre_a"], c["pre_ln"], c["pre_b"]
        self.hello()
        self.issue_dma(dma, range(pa))
        self.stamp(1)
        self.ln_compute(True, X, U, [(i, ("dma", b)) for b in range(pa, pa + pl) for i in dma(b)])
        self.stamp(2)
        self.issue_dma(dma, range(pa + pl, pa + pl + pb))

        skip = e.newlabel("noconst")
        e(f"s_cmp_gt_u32 {sW}, 1\ns_cbranch_scc1 {skip}")
        s0 = e.begin_region()
        e(f"v_cmp_gt_u32 vcc, 80, {v(vCH8)}\ns_and_saveexec_b64 {sEX}, vcc")
        lre, lim, ldt = WK, WK + 1, WK + 2
        t = WK + 4
        for r in (lre, lim, ldt):
            e(f"v_lshlrev_b32 {v(r)}, 16, {v(r)}")
        log2e = "0x3fb8aa3b"
        e(f"v_mul_f32 {v(ldt)}, {log2e}, {v(ldt)}\nv_exp_f32 {v(ldt)}, {v(ldt)}")
        self.round_bf16(ldt)
        e(f"v_mul_f32 {v(t)}, {v(ldt)}, {v(lre)}\nv_mul_f32 {v(t+1)}, {v(ldt)}, {v(lim)}")
        e(f"v_mul_f32 {v(t)}, {log2e}, {v(t)}\nv_exp_f32 {v(t)}, {v(t)}")
        e(f"v_mul_f32 {v(t+1)}, 0.15915494, {v(t+1)}\nv_rndne_f32 {v(t+2)}, {v(t+1)}")
        e(f"v_sub_f32 {v(t+1)}, {v(t+1)}, {v(t+2)}")
        e(f"v_cos_f32 {v(t+2)}, {v(t+1)}\nv_sin_f32 {v(t+3)}, {v(t+1)}")
        L1 = WK + 8
        e(f"v_mul_f32 {v(L1)}, {v(t)}, {v(t+2)}\nv_mul_f32 {v(L1+1)}, {v(t)}, {v(t+3)}")
        e(f"v_mul_f32 {v(t)}, {v(lre)}, {v(lre)}\nv_fma_f32 {v(t)}, {v(lim)}, {v(lim)}, {v(t)}")
        e(f"v_rcp_f32 {v(t)}, {v(t)}\nv_add_f32 {v(t+1)}, -1.0, {v(L1)}\nv_add_f32 {v(t)}, {v(t)}, {v(t)}")
        e(f"v_mul_f32 {v(t+2)}, {v(t+1)}, {v(lre)}\nv_fma_f32 {v(t+2)}, {v(L1+1)}, {v(lim)}, {v(t+2)}")
        e(f"v_mul_f32 {v(t+3)}, {v(L1+1)}, {v(lre)}\nv_fma_f32 {v(t+3)}, -{v(t+1)}, {v(lim)}, {v(t+3)}")
        e(f"v_mul_f32 {v(vSCL)}, {v(t+2)}, {v(t)}\nv_mul_f32 {v(vSCL+1)}, {v(t+3)}, {v(t)}")
        L2, L4 = WK + 10, WK + 12
        self.cmul(L2, L1, L1)
        self.cmul(L4, L2, L2)
        self.cmul(vL8, L4, L4)
        e(f"v_lshlrev_b32 {v(vCH8)}, 3, {v(vCH8)}\nv_add_u32 {v(vCH8)}, {SCR}, {v(vCH8)}")
        e(f"ds_write_b64 {v(vCH8)}, {v(L1,2)} offset:10240")
        e(f"ds_write_b64 {v(vCH8)}, {v(L4,2)} offset:10880")
        e(f"ds_write_b64 {v(vCH8)}, {v(vSCL,2)} offset:11520")
        e(f"ds_write_b64 {v(vCH8)}, {v(vSCL,2)}")
        prev = vSCL
        for s in range(1, 16):
            d = WK + 14 + 2 * (s & 1)
            self.cmul(d, vL8, prev)
            e(f"ds_write_b64 {v(vCH8)}, {v(d,2)} offset:{640*s}")
            prev = d
        self.cmul(L1, vL8, vL8)
        self.cmul(L2, L1, L1)
        self.cmul(L1, L2, L2)
        self.cmul(vL128, L1, L1)
        e(f"s_mov_b64 exec, {sEX}")
        e.wait_lg()
        e.end_region(s0, skip)
        e(f"v_and_b32 v12, 15, {v(vLANE)}\nv_lshrrev_b32 v13, 4, {v(vLANE)}\nv_lshrrev_b32 v14, 1, v12")
        e("v_xor_b32 v15, v13, v14\nv_lshlrev_b32 v15, 4, v15\nv_lshl_add_u32 v15, v12, 7, v15")
        for k in range(3):
            e(f"v_add_u32 {v(vRB+2*k)}, {61440*k}, v15\nv_xor_b32 {v(vRB+2*k+1)}, 64, {v(vRB+2*k)}")
        e("v_and_b32 v15, 1, v13\nv_xor_b32 v15, v15, v14\nv_lshlrev_b32 v15, 4, v15\nv_lshl_add_u32 v15, v12, 7, v15")
        e("v_lshrrev_b32 v14, 1, v13\nv_mul_u32_u24 v14, 0x2800, v14\nv_add_u32 v15, v15, v14")
        for k in range(3):
            e(f"v_add_u32 {v(vRC+4*k)}, {61440*k}, v15")
            for st in range(1, 4):
                e(f"v_xor_b32 {v(vRC+4*k+st)}, {32*st}, {v(vRC+4*k)}")
        e(f"v_lshlrev_b32 {v(vTC)}, 3, v12\nv_add_u32 {v(vTC)}, {SCR}, {v(vTC)}")
        e(f"v_lshl_add_u32 v14, {sW}, 2, v13\nv_mul_u32_u24 v14, 0x280, v14\nv_add_u32 {v(vTW)}, v14, {v(vTC)}")
        e(f"v_add_u32 {v(vA1)}, 20480, {v(vL16B)}")
        e(f"s_mul_i32 {sABEG}, {sRB}, 163840\ns_mul_i32 {sT0}, {sW}, 40960\ns_add_u32 {sABEG}, {sABEG}, {sT0}")
        e(f"s_add_u32 {sABEG}, {sABEG}, {XNS}\ns_add_u32 {sAEND}, {sABEG}, 20480")
        self.rot_init(sA, 10, 2048)
        e(f"s_add_u32 {sA}, {sA}, {sABEG}")
        e.wait_tok(("dma", 0))
        e("s_barrier")
        visible = {0}
        for g in range(5):
            e(f"ds_read_b64 {v(vL+2*g,2)}, {v(vTC)} offset:{10240 + 128*g}")
            e(f"ds_read_b64 {v(vL4+2*g,2)}, {v(vTC)} offset:{10880 + 128*g}")
            e(f"ds_read_b64 {v(vSC+2*g,2)}, {v(vTC)} offset:{11520 + 128*g}")
            e(f"ds_read_b64 {v(vWP+2*g,2)}, {v(vTW)} offset:{128*g}")
        self.stamp(3)
        self.poll(2, TAG_XN, 8, 12, 13)
        self.stamp(4)

        acc = lambda g, cp, m: ACC + ((g * 2 + cp) * 2 + m) * 4

        def aload1(gs):
            st = gs & 1
            r = AR + (gs % 8) * 8
            out = [f"buffer_load_dwordx4 {a(r,4)}, {v(vL16B)}, {srd(R_WS)}, {sA} offen offset:{1024*st} {self.afl}",
                   f"buffer_load_dwordx4 {a(r+4,4)}, {v(vA1)}, {srd(R_WS)}, {sA} offen offset:{1024*st} {self.afl}"]
            return out + (self.adv(sA, 2048, sAEND, sABEG) if st else [])

        def bread1(n, st):
            slot = n % NS
            base, off = vRB + 2 * (slot // 3) + st, (slot % 3) * SLOT
            return [f"ds_read_b128 {a(BB + 40*st + 4*(2*g+cp),4)}, {v(base)} offset:{off + cp*10240 + g*2048}"
                    for g in range(5) for cp in range(2)]

        def mfma1(n, st):
            gs = 2 * n + st
            return [f"v_mfma_f32_16x16x32_bf16 {v(acc(g,cp,m),4)}, {a(AR + (gs%8)*8 + 4*m,4)}, "
                    f"{a(BB + 40*st + 4*(2*g+cp),4)}, {v(acc(g,cp,m),4) if gs else 0}"
                    for g in range(5) for cp in range(2) for m in range(2)]

        early = {gs: [b] for gs, b in enumerate(range(pa + pl + pb, NS))}
        plan = {n: [n - 1 + NS] for n in range(1, 10)}
        self.gemm(10, 2, 0, mfma1, bread1, aload1, 8, c["a_pre"] // 2, dma, early, plan, visible)
        self.stamp(5)

        pair = lambda g, cp, jj: acc(g, cp, jj >> 1) + 2 * (jj & 1)
        LR = "op_sel:[0,0,0] op_sel_hi:[0,1,1]"
        LI = "op_sel:[1,0,0] op_sel_hi:[1,1,1]"
        NEG = "neg_lo:[1,0,0] neg_hi:[1,0,0]"
        for g in range(5):
            Lg = v(vL + 2 * g, 2)
            sre, sim = pair(g, 0, 0), pair(g, 1, 0)
            for jj in range(1, 4):
                dre, dim = (WK, WK + 2) if jj == 2 else (SP + 4 * g, SP + 4 * g + 2)
                e(f"v_pk_fma_f32 {v(dre,2)}, {Lg}, {v(sre,2)}, {v(pair(g,0,jj),2)} {LR}")
                e(f"v_pk_fma_f32 {v(dim,2)}, {Lg}, {v(sim,2)}, {v(pair(g,1,jj),2)} {LR}")
                e(f"v_pk_fma_f32 {v(dre,2)}, {Lg}, {v(sim,2)}, {v(dre,2)} {LI} {NEG}")
                e(f"v_pk_fma_f32 {v(dim,2)}, {Lg}, {v(sre,2)}, {v(dim,2)} {LI}")
                sre, sim = dre, dim
            l4r, l4i, d = vL4 + 2 * g, vL4 + 2 * g + 1, WK + 4 + 2 * (g & 1)
            e(f"v_fma_f32 {v(d)}, {v(l4r)}, {v(sre)}, {v(sre+1)}")
            e(f"v_fma_f32 {v(d+1)}, {v(l4r)}, {v(sim)}, {v(sim+1)}")
            e(f"v_fma_f32 {v(d)}, -{v(l4i)}, {v(sim)}, {v(d)}")
            e(f"v_fma_f32 {v(d+1)}, {v(l4i)}, {v(sre)}, {v(d+1)}")
            e(f"ds_write_b64 {v(vTW)}, {v(d,2)} offset:{128*g}")
        e.wait_lg()
        e("s_barrier")
        self.stamp(6)

        skip = e.newlabel("nocomb")
        e(f"s_cmp_gt_u32 {sW}, 1\ns_cbranch_scc1 {skip}")
        s0 = e.begin_region()
        e(f"s_cmp_eq_u32 {sW}, 0\ns_cselect_b32 s88, -1, 0xffff\ns_cselect_b32 s89, -1, 0\ns_mov_b64 exec, {sEX}")
        SL = WK
        for s in range(16):
            e(f"ds_read_b64 {v(SL+2*s,2)}, {v(vCH8)} offset:{640*s}")
        for s in range(1, 16):
            e(f"v_pk_fma_f32 {v(SL+2*s,2)}, {v(vL8,2)}, {v(SL+2*s-2,2)}, {v(SL+2*s,2)} {LR}")
            e(f"v_pk_fma_f32 {v(SL+2*s,2)}, {v(vL8,2)}, {v(SL+2*s-2,2)}, {v(SL+2*s,2)} "
              "op_sel:[1,1,0] op_sel_hi:[1,0,1] neg_lo:[1,0,0]")
        MSG = SL + 30
        e(f"v_subrev_u32 v12, {SCR}, {v(vCH8)}\nv_lshlrev_b32 v12, 1, v12")
        e(f"s_add_u32 {sT0}, {sRB}, 17\ns_lshl_b32 {sT1}, {sRB}, 3\ns_add_u32 {sT1}, {sT1}, {sJ}")
        e(f"s_mul_i32 {sT1}, {sT1}, 20480\ns_add_u32 {sT1}, {sT1}, {CARRY + 8*20480}")
        lp, lend = e.newlabel("send"), e.newlabel("sent")
        e(f"s_cmp_ge_u32 {sT0}, 32\ns_cbranch_scc1 {lend}")
        s1 = e.begin_region()
        e.label(lp)
        e(f"v_readlane_b32 {sT2}, {v(vE)}, {sT0}")
        e(f"s_add_u32 {sT2}, {sT2}, {TAG_CARRY}")
        e(f"v_mov_b32 {v(MSG+2)}, {sT2}\nv_mov_b32 {v(MSG+3)}, {sT2}")
        e(f"buffer_store_dwordx4 {v(MSG,4)}, v12, {srd(R_WS)}, {sT1} offen sc1")
        e(f"s_add_u32 {sT1}, {sT1}, {8*20480 + 1280}\ns_add_u32 {sT0}, {sT0}, 1")
        e(f"s_cmp_lt_u32 {sT0}, 32\ns_cbranch_scc1 {lp}")
        e.end_region(s1, lend)
        e(f"v_mov_b32 v14, 0\nv_mov_b32 v15, 0\nds_write_b64 {v(vCH8)}, v[14:15]")
        for s in range(1, 16):
            d = WK + 36 + 2 * (s & 1)
            self.cmul(d, vSCL, SL + 2 * s - 2)
            e(f"ds_write_b64 {v(vCH8)}, {v(d,2)} offset:{640*s}")
        e("s_mov_b64 exec, -1")
        e.end_region(s0, skip)
        self.issue_dma(dma, [9 + NS])
        self.stamp(7)

        e(f"s_mul_i32 {sT0}, {sRB}, 163840\ns_mul_i32 {sT1}, {sW}, 40960\ns_add_u32 {sT0}, {sT0}, {sT1}")
        e(f"s_add_u32 {sT0}, {sT0}, {XNS}\ns_lshl_b32 {sT1}, {sJ}, 11\ns_add_u32 {sT1}, {sT1}, {sT0}")
        e(f"s_lshl_b32 {sT2}, {sJ}, 9\ns_add_u32 {sT2}, {sT2}, {sT0}\ns_add_u32 {sT2}, {sT2}, 16384")
        e("s_mov_b32 exec_hi, 0")
        for T in range(5):
            for m in range(2):
                so, imm = (sT1, 512 * T) if T < 4 else (sT2, 0)
                e(f"buffer_load_dwordx4 {a(SK + 8*T + 4*m,4)}, {v(vA1 if m else vL16B)}, {srd(R_WS)}, {so} offen offset:{imm} sc1")
        e("s_mov_b64 exec, -1")
        held = e.vm[-10:]
        dsts = [o["dst"] for o in held]
        for o in held:
            o["dst"] = set()
        e(f"v_and_b32 v12, 15, {v(vLANE)}\nv_lshrrev_b32 v13, 2, v12\nv_lshlrev_b32 v13, 3, v13")
        e("v_and_b32 v14, 1, v12\nv_lshl_add_u32 v13, v14, 2, v13\nv_bfe_u32 v14, v12, 1, 1\nv_add_u32 v13, v13, v14")
        e(f"v_mul_u32_u24 v13, 0x500, v13\nv_bfe_u32 v14, {v(vLANE)}, 4, 1\nv_lshl_add_u32 v13, v14, 4, v13")
        e("v_add_u32 v14, 2560, v13")
        e(f"s_lshl_b32 {sT0}, {sRB}, 2\ns_add_u32 {sT0}, {sT0}, {sW}\ns_mul_i32 {sT0}, {sT0}, 40960")
        e(f"s_lshl_b32 {sT1}, {sJ}, 7\ns_add_u32 {sT1}, {sT1}, {sT0}")
        e(f"s_lshl_b32 {sT2}, {sJ}, 5\ns_add_u32 {sT2}, {sT2}, {sT0}\ns_add_u32 {sT2}, {sT2}, 1024")
        e("s_mov_b32 exec_lo, 0")
        for T in range(5):
            for m in range(2):
                so, imm = (sT1, 32 * T) if T < 4 else (sT2, 0)
                e(f"buffer_load_dwordx4 {a(SK + 8*T + 4*m,4)}, v{13+m}, {srd(R_X)}, {so} offen offset:{imm}")
        e("s_mov_b64 exec, -1")
        for o, d in zip(held, dsts):
            o["dst"] = d
        self.mk_srd(R_TMP, P_DSK, 1280)
        e(f"v_lshlrev_b32 v12, 1, v12\ns_lshl_b32 {sT1}, {sJ}, 7\ns_lshl_b32 {sT2}, {sJ}, 5\ns_add_u32 {sT2}, {sT2}, 1024")
        vDS = 250
        for T in range(5):
            so, imm = (sT1, 32 * T) if T < 4 else (sT2, 0)
            e(f"buffer_load_ushort {v(vDS+T)}, v12, {srd(R_TMP)}, {so} offen offset:{imm}")

        def scale_pairs(g, re, im):
            Sg = v(vSC + 2 * g, 2)
            e(f"v_pk_mul_f32 v[14:15], {Sg}, {v(im,2)} op_sel:[1,0] op_sel_hi:[1,1] neg_lo:[1,0] neg_hi:[1,0]")
            e(f"v_pk_mul_f32 {v(im,2)}, {Sg}, {v(im,2)} op_sel:[0,0] op_sel_hi:[0,1]")
            e(f"v_pk_fma_f32 {v(im,2)}, {Sg}, {v(re,2)}, {v(im,2)} {LI}")
            e(f"v_pk_fma_f32 {v(re,2)}, {Sg}, {v(re,2)}, v[14:15] {LR}")
        for g in range(5):
            scale_pairs(g, SP + 4 * g, SP + 4 * g + 2)
            for jj in range(4):
                scale_pairs(g, pair(g, 0, jj), pair(g, 1, jj))
        e(f"v_and_b32 v12, 15, {v(vLANE)}\nv_lshrrev_b32 v13, 4, {v(vLANE)}")
        e("v_lshrrev_b32 v14, 3, v12\nv_lshlrev_b32 v14, 2, v14\nv_xor_b32 v14, v14, v12\nv_lshlrev_b32 v14, 5, v14")
        e("v_lshrrev_b32 v15, 2, v12\nv_xor_b32 v15, v15, v13\nv_lshl_add_u32 v14, v15, 3, v14")
        e(f"s_lshl_b32 {sT0}, {sW}, 11\ns_add_u32 {sT0}, {sT0}, {SCR + 12288}\nv_add_u32 {v(vTRW)}, {sT0}, v14")
        for j2 in range(2):
            e(f"v_and_b32 v14, 1, v13\nv_xor_b32 v14, {j2}, v14\nv_lshlrev_b32 v14, 2, v14")
            e(f"v_lshl_add_u32 v14, v13, 3, v14\nv_bfe_u32 v15, {v(vLANE)}, 2, 2\nv_add_u32 v14, v14, v15")
            e(f"v_lshlrev_b32 v14, 5, v14\nv_lshlrev_b32 v15, 1, v13\nv_add_u32 v15, {j2}, v15")
            e(f"v_xor_b32 v15, v15, {v(vLANE)}\nv_and_b32 v15, 3, v15\nv_lshl_add_u32 v14, v15, 3, v14")
            e(f"v_add_u32 {v(vTRR+j2)}, {sT0}, v14")
        self.stamp(8)

        skip = e.newlabel("nocarry")
        e(f"s_cmp_gt_u32 {sW}, 1\ns_cbranch_scc1 {skip}")
        s0 = e.begin_region()
        e(f"s_lshr_b32 {sT0}, {sOWN}, 10\ns_mul_i32 {sT0}, {sT0}, 20480\ns_add_u32 {sT0}, {sT0}, {CARRY}")
        e(f"s_add_u32 s{R_TMP}, s{P_WS}, {sT0}\ns_addc_u32 s{R_TMP+1}, s{P_WS+1}, 0")
        e(f"s_mul_i32 s{R_TMP+2}, {sRB}, 1280\ns_mov_b32 s{R_TMP+3}, 0x20000")
        e(f"s_add_u32 {sT1}, {sE}, {TAG_CARRY}\ns_mul_i32 {sT1}, {sT1}, {sRB}")
        e(f"s_mov_b64 exec, {sEX}")
        MG = 196
        vMA = [10, 11, 12, 13, 14]
        e(f"v_subrev_u32 v10, {SCR}, {v(vCH8)}\nv_lshlrev_b32 v10, 1, v10")
        for k in range(1, 5):
            e(f"v_add_u32 v{10+k}, {3840*k}, v10")
        lp, out = e.newlabel("cpoll"), e.newlabel("cpolled")
        e.label(lp)
        mreg = lambda dl: MG + 4 * dl if dl < 13 else (vDB, vRB)[dl - 13]
        for dl in range(15):
            e(f"buffer_load_dwordx3 {v(mreg(dl),3)}, v{vMA[dl//3]}, {srd(R_TMP)}, 0 offen offset:{1280*(dl%3)} sc1")
        e(f"s_cmp_eq_u32 {sSPIN}, 0")
        e.wait_all(lg=False)
        e(f"s_cbranch_scc1 {out}\ns_sub_u32 {sSPIN}, {sSPIN}, 1")
        e(f"v_add3_u32 v15, {v(mreg(0)+2)}, {v(mreg(1)+2)}, {v(mreg(2)+2)}")
        for k in range(3, 15, 2):
            e(f"v_add3_u32 v15, v15, {v(mreg(k)+2)}, {v(mreg(k+1)+2)}")
        e(f"v_cmp_eq_u32 vcc, {sT1}, v15")
        e(f"s_cmp_eq_u64 vcc, exec\ns_cbranch_scc0 {lp}")
        e.label(out)
        for dl in range(13, -1, -1):
            x, y = mreg(dl), mreg(dl + 1)
            e(f"v_pk_fma_f32 {v(x,2)}, {v(vL128,2)}, {v(y,2)}, {v(x,2)} {LR}")
            e(f"v_pk_fma_f32 {v(x,2)}, {v(vL128,2)}, {v(y,2)}, {v(x,2)} op_sel:[1,1,0] op_sel_hi:[1,0,1] neg_lo:[1,0,0]")
        e(f"ds_write_b64 {v(vCH8)}, {v(mreg(0),2)} offset:10240")
        e("s_mov_b64 exec, -1")
        e.end_region(s0, skip)
        e.wait_all(vm=False)
        e("s_barrier")
        self.stamp(9)

        PG = WK
        for g in range(5):
            e(f"ds_read_b64 {v(PG+4*g,2)}, {v(vTW)} offset:{128*g}")
            e(f"ds_read_b64 {v(PG+4*g+2,2)}, {v(vTC)} offset:{10240 + 128*g}")
        e(f"s_mul_i32 {sABEG}, {sRB}, 327680\ns_mul_i32 {sT0}, {sW}, 81920\ns_add_u32 {sABEG}, {sABEG}, {sT0}")
        e(f"s_add_u32 {sABEG}, {sABEG}, {HS}\ns_add_u32 {sAEND}, {sABEG}, 40960")
        e(f"s_mul_i32 {sT2}, {sJ}, 5120\ns_add_u32 {sT2}, {sT2}, {sABEG}")
        e(f"v_add_u32 {v(vA1)}, 40960, {v(vL16B)}")
        HF = WK + 20
        CV = 12

        def pass2(fl):
            for g in range(5):
                p, gg, w_ = PG + 4 * g, PG + 4 * g + 2, vWP + 2 * g
                hre, him = SP + 4 * g, SP + 4 * g + 2
                l4r, l4i = vL4 + 2 * g, vL4 + 2 * g + 1
                e(f"v_fma_f32 {v(p)}, {v(w_)}, {v(gg)}, {v(p)}\nv_fma_f32 {v(p+1)}, {v(w_)}, {v(gg+1)}, {v(p+1)}")
                e(f"v_fma_f32 {v(p)}, -{v(w_+1)}, {v(gg+1)}, {v(p)}\nv_fma_f32 {v(p+1)}, {v(w_+1)}, {v(gg)}, {v(p+1)}")
                e(f"v_fma_f32 {v(hre+1)}, {v(l4r)}, {v(p)}, {v(hre)}\nv_fma_f32 {v(him+1)}, {v(l4r)}, {v(p+1)}, {v(him)}")
                e(f"v_fma_f32 {v(hre+1)}, -{v(l4i)}, {v(p+1)}, {v(hre+1)}\nv_fma_f32 {v(him+1)}, {v(l4i)}, {v(p)}, {v(him+1)}")
                e(f"v_mov_b32 {v(hre)}, {v(p)}\nv_mov_b32 {v(him)}, {v(p+1)}")
                Lg = v(vL + 2 * g, 2)
                for jj in range(4):
                    ur, ui = pair(g, 0, jj), pair(g, 1, jj)
                    e(f"v_pk_fma_f32 {v(ur,2)}, {Lg}, {v(hre,2)}, {v(ur,2)} {LR}")
                    e(f"v_pk_fma_f32 {v(ui,2)}, {Lg}, {v(him,2)}, {v(ui,2)} {LR}")
                    e(f"v_pk_fma_f32 {v(ur,2)}, {Lg}, {v(him,2)}, {v(ur,2)} {LI} {NEG}")
                    e(f"v_pk_fma_f32 {v(ui,2)}, {Lg}, {v(hre,2)}, {v(ui,2)} {LI}")
                    hre, him = ur, ui
                for m in range(2):
                    for cp in range(2):
                        r, sg, d = acc(g, cp, m), "-" if cp else "", CV + 2 * cp
                        e(f"v_cvt_pk_bf16_f32 {v(d)}, {sg}{v(r)}, {sg}{v(r+1)}")
                        e(f"v_cvt_pk_bf16_f32 {v(d+1)}, {sg}{v(r+2)}, {sg}{v(r+3)}")
                        e(f"ds_write_b64 {v(vTRW)}, {v(d,2)} offset:{1024*m + 512*cp}")
                hf = HF + 8 * (g & 1)
                for m in range(2):
                    for j2 in range(2):
                        e(f"ds_read_b64_tr_b16 {v(hf + 4*m + 2*j2,2)}, {v(vTRR+j2)} offset:{1024*m}")
                if g:
                    store_h(g - 1, fl)
            store_h(4, fl)

        def store_h(g, fl):
            hf = HF + 8 * (g & 1)
            if g == 4:
                e(f"s_add_u32 {sT2}, {sT2}, 4096")
            for m in range(2):
                e(f"buffer_store_dwordx4 {v(hf+4*m,4)}, {v(vA1 if m else vL16B)}, {srd(R_WS)}, {sT2} offen offset:{1024*(g&3)} {fl}")
        e.wait_lg()
        self.two_flavours(pass2)
        self.stamp(10)
        e.wait_all()
        e("s_barrier")
        self.send_flags(3, TAG_HID, "0xff", sJ, None)
        visible |= set(range(10, 10 + NS))

        acc2 = lambda T, m: ACC + (T * 2 + m) * 4
        e(f"v_and_b32 v12, 15, {v(vLANE)}\nv_lshrrev_b32 v13, 1, v12\nv_bfe_u32 v14, {v(vLANE)}, 4, 1")
        e("v_lshlrev_b32 v14, 2, v14\nv_sub_u32 v13, v13, v14\nv_and_b32 v12, 1, v12\nv_lshlrev_b32 v12, 4, v12")
        for k in range(4):
            e(f"v_cmp_eq_u32 {sMSK[k]}, {k}, v13")
        e(f"v_cmp_gt_u32 vcc, 32, {v(vLANE)}\nv_mov_b32 v15, 0x3f80")
        SEL = WK
        for T in range(5):
            e(f"v_cndmask_b32 v14, v15, {v(vDS+T)}, vcc\nv_lshlrev_b32 v14, v12, v14")
            for k in range(4):
                e(f"v_cndmask_b32 {v(SEL+4*T+k)}, 0, v14, {sMSK[k]}")
        for T in range(5):
            for m in range(2):
                e(f"v_mfma_f32_16x16x32_bf16 {v(acc2(T,m),4)}, {a(SK + 8*T + 4*m,4)}, {v(SEL+4*T,4)}, 0")
        self.rot_init(sA, 10, 4096)
        e(f"s_add_u32 {sA}, {sA}, {sABEG}")
        self.poll(3, TAG_HID, 8, 12, 13)
        self.stamp(11)

        def aload2(gs):
            st = gs & 3
            r = AR + (gs % 8) * 8
            out = [f"buffer_load_dwordx4 {a(r,4)}, {v(vL16B)}, {srd(R_WS)}, {sA} offen offset:{1024*st} {self.afl}",
                   f"buffer_load_dwordx4 {a(r+4,4)}, {v(vA1)}, {srd(R_WS)}, {sA} offen offset:{1024*st} {self.afl}"]
            return out + (self.adv(sA, 4096, sAEND, sABEG) if st == 3 else [])

        def bread2(n, st):
            slot = (10 + n) % NS
            base, off = vRC + 4 * (slot // 3) + st, (slot % 3) * SLOT
            return [f"ds_read_b128 {a(BB + 20*(st&1) + 4*T,4)}, {v(base)} offset:{off + T*2048}" for T in range(5)]

        def mfma2(n, st):
            gs = 4 * n + st
            return [f"v_mfma_f32_16x16x32_bf16 {v(acc2(T,m),4)}, {a(AR + (gs%8)*8 + 4*m,4)}, "
                    f"{a(BB + 20*(st&1) + 4*T,4)}, {v(acc2(T,m),4)}" for T in range(5) for m in range(2)]

        plan = {n: [10 + n - 1 + NS] for n in range(1, 10) if 10 + n - 1 + NS < 20}
        self.gemm(10, 4, 10, mfma2, bread2, aload2, 8, c["a_pre"] // 2, dma, {}, plan, visible)
        self.stamp(12)

        self.mk_srd(R_OUT, P_OUT, 2048 * 2560)
        e(f"v_lshrrev_b32 v10, 4, {v(vLANE)}\nv_mul_u32_u24 v10, 0x5000, v10\nv_and_b32 v11, 15, {v(vLANE)}")
        e(f"v_lshl_add_u32 v10, v11, 2, v10\ns_mul_i32 {sT0}, {sJ}, 192\ns_sub_u32 {sT0}, 2048, {sT0}")
        e(f"v_add_u32 v11, {sT0}, v10")
        self.poll(4, TAG_PART, 4, 12, 13)
        self.stamp(13)
        e(f"s_lshl_b32 {sT2}, {sOWN}, 5\ns_lshl_b32 {sT0}, {sW}, 13\ns_add_u32 {sT2}, {sT2}, {sT0}")
        e(f"s_add_u32 {sT2}, {sT2}, {PART}\ns_add_u32 {sT3}, {sT2}, 4096")
        PL = 176
        for k in range(8):
            e(f"buffer_load_dwordx4 {v(PL+4*k,4)}, {v(vL16B)}, {srd(R_WS)}, {sT3 if k >= 4 else sT2} offen offset:{1024*(k&3)} sc1")
        self.epoch_bump()
        e(f"s_lshl_b32 {sT0}, {sRB}, 2\ns_add_u32 {sT0}, {sT0}, {sW}\ns_mul_i32 {sT0}, {sT0}, 81920")
        e(f"s_lshl_b32 {sT1}, {sJ}, 8\ns_add_u32 {sT0}, {sT0}, {sT1}")
        rows = [f"s{90+k}" for k in range(8)]
        for m in range(2):
            for r in range(4):
                e(f"s_add_u32 {rows[4*m+r]}, {sT0}, {(4*(r&1) + 2*m + (r>>1)) * 2560}")
        for k in range(8):
            T = min(k, 4)
            for i in range(4):
                d = acc2(T, i >> 1) + 2 * (i & 1)
                t0 = 12 + 2 * (i & 1)
                e(f"v_lshlrev_b32 {v(t0)}, 16, {v(PL+4*k+i)}\nv_and_b32 {v(t0+1)}, 0xffff0000, {v(PL+4*k+i)}")
                e(f"v_pk_add_f32 {v(d,2)}, {v(d,2)}, {v(t0,2)}")
            if k < 4 or k == 7:
                for m in range(2):
                    for r in range(4):
                        e(f"buffer_store_dword {v(acc2(T,m)+r)}, {'v10' if T < 4 else 'v11'}, {srd(R_OUT)}, "
                          f"{rows[4*m+r]} offen offset:{64*T if T < 4 else 0}")
        self.stamp(14)
        self.finish()

    def epoch_bump(self):
        e = self.e
        skip = e.newlabel("nobump")
        e(f"s_cmp_lg_u32 {sW}, 0\ns_cbranch_scc1 {skip}")
        s0 = e.begin_region()
        e(f"s_add_u32 {sT0}, {sE}, 0x100\nv_mov_b32 v12, {sT0}\nv_mov_b32 v13, 0\ns_mov_b64 exec, 1")
        e(f"buffer_store_dword v12, v13, {srd(R_WS)}, {sOWN} offen sc1")
        e("s_mov_b64 exec, -1")
        e.end_region(s0, skip)

    def finish(self):
        e = self.e
        if self.c["diag"]:
            e.wait_all()
            self.stamp(15)
            self.flush_stamp()
            e(f"s_lshr_b32 {sT0}, {sOWN}, 10\ns_lshl_b32 {sT0}, {sT0}, 2\ns_add_u32 {sT0}, {sT0}, {sW}")
            e(f"s_lshl_b32 {sT0}, {sT0}, 8\ns_add_u32 {sT0}, {sT0}, {STAMP}")
            e(f"v_lshlrev_b32 v12, 2, {v(vLANE)}")
            e(f"buffer_store_dword {v(vSTAMP)}, v12, {srd(R_WS)}, {sT0} offen")
        e("s_endpgm")

    def mlp(self):
        e, c = self.e, self.c
        NS, SLOT = 6, 24576
        vD1, vD2 = 16, 19
        vR1, vR2, vA2 = 24, 30, 36
        ACC, WK = 96, 192
        X, U = 96, 116
        AR, BB = 0, 64

        self.epoch_loads(False)
        self.ln_loads(False, X)
        self.code_prefetch("L_mlp", "L_end")
        self.mk_srd(R_1A, P_W1, 640 * 3072)
        self.mk_srd(R_2A, P_W2, 1536 * 1280)
        e(f"s_mul_i32 {sM0A}, {sW}, 6144\ns_lshl_b32 {sM0B}, {sW}, 12")
        e(f"s_mul_i32 {sT0}, {sW}, 49152\ns_mul_i32 {sT1}, {sJ}, 384\ns_add_u32 {sT0}, {sT0}, {sT1}")
        e(f"s_mov_b32 {sT2}, 0xaaaaaab")
        for i in range(3):
            e(f"v_add_u32 v12, {64*i}, {v(vLANE)}\nv_mul_hi_u32 v13, v12, {sT2}")
            e("v_mul_u32_u24 v14, 24, v13\nv_sub_u32 v12, v12, v14\nv_bfe_u32 v14, v13, 1, 1")
            e("v_lshlrev_b32 v14, 2, v14\nv_xor_b32 v12, v12, v14\nv_lshlrev_b32 v12, 4, v12")
            e("v_mul_u32_u24 v13, 0xc00, v13\nv_add_u32 v12, v12, v13")
            e(f"s_sub_u32 {sT1}, {sT0}, {1024*i}\nv_add_u32 {v(vD1+i)}, {sT1}, v12")
        e(f"v_lshrrev_b32 v12, 3, {v(vLANE)}\nv_and_b32 v13, 7, {v(vLANE)}\nv_bfe_u32 v14, v12, 1, 1")
        e("v_lshlrev_b32 v14, 2, v14\nv_xor_b32 v13, v13, v14\nv_lshlrev_b32 v13, 4, v13")
        e("v_mul_u32_u24 v12, 0x500, v12\nv_add_u32 v12, v12, v13")
        e(f"s_add_u32 {sT0}, {sJ}, {sW}\ns_and_b32 {sT0}, {sT0}, 3\ns_mul_i32 {sT0}, {sT0}, 40960")
        e(f"s_lshl_b32 {sT1}, {sJ}, 7\ns_add_u32 {sT0}, {sT0}, {sT1}")
        for i in range(4):
            e(f"s_add_u32 {sT1}, {sT0}, {9216*i}\nv_add_u32 {v(vD2+i)}, {sT1}, v12")
        e(f"s_and_b32 {sT0}, {sJ}, 3\ns_lshl_b32 {sT0}, {sT0}, 2\ns_add_u32 {sT0}, {sT0}, {sW}")
        e(f"s_mul_i32 {sT0}, {sT0}, 10240\ns_lshr_b32 {sT1}, {sJ}, 2\ns_lshl_b32 {sT1}, {sT1}, 7")
        e(f"s_add_u32 {sT0}, {sT0}, {sT1}\ns_add_u32 {sT0}, {sT0}, 1024\nv_add_u32 {v(vD2+4)}, {sT0}, v12")
        sM0C = "s15"
        e(f"s_lshl_b32 {sM0C}, {sW}, 10\ns_add_u32 {sM0C}, {sM0C}, 16384")
        self.rot_init(sWO1, 10, 196608)
        self.rot_init(sWO2, 12, 163840)

        def dma(b):
            base = (b % NS) * SLOT
            if b < 10:
                out = [f"s_add_u32 m0, {sM0A}, {base}", f"s_add_u32 {sWO1B}, {sWO1}, 24576"]
                out += [f"buffer_load_dwordx4 {v(vD1+i)}, {srd(R_1A)}, {sWO1} offen offset:{1024*i} lds" for i in range(3)]
                out += [f"s_add_u32 m0, {sM0A}, {base + 3072}"]
                out += self.adv(sWO1, 196608, 1966080, 0)
                out += [f"buffer_load_dwordx4 {v(vD1+i)}, {srd(R_1A)}, {sWO1B} offen offset:{1024*i} lds" for i in range(3)]
                return out
            out = [f"s_add_u32 m0, {sM0B}, {base}"]
            out += [f"buffer_load_dwordx4 {v(vD2+i)}, {srd(R_2A)}, {sWO2} offen offset:{1024*i} lds" for i in range(4)]
            out += [f"s_add_u32 m0, {sM0C}, {base}"]
            out += [f"buffer_load_dwordx4 {v(vD2+4)}, {srd(R_2A)}, {sWO2} offen lds"]
            return out + self.adv(sWO2, 163840, 1966080, 0)

        pa, pl, pb = c["pre_a"], c["pre_ln"], c["pre_b"]
        self.hello()
        self.issue_dma(dma, range(pa))
        self.stamp(1)
        self.ln_compute(False, X, U, [(i, ("dma", b)) for b in range(pa, pa + pl) for i in dma(b)])
        self.stamp(2)
        self.issue_dma(dma, range(pa + pl, pa + pl + pb))
        e(f"v_bfe_u32 v12, {v(vLANE)}, 2, 2\nv_lshrrev_b32 v13, 5, {v(vLANE)}")
        e(f"v_bfe_u32 v14, {v(vLANE)}, 4, 1\nv_lshlrev_b32 v14, 5, v14\nv_and_b32 v15, 3, {v(vLANE)}")
        e("v_lshl_add_u32 v14, v15, 3, v14\nv_lshrrev_b32 v15, 1, v12\nv_lshlrev_b32 v15, 6, v15")
        e("v_lshl_add_u32 v10, v13, 3, v12\nv_mul_u32_u24 v10, 0x180, v10\nv_add_u32 v10, v10, v14")
        e("v_add_u32 v11, 64, v10\nv_sub_u32 v11, v11, v15\nv_add_u32 v10, v10, v15")
        for k in range(3):
            e(f"v_add_u32 {v(vR1+2*k)}, {49152*k}, v10\nv_add_u32 {v(vR1+2*k+1)}, {49152*k}, v11")
        e("v_lshl_add_u32 v10, v13, 2, v12\nv_lshlrev_b32 v10, 7, v10\nv_add_u32 v10, v10, v14\nv_add_u32 v10, v10, v15")
        for k in range(3):
            e(f"v_add_u32 {v(vR2+2*k)}, {49152*k}, v10\nv_xor_b32 {v(vR2+2*k+1)}, 64, {v(vR2+2*k)}")
        for p in range(4):
            e(f"s_add_u32 {sT0}, {sJ}, {p}\ns_and_b32 {sT0}, {sT0}, 3\ns_lshl_b32 {sT0}, {sT0}, 11")
            e(f"v_add_u32 {v(vA2+p)}, {sT0}, {v(vL16B)}")
        e(f"s_mul_i32 {sABEG}, {sRB}, 163840\ns_mul_i32 {sT0}, {sW}, 40960\ns_add_u32 {sABEG}, {sABEG}, {sT0}")
        e(f"s_add_u32 {sABEG}, {sABEG}, {XNM}\ns_add_u32 {sAEND}, {sABEG}, 40960")
        self.rot_init(sA, 10, 4096)
        e(f"s_add_u32 {sA}, {sA}, {sABEG}")
        e.wait_tok(("dma", 0))
        e("s_barrier")
        visible = {0}
        self.stamp(3)
        self.poll(2, TAG_XN, 8, 12, 13)
        self.stamp(4)

        def aload1(gs):
            st = gs & 3
            out = [f"buffer_load_dwordx4 {a(AR + (gs%16)*4,4)}, {v(vL16B)}, {srd(R_WS)}, {sA} offen offset:{1024*st} {self.afl}"]
            return out + (self.adv(sA, 4096, sAEND, sABEG) if st == 3 else [])

        def bread1(n, st):
            slot = n % NS
            off = (slot % 2) * SLOT + st * 6144
            return [f"ds_read_b64_tr_b16 {a(BB + 24*(st&1) + 4*F + 2*j2,2)}, {v(vR1 + 2*(slot//2) + (F&1))} "
                    f"offset:{off + j2*1536 + (F>>1)*128}" for F in range(6) for j2 in range(2)]

        def mfma1(n, st):
            gs = 4 * n + st
            return [f"v_mfma_f32_32x32x16_bf16 {v(ACC+16*F,16)}, {a(BB + 24*(st&1) + 4*F,4)}, "
                    f"{a(AR + (gs%16)*4,4)}, {v(ACC+16*F,16) if gs else 0}" for F in range(6)]

        early = {2 * k: [b] for k, b in enumerate(range(pa + pl + pb, NS))}
        plan = {n: [n - 1 + NS] for n in range(1, 10)}
        self.gemm(10, 4, 0, mfma1, bread1, aload1, 16, c["a_pre"], dma, early, plan, visible)
        self.stamp(5)

        e(f"s_mul_i32 {sABEG}, {sRB}, 393216\ns_mul_i32 {sT0}, {sW}, 98304\ns_add_u32 {sABEG}, {sABEG}, {sT0}")
        e(f"s_add_u32 {sABEG}, {sABEG}, {HM}\ns_add_u32 {sAEND}, {sABEG}, 98304")
        e(f"s_mul_i32 {sT2}, {sJ}, 12288\ns_add_u32 {sT2}, {sT2}, {sABEG}")

        def relu_store(fl):
            for F in range(6):
                if F in (2, 4):
                    e(f"s_add_u32 {sT2}, {sT2}, 4096")
                for h in range(2):
                    d = WK + 4 * ((2 * F + h) & 3)
                    for k in range(4):
                        r = ACC + 16 * F + 8 * h + 2 * k
                        e(f"v_cvt_pk_bf16_f32 {v(d+k)}, {v(r)}, {v(r+1)}")
                    for k in range(4):
                        e(f"v_pk_max_i16 {v(d+k)}, {v(d+k)}, 0")
                    e(f"buffer_store_dwordx4 {v(d,4)}, {v(vL16B)}, {srd(R_WS)}, {sT2} offen offset:{1024*((2*F+h)&3)} {fl}")
        self.two_flavours(relu_store)
        self.stamp(10)
        e.wait_all()
        e("s_barrier")
        self.send_flags(3, TAG_HID, "0xff", sJ, None)
        visible |= set(range(10, 9 + NS))
        self.issue_dma(dma, [9 + NS])
        self.rot_init(sA, 12, 8192)
        e(f"s_add_u32 {sA}, {sA}, {sABEG}")
        self.poll(3, TAG_HID, 8, 12, 13)
        self.stamp(11)

        def aload2(gs):
            st = gs & 7
            out = [f"buffer_load_dwordx4 {a(AR + (gs%16)*4,4)}, {v(vA2 + (st>>1))}, {srd(R_WS)}, {sA} offen offset:{1024*(st&1)} {self.afl}"]
            return out + (self.adv(sA, 8192, sAEND, sABEG) if st == 7 else [])

        def tiles2(st):
            return range(4 if st < 2 else 2)

        def bread2(n, st):
            slot = (10 + n) % NS
            off = (slot % 2) * SLOT + st * 2048
            return [f"ds_read_b64_tr_b16 {a(BB + 16*(st&1) + 4*t + 2*j2,2)}, {v(vR2 + 2*(slot//2) + (t&1))} "
                    f"offset:{off + j2*1024 + (t>>1)*16384}" for t in tiles2(st) for j2 in range(2)]

        def mfma2(n, st):
            gs = 8 * n + st
            return [f"v_mfma_f32_32x32x16_bf16 {v(ACC+16*t,16)}, {a(AR + (gs%16)*4,4)}, "
                    f"{a(BB + 16*(st&1) + 4*t,4)}, {v(ACC+16*t,16) if gs else 0}" for t in tiles2(st)]

        plan = {n: [10 + n - 1 + NS] for n in range(1, 12) if 10 + n - 1 + NS < 22}
        self.gemm(12, 8, 10, mfma2, bread2, aload2, 16, c["a_pre"], dma, {}, plan, visible)
        self.stamp(12)

        e(f"v_lshrrev_b32 v10, 5, {v(vLANE)}\nv_lshlrev_b32 v10, 8, v10\nv_and_b32 v11, 15, {v(vLANE)}")
        e(f"v_lshl_add_u32 v10, v11, 4, v10\nv_bfe_u32 v12, {v(vLANE)}, 4, 1")
        e("v_lshl_add_u32 v11, v12, 15, v10\nv_lshl_add_u32 v10, v12, 10, v10")
        e(f"s_lshl_b32 {sT0}, {sRB}, 18\ns_lshl_b32 {sT1}, {sW}, 13\ns_add_u32 {sT0}, {sT0}, {sT1}\ns_add_u32 {sT0}, {sT0}, {PART}")
        e(f"s_lshl_b32 {sT1}, {sJ}, 15\ns_add_u32 {sT1}, {sT1}, {sT0}")
        e(f"s_and_b32 {sT2}, {sJ}, 4\ns_lshl_b32 {sT2}, {sT2}, 15\ns_add_u32 {sT2}, {sT2}, {sT0}")
        e(f"s_and_b32 {sT3}, {sJ}, 3\ns_lshl_b32 {sT3}, {sT3}, 10\ns_add_u32 {sT2}, {sT2}, {sT3}")
        e(f"s_add_u32 {sT2}, {sT2}, 4096\ns_add_u32 {sT3}, {sT2}, 65536")
        for t in range(4):
            for Pp in range(2):
                d = WK + 4 * ((2 * t + Pp) & 3)
                for k in range(4):
                    r = ACC + 16 * t + 8 * Pp + 2 * k
                    e(f"v_cvt_pk_bf16_f32 {v(d+k)}, {v(r)}, {v(r+1)}")
                if t < 2:
                    e(f"buffer_store_dwordx4 {v(d,4)}, v10, {srd(R_WS)}, {sT1} offen offset:{2048*t + 512*Pp} sc1")
                else:
                    e(f"buffer_store_dwordx4 {v(d,4)}, v11, {srd(R_WS)}, {sT2 if t == 2 else sT3} offen offset:{512*Pp} sc1")
        self.stamp(13)
        e.wait_all()
        e("s_barrier")
        e(f"s_and_b32 {sT3}, {sJ}, 3")
        self.send_flags(4, TAG_PART, "0xf0000", sT3, "sc1")
        self.epoch_bump()
        self.stamp(14)
        self.finish()

    def build(self):
        e = self.e
        self.entry()
        snap = e.begin_region()
        pend, nst = self.pending_stamp, self.nstamp
        self.ssm()
        e.vm, e.lg, e.hist = list(snap["vm"]), list(snap["lg"]), []
        self.pending_stamp, self.nstamp = pend, nst
        e.label("L_mlp")
        self.mlp()
        e.label("L_end")
        e("s_endpgm")
        ref = open(f"cdna_kernels/{NAME}.s.ref").read()
        head = ref.split("; Override launch")[0]
        out = head
        out += "; Persistent kernel: one workgroup per CU, SSM chain and MLP chain on separate workgroup sets.\n"
        out += f"; @launch grid=(256,1,1) block=(256,1,1) lds={LDS_BYTES}\n"
        out += '.amdgcn_target "amdgcn-amd-amdhsa--gfx950"\n.text\n'
        out += f".globl {KERNEL}\n.p2align 8\n.type {KERNEL},@function\n{KERNEL}:\n"
        out += e.text()
        out += f""".section .rodata,"a"
.p2align 6
.amdhsa_kernel {KERNEL}
  .amdhsa_next_free_vgpr 512
  .amdhsa_next_free_sgpr 102
  .amdhsa_accum_offset 256
  .amdhsa_group_segment_fixed_size 0
  .amdhsa_kernarg_size 120
  .amdhsa_user_sgpr_count 2
  .amdhsa_user_sgpr_kernarg_segment_ptr 1
  .amdhsa_system_sgpr_workgroup_id_x 1
  .amdhsa_float_denorm_mode_32 3
.end_amdhsa_kernel
"""
        return out


def parse_cfg(args):
    cfg = {}
    for s in args:
        k, val = s.split("=")
        cfg[k] = type(DEFAULTS[k])(int(val))
    return cfg


if __name__ == "__main__":
    path = sys.argv[1]
    g = Gen(**parse_cfg(sys.argv[2:]))
    open(path, "w").write(g.build())
    print(path, "lines", len(g.e.lines), "nop slots", g.e.nops)
```

```python
import os
import sys

sys.path.insert(0, os.path.dirname(os.path.abspath(__file__)))
from emit import Emitter

NAME = "parallel_sum__ssm_conv_s5__dense_activation_relu__prompt"
KERNEL = NAME + "_kernel"

INBOX = 0x0
CARRY = 0x40000
XNS = 0x300000
XNM = 0x580000
HS = 0x800000
HM = 0xD00000
PART = 0x1300000
STAMP = 0x1700000
WS_USED = 0x1800000

LDS_BYTES = 163840
SCR = 143360
SPIN_LIMIT = 1 << 15

TAG_UNUSED, TAG_XN, TAG_HID, TAG_PART, TAG_CARRY = 16, 32, 48, 64, 80

DEFAULTS = dict(
    diag=False,
    chain_bit=2,
    swap=True, rot=True, rot_x=1, codepf=True,
    pre_a=1, pre_ln=1, pre_b=1, a_pre=4,
    xq_xor=2, touch=True,
    ab_nomfma=False, ab_nobread=False, ab_noaload=False, ab_nodma=False, a_flag=1, blkstamp=False, clk=False,
)

P_X, P_LRE, P_LIM, P_BRE, P_BIM, P_CRE, P_CIM, P_LDT = 16, 18, 20, 22, 24, 26, 28, 30
P_DSK, P_BX, P_W1, P_W2, P_OUT, P_DBG, P_WS = 32, 34, 36, 38, 40, 42, 44
R_X, R_WS, R_1A, R_1B, R_2A, R_2B, R_OUT, R_TMP = 48, 52, 56, 60, 64, 68, 72, 76
sRB, sJ, sW, sEC, sE, sCH, sOWN, sSPIN = "s3", "s4", "s5", "s6", "s7", "s8", "s9", "s10"
sT0, sT1, sT2, sT3 = "s11", "s12", "s13", "s14"
sWO1, sWO2, sWO1B = "s80", "s81", "s82"
sA, sABEG, sAEND = "s83", "s84", "s85"
sM0A, sM0B = "s86", "s87"
sEX = "s[88:89]"
sMSK = [f"s[{90+2*k}:{91+2*k}]" for k in range(4)]
sST = ["s[98:99]", "s[100:101]"]


def v(a, n=1):
    return f"v{a}" if n == 1 else f"v[{a}:{a+n-1}]"


def a(b, n=1):
    return f"a{b}" if n == 1 else f"a[{b}:{b+n-1}]"


def srd(b):
    return f"s[{b}:{b+3}]"


vTID, vLANE, vL16B, vE, vINB, vFLG, vSTAMP = 0, 1, 2, 3, 4, 5, 6


class Gen:
    def __init__(self, **cfg):
        self.c = dict(DEFAULTS)
        self.c.update(cfg)
        self.e = Emitter()
        self.nstamp = 0
        self.pending_stamp = None
        self.afl = {0: "", 1: "sc1", 2: "nt", 3: "sc0"}[self.c["a_flag"]]

    def stamp(self, k):
        if not self.c["diag"]:
            return
        e = self.e
        self.flush_stamp()
        reg = sST[self.nstamp & 1]
        self.nstamp += 1
        e(f"s_memrealtime {reg}")
        self.pending_stamp = (k, reg)
        if k < 16 and self.c["clk"]:
            self.flush_stamp()
            e(f"s_memtime {reg}")
            self.pending_stamp = (k + 48, reg)

    def flush_stamp(self):
        if self.pending_stamp:
            k, reg = self.pending_stamp
            lo = reg[2:].split(":")[0]
            self.e(f"v_writelane_b32 {v(vSTAMP)}, s{lo}, {k}")
            self.pending_stamp = None

    def mk_srd(self, r, ptr, nbytes):
        e = self.e
        e(f"s_mov_b32 s{r}, s{ptr}\ns_mov_b32 s{r+1}, s{ptr+1}")
        e(f"s_mov_b32 s{r+2}, {nbytes}\ns_mov_b32 s{r+3}, 0x20000")

    def mk_srd_sel(self, r, p_lo, p_hi, nbytes):
        e = self.e
        e(f"s_cselect_b32 s{r}, s{p_lo}, s{p_hi}\ns_cselect_b32 s{r+1}, s{p_lo+1}, s{p_hi+1}")
        e(f"s_mov_b32 s{r+2}, {nbytes}\ns_mov_b32 s{r+3}, 0x20000")

    def cmul(self, d, x, y):
        e = self.e
        e(f"v_pk_mul_f32 {v(d,2)}, {v(x,2)}, {v(y,2)} op_sel:[0,0] op_sel_hi:[0,1]")
        e(f"v_pk_fma_f32 {v(d,2)}, {v(x,2)}, {v(y,2)}, {v(d,2)} op_sel:[1,1,0] op_sel_hi:[1,0,1] neg_lo:[1,0,0]")

    def cfma(self, d, x, y, z):
        e = self.e
        e(f"v_pk_fma_f32 {v(d,2)}, {v(x,2)}, {v(y,2)}, {v(z,2)} op_sel:[0,0,0] op_sel_hi:[0,1,1]")
        e(f"v_pk_fma_f32 {v(d,2)}, {v(x,2)}, {v(y,2)}, {v(d,2)} op_sel:[1,1,0] op_sel_hi:[1,0,1] neg_lo:[1,0,0]")

    def round_bf16(self, r):
        e = self.e
        e(f"v_cvt_pk_bf16_f32 {v(r)}, {v(r)}, {v(r)}\nv_lshlrev_b32 {v(r)}, 16, {v(r)}")

    def rot_init(self, dst, nb, stride):
        e = self.e
        if not self.c["rot"]:
            e(f"s_mov_b32 {dst}, 0")
            return
        e(f"s_and_b32 {sT0}, {sRB}, 3\ns_mul_i32 {sT0}, {sT0}, {nb}\ns_lshr_b32 {sT0}, {sT0}, 2")
        e(f"s_lshr_b32 {sT1}, {sRB}, 2\ns_mul_i32 {sT1}, {sT1}, {self.c['rot_x']}\ns_add_u32 {sT0}, {sT0}, {sT1}")
        e(f"s_sub_u32 {sT1}, {sT0}, {nb}\ns_cselect_b32 {sT0}, {sT0}, {sT1}")
        e(f"s_mul_i32 {dst}, {sT0}, {stride}")

    @staticmethod
    def adv(reg, stride, end, beg):
        return [f"s_add_u32 {reg}, {reg}, {stride}", f"s_cmp_eq_u32 {reg}, {end}",
                f"s_cselect_b32 {reg}, {beg}, {reg}"]

    def send_flags(self, line, tag, lanes, word):
        e = self.e
        skip = e.newlabel("nosend")
        e(f"s_cmp_lg_u32 {sW}, 0\ns_cbranch_scc1 {skip}")
        s0 = e.begin_region()
        e(f"v_add_u32 {v(vFLG)}, {tag}, {v(vE)}")
        e(f"s_lshl_b32 {sT0}, {word}, 2\ns_add_u32 {sT0}, {sT0}, {INBOX + 128*line}")
        e(f"s_mov_b64 exec, {lanes}")
        e(f"buffer_store_dword {v(vFLG)}, {v(vINB)}, {srd(R_WS)}, {sT0} offen sc1")
        e("s_mov_b64 exec, -1")
        e.end_region(s0, skip)

    def poll(self, line, tag, nwords, tmp, tmp2):
        e = self.e
        lp, out = e.newlabel("poll"), e.newlabel("polled")
        e(f"v_and_b32 {v(tmp2)}, {nwords-1}, {v(vLANE)}\nv_lshlrev_b32 {v(tmp2)}, 2, {v(tmp2)}")
        e(f"s_add_u32 {sT0}, {sOWN}, {INBOX + 128*line}\ns_add_u32 {sT1}, {sE}, {tag}")
        e.label(lp)
        e(f"buffer_load_dword {v(tmp)}, {v(tmp2)}, {srd(R_WS)}, {sT0} offen sc1")
        e(f"s_cmp_eq_u32 {sSPIN}, 0")
        e.wait_all(lg=False)
        e(f"s_cbranch_scc1 {out}\ns_sub_u32 {sSPIN}, {sSPIN}, 1")
        e(f"v_cmp_eq_u32 vcc, {sT1}, {v(tmp)}")
        e(f"s_cmp_eq_u64 vcc, exec\ns_cbranch_scc0 {lp}")
        e.label(out)

    def entry(self):
        e, c = self.e, self.c
        X = 96
        e("s_cmp_ge_u32 s2, 256\ns_cbranch_scc1 L_end")
        e("s_load_dwordx2 s[44:45], s[0:1], 112\ns_load_dwordx16 s[16:31], s[0:1], 0")
        e("s_load_dwordx8 s[32:39], s[0:1], 64\ns_load_dwordx4 s[40:43], s[0:1], 96")
        if c["diag"]:
            e(f"v_mov_b32 {v(vSTAMP)}, 0")
        self.stamp(0)
        e(f"s_lshr_b32 {sT0}, s2, 3\ns_bfe_u32 {sCH}, s2, 0x10002")
        if c["swap"]:
            e(f"s_xor_b32 {sCH}, {sCH}, 1")
        if c["codepf"]:
            skip, here = e.newlabel("nopf"), e.newlabel("pc")
            e("s_getpc_b64 s[88:89]")
            e.label(here)
            e(f"s_cmp_eq_u32 {sCH}, 0\ns_cselect_b32 {sT1}, 0, L_mlp-{here}")
            e(f"s_mov_b32 {sT2}, L_end-{here}\ns_cselect_b32 {sT2}, L_mlp-{here}, {sT2}")
            e(f"s_lshl_b32 {sT3}, {sT0}, 7\ns_add_u32 {sT3}, {sT3}, {sT1}")
            e(f"v_lshl_add_u32 v12, v0, 12, {sT3}\nv_cmp_gt_u32 vcc, {sT2}, v12")
            e(f"s_and_saveexec_b64 s[90:91], vcc\ns_cbranch_execz {skip}")
            s0 = e.begin_region()
            e("v_mov_b32 v13, s89\nv_add_co_u32 v12, vcc, s88, v12\nv_addc_co_u32 v13, vcc, 0, v13, vcc")
            e("global_load_dword v255, v[12:13], off")
            e.vm[-1]["dst"] = set()
            e.end_region(s0, skip)
            e("s_mov_b64 exec, -1")
        e(f"s_and_b32 {sJ}, {sT0}, 7\ns_lshr_b32 {sT0}, {sT0}, 3\ns_and_b32 {sT1}, s2, 3")
        e(f"s_cmp_eq_u32 {sCH}, 0\ns_cselect_b32 {sT2}, {c['xq_xor']}, 0\ns_cselect_b32 {sT3}, 16, 2")
        e(f"s_xor_b32 {sT1}, {sT1}, {sT2}\ns_lshl_b32 {sT1}, {sT1}, 2\ns_add_u32 {sRB}, {sT1}, {sT0}")
        e("v_lshrrev_b32 v8, 4, v0\nv_and_b32 v9, 15, v0")
        e("v_and_b32 v10, 1, v8\nv_lshlrev_b32 v10, 2, v10\nv_bfe_u32 v11, v8, 1, 1\nv_add_u32 v10, v10, v11")
        e("v_bfe_u32 v11, v8, 2, 1\nv_lshl_add_u32 v10, v11, 3, v10")
        e(f"v_lshrrev_b32 v11, 3, v8\nv_mad_u32_u24 v10, v11, {sT3}, v10")
        e("v_mul_u32_u24 v10, 0x500, v10\nv_lshl_add_u32 v10, v9, 4, v10")
        e(f"s_sub_u32 {sT3}, 18, {sT3}\ns_and_b32 {sT1}, {sJ}, 1\ns_mul_i32 {sT1}, {sT1}, {sT3}")
        e(f"s_lshr_b32 {sT0}, {sJ}, 1\ns_lshl_b32 {sT0}, {sT0}, 5\ns_add_u32 {sT0}, {sT0}, {sT1}")
        e(f"s_lshl_b32 {sT1}, {sRB}, 7\ns_add_u32 {sT0}, {sT0}, {sT1}\ns_mul_i32 {sT0}, {sT0}, 1280")
        e(f"s_mov_b32 s{R_X+2}, {2048*1280}\ns_mov_b32 s{R_X+3}, 0x20000")
        e(f"s_mov_b32 s{R_X}, s{P_X}\ns_mov_b32 s{R_X+1}, s{P_X+1}")
        for n in range(5):
            e(f"buffer_load_dwordx4 {v(X+4*n,4)}, v10, {srd(R_X)}, {sT0} offen offset:{256*n}")
        e(f"v_lshrrev_b32 v7, 6, v0\nv_and_b32 {v(vLANE)}, 63, v0")
        e(f"v_readfirstlane_b32 {sW}, v7")
        e(f"v_lshlrev_b32 {v(vL16B)}, 4, {v(vLANE)}")
        e(f"s_lshl_b32 {sOWN}, {sCH}, 4\ns_add_u32 {sOWN}, {sOWN}, {sRB}")
        e(f"s_lshl_b32 {sOWN}, {sOWN}, 3\ns_add_u32 {sOWN}, {sOWN}, {sJ}\ns_lshl_b32 {sOWN}, {sOWN}, 10")
        e(f"s_mov_b32 {sSPIN}, {SPIN_LIMIT}")
        self.mk_srd(R_WS, P_WS, WS_USED)
        e(f"s_and_b32 {sT0}, {sOWN}, {~0x1FFF & 0xFFFFFFFF}")
        e(f"v_and_b32 v11, 7, {v(vLANE)}\nv_lshl_add_u32 {v(vINB)}, v11, 10, {sT0}")
        e(f"s_lshl_b32 {sT0}, {sRB}, 3\ns_and_b32 {sT1}, {sJ}, 4\ns_add_u32 {sT0}, {sT0}, {sT1}")
        e(f"s_add_u32 {sT1}, {sJ}, 120\ns_cmp_eq_u32 {sCH}, 0\ns_cselect_b32 {sT0}, {sT1}, {sT0}")
        e(f"s_cselect_b32 {sT1}, 0, 3\ns_lshl_b32 {sT0}, {sT0}, 10")
        e(f"v_and_b32 v11, {sT1}, {v(vLANE)}\nv_lshl_add_u32 v11, v11, 10, {sT0}")
        e(f"v_cmp_gt_u32 vcc, 16, {v(vLANE)}")
        e(f"v_cndmask_b32 {v(vINB)}, v11, {v(vINB)}, vcc")
        e(f"buffer_load_dword {v(vE)}, {v(vINB)}, {srd(R_WS)}, 0 offen sc1")
        if c["touch"]:
            e(f"v_and_b32 v11, 7, {v(vLANE)}\nv_lshlrev_b32 v11, 7, v11")
            e(f"buffer_load_dword v255, v11, {srd(R_WS)}, {sOWN} offen")
            e.vm[-1]["dst"] = set()
        e(f"s_cmp_eq_u32 {sCH}, 0\ns_cbranch_scc0 L_mlp")

    def ln_compute(self, ssm, X, U, fill):
        e = self.e
        for k in range(20):
            e(f"v_lshlrev_b32 {v(U+2*k)}, 16, {v(X+k)}\nv_and_b32 {v(U+2*k+1)}, 0xffff0000, {v(X+k)}")
            if k >= 16:
                for ins, tok in fill[(k - 16) * len(fill) // 4:(k - 15) * len(fill) // 4]:
                    e(ins, tok=tok)
            if k in (0, 19):
                self.stamp(40 + k // 19)
            if k == 1:
                e(f"v_pk_add_f32 v[12:13], {v(U,2)}, {v(U+2,2)}")
            elif k > 1:
                e(f"v_pk_add_f32 v[12:13], v[12:13], {v(U+2*k,2)}")

        def rowsum(r):
            for sh in (8, 4, 2, 1):
                e(f"v_add_f32_dpp {v(r)}, {v(r)}, {v(r)} row_ror:{sh} row_mask:0xf bank_mask:0xf")

        inv_d = "0x3acccccd"
        e("v_add_f32 v12, v12, v13")
        rowsum(12)
        e(f"v_mul_f32 v12, {inv_d}, v12\nv_mov_b32 v14, v12")
        self.round_bf16(14)
        e("v_sub_f32 v15, v12, v14")
        for k in range(20):
            e(f"v_pk_add_f32 {v(U+2*k,2)}, {v(U+2*k,2)}, v[14:15] op_sel_hi:[1,0] neg_lo:[0,1] neg_hi:[0,1]")
        for k in range(20):
            if k == 0:
                e(f"v_pk_mul_f32 v[12:13], {v(U,2)}, {v(U,2)}")
            else:
                e(f"v_pk_fma_f32 v[12:13], {v(U+2*k,2)}, {v(U+2*k,2)}, v[12:13]")
        e("v_add_f32 v12, v12, v13")
        rowsum(12)
        e(f"v_mul_f32 v12, {inv_d}, v12\nv_fma_f32 v12, -v15, v15, v12\nv_max_f32 v12, 0, v12")
        self.round_bf16(12)
        e("v_add_f32 v12, 0x3727c5ac, v12")
        self.round_bf16(12)
        e("v_sqrt_f32 v12, v12")
        self.round_bf16(12)
        e("v_rcp_f32 v12, v12")
        scr = SCR
        e("v_xor_b32 v10, v8, v9\nv_lshlrev_b32 v10, 4, v10\nv_lshl_add_u32 v10, v9, 8, v10")
        e(f"v_add_u32 v10, {scr}, v10")
        for n in range(5):
            for k in range(4 * n, 4 * n + 4):
                e(f"v_pk_mul_f32 {v(U+2*k,2)}, {v(U+2*k,2)}, v[12:13] op_sel_hi:[1,0]")
            for k in range(4 * n, 4 * n + 4):
                e(f"v_cvt_pk_bf16_f32 {v(X+k)}, {v(U+2*k)}, {v(U+2*k+1)}")
            e(f"ds_write_b128 v10, {v(X+4*n,4)} offset:{4096*n}")
        e(f"v_lshrrev_b32 v11, 4, {v(vLANE)}\nv_lshl_add_u32 v11, {sW}, 2, v11")
        e(f"v_and_b32 v13, 15, {v(vLANE)}\nv_xor_b32 v14, v13, v11\nv_lshlrev_b32 v14, 4, v14")
        e(f"v_lshl_add_u32 v14, v11, 8, v14\nv_add_u32 v14, {scr}, v14")
        if ssm:
            e("v_lshlrev_b32 v11, 8, v11")
        else:
            e("v_lshlrev_b32 v11, 9, v11")
        e("v_lshl_add_u32 v11, v13, 4, v11")
        e(f"s_mul_i32 {sT2}, {sRB}, 163840\ns_lshr_b32 {sT1}, {sJ}, 1\ns_mul_i32 {sT1}, {sT1}, 40960")
        e(f"s_add_u32 {sT2}, {sT2}, {sT1}\ns_and_b32 {sT1}, {sJ}, 1\ns_mul_i32 {sT1}, {sT1}, {20480 if ssm else 256}")
        e(f"s_add_u32 {sT2}, {sT2}, {sT1}\ns_add_u32 {sT2}, {sT2}, {XNS if ssm else XNM}")
        self.stamp(42)
        e.wait_lg()
        e("s_barrier")
        for k in range(5):
            e(f"ds_read_b128 {v(X+4*k,4)}, v14 offset:{4096*k}")
        for k in range(5):
            e(f"s_add_u32 {sT3}, {sT2}, {k * (4096 if ssm else 8192)}")
            e(f"buffer_store_dwordx4 {v(X+4*k,4)}, v11, {srd(R_WS)}, {sT3} offen sc1")
        e(f"v_readlane_b32 {sE}, {v(vE)}, {sJ}\nv_readlane_b32 {sEC}, {v(vE)}, 16")
        self.stamp(44)
        e.wait_all()
        self.stamp(45)
        e("s_barrier")
        self.send_flags(2, TAG_XN, "0xff", sJ)

    def gemm(self, nblk, nst, first_blk, mfmas, breads, aloads, adepth, a_pre, dma, early, dma_plan, visible):
        e, c = self.e, self.c
        total = nblk * nst
        if c["ab_nobread"]:
            breads = lambda n, st: []
        if c["ab_noaload"]:
            aloads = lambda gs: []
        if c["ab_nomfma"]:
            real = mfmas
            mfmas = lambda n, st: [i if k in (0, len(real(n, st)) - 1) else "s_nop 0" for k, i in enumerate(real(n, st))]
        if c["ab_nodma"]:
            dma = lambda b: []
        for gs in range(a_pre):
            for ins in aloads(gs):
                e(ins)
        a_next = a_pre
        for ins in breads(0, 0):
            e(ins)
        for n in range(nblk):
            if c["blkstamp"]:
                self.stamp(16 + first_blk + n)
            for st in range(nst):
                gs = n * nst + st
                fill = []
                if st == nst - 1:
                    todo = dma_plan.get(n, [])
                    nxt = first_blk + n + 1
                    need_vis = n + 1 < nblk and nxt not in visible
                    if todo or need_vis:
                        if need_vis:
                            e.wait_tok(("dma", nxt))
                            visible.add(nxt)
                        e("s_barrier")
                if gs + 1 < total:
                    n2, st2 = divmod(gs + 1, nst)
                    fill += [(i, None) for i in breads(n2, st2)]
                while a_next < min(total, gs + adepth, a_pre + 2 * gs + 2):
                    fill += [(i, None) for i in aloads(a_next)]
                    a_next += 1
                for b in early.get(gs, []):
                    fill += [(i, ("dma", b)) for i in dma(b)]
                if st == nst - 1:
                    for b in dma_plan.get(n, []):
                        fill += [(i, ("dma", b)) for i in dma(b)]
                mm = mfmas(n, st)
                done = 0
                for k, ins in enumerate(mm):
                    e(ins)
                    upto = -(-len(fill) * (k + 1) // len(mm))
                    while done < upto:
                        e(fill[done][0], tok=fill[done][1])
                        done += 1

    def issue_dma(self, dma, blocks):
        for b in blocks:
            for ins in dma(b):
                self.e(ins, tok=("dma", b))

    def ssm(self):
        e, c = self.e, self.c
        NS, SLOT = 7, 20480
        vDB, vDC = 16, 21
        vRB, vRC = 26, 32
        vA1, vCH8, vTC, vTW, vTRW, vTRR = 44, 45, 46, 47, 7, 8
        vL, vL4, vSC, vWP = 48, 58, 68, 78
        vL8, vL128, vSCL = 88, 90, 92
        ACC, SP, WK = 96, 176, 196
        X, U = 96, 116
        AR, BB, SK = 0, 64, 144

        e(f"s_and_b32 {sT0}, {sW}, 1\nv_lshl_add_u32 {v(vCH8)}, {sT0}, 6, {v(vLANE)}")
        e(f"s_mul_i32 {sT0}, {sJ}, 160\nv_lshl_add_u32 v12, {v(vCH8)}, 1, {sT0}")
        for k, p in enumerate((P_LRE, P_LIM, P_LDT)):
            self.mk_srd(R_TMP, p, 1280)
            e(f"buffer_load_ushort {v(WK+k)}, v12, {srd(R_TMP)}, 0 offen")
        e(f"s_cmp_lt_u32 {sW}, 2")
        self.mk_srd_sel(R_1A, P_BRE, P_BIM, 819200)
        self.mk_srd_sel(R_1B, P_BIM, P_BRE, 819200)
        self.mk_srd_sel(R_2A, P_CRE, P_CIM, 819200)
        self.mk_srd_sel(R_2B, P_CIM, P_CRE, 819200)
        e(f"s_and_b32 {sT0}, {sW}, 1\ns_lshr_b32 {sT1}, {sW}, 1")
        e(f"s_mul_i32 {sM0A}, {sT1}, 10240\ns_mul_i32 {sT2}, {sT0}, 3072\ns_add_u32 {sM0A}, {sM0A}, {sT2}")
        e(f"s_xor_b32 {sT1}, {sT1}, 1\ns_mul_i32 {sM0B}, {sT1}, 10240\ns_lshl_b32 {sT2}, {sT0}, 11")
        e(f"s_add_u32 {sM0B}, {sM0B}, {sT2}\ns_add_u32 {sM0B}, {sM0B}, 6144")
        e(f"v_lshrrev_b32 v12, 3, {v(vLANE)}\nv_and_b32 v13, 7, {v(vLANE)}\nv_lshrrev_b32 v14, 1, v12")
        e("v_xor_b32 v13, v13, v14\nv_lshlrev_b32 v13, 4, v13\nv_mul_u32_u24 v12, 0x500, v12\nv_add_u32 v12, v12, v13")
        for i in range(5):
            imm = 1024 * (i if i < 3 else i - 3)
            if i < 3:
                e(f"s_mul_i32 {sT1}, {sT0}, 3\ns_add_u32 {sT1}, {sT1}, {i}")
            else:
                e(f"s_lshl_b32 {sT1}, {sT0}, 1\ns_add_u32 {sT1}, {sT1}, {3 + i}")
            e(f"s_and_b32 {sT2}, {sT1}, 1\ns_lshl_b32 {sT2}, {sT2}, 6\nv_xor_b32 v13, {sT2}, v12")
            e(f"s_mul_i32 {sT2}, {sJ}, 10\ns_add_u32 {sT2}, {sT2}, {sT1}\ns_mul_i32 {sT2}, {sT2}, 10240")
            e(f"s_sub_u32 {sT2}, {sT2}, {imm}\nv_add_u32 {v(vDB+i)}, {sT2}, v13")
            e(f"s_lshl_b32 {sT2}, {sJ}, 3\ns_add_u32 {sT2}, {sT2}, {sT1}")
            e(f"s_lshl_b32 {sT3}, {sJ}, 1\ns_add_u32 {sT3}, {sT3}, {sT1}\ns_add_u32 {sT3}, {sT3}, 56")
            e(f"s_cmp_lt_u32 {sT1}, 8\ns_cselect_b32 {sT2}, {sT2}, {sT3}\ns_mul_i32 {sT2}, {sT2}, 10240")
            e(f"s_sub_u32 {sT2}, {sT2}, {imm}\nv_add_u32 {v(vDC+i)}, {sT2}, v13")
        self.rot_init(sWO1, 10, 128)
        self.rot_init(sWO2, 10, 128)

        def dma(b):
            ph2 = b >= 10
            ra, rb_, vb, so = (R_2A, R_2B, vDC, sWO2) if ph2 else (R_1A, R_1B, vDB, sWO1)
            base = (b % NS) * SLOT
            out = [f"s_add_u32 m0, {sM0A}, {base}"]
            out += [f"buffer_load_dwordx4 {v(vb+i)}, {srd(ra)}, {so} offen offset:{1024*i} lds" for i in range(3)]
            out += [f"s_add_u32 m0, {sM0B}, {base}"]
            out += [f"buffer_load_dwordx4 {v(vb+3+i)}, {srd(rb_)}, {so} offen offset:{1024*i} lds" for i in range(2)]
            return out + self.adv(so, 128, 1280, 0)

        pa, pl, pb = c["pre_a"], c["pre_ln"], c["pre_b"]
        self.issue_dma(dma, range(pa))
        self.stamp(1)
        self.ln_compute(True, X, U, [(i, ("dma", b)) for b in range(pa, pa + pl) for i in dma(b)])
        self.stamp(2)
        self.issue_dma(dma, range(pa + pl, pa + pl + pb))

        e(f"v_lshlrev_b32 {v(vCH8)}, 3, {v(vCH8)}\nv_add_u32 {v(vCH8)}, {SCR}, {v(vCH8)}")
        e(f"s_bitcmp0_b32 {sW}, 0\ns_cselect_b32 s88, -1, 0xffff\ns_cselect_b32 s89, -1, 0")
        skip = e.newlabel("noconst")
        e(f"s_cmp_gt_u32 {sW}, 1\ns_cbranch_scc1 {skip}")
        s0 = e.begin_region()
        e(f"s_mov_b64 exec, {sEX}")
        lre, lim, ldt = WK, WK + 1, WK + 2
        t = WK + 4
        for r in (lre, lim, ldt):
            e(f"v_lshlrev_b32 {v(r)}, 16, {v(r)}")
        log2e = "0x3fb8aa3b"
        e(f"v_mul_f32 {v(ldt)}, {log2e}, {v(ldt)}\nv_exp_f32 {v(ldt)}, {v(ldt)}")
        self.round_bf16(ldt)
        e(f"v_mul_f32 {v(t)}, {v(ldt)}, {v(lre)}\nv_mul_f32 {v(t+1)}, {v(ldt)}, {v(lim)}")
        e(f"v_mul_f32 {v(t)}, {log2e}, {v(t)}\nv_exp_f32 {v(t)}, {v(t)}")
        e(f"v_mul_f32 {v(t+1)}, 0.15915494, {v(t+1)}\nv_rndne_f32 {v(t+2)}, {v(t+1)}")
        e(f"v_sub_f32 {v(t+1)}, {v(t+1)}, {v(t+2)}")
        e(f"v_cos_f32 {v(t+2)}, {v(t+1)}\nv_sin_f32 {v(t+3)}, {v(t+1)}")
        L1 = WK + 8
        e(f"v_mul_f32 {v(L1)}, {v(t)}, {v(t+2)}\nv_mul_f32 {v(L1+1)}, {v(t)}, {v(t+3)}")
        e(f"v_mul_f32 {v(t)}, {v(lre)}, {v(lre)}\nv_fma_f32 {v(t)}, {v(lim)}, {v(lim)}, {v(t)}")
        e(f"v_rcp_f32 {v(t)}, {v(t)}\nv_add_f32 {v(t+1)}, -1.0, {v(L1)}\nv_add_f32 {v(t)}, {v(t)}, {v(t)}")
        e(f"v_mul_f32 {v(t+2)}, {v(t+1)}, {v(lre)}\nv_fma_f32 {v(t+2)}, {v(L1+1)}, {v(lim)}, {v(t+2)}")
        e(f"v_mul_f32 {v(t+3)}, {v(L1+1)}, {v(lre)}\nv_fma_f32 {v(t+3)}, -{v(t+1)}, {v(lim)}, {v(t+3)}")
        e(f"v_mul_f32 {v(vSCL)}, {v(t+2)}, {v(t)}\nv_mul_f32 {v(vSCL+1)}, {v(t+3)}, {v(t)}")
        L2, L4 = WK + 10, WK + 12
        self.cmul(L2, L1, L1)
        self.cmul(L4, L2, L2)
        self.cmul(vL8, L4, L4)
        e(f"ds_write_b64 {v(vCH8)}, {v(L1,2)} offset:10240")
        e(f"ds_write_b64 {v(vCH8)}, {v(L4,2)} offset:10880")
        e(f"ds_write_b64 {v(vCH8)}, {v(vSCL,2)} offset:11520")
        e(f"ds_write_b64 {v(vCH8)}, {v(vSCL,2)}")
        prev = vSCL
        for s in range(1, 16):
            d = WK + 14 + 2 * (s & 1)
            self.cmul(d, vL8, prev)
            e(f"ds_write_b64 {v(vCH8)}, {v(d,2)} offset:{640*s}")
            prev = d
        self.cmul(L1, vL8, vL8)
        self.cmul(L2, L1, L1)
        self.cmul(L1, L2, L2)
        self.cmul(vL128, L1, L1)
        e(f"ds_write_b64 {v(vCH8)}, {v(vL128,2)} offset:12160")
        e("s_mov_b64 exec, -1")
        e.wait_lg()
        e.end_region(s0, skip)
        e(f"v_and_b32 v12, 15, {v(vLANE)}\nv_lshrrev_b32 v13, 4, {v(vLANE)}\nv_lshrrev_b32 v14, 1, v12")
        e("v_xor_b32 v15, v13, v14\nv_lshlrev_b32 v15, 4, v15\nv_lshl_add_u32 v15, v12, 7, v15")
        for k in range(3):
            e(f"v_add_u32 {v(vRB+2*k)}, {61440*k}, v15\nv_xor_b32 {v(vRB+2*k+1)}, 64, {v(vRB+2*k)}")
        e("v_and_b32 v15, 1, v13\nv_xor_b32 v15, v15, v14\nv_lshlrev_b32 v15, 4, v15\nv_lshl_add_u32 v15, v12, 7, v15")
        e("v_lshrrev_b32 v14, 1, v13\nv_mul_u32_u24 v14, 0x2800, v14\nv_add_u32 v15, v15, v14")
        for k in range(3):
            e(f"v_add_u32 {v(vRC+4*k)}, {61440*k}, v15")
            for st in range(1, 4):
                e(f"v_xor_b32 {v(vRC+4*k+st)}, {32*st}, {v(vRC+4*k)}")
        e(f"v_lshlrev_b32 {v(vTC)}, 3, v12\nv_add_u32 {v(vTC)}, {SCR}, {v(vTC)}")
        e(f"v_lshl_add_u32 v14, {sW}, 2, v13\nv_mul_u32_u24 v14, 0x280, v14\nv_add_u32 {v(vTW)}, v14, {v(vTC)}")
        e(f"v_add_u32 {v(vA1)}, 20480, {v(vL16B)}")
        e(f"s_mul_i32 {sABEG}, {sRB}, 163840\ns_mul_i32 {sT0}, {sW}, 40960\ns_add_u32 {sABEG}, {sABEG}, {sT0}")
        e(f"s_add_u32 {sABEG}, {sABEG}, {XNS}\ns_add_u32 {sAEND}, {sABEG}, 20480")
        self.rot_init(sA, 10, 2048)
        e(f"s_add_u32 {sA}, {sA}, {sABEG}")
        e.wait_tok(("dma", 0))
        e("s_barrier")
        visible = {0}
        for g in range(5):
            e(f"ds_read_b64 {v(vL+2*g,2)}, {v(vTC)} offset:{10240 + 128*g}")
            e(f"ds_read_b64 {v(vL4+2*g,2)}, {v(vTC)} offset:{10880 + 128*g}")
            e(f"ds_read_b64 {v(vSC+2*g,2)}, {v(vTC)} offset:{11520 + 128*g}")
            e(f"ds_read_b64 {v(vWP+2*g,2)}, {v(vTW)} offset:{128*g}")
        e(f"ds_read_b64 {v(vL128,2)}, {v(vCH8)} offset:12160")
        self.stamp(3)
        self.poll(2, TAG_XN, 8, 12, 13)
        self.stamp(4)

        acc = lambda g, cp, m: ACC + ((g * 2 + cp) * 2 + m) * 4

        def aload1(gs):
            st = gs & 1
            r = AR + (gs % 8) * 8
            out = [f"buffer_load_dwordx4 {a(r,4)}, {v(vL16B)}, {srd(R_WS)}, {sA} offen offset:{1024*st} {self.afl}",
                   f"buffer_load_dwordx4 {a(r+4,4)}, {v(vA1)}, {srd(R_WS)}, {sA} offen offset:{1024*st} {self.afl}"]
            return out + (self.adv(sA, 2048, sAEND, sABEG) if st else [])

        def bread1(n, st):
            slot = n % NS
            base, off = vRB + 2 * (slot // 3) + st, (slot % 3) * SLOT
            return [f"ds_read_b128 {a(BB + 40*st + 4*(2*g+cp),4)}, {v(base)} offset:{off + cp*10240 + g*2048}"
                    for g in range(5) for cp in range(2)]

        def mfma1(n, st):
            gs = 2 * n + st
            return [f"v_mfma_f32_16x16x32_bf16 {v(acc(g,cp,m),4)}, {a(AR + (gs%8)*8 + 4*m,4)}, "
                    f"{a(BB + 40*st + 4*(2*g+cp),4)}, {v(acc(g,cp,m),4) if gs else 0}"
                    for g in range(5) for cp in range(2) for m in range(2)]

        early = {gs: [b] for gs, b in enumerate(range(pa + pl + pb, NS))}
        plan = {n: [n - 1 + NS] for n in range(1, 10)}
        self.gemm(10, 2, 0, mfma1, bread1, aload1, 8, c["a_pre"] // 2, dma, early, plan, visible)
        self.stamp(5)

        SXN, SXR, SXP, SPF, SPR = SK, SK + 16, SK + 32, SK + 48, SK + 56
        vDS = 250
        e(f"s_mul_i32 {sT0}, {sRB}, 163840\ns_mul_i32 {sT1}, {sW}, 40960\ns_add_u32 {sT0}, {sT0}, {sT1}")
        e(f"s_add_u32 {sT0}, {sT0}, {XNS}\ns_lshl_b32 {sT1}, {sJ}, 11\ns_add_u32 {sT1}, {sT1}, {sT0}")
        e(f"s_lshl_b32 {sT2}, {sJ}, 9\ns_add_u32 {sT2}, {sT2}, {sT0}\ns_add_u32 {sT2}, {sT2}, 16384")
        for f in range(2):
            for m in range(2):
                e(f"buffer_load_dwordx4 {a(SXN + 8*f + 4*m,4)}, {v(vA1 if m else vL16B)}, {srd(R_WS)}, {sT1} offen offset:{1024*f} sc1")
        e("s_mov_b32 exec_hi, 0")
        for m in range(2):
            e(f"buffer_load_dwordx4 {a(SPF + 4*m,4)}, {v(vA1 if m else vL16B)}, {srd(R_WS)}, {sT2} offen sc1")
        e("s_mov_b64 exec, -1")

        def rowoff(d, i):
            e(f"v_lshrrev_b32 {v(d)}, 2, {v(i)}\nv_lshlrev_b32 {v(d)}, 3, {v(d)}\nv_and_b32 v15, 1, {v(i)}")
            e(f"v_lshl_add_u32 {v(d)}, v15, 2, {v(d)}\nv_bfe_u32 v15, {v(i)}, 1, 1\nv_add_u32 {v(d)}, {v(d)}, v15")
            e(f"v_mul_u32_u24 {v(d)}, 0x500, {v(d)}")
        e(f"v_lshrrev_b32 v12, 2, {v(vLANE)}")
        rowoff(10, 12)
        e(f"v_and_b32 v15, 3, {v(vLANE)}\nv_lshl_add_u32 v10, v15, 4, v10")
        e(f"v_bfe_u32 v12, {v(vLANE)}, 1, 4")
        rowoff(11, 12)
        e(f"v_and_b32 v15, 1, {v(vLANE)}\nv_lshl_add_u32 v11, v15, 4, v11")
        e(f"s_lshl_b32 {sT0}, {sRB}, 2\ns_add_u32 {sT0}, {sT0}, {sW}\ns_mul_i32 {sT0}, {sT0}, 40960")
        e(f"s_lshl_b32 {sT1}, {sJ}, 7\ns_add_u32 {sT1}, {sT1}, {sT0}")
        e(f"s_lshl_b32 {sT2}, {sJ}, 5\ns_add_u32 {sT2}, {sT2}, {sT0}\ns_add_u32 {sT2}, {sT2}, 1024")
        for m in range(2):
            for f in range(2):
                e(f"buffer_load_dwordx4 {a(SXR + 8*f + 4*m,4)}, v10, {srd(R_X)}, {sT1} offen offset:{2560*m + 64*f}")
        e("s_mov_b32 exec_lo, 0")
        for m in range(2):
            e(f"buffer_load_dwordx4 {a(SPR + 4*m,4)}, v11, {srd(R_X)}, {sT2} offen offset:{2560*m}")
        e("s_mov_b64 exec, -1")
        self.mk_srd(R_TMP, P_DSK, 1280)
        e(f"v_and_b32 v12, 15, {v(vLANE)}\nv_lshlrev_b32 v12, 1, v12")
        e(f"s_lshl_b32 {sT1}, {sJ}, 7\ns_lshl_b32 {sT2}, {sJ}, 5\ns_add_u32 {sT2}, {sT2}, 1024")
        for T in range(5):
            so, imm = (sT1, 32 * T) if T < 4 else (sT2, 0)
            e(f"buffer_load_ushort {v(vDS+T)}, v12, {srd(R_TMP)}, {so} offen offset:{imm}")

        pair = lambda g, cp, jj: acc(g, cp, jj >> 1) + 2 * (jj & 1)
        LR = "op_sel:[0,0,0] op_sel_hi:[0,1,1]"
        LI = "op_sel:[1,0,0] op_sel_hi:[1,1,1]"
        NEG = "neg_lo:[1,0,0] neg_hi:[1,0,0]"
        for g in range(5):
            Lg = v(vL + 2 * g, 2)
            sre, sim = pair(g, 0, 0), pair(g, 1, 0)
            for jj in range(1, 4):
                dre, dim = (WK, WK + 2) if jj == 2 else (SP + 4 * g, SP + 4 * g + 2)
                e(f"v_pk_fma_f32 {v(dre,2)}, {Lg}, {v(sre,2)}, {v(pair(g,0,jj),2)} {LR}")
                e(f"v_pk_fma_f32 {v(dim,2)}, {Lg}, {v(sim,2)}, {v(pair(g,1,jj),2)} {LR}")
                e(f"v_pk_fma_f32 {v(dre,2)}, {Lg}, {v(sim,2)}, {v(dre,2)} {LI} {NEG}")
                e(f"v_pk_fma_f32 {v(dim,2)}, {Lg}, {v(sre,2)}, {v(dim,2)} {LI}")
                sre, sim = dre, dim
            l4r, l4i, d = vL4 + 2 * g, vL4 + 2 * g + 1, WK + 4 + 2 * (g & 1)
            e(f"v_fma_f32 {v(d)}, {v(l4r)}, {v(sre)}, {v(sre+1)}")
            e(f"v_fma_f32 {v(d+1)}, {v(l4r)}, {v(sim)}, {v(sim+1)}")
            e(f"v_fma_f32 {v(d)}, -{v(l4i)}, {v(sim)}, {v(d)}")
            e(f"v_fma_f32 {v(d+1)}, {v(l4i)}, {v(sre)}, {v(d+1)}")
            e(f"ds_write_b64 {v(vTW)}, {v(d,2)} offset:{128*g}")
        e.wait_lg()
        e("s_barrier")
        self.stamp(6)

        skip = e.newlabel("nocomb")
        e(f"s_cmp_gt_u32 {sW}, 1\ns_cbranch_scc1 {skip}")
        s0 = e.begin_region()
        e(f"s_mov_b64 exec, {sEX}")
        SL = WK
        for s in range(16):
            e(f"ds_read_b64 {v(SL+2*s,2)}, {v(vCH8)} offset:{640*s}")
        for s in range(1, 16):
            e(f"v_pk_fma_f32 {v(SL+2*s,2)}, {v(vL8,2)}, {v(SL+2*s-2,2)}, {v(SL+2*s,2)} {LR}")
            e(f"v_pk_fma_f32 {v(SL+2*s,2)}, {v(vL8,2)}, {v(SL+2*s-2,2)}, {v(SL+2*s,2)} "
              "op_sel:[1,1,0] op_sel_hi:[1,0,1] neg_lo:[1,0,0]")
        MSG = SL + 30
        e(f"v_subrev_u32 v12, {SCR}, {v(vCH8)}\nv_lshlrev_b32 v12, 1, v12")
        e(f"s_add_u32 {sT0}, {sEC}, {TAG_CARRY}\nv_mov_b32 {v(MSG+2)}, {sT0}\nv_mov_b32 {v(MSG+3)}, {sT0}")
        e(f"s_lshl_b32 {sT1}, {sJ}, 4\ns_sub_u32 {sT1}, {sT1}, {sRB}\ns_mul_i32 {sT1}, {sT1}, 1280")
        e(f"s_add_u32 {sT1}, {sT1}, {CARRY + 15*1280}")
        e(f"buffer_store_dwordx4 {v(MSG,4)}, v12, {srd(R_WS)}, {sT1} offen sc1")
        e(f"v_mov_b32 v14, 0\nv_mov_b32 v15, 0\nds_write_b64 {v(vCH8)}, v[14:15]")
        for s in range(1, 16):
            d = WK + 36 + 2 * (s & 1)
            self.cmul(d, vSCL, SL + 2 * s - 2)
            e(f"ds_write_b64 {v(vCH8)}, {v(d,2)} offset:{640*s}")
        e("s_mov_b64 exec, -1")
        e.end_region(s0, skip)
        self.issue_dma(dma, [9 + NS])
        self.stamp(7)

        def scale_pairs(g, re, im):
            Sg = v(vSC + 2 * g, 2)
            e(f"v_pk_mul_f32 v[14:15], {Sg}, {v(im,2)} op_sel:[1,0] op_sel_hi:[1,1] neg_lo:[1,0] neg_hi:[1,0]")
            e(f"v_pk_mul_f32 {v(im,2)}, {Sg}, {v(im,2)} op_sel:[0,0] op_sel_hi:[0,1]")
            e(f"v_pk_fma_f32 {v(im,2)}, {Sg}, {v(re,2)}, {v(im,2)} {LI}")
            e(f"v_pk_fma_f32 {v(re,2)}, {Sg}, {v(re,2)}, v[14:15] {LR}")
        for g in range(5):
            scale_pairs(g, SP + 4 * g, SP + 4 * g + 2)
            for jj in range(4):
                scale_pairs(g, pair(g, 0, jj), pair(g, 1, jj))
        e(f"v_and_b32 v12, 15, {v(vLANE)}\nv_lshrrev_b32 v13, 4, {v(vLANE)}")
        e("v_lshrrev_b32 v14, 3, v12\nv_lshlrev_b32 v14, 2, v14\nv_xor_b32 v14, v14, v12\nv_lshlrev_b32 v14, 5, v14")
        e("v_lshrrev_b32 v15, 2, v12\nv_xor_b32 v15, v15, v13\nv_lshl_add_u32 v14, v15, 3, v14")
        e(f"s_lshl_b32 {sT0}, {sW}, 11\ns_add_u32 {sT0}, {sT0}, {SCR + 12288}\nv_add_u32 {v(vTRW)}, {sT0}, v14")
        for j2 in range(2):
            e(f"v_and_b32 v14, 1, v13\nv_xor_b32 v14, {j2}, v14\nv_lshlrev_b32 v14, 2, v14")
            e(f"v_lshl_add_u32 v14, v13, 3, v14\nv_bfe_u32 v15, {v(vLANE)}, 2, 2\nv_add_u32 v14, v14, v15")
            e(f"v_lshlrev_b32 v14, 5, v14\nv_lshlrev_b32 v15, 1, v13\nv_add_u32 v15, {j2}, v15")
            e(f"v_xor_b32 v15, v15, {v(vLANE)}\nv_and_b32 v15, 3, v15\nv_lshl_add_u32 v14, v15, 3, v14")
            e(f"v_add_u32 {v(vTRR+j2)}, {sT0}, v14")
        self.stamp(8)

        skip = e.newlabel("nocarry")
        e(f"s_cmp_lt_u32 {sW}, 2\ns_cbranch_scc1 {skip}")
        s0 = e.begin_region()
        e(f"s_lshl_b32 {sT0}, {sJ}, 4\ns_sub_u32 {sT0}, {sT0}, {sRB}\ns_mul_i32 {sT0}, {sT0}, 1280")
        e(f"s_add_u32 {sT0}, {sT0}, {CARRY + 16*1280}")
        e(f"s_add_u32 s{R_TMP}, s{P_WS}, {sT0}\ns_addc_u32 s{R_TMP+1}, s{P_WS+1}, 0")
        e(f"s_mul_i32 s{R_TMP+2}, {sRB}, 1280\ns_mov_b32 s{R_TMP+3}, 0x20000")
        e(f"s_add_u32 {sT1}, {sEC}, {TAG_CARRY}\ns_mul_i32 {sT1}, {sT1}, {sRB}")
        e(f"s_mov_b64 exec, {sEX}")
        MG = 196
        vMA = [10, 11, 12, 13, 14]
        e(f"v_subrev_u32 v10, {SCR}, {v(vCH8)}\nv_lshlrev_b32 v10, 1, v10")
        for k in range(1, 5):
            e(f"v_add_u32 v{10+k}, {3840*k}, v10")
        lp, out = e.newlabel("cpoll"), e.newlabel("cpolled")
        e.label(lp)
        mreg = lambda dl: MG + 4 * dl if dl < 13 else (vDB, vRB)[dl - 13]
        for dl in range(15):
            e(f"buffer_load_dwordx3 {v(mreg(dl),3)}, v{vMA[dl//3]}, {srd(R_TMP)}, 0 offen offset:{1280*(dl%3)} sc1")
        e(f"s_cmp_eq_u32 {sSPIN}, 0")
        e.wait_all(lg=False)
        e(f"s_cbranch_scc1 {out}\ns_sub_u32 {sSPIN}, {sSPIN}, 1")
        e(f"v_add3_u32 v15, {v(mreg(0)+2)}, {v(mreg(1)+2)}, {v(mreg(2)+2)}")
        for k in range(3, 15, 2):
            e(f"v_add3_u32 v15, v15, {v(mreg(k)+2)}, {v(mreg(k+1)+2)}")
        e(f"v_cmp_eq_u32 vcc, {sT1}, v15")
        e(f"s_cmp_eq_u64 vcc, exec\ns_cbranch_scc0 {lp}")
        e.label(out)
        for dl in range(13, -1, -1):
            x, y = mreg(dl), mreg(dl + 1)
            e(f"v_pk_fma_f32 {v(x,2)}, {v(vL128,2)}, {v(y,2)}, {v(x,2)} {LR}")
            e(f"v_pk_fma_f32 {v(x,2)}, {v(vL128,2)}, {v(y,2)}, {v(x,2)} op_sel:[1,1,0] op_sel_hi:[1,0,1] neg_lo:[1,0,0]")
        e(f"ds_write_b64 {v(vCH8)}, {v(mreg(0),2)} offset:10240")
        e("s_mov_b64 exec, -1")
        e.end_region(s0, skip)
        e(f"v_and_b32 v12, 15, {v(vLANE)}\nv_lshrrev_b32 v13, 4, {v(vLANE)}")
        e("v_lshl_add_u32 v14, v12, 2, v13\nv_lshlrev_b32 v14, 2, v14")
        e("v_and_b32 v13, 1, v13\nv_lshl_add_u32 v13, v12, 1, v13\nv_lshlrev_b32 v13, 2, v13\nv_add_u32 v13, 0x80, v13")
        for k in range(16):
            e(f"ds_bpermute_b32 {a(SXP+k)}, v14, {a(SXR+k)}")
        e("s_mov_b32 exec_lo, 0")
        for k in range(8):
            e(f"ds_bpermute_b32 {a(SPF+k)}, v13, {a(SPR+k)}")
        e("s_mov_b64 exec, -1")
        e.wait_all(vm=False)
        e("s_barrier")
        self.stamp(9)

        PG = WK
        for g in range(5):
            e(f"ds_read_b64 {v(PG+4*g,2)}, {v(vTW)} offset:{128*g}")
            e(f"ds_read_b64 {v(PG+4*g+2,2)}, {v(vTC)} offset:{10240 + 128*g}")
        e(f"s_mul_i32 {sABEG}, {sRB}, 327680\ns_mul_i32 {sT0}, {sW}, 81920\ns_add_u32 {sABEG}, {sABEG}, {sT0}")
        e(f"s_add_u32 {sABEG}, {sABEG}, {HS}\ns_add_u32 {sAEND}, {sABEG}, 40960")
        e(f"s_mul_i32 {sT2}, {sJ}, 5120\ns_add_u32 {sT2}, {sT2}, {sABEG}")
        e(f"v_add_u32 {v(vA1)}, 40960, {v(vL16B)}")
        HF = WK + 20
        CV = 12

        def pass2(fl):
            for g in range(5):
                p, gg, w_ = PG + 4 * g, PG + 4 * g + 2, vWP + 2 * g
                hre, him = SP + 4 * g, SP + 4 * g + 2
                l4r, l4i = vL4 + 2 * g, vL4 + 2 * g + 1
                e(f"v_fma_f32 {v(p)}, {v(w_)}, {v(gg)}, {v(p)}\nv_fma_f32 {v(p+1)}, {v(w_)}, {v(gg+1)}, {v(p+1)}")
                e(f"v_fma_f32 {v(p)}, -{v(w_+1)}, {v(gg+1)}, {v(p)}\nv_fma_f32 {v(p+1)}, {v(w_+1)}, {v(gg)}, {v(p+1)}")
                e(f"v_fma_f32 {v(hre+1)}, {v(l4r)}, {v(p)}, {v(hre)}\nv_fma_f32 {v(him+1)}, {v(l4r)}, {v(p+1)}, {v(him)}")
                e(f"v_fma_f32 {v(hre+1)}, -{v(l4i)}, {v(p+1)}, {v(hre+1)}\nv_fma_f32 {v(him+1)}, {v(l4i)}, {v(p)}, {v(him+1)}")
                e(f"v_mov_b32 {v(hre)}, {v(p)}\nv_mov_b32 {v(him)}, {v(p+1)}")
                Lg = v(vL + 2 * g, 2)
                for jj in range(4):
                    ur, ui = pair(g, 0, jj), pair(g, 1, jj)
                    e(f"v_pk_fma_f32 {v(ur,2)}, {Lg}, {v(hre,2)}, {v(ur,2)} {LR}")
                    e(f"v_pk_fma_f32 {v(ui,2)}, {Lg}, {v(him,2)}, {v(ui,2)} {LR}")
                    e(f"v_pk_fma_f32 {v(ur,2)}, {Lg}, {v(him,2)}, {v(ur,2)} {LI} {NEG}")
                    e(f"v_pk_fma_f32 {v(ui,2)}, {Lg}, {v(hre,2)}, {v(ui,2)} {LI}")
                    hre, him = ur, ui
                for m in range(2):
                    for cp in range(2):
                        r, sg, d = acc(g, cp, m), "-" if cp else "", CV + 2 * cp
                        e(f"v_cvt_pk_bf16_f32 {v(d)}, {sg}{v(r)}, {sg}{v(r+1)}")
                        e(f"v_cvt_pk_bf16_f32 {v(d+1)}, {sg}{v(r+2)}, {sg}{v(r+3)}")
                        e(f"ds_write_b64 {v(vTRW)}, {v(d,2)} offset:{1024*m + 512*cp}")
                hf = HF + 8 * (g & 1)
                for m in range(2):
                    for j2 in range(2):
                        e(f"ds_read_b64_tr_b16 {v(hf + 4*m + 2*j2,2)}, {v(vTRR+j2)} offset:{1024*m}")
                if g:
                    store_h(g - 1, fl)
            store_h(4, fl)

        def store_h(g, fl):
            hf = HF + 8 * (g & 1)
            if g == 4:
                e(f"s_add_u32 {sT2}, {sT2}, 4096")
            for m in range(2):
                e(f"buffer_store_dwordx4 {v(hf+4*m,4)}, {v(vA1 if m else vL16B)}, {srd(R_WS)}, {sT2} offen offset:{1024*(g&3)} {fl}")
        e.wait_lg()
        pass2("sc1")
        self.stamp(10)
        e.wait_all()
        e("s_barrier")
        self.send_flags(3, TAG_HID, "0xff", sJ)
        visible |= set(range(10, 10 + NS))

        acc2 = lambda T, m: ACC + (T * 2 + m) * 4
        e(f"v_and_b32 v12, 15, {v(vLANE)}\nv_lshrrev_b32 v13, 1, v12\nv_bfe_u32 v14, {v(vLANE)}, 4, 1")
        e("v_lshlrev_b32 v14, 2, v14\nv_sub_u32 v13, v13, v14\nv_and_b32 v12, 1, v12\nv_lshlrev_b32 v12, 4, v12")
        for k in range(4):
            e(f"v_cmp_eq_u32 {sMSK[k]}, {k}, v13")
        e(f"v_cmp_gt_u32 vcc, 32, {v(vLANE)}\nv_mov_b32 v15, 0x3f80")
        SEL = WK
        pick = [(v(vDS+T), "0") if T % 2 == 0 else ("0", v(vDS+T)) for T in range(4)]
        pick += [(v(vDS+4), "v15"), ("v15", "0"), ("0", "v15")]
        for n, (lo, hi) in enumerate(pick):
            e(f"v_cndmask_b32 v14, {hi}, {lo}, vcc\nv_lshlrev_b32 v14, v12, v14")
            for k in range(4):
                e(f"v_cndmask_b32 {v(SEL+4*n+k)}, 0, v14, {sMSK[k]}")
        for T in range(5):
            for m in range(2):
                src = SXN + 8 * (T >> 1) + 4 * m if T < 4 else SPF + 4 * m
                e(f"v_mfma_f32_16x16x32_bf16 {v(acc2(T,m),4)}, {a(src,4)}, {v(SEL+4*T,4)}, 0")
        for T in range(4):
            for m in range(2):
                e(f"v_mfma_f32_16x16x32_bf16 {v(acc2(T,m),4)}, {a(SXP + 8*(T>>1) + 4*m,4)}, {v(SEL+20+4*(T&1),4)}, {v(acc2(T,m),4)}")
        self.rot_init(sA, 10, 4096)
        e(f"s_add_u32 {sA}, {sA}, {sABEG}")
        self.poll(3, TAG_HID, 8, 12, 13)
        self.stamp(11)

        def aload2(gs):
            st = gs & 3
            r = AR + (gs % 8) * 8
            out = [f"buffer_load_dwordx4 {a(r,4)}, {v(vL16B)}, {srd(R_WS)}, {sA} offen offset:{1024*st} {self.afl}",
                   f"buffer_load_dwordx4 {a(r+4,4)}, {v(vA1)}, {srd(R_WS)}, {sA} offen offset:{1024*st} {self.afl}"]
            return out + (self.adv(sA, 4096, sAEND, sABEG) if st == 3 else [])

        def bread2(n, st):
            slot = (10 + n) % NS
            base, off = vRC + 4 * (slot // 3) + st, (slot % 3) * SLOT
            return [f"ds_read_b128 {a(BB + 20*(st&1) + 4*T,4)}, {v(base)} offset:{off + T*2048}" for T in range(5)]

        def mfma2(n, st):
            gs = 4 * n + st
            return [f"v_mfma_f32_16x16x32_bf16 {v(acc2(T,m),4)}, {a(AR + (gs%8)*8 + 4*m,4)}, "
                    f"{a(BB + 20*(st&1) + 4*T,4)}, {v(acc2(T,m),4)}" for T in range(5) for m in range(2)]

        plan = {n: [10 + n - 1 + NS] for n in range(1, 10) if 10 + n - 1 + NS < 20}
        self.gemm(10, 4, 10, mfma2, bread2, aload2, 8, c["a_pre"] // 2, dma, {}, plan, visible)
        self.stamp(12)

        self.mk_srd(R_OUT, P_OUT, 2048 * 2560)
        e(f"v_lshrrev_b32 v10, 4, {v(vLANE)}\nv_mul_u32_u24 v10, 0x5000, v10\nv_and_b32 v11, 15, {v(vLANE)}")
        e(f"v_lshl_add_u32 v10, v11, 2, v10\ns_mul_i32 {sT0}, {sJ}, 192\ns_sub_u32 {sT0}, 2048, {sT0}")
        e(f"v_add_u32 v11, {sT0}, v10")
        self.poll(4, TAG_PART, 4, 12, 13)
        self.stamp(13)
        e(f"s_lshl_b32 {sT2}, {sOWN}, 5\ns_lshl_b32 {sT0}, {sW}, 13\ns_add_u32 {sT2}, {sT2}, {sT0}")
        e(f"s_add_u32 {sT2}, {sT2}, {PART}\ns_add_u32 {sT3}, {sT2}, 4096")
        PL = 176
        for k in range(8):
            e(f"buffer_load_dwordx4 {v(PL+4*k,4)}, {v(vL16B)}, {srd(R_WS)}, {sT3 if k >= 4 else sT2} offen offset:{1024*(k&3)} sc1")
        self.epoch_bump()
        e(f"s_lshl_b32 {sT0}, {sRB}, 2\ns_add_u32 {sT0}, {sT0}, {sW}\ns_mul_i32 {sT0}, {sT0}, 81920")
        e(f"s_lshl_b32 {sT1}, {sJ}, 8\ns_add_u32 {sT0}, {sT0}, {sT1}")
        rows = [f"s{90+k}" for k in range(8)]
        for m in range(2):
            for r in range(4):
                e(f"s_add_u32 {rows[4*m+r]}, {sT0}, {(4*(r&1) + 2*m + (r>>1)) * 2560}")
        for k in range(8):
            T = min(k, 4)
            for i in range(4):
                d = acc2(T, i >> 1) + 2 * (i & 1)
                t0 = 12 + 2 * (i & 1)
                e(f"v_lshlrev_b32 {v(t0)}, 16, {v(PL+4*k+i)}\nv_and_b32 {v(t0+1)}, 0xffff0000, {v(PL+4*k+i)}")
                e(f"v_pk_add_f32 {v(d,2)}, {v(d,2)}, {v(t0,2)}")
            if k < 4 or k == 7:
                for m in range(2):
                    for r in range(4):
                        e(f"buffer_store_dword {v(acc2(T,m)+r)}, {'v10' if T < 4 else 'v11'}, {srd(R_OUT)}, "
                          f"{rows[4*m+r]} offen offset:{64*T if T < 4 else 0}")
        self.stamp(14)
        self.finish()

    def epoch_bump(self):
        e = self.e
        skip = e.newlabel("nobump")
        e(f"s_cmp_lg_u32 {sW}, 0\ns_cbranch_scc1 {skip}")
        s0 = e.begin_region()
        e(f"s_add_u32 {sT0}, {sE}, 0x100\nv_mov_b32 v12, {sT0}\nv_mov_b32 v13, 0\ns_mov_b64 exec, 1")
        e(f"buffer_store_dword v12, v13, {srd(R_WS)}, {sOWN} offen sc1")
        e("s_mov_b64 exec, -1")
        e.end_region(s0, skip)

    def finish(self):
        e = self.e
        if self.c["diag"]:
            e.wait_all()
            self.stamp(15)
            self.flush_stamp()
            e(f"s_lshr_b32 {sT0}, {sOWN}, 10\ns_lshl_b32 {sT0}, {sT0}, 2\ns_add_u32 {sT0}, {sT0}, {sW}")
            e(f"s_lshl_b32 {sT0}, {sT0}, 8\ns_add_u32 {sT0}, {sT0}, {STAMP}")
            e(f"v_lshlrev_b32 v12, 2, {v(vLANE)}")
            e(f"buffer_store_dword {v(vSTAMP)}, v12, {srd(R_WS)}, {sT0} offen")
        e("s_endpgm")

    def mlp(self):
        e, c = self.e, self.c
        NS, SLOT = 6, 24576
        vD1, vD2 = 16, 19
        vR1, vR2, vA2 = 24, 30, 36
        ACC, WK = 96, 192
        X, U = 96, 116
        AR, BB = 0, 64

        self.mk_srd(R_1A, P_W1, 640 * 3072)
        self.mk_srd(R_2A, P_W2, 1536 * 1280)
        e(f"s_mul_i32 {sM0A}, {sW}, 6144\ns_lshl_b32 {sM0B}, {sW}, 12")
        e(f"s_mul_i32 {sT0}, {sW}, 49152\ns_mul_i32 {sT1}, {sJ}, 384\ns_add_u32 {sT0}, {sT0}, {sT1}")
        e(f"s_mov_b32 {sT2}, 0xaaaaaab")
        for i in range(3):
            e(f"v_add_u32 v12, {64*i}, {v(vLANE)}\nv_mul_hi_u32 v13, v12, {sT2}")
            e("v_mul_u32_u24 v14, 24, v13\nv_sub_u32 v12, v12, v14\nv_bfe_u32 v14, v13, 1, 1")
            e("v_lshlrev_b32 v14, 2, v14\nv_xor_b32 v12, v12, v14\nv_lshlrev_b32 v12, 4, v12")
            e("v_mul_u32_u24 v13, 0xc00, v13\nv_add_u32 v12, v12, v13")
            e(f"s_sub_u32 {sT1}, {sT0}, {1024*i}\nv_add_u32 {v(vD1+i)}, {sT1}, v12")
        e(f"v_lshrrev_b32 v12, 3, {v(vLANE)}\nv_and_b32 v13, 7, {v(vLANE)}\nv_bfe_u32 v14, v12, 1, 1")
        e("v_lshlrev_b32 v14, 2, v14\nv_xor_b32 v13, v13, v14\nv_lshlrev_b32 v13, 4, v13")
        e("v_mul_u32_u24 v12, 0x500, v12\nv_add_u32 v12, v12, v13")
        e(f"s_add_u32 {sT0}, {sJ}, {sW}\ns_and_b32 {sT0}, {sT0}, 3\ns_mul_i32 {sT0}, {sT0}, 40960")
        e(f"s_lshl_b32 {sT1}, {sJ}, 7\ns_add_u32 {sT0}, {sT0}, {sT1}")
        for i in range(4):
            e(f"s_add_u32 {sT1}, {sT0}, {9216*i}\nv_add_u32 {v(vD2+i)}, {sT1}, v12")
        e(f"s_and_b32 {sT0}, {sJ}, 3\ns_lshl_b32 {sT0}, {sT0}, 2\ns_add_u32 {sT0}, {sT0}, {sW}")
        e(f"s_mul_i32 {sT0}, {sT0}, 10240\ns_lshr_b32 {sT1}, {sJ}, 2\ns_lshl_b32 {sT1}, {sT1}, 7")
        e(f"s_add_u32 {sT0}, {sT0}, {sT1}\ns_add_u32 {sT0}, {sT0}, 1024\nv_add_u32 {v(vD2+4)}, {sT0}, v12")
        sM0C = "s15"
        e(f"s_lshl_b32 {sM0C}, {sW}, 10\ns_add_u32 {sM0C}, {sM0C}, 16384")
        self.rot_init(sWO1, 10, 196608)
        self.rot_init(sWO2, 12, 163840)

        def dma(b):
            base = (b % NS) * SLOT
            if b < 10:
                out = [f"s_add_u32 m0, {sM0A}, {base}", f"s_add_u32 {sWO1B}, {sWO1}, 24576"]
                out += [f"buffer_load_dwordx4 {v(vD1+i)}, {srd(R_1A)}, {sWO1} offen offset:{1024*i} lds" for i in range(3)]
                out += [f"s_add_u32 m0, {sM0A}, {base + 3072}"]
                out += self.adv(sWO1, 196608, 1966080, 0)
                out += [f"buffer_load_dwordx4 {v(vD1+i)}, {srd(R_1A)}, {sWO1B} offen offset:{1024*i} lds" for i in range(3)]
                return out
            out = [f"s_add_u32 m0, {sM0B}, {base}"]
            out += [f"buffer_load_dwordx4 {v(vD2+i)}, {srd(R_2A)}, {sWO2} offen offset:{1024*i} lds" for i in range(4)]
            out += [f"s_add_u32 m0, {sM0C}, {base}"]
            out += [f"buffer_load_dwordx4 {v(vD2+4)}, {srd(R_2A)}, {sWO2} offen lds"]
            return out + self.adv(sWO2, 163840, 1966080, 0)

        pa, pl, pb = c["pre_a"], c["pre_ln"], c["pre_b"]
        self.issue_dma(dma, range(pa))
        self.stamp(1)
        self.ln_compute(False, X, U, [(i, ("dma", b)) for b in range(pa, pa + pl) for i in dma(b)])
        self.stamp(2)
        self.issue_dma(dma, range(pa + pl, pa + pl + pb))
        e(f"v_bfe_u32 v12, {v(vLANE)}, 2, 2\nv_lshrrev_b32 v13, 5, {v(vLANE)}")
        e(f"v_bfe_u32 v14, {v(vLANE)}, 4, 1\nv_lshlrev_b32 v14, 5, v14\nv_and_b32 v15, 3, {v(vLANE)}")
        e("v_lshl_add_u32 v14, v15, 3, v14\nv_lshrrev_b32 v15, 1, v12\nv_lshlrev_b32 v15, 6, v15")
        e("v_lshl_add_u32 v10, v13, 3, v12\nv_mul_u32_u24 v10, 0x180, v10\nv_add_u32 v10, v10, v14")
        e("v_add_u32 v11, 64, v10\nv_sub_u32 v11, v11, v15\nv_add_u32 v10, v10, v15")
        for k in range(3):
            e(f"v_add_u32 {v(vR1+2*k)}, {49152*k}, v10\nv_add_u32 {v(vR1+2*k+1)}, {49152*k}, v11")
        e("v_lshl_add_u32 v10, v13, 2, v12\nv_lshlrev_b32 v10, 7, v10\nv_add_u32 v10, v10, v14\nv_add_u32 v10, v10, v15")
        for k in range(3):
            e(f"v_add_u32 {v(vR2+2*k)}, {49152*k}, v10\nv_xor_b32 {v(vR2+2*k+1)}, 64, {v(vR2+2*k)}")
        for p in range(4):
            e(f"s_add_u32 {sT0}, {sJ}, {p}\ns_and_b32 {sT0}, {sT0}, 3\ns_lshl_b32 {sT0}, {sT0}, 11")
            e(f"v_add_u32 {v(vA2+p)}, {sT0}, {v(vL16B)}")
        e(f"s_mul_i32 {sABEG}, {sRB}, 163840\ns_mul_i32 {sT0}, {sW}, 40960\ns_add_u32 {sABEG}, {sABEG}, {sT0}")
        e(f"s_add_u32 {sABEG}, {sABEG}, {XNM}\ns_add_u32 {sAEND}, {sABEG}, 40960")
        self.rot_init(sA, 10, 4096)
        e(f"s_add_u32 {sA}, {sA}, {sABEG}")
        e.wait_tok(("dma", 0))
        e("s_barrier")
        visible = {0}
        self.stamp(3)
        self.poll(2, TAG_XN, 8, 12, 13)
        self.stamp(4)

        def aload1(gs):
            st = gs & 3
            out = [f"buffer_load_dwordx4 {a(AR + (gs%16)*4,4)}, {v(vL16B)}, {srd(R_WS)}, {sA} offen offset:{1024*st} {self.afl}"]
            return out + (self.adv(sA, 4096, sAEND, sABEG) if st == 3 else [])

        def bread1(n, st):
            slot = n % NS
            off = (slot % 2) * SLOT + st * 6144
            return [f"ds_read_b64_tr_b16 {a(BB + 24*(st&1) + 4*F + 2*j2,2)}, {v(vR1 + 2*(slot//2) + (F&1))} "
                    f"offset:{off + j2*1536 + (F>>1)*128}" for F in range(6) for j2 in range(2)]

        def mfma1(n, st):
            gs = 4 * n + st
            return [f"v_mfma_f32_32x32x16_bf16 {v(ACC+16*F,16)}, {a(BB + 24*(st&1) + 4*F,4)}, "
                    f"{a(AR + (gs%16)*4,4)}, {v(ACC+16*F,16) if gs else 0}" for F in range(6)]

        early = {2 * k: [b] for k, b in enumerate(range(pa + pl + pb, NS))}
        plan = {n: [n - 1 + NS] for n in range(1, 10)}
        self.gemm(10, 4, 0, mfma1, bread1, aload1, 16, c["a_pre"], dma, early, plan, visible)
        self.stamp(5)

        e(f"s_mul_i32 {sABEG}, {sRB}, 393216\ns_mul_i32 {sT0}, {sW}, 98304\ns_add_u32 {sABEG}, {sABEG}, {sT0}")
        e(f"s_add_u32 {sABEG}, {sABEG}, {HM}\ns_add_u32 {sAEND}, {sABEG}, 98304")
        e(f"s_mul_i32 {sT2}, {sJ}, 12288\ns_add_u32 {sT2}, {sT2}, {sABEG}")

        def relu_store(fl):
            for F in range(6):
                if F in (2, 4):
                    e(f"s_add_u32 {sT2}, {sT2}, 4096")
                for h in range(2):
                    d = WK + 4 * ((2 * F + h) & 3)
                    for k in range(4):
                        r = ACC + 16 * F + 8 * h + 2 * k
                        e(f"v_cvt_pk_bf16_f32 {v(d+k)}, {v(r)}, {v(r+1)}")
                    for k in range(4):
                        e(f"v_pk_max_i16 {v(d+k)}, {v(d+k)}, 0")
                    e(f"buffer_store_dwordx4 {v(d,4)}, {v(vL16B)}, {srd(R_WS)}, {sT2} offen offset:{1024*((2*F+h)&3)} {fl}")
        relu_store("sc1")
        self.stamp(10)
        e.wait_all()
        e("s_barrier")
        self.send_flags(3, TAG_HID, "0xff", sJ)
        visible |= set(range(10, 9 + NS))
        self.issue_dma(dma, [9 + NS])
        self.rot_init(sA, 12, 8192)
        e(f"s_add_u32 {sA}, {sA}, {sABEG}")
        self.poll(3, TAG_HID, 8, 12, 13)
        self.stamp(11)

        def aload2(gs):
            st = gs & 7
            out = [f"buffer_load_dwordx4 {a(AR + (gs%16)*4,4)}, {v(vA2 + (st>>1))}, {srd(R_WS)}, {sA} offen offset:{1024*(st&1)} {self.afl}"]
            return out + (self.adv(sA, 8192, sAEND, sABEG) if st == 7 else [])

        def tiles2(st):
            return range(4 if st < 2 else 2)

        def bread2(n, st):
            slot = (10 + n) % NS
            off = (slot % 2) * SLOT + st * 2048
            return [f"ds_read_b64_tr_b16 {a(BB + 16*(st&1) + 4*t + 2*j2,2)}, {v(vR2 + 2*(slot//2) + (t&1))} "
                    f"offset:{off + j2*1024 + (t>>1)*16384}" for t in tiles2(st) for j2 in range(2)]

        def mfma2(n, st):
            gs = 8 * n + st
            return [f"v_mfma_f32_32x32x16_bf16 {v(ACC+16*t,16)}, {a(AR + (gs%16)*4,4)}, "
                    f"{a(BB + 16*(st&1) + 4*t,4)}, {v(ACC+16*t,16) if gs else 0}" for t in tiles2(st)]

        plan = {n: [10 + n - 1 + NS] for n in range(1, 12) if 10 + n - 1 + NS < 22}
        self.gemm(12, 8, 10, mfma2, bread2, aload2, 16, c["a_pre"], dma, {}, plan, visible)
        self.stamp(12)

        e(f"v_lshrrev_b32 v10, 5, {v(vLANE)}\nv_lshlrev_b32 v10, 8, v10\nv_and_b32 v11, 15, {v(vLANE)}")
        e(f"v_lshl_add_u32 v10, v11, 4, v10\nv_bfe_u32 v12, {v(vLANE)}, 4, 1")
        e("v_lshl_add_u32 v11, v12, 15, v10\nv_lshl_add_u32 v10, v12, 10, v10")
        e(f"s_lshl_b32 {sT0}, {sRB}, 18\ns_lshl_b32 {sT1}, {sW}, 13\ns_add_u32 {sT0}, {sT0}, {sT1}\ns_add_u32 {sT0}, {sT0}, {PART}")
        e(f"s_lshl_b32 {sT1}, {sJ}, 15\ns_add_u32 {sT1}, {sT1}, {sT0}")
        e(f"s_and_b32 {sT2}, {sJ}, 4\ns_lshl_b32 {sT2}, {sT2}, 15\ns_add_u32 {sT2}, {sT2}, {sT0}")
        e(f"s_and_b32 {sT3}, {sJ}, 3\ns_lshl_b32 {sT3}, {sT3}, 10\ns_add_u32 {sT2}, {sT2}, {sT3}")
        e(f"s_add_u32 {sT2}, {sT2}, 4096\ns_add_u32 {sT3}, {sT2}, 65536")
        for t in range(4):
            for Pp in range(2):
                d = WK + 4 * ((2 * t + Pp) & 3)
                for k in range(4):
                    r = ACC + 16 * t + 8 * Pp + 2 * k
                    e(f"v_cvt_pk_bf16_f32 {v(d+k)}, {v(r)}, {v(r+1)}")
                if t < 2:
                    e(f"buffer_store_dwordx4 {v(d,4)}, v10, {srd(R_WS)}, {sT1} offen offset:{2048*t + 512*Pp} sc1")
                else:
                    e(f"buffer_store_dwordx4 {v(d,4)}, v11, {srd(R_WS)}, {sT2 if t == 2 else sT3} offen offset:{512*Pp} sc1")
        self.stamp(13)
        e.wait_all()
        e("s_barrier")
        e(f"s_and_b32 {sT3}, {sJ}, 3")
        self.send_flags(4, TAG_PART, "0xf0000", sT3)
        self.epoch_bump()
        self.stamp(14)
        self.finish()

    def build(self):
        e = self.e
        self.entry()
        snap = e.begin_region()
        pend, nst = self.pending_stamp, self.nstamp
        self.ssm()
        e.vm, e.lg, e.hist = list(snap["vm"]), list(snap["lg"]), []
        self.pending_stamp, self.nstamp = pend, nst
        e.label("L_mlp")
        self.mlp()
        e.label("L_end")
        e("s_endpgm")
        ref = open(f"cdna_kernels/{NAME}.s.ref").read()
        head = ref.split("; Override launch")[0]
        out = head
        out += "; Persistent kernel: one workgroup per CU, SSM chain and MLP chain on separate workgroup sets.\n"
        out += f"; @launch grid=(256,1,1) block=(256,1,1) lds={LDS_BYTES}\n"
        out += '.amdgcn_target "amdgcn-amd-amdhsa--gfx950"\n.text\n'
        out += f".globl {KERNEL}\n.p2align 8\n.type {KERNEL},@function\n{KERNEL}:\n"
        out += e.text()
        out += f""".section .rodata,"a"
.p2align 6
.amdhsa_kernel {KERNEL}
  .amdhsa_next_free_vgpr 512
  .amdhsa_next_free_sgpr 102
  .amdhsa_accum_offset 256
  .amdhsa_group_segment_fixed_size 0
  .amdhsa_kernarg_size 120
  .amdhsa_user_sgpr_count 2
  .amdhsa_user_sgpr_kernarg_segment_ptr 1
  .amdhsa_system_sgpr_workgroup_id_x 1
  .amdhsa_float_denorm_mode_32 3
.end_amdhsa_kernel
"""
        return out


def parse_cfg(args):
    cfg = {}
    for s in args:
        k, val = s.split("=")
        cfg[k] = type(DEFAULTS[k])(int(val))
    return cfg


if __name__ == "__main__":
    path = sys.argv[1]
    g = Gen(**parse_cfg(sys.argv[2:]))
    open(path, "w").write(g.build())
    print(path, "lines", len(g.e.lines), "nop slots", g.e.nops)
```

```python
import re

_REG = re.compile(r"(?<![\w.])(-?\|?)([vas])(\d+|\[(\d+):(\d+)\])")
TRANS = ("v_exp_f32", "v_log_f32", "v_rcp_f32", "v_rsq_f32", "v_sqrt_f32", "v_sin_f32", "v_cos_f32")


def regs_of(op):
    op = op.strip()
    out = set()
    if op in ("vcc", "vcc_lo", "vcc_hi"):
        return {"vcc"}
    if op in ("exec", "m0"):
        return {op}
    m = _REG.match(op)
    if m:
        k = m.group(2)
        if m.group(4) is not None:
            out |= {f"{k}{i}" for i in range(int(m.group(4)), int(m.group(5)) + 1)}
        else:
            out.add(f"{k}{m.group(3)}")
    return out


def split_ops(rest):
    ops, depth, cur = [], 0, ""
    for ch in rest:
        if ch in "[(":
            depth += 1
        if ch in "])":
            depth -= 1
        if ch == "," and depth == 0:
            ops.append(cur.strip())
            cur = ""
        else:
            cur += ch
    if cur.strip():
        ops.append(cur.strip())
    mods = ""
    if ops:
        parts = ops[-1].split(None, 1)
        ops[-1] = parts[0]
        mods = parts[1] if len(parts) > 1 else ""
    return ops, mods


class Ins:
    def __init__(self, text):
        self.text = text
        p = text.split(None, 1)
        self.m = m = p[0]
        ops, mods = split_ops(p[1]) if len(p) > 1 else ([], "")
        self.ops, self.mods = ops, mods
        R = [regs_of(o) for o in ops]
        U = lambda l: set().union(*l) if l else set()
        self.mfma = m.startswith("v_mfma")
        self.valu = m.startswith("v_") and not self.mfma
        self.vmem = m.startswith(("buffer_", "global_"))
        self.ds = m.startswith("ds_")
        self.smem = m.startswith(("s_load", "s_memtime", "s_memrealtime"))
        self.salu = m.startswith("s_") and not self.smem
        self.dpp = "row_" in mods or "quad_perm" in mods
        self.trans = m.replace("_e32", "").replace("_e64", "") in TRANS
        self.passes = 0
        self.srcc = set()
        self.srcab = set()
        self.store_data = set()
        self.lds_dma = False
        w, r = set(), set()
        if self.mfma:
            self.passes = 8 if "32x32" in m else 4
            w, r = R[0], U(R[1:])
            self.srcab, self.srcc = R[1] | R[2], R[3]
        elif self.valu:
            if m.startswith("v_permlane"):
                w = r = U(R)
            elif m.startswith(("v_add_co", "v_sub_co", "v_addc_co", "v_subb_co")):
                w, r = R[0] | R[1], U(R[2:])
            else:
                w, r = R[0], U(R[1:])
                if m.startswith(("v_fmac", "v_dot2c", "v_writelane")) or self.dpp:
                    r = r | R[0]
        elif self.vmem:
            self.lds_dma = " lds" in " " + mods
            if self.lds_dma:
                r = U(R) | {"m0"}
            elif "_load" in m:
                w, r = R[0], U(R[1:])
            else:
                r = U(R)
                if m.endswith(("x3", "x4")):
                    self.store_data = R[0]
        elif self.ds:
            if m.startswith(("ds_read", "ds_bpermute", "ds_permute", "ds_swizzle")):
                w, r = R[0], U(R[1:])
            else:
                r = U(R)
        elif self.smem:
            w, r = R[0], U(R[1:])
        elif self.salu:
            if m.startswith(("s_cmp", "s_cbranch", "s_branch", "s_waitcnt", "s_nop", "s_barrier",
                             "s_endpgm", "s_sleep", "s_setprio", "s_bitcmp")):
                r = U(R)
            else:
                w, r = R[0], U(R[1:])
                if "saveexec" in m:
                    w, r = w | {"exec"}, r | {"exec"}
                if m.startswith(("s_addk", "s_mulk", "s_bitset")):
                    r = r | R[0]
        self.w, self.r = w, r


def is_s(x):
    return x[0] == "s" or x == "vcc"


class Emitter:
    def __init__(self):
        self.lines = []
        self.slot = 0
        self.hist = []
        self.vm = []
        self.lg = []
        self.nlab = 0
        self.nops = 0

    def raw(self, text):
        self.lines.append(text)

    def comment(self, text):
        self.lines.append("    ; " + text)

    def label(self, name):
        self.lines.append(name + ":")

    def newlabel(self, stem):
        self.nlab += 1
        return f"L_{stem}_{self.nlab}"

    def _need(self, c):
        need = 0
        for slot, p in self.hist:
            ws = 0
            if p.valu:
                pv = {x for x in p.w if not is_s(x) and x not in ("exec", "m0")}
                ps = {x for x in p.w if is_s(x)}
                if c.mfma and pv & c.r:
                    ws = max(ws, 2)
                if c.valu and pv & c.r:
                    if c.dpp or c.m.startswith("v_permlane"):
                        ws = max(ws, 2)
                    if c.m.startswith(("v_readlane", "v_readfirstlane")):
                        ws = max(ws, 1)
                    if p.trans:
                        ws = max(ws, 1)
                if ps & c.r:
                    if c.vmem:
                        ws = max(ws, 5)
                    elif c.m.startswith(("v_readlane", "v_writelane")):
                        ws = max(ws, 4)
                    elif c.valu:
                        ws = max(ws, 2)
                    else:
                        ws = max(ws, 1)
            if p.mfma:
                far = 12 if p.passes == 8 else 8
                if c.mfma:
                    if p.w & c.srcab:
                        ws = max(ws, far)
                    if p.w & c.srcc and not (p.w == c.srcc and p.passes == c.passes):
                        ws = max(ws, far - 2)
                    if p.w & c.w and not (p.w == c.srcc and p.passes == c.passes):
                        ws = max(ws, far)
                elif p.w & (c.r | c.w):
                    ws = max(ws, far)
                if c.valu and p.srcc & c.w:
                    ws = max(ws, 7 if p.passes == 8 else 3)
            if p.salu and "m0" in p.w and c.lds_dma:
                ws = max(ws, 1)
            if p.store_data & c.w:
                ws = max(ws, 2 if c.valu else 1)
            if ws:
                need = max(need, slot + 1 + ws - self.slot)
        return need

    def _out(self, ins, slots=1):
        self.lines.append("    " + ins.text)
        self.hist.append((self.slot + slots - 1, ins))
        self.slot += slots
        self.hist = [h for h in self.hist if self.slot - h[0] <= 14]

    @staticmethod
    def _younger(q, idx):
        return sum(1 for o in q[idx + 1:] if not o["maybe"])

    def _wait(self, vm=None, lg=None):
        parts = []
        if vm is not None:
            n = min(self._younger(self.vm, vm), 63)
            parts.append(f"vmcnt({n})")
            self.vm = self.vm[vm + 1:]
        if lg is not None:
            if any(o["smem"] for o in self.lg):
                n, self.lg = 0, []
            else:
                n = min(self._younger(self.lg, lg), 15)
                self.lg = self.lg[lg + 1:]
            parts.append(f"lgkmcnt({n})")
        if parts:
            self._out(Ins("s_waitcnt " + " ".join(parts)))

    @staticmethod
    def _last(q, pred):
        idx = None
        for i, o in enumerate(q):
            if pred(o):
                idx = i
        return idx

    def __call__(self, text, tok=None):
        for line in text.split("\n"):
            line = line.strip()
            if line.startswith("EITHER "):
                sreg, ins = line[7:].split(" ", 1)
                self.either(sreg, ins, ins + " sc1", tok)
            elif line:
                self._one(line, tok)

    def _one(self, text, tok):
        c = Ins(text)
        touch = c.r | c.w
        self._wait(self._last(self.vm, lambda o: o["dst"] & touch),
                   self._last(self.lg, lambda o: o["dst"] & touch))
        need = self._need(c)
        while need > 0:
            k = min(need, 16)
            self._out(Ins(f"s_nop {k-1}"), k)
            self.nops += k
            need -= k
        slots = 1
        if c.m == "s_nop":
            slots = int(c.ops[0]) + 1
        self._out(c, slots)
        if c.vmem:
            self.vm.append({"dst": set() if tok == "junk" else c.w, "tok": tok, "maybe": False})
        elif c.ds or c.smem:
            self.lg.append({"dst": c.w, "tok": tok, "maybe": False, "smem": c.smem})

    def either(self, sreg, ins_nz, ins_z, tok=None):
        lz, lj = self.newlabel("z"), self.newlabel("j")
        self(f"s_cmp_eq_u32 {sreg}, 0")
        c = Ins(ins_nz)
        touch = c.r | c.w
        self._wait(self._last(self.vm, lambda o: o["dst"] & touch),
                   self._last(self.lg, lambda o: o["dst"] & touch))
        self(f"s_cbranch_scc1 {lz}")
        self(ins_nz, tok=tok)
        self.lines += [f"    s_branch {lj}", f"{lz}:", "    " + ins_z, f"{lj}:"]

    def wait_tok(self, *toks):
        self._wait(self._last(self.vm, lambda o: o["tok"] in toks),
                   self._last(self.lg, lambda o: o["tok"] in toks))

    def wait_all(self, vm=True, lg=True):
        parts = []
        if vm:
            parts.append("vmcnt(0)")
            self.vm = []
        if lg:
            parts.append("lgkmcnt(0)")
            self.lg = []
        self._out(Ins("s_waitcnt " + " ".join(parts)))

    def wait_lg(self):
        if self.lg:
            self.wait_all(vm=False)

    def begin_region(self):
        return {"slot": self.slot, "hist": list(self.hist),
                "vm": [o for o in self.vm], "lg": [o for o in self.lg]}

    def end_region(self, snap, label):
        for name in ("vm", "lg"):
            before = snap[name]
            ids = {id(o) for o in before}
            inside = [o for o in getattr(self, name) if id(o) not in ids]
            for o in inside:
                assert not o["dst"], f"load result pending at region end: {o}"
                o["maybe"] = True
            setattr(self, name, before + inside)
        shift = self.slot - snap["slot"]
        self.hist = [(s + shift, i) for s, i in snap["hist"]] + self.hist
        self.label(label)

    def text(self):
        return "\n".join(self.lines) + "\n"
```

```python
import os
import sys

sys.path.insert(0, os.path.dirname(os.path.abspath(__file__)))
from emit import Emitter

NAME = "parallel_sum__ssm_conv_s5__dense_activation_relu__prompt"
KERNEL = NAME + "_kernel"

INBOX = 0x0
CARRY = 0x40000
XNS = 0x300000
XNM = 0x580000
HS = 0x800000
HM = 0xD00000
PART = 0x1300000
STAMP = 0x1700000
WS_USED = 0x1800000

LDS_BYTES = 163840
SCR = 143360
SPIN_LIMIT = 1 << 15

TAG_HID2, TAG_XN, TAG_HID, TAG_PART, TAG_CARRY, TAG_HID3 = 16, 32, 48, 64, 80, 96

DEFAULTS = dict(
    diag=False,
    chain_bit=2,
    swap=True, ri1=1, rx1=1, rj1=1, ri2=1, rx2=1, rj2=0, codepf=True,
    pre_a=1, pre_ln=0, pre_st=1, pre_b=2, mpre_a=1, mpre_st=1, mpre_b=6,  a_pre=4, force_slow=True, touch_s=0, touch_m0=0, touch_m2=24, cap=115, lat_a=4, lat_d=8, warm_s=0, warm_m=18, st_gap=2, flag01=15, flag2=11, test0=6, test1=4, test2=17,
    xq_xor=2, touch=True,
    ab_nomfma=False, ab_nobread=False, ab_noaload=False, ab_nodma=False, a_flag=1, blkstamp=False, clk=False, blkclk=False,
)

P_X, P_LRE, P_LIM, P_BRE, P_BIM, P_CRE, P_CIM, P_LDT = 16, 18, 20, 22, 24, 26, 28, 30
P_DSK, P_BX, P_W1, P_W2, P_OUT, P_DBG, P_WS = 32, 34, 36, 38, 40, 42, 44
R_X, R_WS, R_1A, R_1B, R_2A, R_2B, R_OUT, R_TMP = 48, 52, 56, 60, 64, 68, 72, 76
sRB, sJ, sW, sEC, sE, sCH, sOWN, sSPIN = "s3", "s4", "s5", "s6", "s7", "s8", "s9", "s10"
sT0, sT1, sT2, sT3 = "s11", "s12", "s13", "s14"
sWO1, sWO2, sWO1B = "s80", "s81", "s82"
sA, sABEG, sAEND = "s83", "s84", "s85"
sM0A, sM0B = "s86", "s87"
sFAST, sXCC = "s47", "s0"
sEX = "s[88:89]"
sMSK = [f"s[{90+2*k}:{91+2*k}]" for k in range(4)]
sST = ["s[98:99]", "s[100:101]"]


def v(a, n=1):
    return f"v{a}" if n == 1 else f"v[{a}:{a+n-1}]"


def a(b, n=1):
    return f"a{b}" if n == 1 else f"a[{b}:{b+n-1}]"


def srd(b):
    return f"s[{b}:{b+3}]"


vTID, vLANE, vL16B, vE, vINB, vFLG, vSTAMP = 0, 1, 2, 3, 4, 5, 6


class Gen:
    def __init__(self, **cfg):
        self.c = dict(DEFAULTS)
        self.c.update(cfg)
        self.e = Emitter()
        self.nstamp = 0
        self.pending_stamp = None
        self.afl = {0: "", 1: "sc1", 2: "nt", 3: "sc0"}[self.c["a_flag"]]

    def stamp(self, k):
        if not self.c["diag"]:
            return
        e = self.e
        self.flush_stamp()
        reg = sST[self.nstamp & 1]
        self.nstamp += 1
        e(f"s_memtime {reg}" if 16 <= k < 44 and self.c["blkclk"] else f"s_memrealtime {reg}")
        self.pending_stamp = (k, reg)
        if k < 16 and self.c["clk"]:
            self.flush_stamp()
            e(f"s_memtime {reg}")
            self.pending_stamp = (k + 48, reg)

    def flush_stamp(self):
        if self.pending_stamp:
            k, reg = self.pending_stamp
            lo = reg[2:].split(":")[0]
            self.e(f"v_writelane_b32 {v(vSTAMP)}, s{lo}, {k}")
            self.pending_stamp = None

    def mk_srd(self, r, ptr, nbytes):
        e = self.e
        e(f"s_mov_b32 s{r}, s{ptr}\ns_mov_b32 s{r+1}, s{ptr+1}")
        e(f"s_mov_b32 s{r+2}, {nbytes}\ns_mov_b32 s{r+3}, 0x20000")

    def mk_srd_sel(self, r, p_lo, p_hi, nbytes):
        e = self.e
        e(f"s_cselect_b32 s{r}, s{p_lo}, s{p_hi}\ns_cselect_b32 s{r+1}, s{p_lo+1}, s{p_hi+1}")
        e(f"s_mov_b32 s{r+2}, {nbytes}\ns_mov_b32 s{r+3}, 0x20000")

    def cmul(self, d, x, y):
        e = self.e
        e(f"v_pk_mul_f32 {v(d,2)}, {v(x,2)}, {v(y,2)} op_sel:[0,0] op_sel_hi:[0,1]")
        e(f"v_pk_fma_f32 {v(d,2)}, {v(x,2)}, {v(y,2)}, {v(d,2)} op_sel:[1,1,0] op_sel_hi:[1,0,1] neg_lo:[1,0,0]")

    def cfma(self, d, x, y, z):
        e = self.e
        e(f"v_pk_fma_f32 {v(d,2)}, {v(x,2)}, {v(y,2)}, {v(z,2)} op_sel:[0,0,0] op_sel_hi:[0,1,1]")
        e(f"v_pk_fma_f32 {v(d,2)}, {v(x,2)}, {v(y,2)}, {v(d,2)} op_sel:[1,1,0] op_sel_hi:[1,0,1] neg_lo:[1,0,0]")

    def round_bf16(self, r):
        e = self.e
        e(f"v_cvt_pk_bf16_f32 {v(r)}, {v(r)}, {v(r)}\nv_lshlrev_b32 {v(r)}, 16, {v(r)}")

    def rot_init(self, dst, nb, stride, ph):
        e, c = self.e, self.c
        ri, rx, rj = c[f"ri{ph}"], c[f"rx{ph}"], c[f"rj{ph}"]
        e(f"s_and_b32 {sT0}, {sRB}, 3\ns_mul_i32 {sT0}, {sT0}, {nb * ri}\ns_lshr_b32 {sT0}, {sT0}, 2")
        e(f"s_lshr_b32 {sT1}, {sRB}, 2\ns_mul_i32 {sT1}, {sT1}, {rx}\ns_add_u32 {sT0}, {sT0}, {sT1}")
        e(f"s_mul_i32 {sT1}, {sJ}, {nb * rj}\ns_lshr_b32 {sT1}, {sT1}, 3\ns_add_u32 {sT0}, {sT0}, {sT1}")
        e(f"s_mul_hi_u32 {sT1}, {sT0}, {(2**32 + nb - 1) // nb}\ns_mul_i32 {sT1}, {sT1}, {nb}")
        e(f"s_sub_u32 {sT0}, {sT0}, {sT1}\ns_mul_i32 {dst}, {sT0}, {stride}")

    @staticmethod
    def adv(reg, stride, end, beg):
        return [f"s_add_u32 {reg}, {reg}, {stride}", f"s_cmp_eq_u32 {reg}, {end}",
                f"s_cselect_b32 {reg}, {beg}, {reg}"]

    def send_flags(self, line, tag, lanes, word, local=False):
        e = self.e
        skip = e.newlabel("nosend")
        e(f"s_cmp_lg_u32 {sW}, 0\ns_cbranch_scc1 {skip}")
        s0 = e.begin_region()
        e(f"v_add_u32 {v(vFLG)}, {tag}, {v(vE)}")
        e(f"s_lshl_b32 {sT0}, {word}, 2\ns_add_u32 {sT0}, {sT0}, {INBOX + 128*line}")
        e(f"s_mov_b64 exec, {lanes}")
        st = f"buffer_store_dword {v(vFLG)}, {v(vINB)}, {srd(R_WS)}, {sT0} offen"
        e(f"EITHER {sFAST} {st}" if local else st + " sc1")
        e("s_mov_b64 exec, -1")
        e.end_region(s0, skip)

    def poll_xn(self):
        e = self.e
        self.poll(2, TAG_XN, 8, 12, 13, span=16)
        e(f"v_cmp_eq_u32 vcc, {sXCC}, v12")
        e(f"s_cmp_eq_u64 vcc, exec\ns_cselect_b32 {sFAST}, {0 if self.c['force_slow'] else 1}, 0")

    def poll(self, line, tag, nwords, tmp, tmp2, span=0):
        e = self.e
        lp, out = e.newlabel("poll"), e.newlabel("polled")
        e(f"v_and_b32 {v(tmp2)}, {nwords-1}, {v(vLANE)}\nv_lshlrev_b32 {v(tmp2)}, 2, {v(tmp2)}")
        e(f"s_add_u32 {sT0}, {sOWN}, {INBOX + 128*line}\ns_add_u32 {sT1}, {sE}, {tag}")
        e.label(lp)
        e(f"buffer_load_dword {v(tmp)}, {v(tmp2)}, {srd(R_WS)}, {sT0} offen sc1")
        e(f"s_cmp_eq_u32 {sSPIN}, 0")
        e.wait_all(lg=False)
        e(f"s_cbranch_scc1 {out}\ns_sub_u32 {sSPIN}, {sSPIN}, 1")
        if span:
            e(f"v_subrev_u32 {v(tmp)}, {sT1}, {v(tmp)}\nv_cmp_gt_u32 vcc, {span}, {v(tmp)}")
        else:
            e(f"v_cmp_eq_u32 vcc, {sT1}, {v(tmp)}")
        e(f"s_cmp_eq_u64 vcc, exec\ns_cbranch_scc0 {lp}")
        e.label(out)

    def entry(self):
        e, c = self.e, self.c
        X = 96
        e("s_cmp_ge_u32 s2, 256\ns_cbranch_scc1 L_end")
        e("s_load_dwordx2 s[44:45], s[0:1], 112\ns_load_dwordx16 s[16:31], s[0:1], 0")
        e("s_load_dwordx8 s[32:39], s[0:1], 64\ns_load_dwordx4 s[40:43], s[0:1], 96")
        if c["diag"]:
            e(f"v_mov_b32 {v(vSTAMP)}, 0")
        self.stamp(0)
        e(f"s_lshr_b32 {sT0}, s2, 3\ns_bfe_u32 {sCH}, s2, 0x10002")
        if c["swap"]:
            e(f"s_xor_b32 {sCH}, {sCH}, 1")
        if c["codepf"]:
            skip, here = e.newlabel("nopf"), e.newlabel("pc")
            e("s_getpc_b64 s[88:89]")
            e.label(here)
            e(f"s_cmp_eq_u32 {sCH}, 0\ns_cselect_b32 {sT1}, 0, L_mlp-{here}")
            e(f"s_mov_b32 {sT2}, L_end-{here}\ns_cselect_b32 {sT2}, L_mlp-{here}, {sT2}")
            e(f"s_lshl_b32 {sT3}, {sT0}, 7\ns_add_u32 {sT3}, {sT3}, {sT1}")
            e(f"v_lshl_add_u32 v12, v0, 12, {sT3}\nv_cmp_gt_u32 vcc, {sT2}, v12")
            e(f"s_and_saveexec_b64 s[90:91], vcc\ns_cbranch_execz {skip}")
            s0 = e.begin_region()
            e("v_mov_b32 v13, s89\nv_add_co_u32 v12, vcc, s88, v12\nv_addc_co_u32 v13, vcc, 0, v13, vcc")
            e("global_load_dword v255, v[12:13], off")
            e.vm[-1]["dst"] = set()
            e.end_region(s0, skip)
            e("s_mov_b64 exec, -1")
        e(f"s_and_b32 {sJ}, {sT0}, 7\ns_lshr_b32 {sT0}, {sT0}, 3\ns_and_b32 {sT1}, s2, 3")
        e(f"s_cmp_eq_u32 {sCH}, 0\ns_cselect_b32 {sT2}, {c['xq_xor']}, 0")
        e(f"s_xor_b32 {sT1}, {sT1}, {sT2}\ns_lshl_b32 {sT1}, {sT1}, 2\ns_add_u32 {sRB}, {sT1}, {sT0}")
        e("v_lshrrev_b32 v8, 4, v0\nv_and_b32 v9, 15, v0")
        e("v_and_b32 v10, 1, v8\nv_lshlrev_b32 v10, 2, v10\nv_bfe_u32 v11, v8, 1, 1\nv_add_u32 v10, v10, v11")
        e("v_lshrrev_b32 v11, 2, v8\nv_lshl_add_u32 v10, v11, 3, v10")
        e("v_mul_u32_u24 v10, 0x500, v10\nv_lshl_add_u32 v10, v9, 4, v10")
        e(f"s_and_b32 {sT1}, {sJ}, 1\ns_lshl_b32 {sT1}, {sT1}, 1")
        e(f"s_lshr_b32 {sT0}, {sJ}, 1\ns_lshl_b32 {sT0}, {sT0}, 5\ns_add_u32 {sT0}, {sT0}, {sT1}")
        e(f"s_lshl_b32 {sT1}, {sRB}, 7\ns_add_u32 {sT0}, {sT0}, {sT1}\ns_mul_i32 {sT0}, {sT0}, 1280")
        e(f"s_mov_b32 s{R_X+2}, {2048*1280}\ns_mov_b32 s{R_X+3}, 0x20000")
        e(f"s_mov_b32 s{R_X}, s{P_X}\ns_mov_b32 s{R_X+1}, s{P_X+1}")
        for n in range(5):
            e(f"buffer_load_dwordx4 {v(X+4*n,4)}, v10, {srd(R_X)}, {sT0} offen offset:{256*n}")
        e(f"v_lshrrev_b32 v7, 6, v0\nv_and_b32 {v(vLANE)}, 63, v0")
        e(f"v_readfirstlane_b32 {sW}, v7")
        e(f"v_lshlrev_b32 {v(vL16B)}, 4, {v(vLANE)}")
        e(f"s_lshl_b32 {sOWN}, {sCH}, 4\ns_add_u32 {sOWN}, {sOWN}, {sRB}")
        e(f"s_lshl_b32 {sOWN}, {sOWN}, 3\ns_add_u32 {sOWN}, {sOWN}, {sJ}\ns_lshl_b32 {sOWN}, {sOWN}, 10")
        e(f"s_mov_b32 {sSPIN}, {SPIN_LIMIT}")
        self.mk_srd(R_WS, P_WS, WS_USED)
        e(f"s_and_b32 {sT0}, {sOWN}, {~0x1FFF & 0xFFFFFFFF}")
        e(f"v_and_b32 v11, 7, {v(vLANE)}\nv_lshl_add_u32 {v(vINB)}, v11, 10, {sT0}")
        e(f"s_lshl_b32 {sT0}, {sRB}, 3\ns_and_b32 {sT1}, {sJ}, 4\ns_add_u32 {sT0}, {sT0}, {sT1}")
        e(f"s_add_u32 {sT1}, {sJ}, 120\ns_cmp_eq_u32 {sCH}, 0\ns_cselect_b32 {sT0}, {sT1}, {sT0}")
        e(f"s_cselect_b32 {sT1}, 0, 3\ns_lshl_b32 {sT0}, {sT0}, 10")
        e(f"v_and_b32 v11, {sT1}, {v(vLANE)}\nv_lshl_add_u32 v11, v11, 10, {sT0}")
        e(f"v_cmp_gt_u32 vcc, 16, {v(vLANE)}")
        e(f"v_cndmask_b32 {v(vINB)}, v11, {v(vINB)}, vcc")
        e(f"buffer_load_dword {v(vE)}, {v(vINB)}, {srd(R_WS)}, 0 offen sc1")
        if c["touch"]:
            e(f"v_and_b32 v11, 7, {v(vLANE)}\nv_lshlrev_b32 v11, 7, v11")
            e(f"buffer_load_dword v255, v11, {srd(R_WS)}, {sOWN} offen")
            e.vm[-1]["dst"] = set()
        e(f"s_cmp_eq_u32 {sCH}, 0\ns_cbranch_scc0 L_mlp")

    def ln_compute(self, ssm, X, U, fill, fill_st):
        e = self.e
        for k in range(20):
            e(f"v_lshlrev_b32 {v(U+2*k)}, 16, {v(X+k)}\nv_and_b32 {v(U+2*k+1)}, 0xffff0000, {v(X+k)}")
            if k >= 16:
                for ins, tok in fill[(k - 16) * len(fill) // 4:(k - 15) * len(fill) // 4]:
                    e(ins, tok=tok)
            if k == 0:
                self.stamp(44)
            if k == 1:
                e(f"v_pk_add_f32 v[12:13], {v(U,2)}, {v(U+2,2)}")
            elif k > 1:
                e(f"v_pk_add_f32 v[12:13], v[12:13], {v(U+2*k,2)}")

        def rowsum(r):
            for sh in (8, 4, 2, 1):
                e(f"v_add_f32_dpp {v(r)}, {v(r)}, {v(r)} row_ror:{sh} row_mask:0xf bank_mask:0xf")

        inv_d = "0x3acccccd"
        e("v_add_f32 v12, v12, v13")
        rowsum(12)
        e(f"v_mul_f32 v12, {inv_d}, v12\nv_mov_b32 v14, v12")
        self.round_bf16(14)
        e("v_sub_f32 v15, v12, v14")
        for k in range(20):
            e(f"v_pk_add_f32 {v(U+2*k,2)}, {v(U+2*k,2)}, v[14:15] op_sel_hi:[1,0] neg_lo:[0,1] neg_hi:[0,1]")
        for k in range(20):
            if k == 0:
                e(f"v_pk_mul_f32 v[12:13], {v(U,2)}, {v(U,2)}")
            else:
                e(f"v_pk_fma_f32 v[12:13], {v(U+2*k,2)}, {v(U+2*k,2)}, v[12:13]")
        e("v_add_f32 v12, v12, v13")
        rowsum(12)
        e(f"v_mul_f32 v12, {inv_d}, v12\nv_fma_f32 v12, -v15, v15, v12\nv_max_f32 v12, 0, v12")
        self.round_bf16(12)
        e("v_add_f32 v12, 0x3727c5ac, v12")
        self.round_bf16(12)
        e("v_sqrt_f32 v12, v12")
        self.round_bf16(12)
        e("v_rcp_f32 v12, v12")
        scr = SCR
        e("v_xor_b32 v10, v8, v9\nv_lshlrev_b32 v10, 4, v10\nv_lshl_add_u32 v10, v9, 8, v10")
        e(f"v_add_u32 v10, {scr}, v10")
        for n in range(5):
            for k in range(4 * n, 4 * n + 4):
                e(f"v_pk_mul_f32 {v(U+2*k,2)}, {v(U+2*k,2)}, v[12:13] op_sel_hi:[1,0]")
            for k in range(4 * n, 4 * n + 4):
                e(f"v_cvt_pk_bf16_f32 {v(X+k)}, {v(U+2*k)}, {v(U+2*k+1)}")
            e(f"ds_write_b128 v10, {v(X+4*n,4)} offset:{4096*n}")
        e(f"v_lshrrev_b32 v11, 4, {v(vLANE)}\nv_lshl_add_u32 v11, {sW}, 2, v11")
        e(f"v_and_b32 v13, 15, {v(vLANE)}\nv_xor_b32 v14, v13, v11\nv_lshlrev_b32 v14, 4, v14")
        e(f"v_lshl_add_u32 v14, v11, 8, v14\nv_add_u32 v14, {scr}, v14")
        e("v_lshlrev_b32 v11, 8, v11")
        e("v_lshl_add_u32 v11, v13, 4, v11")
        e(f"s_mul_i32 {sT2}, {sRB}, 163840\ns_lshr_b32 {sT1}, {sJ}, 1\ns_mul_i32 {sT1}, {sT1}, 40960")
        e(f"s_add_u32 {sT2}, {sT2}, {sT1}\ns_and_b32 {sT1}, {sJ}, 1\ns_mul_i32 {sT1}, {sT1}, 20480")
        e(f"s_add_u32 {sT2}, {sT2}, {sT1}\ns_add_u32 {sT2}, {sT2}, {XNS if ssm else XNM}")
        self.stamp(45)
        e.wait_lg()
        e("s_barrier")
        for k in range(5):
            e(f"ds_read_b128 {v(X+4*k,4)}, v14 offset:{4096*k}")
        for k in range(5):
            e(f"s_add_u32 {sT3}, {sT2}, {k * 4096}")
            e(f"buffer_store_dwordx4 {v(X+4*k,4)}, v11, {srd(R_WS)}, {sT3} offen sc1", tok="xn")
        self.stamp(46)
        e(f"v_readlane_b32 {sE}, {v(vE)}, {sJ}\nv_readlane_b32 {sEC}, {v(vE)}, 16")
        for ins, tok in fill_st:
            e(ins, tok=tok)
        e.wait_tok("xn")
        self.stamp(47)
        e("s_barrier")
        e(f"s_getreg_b32 {sXCC}, hwreg(HW_REG_XCC_ID)\ns_and_b32 {sXCC}, {sXCC}, 15\ns_add_u32 {sT3}, {sXCC}, {TAG_XN}")
        self.send_flags(2, sT3, "0xff", sJ)

    @staticmethod
    def groups(instrs, tok=None):
        out, cur = [], []
        for ins in instrs:
            cur.append((ins, tok))
            if ins.startswith("buffer_"):
                out.append(cur)
                cur = []
        if cur:
            out[-1] += cur
        return out

    def pipeline(self, steps, dma, ns, nstream, early, visible, aitems):
        e, c = self.e, self.c
        last = {st["blk"]: k for k, st in enumerate(steps) if st["last"]}
        b0 = steps[0]["blk"]
        blocks = [(b, 0) for b in early]
        if not c["ab_nodma"]:
            blocks += [(b - 1 + ns, last[b]) for b in sorted(last) if b > b0 and b - 1 + ns < nstream]
        ditems = [dict(r=r, d=last.get(b - 1, len(steps) + b), g=g)
                  for b, r in blocks for g in self.groups(dma(b), ("dma", b))]
        streams = [([] if c["ab_noaload"] else list(aitems), c["lat_a"]), (ditems, c["lat_d"])]
        credit = 0.0
        for k, st in enumerate(steps):
            credit = max(min(credit, 1.0), -1.0) + c["cap"] / 100 * len(st["mf"]) / 4 - len(st["vm"])
            credit -= sum(1 for g in st["alu"] for ins, _ in g if "buffer_" in ins)
            while True:
                heads = [(q[0]["d"] - lat, q) for q, lat in streams if q and q[0]["r"] <= k]
                if not heads:
                    break
                due = [h for h in heads if h[1][0]["d"] <= k + 1]
                if not due and credit < 1:
                    break
                dl, q = min(due or heads, key=lambda h: h[0])
                st["vm"].append(q.pop(0)["g"])
                credit -= 1
        assert not streams[0][0] and all(it["r"] < it["d"] for it in aitems)
        for ins in steps[0]["rd"]:
            e(ins)
        for k, st in enumerate(steps):
            b = st["blk"]
            if c["blkstamp"] and (k == 0 or steps[k - 1]["last"]):
                self.stamp(16 + b)
            nxt = steps[k + 1] if k + 1 < len(steps) else None
            if st["last"]:
                release = b > b0 and b - 1 + ns < nstream
                need_vis = nxt is not None and nxt["blk"] not in visible
                if need_vis:
                    e.wait_tok(("dma", nxt["blk"]))
                    visible.add(nxt["blk"])
                if st.get("pre"):
                    st["pre"]()
                if release or need_vis or st.get("post"):
                    e("s_barrier")
                if st.get("post"):
                    st["post"]()
            elif st.get("pre"):
                st["pre"]()
            rd = nxt["rd"] if nxt is not None and not c["ab_nobread"] else []
            mm, vm = st["mf"], st["vm"]
            slots = [[] for _ in mm]
            for n, ins in enumerate(rd):
                slots[n * len(mm) // len(rd)].append((ins, None))
            for n, g in enumerate(st["alu"]):
                slots[n * len(mm) // len(st["alu"])] += g
            for n, g in enumerate(vm):
                slots[(2 * n + 1) * len(mm) // (2 * len(vm))] += g
            for ins, fl in zip(mm, slots):
                e(ins)
                for f_, tok in fl:
                    e(f_, tok=tok)
        for it in ditems:
            for ins, tok in it["g"]:
                e(ins, tok=tok)

    def a_items(self, aloads, first, count, rel, use):
        return [dict(r=rel(gs), d=use(gs), g=g) for gs in range(first, count) for g in self.groups(aloads(gs))]

    @staticmethod
    def mk_steps(first_blk, nblk, nst, mfmas, breads):
        return [dict(blk=first_blk + n, last=st == nst - 1, mf=mfmas(n, st), rd=breads(n, st), vm=[], alu=[])
                for n in range(nblk) for st in range(nst)]

    def warm(self, descs, lines, pos, steps=None):
        e = self.e
        if steps is None and pos:
            e(f"s_bfe_u32 s93, {sOWN}, 0x7000a\ns_lshl_b32 s93, s93, 2\ns_add_u32 s93, s93, {sW}")
            e(f"s_mul_i32 s93, s93, {128 * lines}\nv_min_u32 v247, {lines - 1}, {v(vLANE)}\nv_lshlrev_b32 v247, 7, v247")
        for k, d in enumerate(descs):
            ld = f"buffer_load_dword v255, v247, {srd(d)}, s93 offen"
            if steps is None and pos == 1:
                e(ld, tok="junk")
            if steps is not None and pos > 1:
                steps[pos + k]["vm"].append([(ld, "junk")])

    def issue_dma(self, dma, blocks):
        for b in blocks:
            for ins in dma(b):
                self.e(ins, tok=("dma", b))

    def ssm(self):
        e, c = self.e, self.c
        NS, SLOT = 7, 20480
        vDB, vDC = 16, 21
        vRB, vRC = 26, 32
        vA1, vCH8, vTC, vTW, vTRW, vTRR = 44, 45, 46, 47, 7, 8
        vL, vL4, vSC, vWP = 48, 58, 68, 78
        vL8, vL128, vSCL = 88, 90, 92
        ACC, SP, WK = 96, 176, 196
        X, U = 96, 116
        AR, BB, SK = 0, 64, 144

        e(f"s_and_b32 {sT0}, {sW}, 1\nv_lshl_add_u32 {v(vCH8)}, {sT0}, 6, {v(vLANE)}")
        e(f"s_mul_i32 {sT0}, {sJ}, 160\nv_lshl_add_u32 v12, {v(vCH8)}, 1, {sT0}")
        for k, p in enumerate((P_LRE, P_LIM, P_LDT)):
            self.mk_srd(R_TMP, p, 1280)
            e(f"buffer_load_ushort {v(WK+k)}, v12, {srd(R_TMP)}, 0 offen")
        if c["touch"]:
            e(f"s_lshl_b32 {sT1}, {sJ}, 4\ns_sub_u32 {sT1}, {sT1}, {sRB}\ns_mul_i32 {sT1}, {sT1}, 1280")
            e(f"s_add_u32 {sT1}, {sT1}, {CARRY + 15*1280}\nv_min_u32 v12, 9, {v(vLANE)}\nv_lshlrev_b32 v12, 7, v12")
            e(f"buffer_load_dword v255, v12, {srd(R_WS)}, {sT1} offen")
            e.vm[-1]["dst"] = set()
        e(f"s_cmp_lt_u32 {sW}, 2")
        self.mk_srd_sel(R_1A, P_BRE, P_BIM, 819200)
        self.mk_srd_sel(R_1B, P_BIM, P_BRE, 819200)
        self.mk_srd_sel(R_2A, P_CRE, P_CIM, 819200)
        self.mk_srd_sel(R_2B, P_CIM, P_CRE, 819200)
        e(f"s_and_b32 {sT0}, {sW}, 1\ns_lshr_b32 {sT1}, {sW}, 1")
        e(f"s_mul_i32 {sM0A}, {sT1}, 10240\ns_mul_i32 {sT2}, {sT0}, 3072\ns_add_u32 {sM0A}, {sM0A}, {sT2}")
        e(f"s_xor_b32 {sT1}, {sT1}, 1\ns_mul_i32 {sM0B}, {sT1}, 10240\ns_lshl_b32 {sT2}, {sT0}, 11")
        e(f"s_add_u32 {sM0B}, {sM0B}, {sT2}\ns_add_u32 {sM0B}, {sM0B}, 6144")
        e(f"v_lshrrev_b32 v12, 3, {v(vLANE)}\nv_and_b32 v13, 7, {v(vLANE)}\nv_lshrrev_b32 v14, 1, v12")
        e("v_xor_b32 v13, v13, v14\nv_lshlrev_b32 v13, 4, v13\nv_mul_u32_u24 v12, 0x500, v12\nv_add_u32 v12, v12, v13")
        for i in range(5):
            imm = 1024 * (i if i < 3 else i - 3)
            if i < 3:
                e(f"s_mul_i32 {sT1}, {sT0}, 3\ns_add_u32 {sT1}, {sT1}, {i}")
            else:
                e(f"s_lshl_b32 {sT1}, {sT0}, 1\ns_add_u32 {sT1}, {sT1}, {3 + i}")
            e(f"s_and_b32 {sT2}, {sT1}, 1\ns_lshl_b32 {sT2}, {sT2}, 6\nv_xor_b32 v13, {sT2}, v12")
            e(f"s_mul_i32 {sT2}, {sJ}, 10\ns_add_u32 {sT2}, {sT2}, {sT1}\ns_mul_i32 {sT2}, {sT2}, 10240")
            e(f"s_sub_u32 {sT2}, {sT2}, {imm}\nv_add_u32 {v(vDB+i)}, {sT2}, v13")
            e(f"s_lshl_b32 {sT2}, {sJ}, 3\ns_add_u32 {sT2}, {sT2}, {sT1}")
            e(f"s_lshl_b32 {sT3}, {sJ}, 1\ns_add_u32 {sT3}, {sT3}, {sT1}\ns_add_u32 {sT3}, {sT3}, 56")
            e(f"s_cmp_lt_u32 {sT1}, 8\ns_cselect_b32 {sT2}, {sT2}, {sT3}\ns_mul_i32 {sT2}, {sT2}, 10240")
            e(f"s_sub_u32 {sT2}, {sT2}, {imm}\nv_add_u32 {v(vDC+i)}, {sT2}, v13")
        self.rot_init(sWO1, 10, 128, 1)
        self.rot_init(sWO2, 10, 128, 2)

        def dma(b):
            ph2 = b >= 10
            ra, rb_, vb, so = (R_2A, R_2B, vDC, sWO2) if ph2 else (R_1A, R_1B, vDB, sWO1)
            base = (b % NS) * SLOT
            out = [f"s_add_u32 m0, {sM0A}, {base}"]
            out += [f"buffer_load_dwordx4 {v(vb+i)}, {srd(ra)}, {so} offen offset:{1024*i} lds" for i in range(3)]
            out += [f"s_add_u32 m0, {sM0B}, {base}"]
            out += [f"buffer_load_dwordx4 {v(vb+3+i)}, {srd(rb_)}, {so} offen offset:{1024*i} lds" for i in range(2)]
            return out + self.adv(so, 128, 1280, 0)

        pa, pl, pb = c["pre_a"], c["pre_ln"] + c["pre_st"], c["pre_b"]
        self.issue_dma(dma, range(pa))
        self.stamp(1)
        toks = lambda r: [(i, ("dma", b)) for b in r for i in dma(b)]
        self.ln_compute(True, X, U, toks(range(pa, pa + c["pre_ln"])), toks(range(pa + c["pre_ln"], pa + pl)))
        self.stamp(2)
        self.warm((R_2A, R_2B), 13, c["warm_s"])
        self.issue_dma(dma, range(pa + pl, pa + pl + pb))

        e(f"v_lshlrev_b32 {v(vCH8)}, 3, {v(vCH8)}\nv_add_u32 {v(vCH8)}, {SCR}, {v(vCH8)}")
        e(f"s_bitcmp0_b32 {sW}, 0\ns_cselect_b32 s88, -1, 0xffff\ns_cselect_b32 s89, -1, 0")
        skip = e.newlabel("noconst")
        e(f"s_cmp_gt_u32 {sW}, 1\ns_cbranch_scc1 {skip}")
        s0 = e.begin_region()
        e(f"s_mov_b64 exec, {sEX}")
        lre, lim, ldt = WK, WK + 1, WK + 2
        t = WK + 4
        for r in (lre, lim, ldt):
            e(f"v_lshlrev_b32 {v(r)}, 16, {v(r)}")
        log2e = "0x3fb8aa3b"
        e(f"v_mul_f32 {v(ldt)}, {log2e}, {v(ldt)}\nv_exp_f32 {v(ldt)}, {v(ldt)}")
        self.round_bf16(ldt)
        e(f"v_mul_f32 {v(t)}, {v(ldt)}, {v(lre)}\nv_mul_f32 {v(t+1)}, {v(ldt)}, {v(lim)}")
        e(f"v_mul_f32 {v(t)}, {log2e}, {v(t)}\nv_exp_f32 {v(t)}, {v(t)}")
        e(f"v_mul_f32 {v(t+1)}, 0.15915494, {v(t+1)}\nv_rndne_f32 {v(t+2)}, {v(t+1)}")
        e(f"v_sub_f32 {v(t+1)}, {v(t+1)}, {v(t+2)}")
        e(f"v_cos_f32 {v(t+2)}, {v(t+1)}\nv_sin_f32 {v(t+3)}, {v(t+1)}")
        L1 = WK + 8
        e(f"v_mul_f32 {v(L1)}, {v(t)}, {v(t+2)}\nv_mul_f32 {v(L1+1)}, {v(t)}, {v(t+3)}")
        e(f"v_mul_f32 {v(t)}, {v(lre)}, {v(lre)}\nv_fma_f32 {v(t)}, {v(lim)}, {v(lim)}, {v(t)}")
        e(f"v_rcp_f32 {v(t)}, {v(t)}\nv_add_f32 {v(t+1)}, -1.0, {v(L1)}\nv_add_f32 {v(t)}, {v(t)}, {v(t)}")
        e(f"v_mul_f32 {v(t+2)}, {v(t+1)}, {v(lre)}\nv_fma_f32 {v(t+2)}, {v(L1+1)}, {v(lim)}, {v(t+2)}")
        e(f"v_mul_f32 {v(t+3)}, {v(L1+1)}, {v(lre)}\nv_fma_f32 {v(t+3)}, -{v(t+1)}, {v(lim)}, {v(t+3)}")
        e(f"v_mul_f32 {v(vSCL)}, {v(t+2)}, {v(t)}\nv_mul_f32 {v(vSCL+1)}, {v(t+3)}, {v(t)}")
        L2, L4 = WK + 10, WK + 12
        self.cmul(L2, L1, L1)
        self.cmul(L4, L2, L2)
        self.cmul(vL8, L4, L4)
        e(f"ds_write_b64 {v(vCH8)}, {v(L1,2)} offset:10240")
        e(f"ds_write_b64 {v(vCH8)}, {v(L4,2)} offset:10880")
        e(f"ds_write_b64 {v(vCH8)}, {v(vSCL,2)} offset:11520")
        e(f"ds_write_b64 {v(vCH8)}, {v(vSCL,2)}")
        prev = vSCL
        for s in range(1, 16):
            d = WK + 14 + 2 * (s & 1)
            self.cmul(d, vL8, prev)
            e(f"ds_write_b64 {v(vCH8)}, {v(d,2)} offset:{640*s}")
            prev = d
        self.cmul(L1, vL8, vL8)
        self.cmul(L2, L1, L1)
        self.cmul(L1, L2, L2)
        self.cmul(vL128, L1, L1)
        e(f"ds_write_b64 {v(vCH8)}, {v(vL128,2)} offset:12160")
        e("s_mov_b64 exec, -1")
        e.wait_lg()
        e.end_region(s0, skip)
        e(f"v_and_b32 v12, 15, {v(vLANE)}\nv_lshrrev_b32 v13, 4, {v(vLANE)}\nv_lshrrev_b32 v14, 1, v12")
        e("v_xor_b32 v15, v13, v14\nv_lshlrev_b32 v15, 4, v15\nv_lshl_add_u32 v15, v12, 7, v15")
        for k in range(3):
            e(f"v_add_u32 {v(vRB+2*k)}, {61440*k}, v15\nv_xor_b32 {v(vRB+2*k+1)}, 64, {v(vRB+2*k)}")
        e("v_and_b32 v15, 1, v13\nv_xor_b32 v15, v15, v14\nv_lshlrev_b32 v15, 4, v15\nv_lshl_add_u32 v15, v12, 7, v15")
        e("v_lshrrev_b32 v14, 1, v13\nv_mul_u32_u24 v14, 0x2800, v14\nv_add_u32 v15, v15, v14")
        for k in range(3):
            e(f"v_add_u32 {v(vRC+4*k)}, {61440*k}, v15")
            for st in range(1, 4):
                e(f"v_xor_b32 {v(vRC+4*k+st)}, {32*st}, {v(vRC+4*k)}")
        e(f"v_lshlrev_b32 {v(vTC)}, 3, v12\nv_add_u32 {v(vTC)}, {SCR}, {v(vTC)}")
        e(f"v_lshl_add_u32 v14, {sW}, 2, v13\nv_mul_u32_u24 v14, 0x280, v14\nv_add_u32 {v(vTW)}, v14, {v(vTC)}")
        e(f"v_add_u32 {v(vA1)}, 20480, {v(vL16B)}")
        e(f"s_mul_i32 {sABEG}, {sRB}, 163840\ns_mul_i32 {sT0}, {sW}, 40960\ns_add_u32 {sABEG}, {sABEG}, {sT0}")
        e(f"s_add_u32 {sABEG}, {sABEG}, {XNS}\ns_add_u32 {sAEND}, {sABEG}, 20480")
        self.rot_init(sA, 10, 2048, 1)
        e(f"s_add_u32 {sA}, {sA}, {sABEG}")
        e.wait_tok(("dma", 0))
        e("s_barrier")
        visible = {0}
        for g in range(5):
            e(f"ds_read_b64 {v(vL+2*g,2)}, {v(vTC)} offset:{10240 + 128*g}")
            e(f"ds_read_b64 {v(vL4+2*g,2)}, {v(vTC)} offset:{10880 + 128*g}")
            e(f"ds_read_b64 {v(vSC+2*g,2)}, {v(vTC)} offset:{11520 + 128*g}")
            e(f"ds_read_b64 {v(vWP+2*g,2)}, {v(vTW)} offset:{128*g}")
        e(f"ds_read_b64 {v(vL128,2)}, {v(vCH8)} offset:12160")
        self.stamp(3)
        self.poll_xn()
        self.stamp(4)

        acc = lambda g, cp, m: ACC + ((g * 2 + cp) * 2 + m) * 4

        def aload1(gs):
            st = gs & 1
            r = AR + (gs % 8) * 8
            out = [f"buffer_load_dwordx4 {a(r,4)}, {v(vL16B)}, {srd(R_WS)}, {sA} offen offset:{1024*st} {self.afl}",
                   f"buffer_load_dwordx4 {a(r+4,4)}, {v(vA1)}, {srd(R_WS)}, {sA} offen offset:{1024*st} {self.afl}"]
            return out + (self.adv(sA, 2048, sAEND, sABEG) if st else [])

        def bread1(n, st):
            slot = n % NS
            base, off = vRB + 2 * (slot // 3) + st, (slot % 3) * SLOT
            return [f"ds_read_b128 {a(BB + 40*st + 4*(2*g+cp),4)}, {v(base)} offset:{off + cp*10240 + g*2048}"
                    for g in range(5) for cp in range(2)]

        def mfma1(n, st):
            gs = 2 * n + st
            return [f"v_mfma_f32_16x16x32_bf16 {v(acc(g,cp,m),4)}, {a(AR + (gs%8)*8 + 4*m,4)}, "
                    f"{a(BB + 40*st + 4*(2*g+cp),4)}, {v(acc(g,cp,m),4) if gs else 0}"
                    for g in range(5) for cp in range(2) for m in range(2)]

        steps = self.mk_steps(0, 10, 2, mfma1, bread1)
        items = self.a_items(aload1, c["a_pre"] // 2, 20, lambda g: g - 7, lambda g: g)
        self.warm((R_2A, R_2B), 13, c["warm_s"], steps)
        if c["touch_s"]:
            e(f"s_mul_i32 s46, {sRB}, 327680\ns_mul_i32 {sT0}, {sW}, 81920\ns_add_u32 s46, s46, {sT0}")
            e(f"s_mul_i32 {sT0}, {sJ}, 5120\ns_add_u32 s46, s46, {sT0}\ns_add_u32 s46, s46, {HS}\ns_add_u32 s1, s46, 40960")
            e(f"v_min_u32 v249, 39, {v(vLANE)}\nv_lshlrev_b32 v249, 7, v249")
            for k, so in enumerate(("s46", "s1")):
                steps[c["touch_s"] + 2 * k]["vm"].append([(f"buffer_load_dword v255, v249, {srd(R_WS)}, {so} offen", "junk")])
        for gs in range(c["a_pre"] // 2):
            e("\n".join(aload1(gs)))
        self.pipeline(steps, dma, NS, 20, range(pa + pl + pb, NS), visible, items)
        self.stamp(5)

        pair = lambda g, cp, jj: acc(g, cp, jj >> 1) + 2 * (jj & 1)
        LR = "op_sel:[0,0,0] op_sel_hi:[0,1,1]"
        LI = "op_sel:[1,0,0] op_sel_hi:[1,1,1]"
        NEG = "neg_lo:[1,0,0] neg_hi:[1,0,0]"
        for g in range(5):
            Lg = v(vL + 2 * g, 2)
            sre, sim = pair(g, 0, 0), pair(g, 1, 0)
            for jj in range(1, 4):
                dre, dim = (WK, WK + 2) if jj == 2 else (SP + 4 * g, SP + 4 * g + 2)
                e(f"v_pk_fma_f32 {v(dre,2)}, {Lg}, {v(sre,2)}, {v(pair(g,0,jj),2)} {LR}")
                e(f"v_pk_fma_f32 {v(dim,2)}, {Lg}, {v(sim,2)}, {v(pair(g,1,jj),2)} {LR}")
                e(f"v_pk_fma_f32 {v(dre,2)}, {Lg}, {v(sim,2)}, {v(dre,2)} {LI} {NEG}")
                e(f"v_pk_fma_f32 {v(dim,2)}, {Lg}, {v(sre,2)}, {v(dim,2)} {LI}")
                sre, sim = dre, dim
            l4r, l4i, d = vL4 + 2 * g, vL4 + 2 * g + 1, WK + 4 + 2 * (g & 1)
            e(f"v_fma_f32 {v(d)}, {v(l4r)}, {v(sre)}, {v(sre+1)}")
            e(f"v_fma_f32 {v(d+1)}, {v(l4r)}, {v(sim)}, {v(sim+1)}")
            e(f"v_fma_f32 {v(d)}, -{v(l4i)}, {v(sim)}, {v(d)}")
            e(f"v_fma_f32 {v(d+1)}, {v(l4i)}, {v(sre)}, {v(d+1)}")
            e(f"ds_write_b64 {v(vTW)}, {v(d,2)} offset:{128*g}")
        e.wait_lg()
        e("s_barrier")
        self.stamp(6)

        skip = e.newlabel("nocomb")
        e(f"s_cmp_gt_u32 {sW}, 1\ns_cbranch_scc1 {skip}")
        s0 = e.begin_region()
        e(f"s_mov_b64 exec, {sEX}")
        SL = WK
        for s in range(16):
            e(f"ds_read_b64 {v(SL+2*s,2)}, {v(vCH8)} offset:{640*s}")
        for s in range(1, 16):
            e(f"v_pk_fma_f32 {v(SL+2*s,2)}, {v(vL8,2)}, {v(SL+2*s-2,2)}, {v(SL+2*s,2)} {LR}")
            e(f"v_pk_fma_f32 {v(SL+2*s,2)}, {v(vL8,2)}, {v(SL+2*s-2,2)}, {v(SL+2*s,2)} "
              "op_sel:[1,1,0] op_sel_hi:[1,0,1] neg_lo:[1,0,0]")
        MSG = SL + 30
        e(f"v_subrev_u32 v12, {SCR}, {v(vCH8)}\nv_lshlrev_b32 v12, 1, v12")
        e(f"s_add_u32 {sT0}, {sEC}, {TAG_CARRY}\nv_mov_b32 {v(MSG+2)}, {sT0}\nv_mov_b32 {v(MSG+3)}, {sT0}")
        e(f"s_lshl_b32 {sT1}, {sJ}, 4\ns_sub_u32 {sT1}, {sT1}, {sRB}\ns_mul_i32 {sT1}, {sT1}, 1280")
        e(f"s_add_u32 {sT1}, {sT1}, {CARRY + 15*1280}")
        e(f"buffer_store_dwordx4 {v(MSG,4)}, v12, {srd(R_WS)}, {sT1} offen sc1")
        e(f"v_mov_b32 v14, 0\nv_mov_b32 v15, 0\nds_write_b64 {v(vCH8)}, v[14:15]")
        for s in range(1, 16):
            d = WK + 36 + 2 * (s & 1)
            self.cmul(d, vSCL, SL + 2 * s - 2)
            e(f"ds_write_b64 {v(vCH8)}, {v(d,2)} offset:{640*s}")
        e("s_mov_b64 exec, -1")
        e.end_region(s0, skip)
        self.issue_dma(dma, [9 + NS])
        self.stamp(7)

        SXN, SXR, SXP, SPF, SPR = SK, SK + 16, SK + 32, SK + 48, SK + 56
        vDS = 250
        e(f"s_mul_i32 {sT0}, {sRB}, 163840\ns_mul_i32 {sT1}, {sW}, 40960\ns_add_u32 {sT0}, {sT0}, {sT1}")
        e(f"s_add_u32 {sT0}, {sT0}, {XNS}\ns_lshl_b32 {sT1}, {sJ}, 11\ns_add_u32 {sT1}, {sT1}, {sT0}")
        e(f"s_lshl_b32 {sT2}, {sJ}, 9\ns_add_u32 {sT2}, {sT2}, {sT0}\ns_add_u32 {sT2}, {sT2}, 16384")
        for f in range(2):
            for m in range(2):
                e(f"buffer_load_dwordx4 {a(SXN + 8*f + 4*m,4)}, {v(vA1 if m else vL16B)}, {srd(R_WS)}, {sT1} offen offset:{1024*f} sc1")
        e("s_mov_b32 exec_hi, 0")
        for m in range(2):
            e(f"buffer_load_dwordx4 {a(SPF + 4*m,4)}, {v(vA1 if m else vL16B)}, {srd(R_WS)}, {sT2} offen sc1")
        e("s_mov_b64 exec, -1")

        def rowoff(d, i):
            e(f"v_lshrrev_b32 {v(d)}, 2, {v(i)}\nv_lshlrev_b32 {v(d)}, 3, {v(d)}\nv_and_b32 v15, 1, {v(i)}")
            e(f"v_lshl_add_u32 {v(d)}, v15, 2, {v(d)}\nv_bfe_u32 v15, {v(i)}, 1, 1\nv_add_u32 {v(d)}, {v(d)}, v15")
            e(f"v_mul_u32_u24 {v(d)}, 0x500, {v(d)}")
        e(f"v_lshrrev_b32 v12, 2, {v(vLANE)}")
        rowoff(10, 12)
        e(f"v_and_b32 v15, 3, {v(vLANE)}\nv_lshl_add_u32 v10, v15, 4, v10")
        e(f"v_bfe_u32 v12, {v(vLANE)}, 1, 4")
        rowoff(11, 12)
        e(f"v_and_b32 v15, 1, {v(vLANE)}\nv_lshl_add_u32 v11, v15, 4, v11")
        e(f"s_lshl_b32 {sT0}, {sRB}, 2\ns_add_u32 {sT0}, {sT0}, {sW}\ns_mul_i32 {sT0}, {sT0}, 40960")
        e(f"s_lshl_b32 {sT1}, {sJ}, 7\ns_add_u32 {sT1}, {sT1}, {sT0}")
        e(f"s_lshl_b32 {sT2}, {sJ}, 5\ns_add_u32 {sT2}, {sT2}, {sT0}\ns_add_u32 {sT2}, {sT2}, 1024")
        for m in range(2):
            for f in range(2):
                e(f"buffer_load_dwordx4 {a(SXR + 8*f + 4*m,4)}, v10, {srd(R_X)}, {sT1} offen offset:{2560*m + 64*f}")
        e("s_mov_b32 exec_lo, 0")
        for m in range(2):
            e(f"buffer_load_dwordx4 {a(SPR + 4*m,4)}, v11, {srd(R_X)}, {sT2} offen offset:{2560*m}")
        e("s_mov_b64 exec, -1")
        self.mk_srd(R_TMP, P_DSK, 1280)
        e(f"v_and_b32 v12, 15, {v(vLANE)}\nv_lshlrev_b32 v12, 1, v12")
        e(f"s_lshl_b32 {sT1}, {sJ}, 7\ns_lshl_b32 {sT2}, {sJ}, 5\ns_add_u32 {sT2}, {sT2}, 1024")
        for T in range(5):
            so, imm = (sT1, 32 * T) if T < 4 else (sT2, 0)
            e(f"buffer_load_ushort {v(vDS+T)}, v12, {srd(R_TMP)}, {so} offen offset:{imm}")


        def scale_pairs(g, re, im):
            Sg = v(vSC + 2 * g, 2)
            e(f"v_pk_mul_f32 v[14:15], {Sg}, {v(im,2)} op_sel:[1,0] op_sel_hi:[1,1] neg_lo:[1,0] neg_hi:[1,0]")
            e(f"v_pk_mul_f32 {v(im,2)}, {Sg}, {v(im,2)} op_sel:[0,0] op_sel_hi:[0,1]")
            e(f"v_pk_fma_f32 {v(im,2)}, {Sg}, {v(re,2)}, {v(im,2)} {LI}")
            e(f"v_pk_fma_f32 {v(re,2)}, {Sg}, {v(re,2)}, v[14:15] {LR}")
        for g in range(5):
            scale_pairs(g, SP + 4 * g, SP + 4 * g + 2)
            for jj in range(4):
                scale_pairs(g, pair(g, 0, jj), pair(g, 1, jj))
        e(f"v_and_b32 v12, 15, {v(vLANE)}\nv_lshrrev_b32 v13, 4, {v(vLANE)}")
        e("v_lshrrev_b32 v14, 3, v12\nv_lshlrev_b32 v14, 2, v14\nv_xor_b32 v14, v14, v12\nv_lshlrev_b32 v14, 5, v14")
        e("v_lshrrev_b32 v15, 2, v12\nv_xor_b32 v15, v15, v13\nv_lshl_add_u32 v14, v15, 3, v14")
        e(f"s_lshl_b32 {sT0}, {sW}, 11\ns_add_u32 {sT0}, {sT0}, {SCR + 12288}\nv_add_u32 {v(vTRW)}, {sT0}, v14")
        for j2 in range(2):
            e(f"v_and_b32 v14, 1, v13\nv_xor_b32 v14, {j2}, v14\nv_lshlrev_b32 v14, 2, v14")
            e(f"v_lshl_add_u32 v14, v13, 3, v14\nv_bfe_u32 v15, {v(vLANE)}, 2, 2\nv_add_u32 v14, v14, v15")
            e(f"v_lshlrev_b32 v14, 5, v14\nv_lshlrev_b32 v15, 1, v13\nv_add_u32 v15, {j2}, v15")
            e(f"v_xor_b32 v15, v15, {v(vLANE)}\nv_and_b32 v15, 3, v15\nv_lshl_add_u32 v14, v15, 3, v14")
            e(f"v_add_u32 {v(vTRR+j2)}, {sT0}, v14")
        self.stamp(8)

        skip = e.newlabel("nocarry")
        e(f"s_cmp_lt_u32 {sW}, 2\ns_cbranch_scc1 {skip}")
        s0 = e.begin_region()
        e(f"s_lshl_b32 {sT0}, {sJ}, 4\ns_sub_u32 {sT0}, {sT0}, {sRB}\ns_mul_i32 {sT0}, {sT0}, 1280")
        e(f"s_add_u32 {sT0}, {sT0}, {CARRY + 16*1280}")
        e(f"s_add_u32 s{R_TMP}, s{P_WS}, {sT0}\ns_addc_u32 s{R_TMP+1}, s{P_WS+1}, 0")
        e(f"s_mul_i32 s{R_TMP+2}, {sRB}, 1280\ns_mov_b32 s{R_TMP+3}, 0x20000")
        e(f"s_add_u32 {sT1}, {sEC}, {TAG_CARRY}\ns_mul_i32 {sT1}, {sT1}, {sRB}")
        e(f"s_mov_b64 exec, {sEX}")
        MG = 196
        vMA = [10, 11, 12, 13, 14]
        e(f"v_subrev_u32 v10, {SCR}, {v(vCH8)}\nv_lshlrev_b32 v10, 1, v10")
        for k in range(1, 5):
            e(f"v_add_u32 v{10+k}, {3840*k}, v10")
        lp, out = e.newlabel("cpoll"), e.newlabel("cpolled")
        e.label(lp)
        mreg = lambda dl: MG + 4 * dl if dl < 13 else (vDB, vRB)[dl - 13]
        for dl in range(15):
            e(f"buffer_load_dwordx3 {v(mreg(dl),3)}, v{vMA[dl//3]}, {srd(R_TMP)}, 0 offen offset:{1280*(dl%3)} sc1")
        e(f"s_cmp_eq_u32 {sSPIN}, 0")
        e.wait_all(lg=False)
        e(f"s_cbranch_scc1 {out}\ns_sub_u32 {sSPIN}, {sSPIN}, 1")
        e(f"v_add3_u32 v15, {v(mreg(0)+2)}, {v(mreg(1)+2)}, {v(mreg(2)+2)}")
        for k in range(3, 15, 2):
            e(f"v_add3_u32 v15, v15, {v(mreg(k)+2)}, {v(mreg(k+1)+2)}")
        e(f"v_cmp_eq_u32 vcc, {sT1}, v15")
        e(f"s_cmp_eq_u64 vcc, exec\ns_cbranch_scc0 {lp}")
        e.label(out)
        for dl in range(13, -1, -1):
            x, y = mreg(dl), mreg(dl + 1)
            e(f"v_pk_fma_f32 {v(x,2)}, {v(vL128,2)}, {v(y,2)}, {v(x,2)} {LR}")
            e(f"v_pk_fma_f32 {v(x,2)}, {v(vL128,2)}, {v(y,2)}, {v(x,2)} op_sel:[1,1,0] op_sel_hi:[1,0,1] neg_lo:[1,0,0]")
        e(f"ds_write_b64 {v(vCH8)}, {v(mreg(0),2)} offset:10240")
        e("s_mov_b64 exec, -1")
        e.end_region(s0, skip)
        e(f"v_and_b32 v12, 15, {v(vLANE)}\nv_lshrrev_b32 v13, 4, {v(vLANE)}")
        e("v_lshl_add_u32 v14, v12, 2, v13\nv_lshlrev_b32 v14, 2, v14")
        e("v_and_b32 v13, 1, v13\nv_lshl_add_u32 v13, v12, 1, v13\nv_lshlrev_b32 v13, 2, v13\nv_add_u32 v13, 0x80, v13")
        for k in range(16):
            e(f"ds_bpermute_b32 {a(SXP+k)}, v14, {a(SXR+k)}")
        e("s_mov_b32 exec_lo, 0")
        for k in range(8):
            e(f"ds_bpermute_b32 {a(SPF+k)}, v13, {a(SPR+k)}")
        e("s_mov_b64 exec, -1")
        e.wait_all(vm=False)
        e("s_barrier")
        self.stamp(9)

        PG = WK
        for g in range(5):
            e(f"ds_read_b64 {v(PG+4*g,2)}, {v(vTW)} offset:{128*g}")
            e(f"ds_read_b64 {v(PG+4*g+2,2)}, {v(vTC)} offset:{10240 + 128*g}")
        e(f"s_mul_i32 {sABEG}, {sRB}, 327680\ns_mul_i32 {sT0}, {sW}, 81920\ns_add_u32 {sABEG}, {sABEG}, {sT0}")
        e(f"s_add_u32 {sABEG}, {sABEG}, {HS}\ns_add_u32 {sAEND}, {sABEG}, 40960")
        e(f"s_mul_i32 {sT2}, {sJ}, 5120\ns_add_u32 {sT2}, {sT2}, {sABEG}")
        e(f"v_add_u32 {v(vA1)}, 40960, {v(vL16B)}")
        HF = WK + 20
        CV = 12

        def pass2(fl):
            for g in range(5):
                p, gg, w_ = PG + 4 * g, PG + 4 * g + 2, vWP + 2 * g
                hre, him = SP + 4 * g, SP + 4 * g + 2
                l4r, l4i = vL4 + 2 * g, vL4 + 2 * g + 1
                e(f"v_fma_f32 {v(p)}, {v(w_)}, {v(gg)}, {v(p)}\nv_fma_f32 {v(p+1)}, {v(w_)}, {v(gg+1)}, {v(p+1)}")
                e(f"v_fma_f32 {v(p)}, -{v(w_+1)}, {v(gg+1)}, {v(p)}\nv_fma_f32 {v(p+1)}, {v(w_+1)}, {v(gg)}, {v(p+1)}")
                e(f"v_fma_f32 {v(hre+1)}, {v(l4r)}, {v(p)}, {v(hre)}\nv_fma_f32 {v(him+1)}, {v(l4r)}, {v(p+1)}, {v(him)}")
                e(f"v_fma_f32 {v(hre+1)}, -{v(l4i)}, {v(p+1)}, {v(hre+1)}\nv_fma_f32 {v(him+1)}, {v(l4i)}, {v(p)}, {v(him+1)}")
                e(f"v_mov_b32 {v(hre)}, {v(p)}\nv_mov_b32 {v(him)}, {v(p+1)}")
                Lg = v(vL + 2 * g, 2)
                for jj in range(4):
                    ur, ui = pair(g, 0, jj), pair(g, 1, jj)
                    e(f"v_pk_fma_f32 {v(ur,2)}, {Lg}, {v(hre,2)}, {v(ur,2)} {LR}")
                    e(f"v_pk_fma_f32 {v(ui,2)}, {Lg}, {v(him,2)}, {v(ui,2)} {LR}")
                    e(f"v_pk_fma_f32 {v(ur,2)}, {Lg}, {v(him,2)}, {v(ur,2)} {LI} {NEG}")
                    e(f"v_pk_fma_f32 {v(ui,2)}, {Lg}, {v(hre,2)}, {v(ui,2)} {LI}")
                    hre, him = ur, ui
                for m in range(2):
                    for cp in range(2):
                        r, sg, d = acc(g, cp, m), "-" if cp else "", CV + 2 * cp
                        e(f"v_cvt_pk_bf16_f32 {v(d)}, {sg}{v(r)}, {sg}{v(r+1)}")
                        e(f"v_cvt_pk_bf16_f32 {v(d+1)}, {sg}{v(r+2)}, {sg}{v(r+3)}")
                        e(f"ds_write_b64 {v(vTRW)}, {v(d,2)} offset:{1024*m + 512*cp}")
                hf = HF + 8 * (g & 1)
                for m in range(2):
                    for j2 in range(2):
                        e(f"ds_read_b64_tr_b16 {v(hf + 4*m + 2*j2,2)}, {v(vTRR+j2)} offset:{1024*m}")
                if g:
                    store_h(g - 1, fl)
            store_h(4, fl)

        def store_h(g, fl):
            hf = HF + 8 * (g & 1)
            if g == 4:
                e(f"s_add_u32 {sT2}, {sT2}, 4096")
            for m in range(2):
                e(f"EITHER {sFAST} buffer_store_dwordx4 {v(hf+4*m,4)}, {v(vA1 if m else vL16B)}, {srd(R_WS)}, {sT2} offen offset:{1024*(g&3)}")
        e.wait_lg()
        pass2("sc1")
        self.stamp(10)
        e.wait_all()
        e("s_barrier")
        self.send_flags(3, TAG_HID, "0xff", sJ, local=True)
        visible |= set(range(10, 10 + NS))

        acc2 = lambda T, m: ACC + (T * 2 + m) * 4
        e(f"v_and_b32 v12, 15, {v(vLANE)}\nv_lshrrev_b32 v13, 1, v12\nv_bfe_u32 v14, {v(vLANE)}, 4, 1")
        e("v_lshlrev_b32 v14, 2, v14\nv_sub_u32 v13, v13, v14\nv_and_b32 v12, 1, v12\nv_lshlrev_b32 v12, 4, v12")
        for k in range(4):
            e(f"v_cmp_eq_u32 {sMSK[k]}, {k}, v13")
        e(f"v_cmp_gt_u32 vcc, 32, {v(vLANE)}\nv_mov_b32 v15, 0x3f80")
        SEL = WK
        pick = [(v(vDS+T), "0") if T % 2 == 0 else ("0", v(vDS+T)) for T in range(4)]
        pick += [(v(vDS+4), "v15"), ("v15", "0"), ("0", "v15")]
        for n, (lo, hi) in enumerate(pick):
            e(f"v_cndmask_b32 v14, {hi}, {lo}, vcc\nv_lshlrev_b32 v14, v12, v14")
            for k in range(4):
                e(f"v_cndmask_b32 {v(SEL+4*n+k)}, 0, v14, {sMSK[k]}")
        for T in range(5):
            for m in range(2):
                src = SXN + 8 * (T >> 1) + 4 * m if T < 4 else SPF + 4 * m
                e(f"v_mfma_f32_16x16x32_bf16 {v(acc2(T,m),4)}, {a(src,4)}, {v(SEL+4*T,4)}, 0")
        for T in range(4):
            for m in range(2):
                e(f"v_mfma_f32_16x16x32_bf16 {v(acc2(T,m),4)}, {a(SXP + 8*(T>>1) + 4*m,4)}, {v(SEL+20+4*(T&1),4)}, {v(acc2(T,m),4)}")
        self.rot_init(sA, 10, 4096, 2)
        e(f"s_add_u32 {sA}, {sA}, {sABEG}")
        self.poll(3, TAG_HID, 8, 12, 13)
        self.stamp(11)

        def aload2(gs):
            st = gs & 3
            r = AR + (gs % 8) * 8
            out = [f"buffer_load_dwordx4 {a(r,4)}, {v(vL16B)}, {srd(R_WS)}, {sA} offen offset:{1024*st} {self.afl}",
                   f"buffer_load_dwordx4 {a(r+4,4)}, {v(vA1)}, {srd(R_WS)}, {sA} offen offset:{1024*st} {self.afl}"]
            return out + (self.adv(sA, 4096, sAEND, sABEG) if st == 3 else [])

        def bread2(n, st):
            slot = (10 + n) % NS
            base, off = vRC + 4 * (slot // 3) + st, (slot % 3) * SLOT
            return [f"ds_read_b128 {a(BB + 20*(st&1) + 4*T,4)}, {v(base)} offset:{off + T*2048}" for T in range(5)]

        def mfma2(n, st):
            gs = 4 * n + st
            return [f"v_mfma_f32_16x16x32_bf16 {v(acc2(T,m),4)}, {a(AR + (gs%8)*8 + 4*m,4)}, "
                    f"{a(BB + 20*(st&1) + 4*T,4)}, {v(acc2(T,m),4)}" for T in range(5) for m in range(2)]

        steps = self.mk_steps(10, 10, 4, mfma2, bread2)
        items = self.a_items(aload2, c["a_pre"] // 2, 40, lambda g: g - 7, lambda g: g)
        for gs in range(c["a_pre"] // 2):
            e("\n".join(aload2(gs)))
        self.pipeline(steps, dma, NS, 20, [], visible, items)
        self.stamp(12)

        self.mk_srd(R_OUT, P_OUT, 2048 * 2560)
        e(f"v_lshrrev_b32 v10, 4, {v(vLANE)}\nv_mul_u32_u24 v10, 0x5000, v10\nv_and_b32 v11, 15, {v(vLANE)}")
        e(f"v_lshl_add_u32 v10, v11, 2, v10\ns_mul_i32 {sT0}, {sJ}, 192\ns_sub_u32 {sT0}, 2048, {sT0}")
        e(f"v_add_u32 v11, {sT0}, v10")
        self.poll(4, TAG_PART, 4, 12, 13)
        self.stamp(13)
        e(f"s_lshl_b32 {sT2}, {sOWN}, 5\ns_lshl_b32 {sT0}, {sW}, 13\ns_add_u32 {sT2}, {sT2}, {sT0}")
        e(f"s_add_u32 {sT2}, {sT2}, {PART}\ns_add_u32 {sT3}, {sT2}, 4096")
        PL = 176
        for k in range(8):
            e(f"buffer_load_dwordx4 {v(PL+4*k,4)}, {v(vL16B)}, {srd(R_WS)}, {sT3 if k >= 4 else sT2} offen offset:{1024*(k&3)} sc1")
        self.epoch_bump()
        e(f"s_lshl_b32 {sT0}, {sRB}, 2\ns_add_u32 {sT0}, {sT0}, {sW}\ns_mul_i32 {sT0}, {sT0}, 81920")
        e(f"s_lshl_b32 {sT1}, {sJ}, 8\ns_add_u32 {sT0}, {sT0}, {sT1}")
        rows = [f"s{90+k}" for k in range(8)]
        for m in range(2):
            for r in range(4):
                e(f"s_add_u32 {rows[4*m+r]}, {sT0}, {(4*(r&1) + 2*m + (r>>1)) * 2560}")
        for k in range(8):
            T = min(k, 4)
            for i in range(4):
                d = acc2(T, i >> 1) + 2 * (i & 1)
                t0 = 12 + 2 * (i & 1)
                e(f"v_lshlrev_b32 {v(t0)}, 16, {v(PL+4*k+i)}\nv_and_b32 {v(t0+1)}, 0xffff0000, {v(PL+4*k+i)}")
                e(f"v_pk_add_f32 {v(d,2)}, {v(d,2)}, {v(t0,2)}")
            if k < 4 or k == 7:
                for m in range(2):
                    for r in range(4):
                        e(f"buffer_store_dword {v(acc2(T,m)+r)}, {'v10' if T < 4 else 'v11'}, {srd(R_OUT)}, "
                          f"{rows[4*m+r]} offen offset:{64*T if T < 4 else 0}")
        self.stamp(14)
        self.finish()

    def epoch_bump(self):
        e = self.e
        skip = e.newlabel("nobump")
        e(f"s_cmp_lg_u32 {sW}, 0\ns_cbranch_scc1 {skip}")
        s0 = e.begin_region()
        e(f"s_add_u32 {sT0}, {sE}, 0x100\nv_mov_b32 v12, {sT0}\nv_mov_b32 v13, 0\ns_mov_b64 exec, 1")
        e(f"buffer_store_dword v12, v13, {srd(R_WS)}, {sOWN} offen sc1")
        e("s_mov_b64 exec, -1")
        e.end_region(s0, skip)

    def finish(self):
        e = self.e
        if self.c["diag"]:
            e.wait_all()
            self.stamp(15)
            self.flush_stamp()
            e(f"s_lshr_b32 {sT0}, {sOWN}, 10\ns_lshl_b32 {sT0}, {sT0}, 2\ns_add_u32 {sT0}, {sT0}, {sW}")
            e(f"s_lshl_b32 {sT0}, {sT0}, 8\ns_add_u32 {sT0}, {sT0}, {STAMP}")
            e(f"v_lshlrev_b32 v12, 2, {v(vLANE)}")
            e(f"buffer_store_dword {v(vSTAMP)}, v12, {srd(R_WS)}, {sT0} offen")
        e("s_endpgm")

    def check_flags(self, line, tag, tmp, tmp2):
        e = self.e
        issue = [f"v_and_b32 {v(tmp2)}, 7, {v(vLANE)}", f"v_lshlrev_b32 {v(tmp2)}, 2, {v(tmp2)}",
                 f"s_add_u32 s46, {sOWN}, {INBOX + 128*line}",
                 f"buffer_load_dword {v(tmp)}, {v(tmp2)}, {srd(R_WS)}, s46 offen sc1"]

        def test():
            ok = e.newlabel("ready")
            e(f"s_add_u32 {sT1}, {sE}, {tag}\nv_cmp_eq_u32 vcc, {sT1}, {v(tmp)}")
            e(f"s_cmp_eq_u64 vcc, exec\ns_cbranch_scc1 {ok}")
            s0 = e.begin_region()
            self.poll(line, tag, 8, tmp, tmp2)
            e.end_region(s0, ok)
        return issue, test

    def mlp(self):
        e, c = self.e, self.c
        NS, SLOT, NSTREAM = 8, 20480, 27
        vD1, vD2 = 16, 20
        vR1, vR2 = 26, 30
        vA1, vA2 = 34, 36
        ACC1, ACC, WK = 96, 128, 192
        X, U = 96, 116
        XA, BB = 0, 160
        sM0C, sH, sHS, sR2 = "s15", "s89", "s90", "s91"
        LINES, TAGS = (3, 5, 6), (TAG_HID, TAG_HID2, TAG_HID3)

        self.mk_srd(R_1A, P_W1, 640 * 3072)
        self.mk_srd(R_2A, P_W2, 1536 * 1280)
        e(f"s_lshl_b32 {sM0B}, {sW}, 12\ns_lshl_b32 {sM0C}, {sW}, 10\ns_add_u32 {sM0C}, {sM0C}, 16384")
        e(f"v_lshrrev_b32 v12, 3, {v(vLANE)}\nv_and_b32 v13, 7, {v(vLANE)}\nv_and_b32 v14, 2, v12")
        e("v_xor_b32 v14, v13, v14\nv_lshlrev_b32 v14, 4, v14\nv_mul_u32_u24 v15, 0xc00, v12\nv_add_u32 v14, v14, v15")
        e(f"s_and_b32 {sT0}, {sW}, 1\ns_mul_i32 {sT0}, {sT0}, 98304\ns_mul_i32 {sT1}, {sJ}, 384")
        e(f"s_add_u32 {sT0}, {sT0}, {sT1}")
        for i in range(4):
            e(f"s_add_u32 {sT2}, {sT0}, {23552*i}\nv_add_u32 {v(vD1+i)}, {sT2}, v14")
            if i & 1:
                e(f"v_xor_b32 {v(vD1+i)}, 64, {v(vD1+i)}")
        self.rot_init(sA, 10, 2048, 1)
        e(f"s_lshr_b32 {sT2}, {sW}, 1\ns_lshl_b32 {sT2}, {sT2}, 11\ns_add_u32 {sWO1}, {sA}, {sT2}")
        e(f"s_cmp_eq_u32 {sWO1}, 20480\ns_cselect_b32 {sWO1}, 0, {sWO1}\ns_mul_i32 {sWO1}, {sWO1}, 96")

        def wrap(reg, inc):
            return [f"s_add_u32 {reg}, {reg}, {inc}", f"s_sub_u32 {sT3}, {reg}, 1966080", f"s_cselect_b32 {reg}, {reg}, {sT3}"]

        def dma(b):
            base = (b % NS) * SLOT
            ld = lambda r, d, so, imm: f"buffer_load_dwordx4 {v(r)}, {srd(d)}, {so} offen offset:{imm} lds"
            if b < 15:
                return ([f"s_add_u32 m0, {sM0B}, {base}"] + [ld(vD1 + i, R_1A, sWO1, 1024 * i) for i in range(4)]
                        + wrap(sWO1, 393216 + (128 if b % 5 == 4 else 0)))
            return ([f"s_add_u32 m0, {sM0B}, {base}"] + [ld(vD2 + i, R_2A, sWO2, 1024 * i) for i in range(4)]
                    + [f"s_add_u32 m0, {sM0C}, {base}", ld(vD2 + 4, R_2A, sWO2, 0)]
                    + wrap(sWO2, 491520 + (81920 if (b - 15) % 4 == 3 else 0)))

        pa, pl, pb = c["mpre_a"], c["pre_ln"] + c["mpre_st"], c["mpre_b"]
        self.issue_dma(dma, range(pa))
        self.stamp(1)
        toks = lambda r: [(i, ("dma", b)) for b in r for i in dma(b)]
        self.ln_compute(False, X, U, toks(range(pa, pa + c["pre_ln"])), toks(range(pa + c["pre_ln"], pa + pl)))
        self.stamp(2)
        self.warm((R_2A,), 30, c["warm_m"])
        self.issue_dma(dma, range(pa + pl, pa + pl + pb))
        e(f"v_lshrrev_b32 v12, 3, {v(vLANE)}\nv_and_b32 v13, 7, {v(vLANE)}")
        e("v_and_b32 v14, 6, v12\nv_xor_b32 v14, v13, v14\nv_lshlrev_b32 v14, 4, v14")
        e("v_mul_u32_u24 v15, 0x500, v12\nv_add_u32 v14, v14, v15")

        def row0(sub):
            e(f"s_and_b32 {sT3}, {sub}, 1\ns_lshl_b32 {sT3}, {sT3}, 5\ns_bfe_u32 {sub}, {sub}, 0x10001")
            e(f"s_mul_i32 {sub}, {sub}, 192\ns_add_u32 {sub}, {sub}, {sT3}")
        e(f"s_add_u32 {sT0}, {sJ}, {sW}")
        row0(sT0)
        e(f"s_mul_i32 {sT0}, {sT0}, 1280\ns_lshl_b32 {sT1}, {sJ}, 7\ns_add_u32 {sT0}, {sT0}, {sT1}")
        for i in range(4):
            e(f"s_add_u32 {sT1}, {sT0}, {9216*i}\nv_add_u32 {v(vD2+i)}, {sT1}, v14")
        e(f"s_mov_b32 {sT0}, {sJ}")
        row0(sT0)
        e(f"s_lshl_b32 {sT1}, {sW}, 3\ns_add_u32 {sT0}, {sT0}, {sT1}\ns_mul_i32 {sT0}, {sT0}, 1280")
        e(f"s_lshr_b32 {sT1}, {sJ}, 2\ns_lshl_b32 {sT1}, {sT1}, 7\ns_add_u32 {sT0}, {sT0}, {sT1}")
        e(f"s_add_u32 {sT0}, {sT0}, 1024\nv_add_u32 {v(vD2+4)}, {sT0}, v14")
        self.rot_init(sR2, 4, 4096, 2)
        e(f"s_mul_i32 {sWO2}, {sR2}, 120")
        e(f"v_bfe_u32 v12, {v(vLANE)}, 2, 2\nv_lshrrev_b32 v13, 4, {v(vLANE)}\nv_and_b32 v14, 3, {v(vLANE)}")
        e("v_lshlrev_b32 v14, 3, v14\nv_and_b32 v10, 1, v13\nv_lshrrev_b32 v11, 1, v12\nv_lshl_add_u32 v10, v10, 1, v11")
        e("v_lshl_add_u32 v14, v10, 5, v14")
        for r, sh in ((vR1, 3), (vR2, 2)):
            e(f"v_lshl_add_u32 v15, v13, {sh}, v12\nv_lshl_add_u32 v15, v15, 7, v14")
            for f in range(4):
                e(f"v_xor_b32 {v(r+f)}, {32*f}, v15")
        for p in range(4):
            e(f"s_add_u32 {sT0}, {sJ}, {p}\ns_and_b32 {sT0}, {sT0}, 3\ns_lshl_b32 {sT0}, {sT0}, 10")
            e(f"v_add_u32 {v(vA2+2*p)}, {sT0}, {v(vL16B)}\nv_add_u32 {v(vA2+2*p+1)}, 49152, {v(vA2+2*p)}")
        e(f"v_add_u32 {v(vA1)}, 20480, {v(vL16B)}\nv_add_u32 {v(vA1+1)}, 49152, {v(vL16B)}")
        e(f"s_mul_i32 {sABEG}, {sRB}, 163840\ns_mul_i32 {sT0}, {sW}, 40960\ns_add_u32 {sABEG}, {sABEG}, {sT0}")
        e(f"s_add_u32 {sABEG}, {sABEG}, {XNM}\ns_add_u32 {sAEND}, {sABEG}, 20480\ns_add_u32 {sA}, {sA}, {sABEG}")
        e(f"s_mul_i32 {sH}, {sRB}, 393216\ns_mul_i32 {sT0}, {sW}, 98304\ns_add_u32 {sH}, {sH}, {sT0}")
        e(f"s_add_u32 {sH}, {sH}, {HM}\ns_lshl_b32 {sHS}, {sJ}, 11\ns_add_u32 {sHS}, {sHS}, {sH}")
        e.wait_tok(("dma", 0))
        e("s_barrier")
        visible = {0}
        self.stamp(3)
        self.poll_xn()
        self.stamp(4)

        cur = {vR1: 0, vR2: 0}
        par = [0]

        def step(b, last, reg, offs, mk):
            want = (b % NS) // 3
            d, cur[reg] = (want - cur[reg]) * 61440, want
            rd = [f"v_add_u32 {v(reg+f)}, {d & 0xFFFFFFFF}, {v(reg+f)}" for f in range(4)] if d else []
            so = (b % NS) % 3 * SLOT
            par[0] ^= 1
            bb = BB + 32 * par[0]
            rd += [f"ds_read_b64_tr_b16 {a(bb + 4*n + 2*j2,2)}, {v(reg + (n & 3))} offset:{so + o + dj*j2}"
                   for n, (o, dj) in enumerate(offs) for j2 in range(2)]
            mf = [mk(n, m, bb + 4 * n) for n in range(len(offs)) for m in range(2)]
            return dict(blk=b, last=last, mf=mf, rd=rd, vm=[], alu=[])

        mf16 = lambda d, x, y, first: f"v_mfma_f32_16x16x32_bf16 {v(d,4)}, {a(x,4)}, {a(y,4)}, {0 if first else v(d,4)}"
        steps = []
        for r in range(3):
            acc = ACC1 + 32 * (r & 1)
            for gs in range(20):
                steps.append(step(5 * r + gs // 4, gs & 3 == 3, vR1, [((gs & 3) * 4096, 512)] * 4,
                                  lambda n, m, w_: mf16(acc + 8 * n + 4 * m, w_, XA + 8 * gs + 4 * m, gs == 0)))
        for gs in range(48):
            p = gs & 3
            offs = [(p * 4096, 2048)] * 4 + ([(16384, 2048)] * 4 if p == 0 else [])
            steps.append(step(15 + gs // 4, p == 3, vR2, offs,
                              lambda n, m, w_: mf16(ACC + 8 * n + 4 * m, XA + 8 * (gs % 16) + 4 * m, w_, gs == 0)))

        def aload1(gs):
            out = [f"buffer_load_dwordx4 {a(XA + 8*gs + 4*m,4)}, {v(vA1 if m else vL16B)}, {srd(R_WS)}, {sA} "
                   f"offen offset:{1024*(gs&1)} {self.afl}" for m in range(2)]
            return out + (self.adv(sA, 2048, sAEND, sABEG) if gs & 1 else [])

        def aload2(gs):
            out = []
            if gs % 16 == 0:
                out += [f"s_add_u32 {sABEG}, {sH}, {1024*gs}", f"s_add_u32 {sAEND}, {sABEG}, 16384", f"s_add_u32 {sA}, {sR2}, {sABEG}"]
            out += [f"buffer_load_dwordx4 {a(XA + 8*(gs%16) + 4*m,4)}, {v(vA2 + 2*(gs&3) + m)}, {srd(R_WS)}, {sA} "
                    f"offen {self.afl}" for m in range(2)]
            return out + (self.adv(sA, 4096, sAEND, sABEG) if gs & 3 == 3 else [])

        def relu_store(r, u, m):
            acc, d = ACC1 + 32 * (r & 1), WK + 4 * (2 * u + m)
            src = [acc + 8 * (2 * u + h) + 4 * m + 2 * k for h in range(2) for k in range(2)]
            out = [[(f"v_cvt_pk_bf16_f32 {v(d+k)}, {v(src[k])}, {v(src[k]+1)}", None)] for k in range(4)]
            out += [[(f"v_pk_max_i16 {v(d+k)}, {v(d+k)}, 0", None)] for k in range(4)]
            out[-1].append((f"EITHER {sFAST} buffer_store_dwordx4 {v(d,4)}, {v(vA1+1 if m else vL16B)}, {srd(R_WS)}, {sHS} "
                            f"offen offset:{1024*u}", ("h", r)))
            if u and m:
                out[-1].append((f"s_add_u32 {sHS}, {sHS}, 16384", None))
            return out

        apre = c["a_pre"] // 2
        items = self.a_items(aload1, apre, 20, lambda g: 0, lambda g: g)
        self.warm((R_2A,), 30, c["warm_m"], steps)
        if c["touch_m0"]:
            e(f"v_and_b32 v12, 15, {v(vLANE)}\nv_lshlrev_b32 v12, 7, v12\nv_bfe_u32 v13, {v(vLANE)}, 4, 1")
            e(f"v_mul_u32_u24 v13, 0xc000, v13\nv_add_u32 v248, v12, v13\nv_lshrrev_b32 v13, 5, {v(vLANE)}")
            e(f"v_lshl_add_u32 v249, v13, 14, v248\ns_add_u32 s1, {sHS}, 32768\ns_mov_b32 s92, {sHS}")
            steps[c["touch_m0"]]["vm"].append([(f"buffer_load_dword v255, v249, {srd(R_WS)}, s92 offen", "junk")])
            steps[c["touch_m2"]]["vm"].append([(f"buffer_load_dword v255, v248, {srd(R_WS)}, s1 offen", "junk")])
        tests = (40 + c["test0"], 60 + c["test1"], 60 + c["test2"])
        for r in range(3):
            base = 20 * (r + 1)
            for n in range(4):
                steps[base + 1 + c["st_gap"] * n]["alu"] += relu_store(r, n >> 1, n & 1)
            fl = steps[base + (c["flag01"] if r < 2 else c["flag2"])]
            assert fl["last"]
            fl["pre"] = lambda r=r: e.wait_tok(("h", r))
            fl["post"] = lambda r=r: self.send_flags(LINES[r], TAGS[r], "0xff", sJ, local=True)
            issue, test = self.check_flags(LINES[r], TAGS[r], 10, 11)
            steps[tests[r] - 1]["vm"] += self.groups(issue)
            assert "pre" not in steps[tests[r]]
            steps[tests[r]]["pre"] = test
        items += self.a_items(aload2, 0, 48, lambda g: max(tests[g // 16], 41 + g if g < 16 else 45 + g), lambda g: 60 + g)
        for gs in range(apre):
            e("\n".join(aload1(gs)))
        self.pipeline(steps, dma, NS, NSTREAM, range(pa + pl + pb, NS), visible, items)
        self.stamp(12)

        e(f"s_lshl_b32 {sT0}, {sRB}, 18\ns_lshl_b32 {sT1}, {sW}, 13\ns_add_u32 {sT0}, {sT0}, {sT1}\ns_add_u32 {sT0}, {sT0}, {PART}")
        e(f"s_lshl_b32 {sT1}, {sJ}, 15\ns_add_u32 {sT1}, {sT1}, {sT0}")
        e(f"s_and_b32 {sT2}, {sJ}, 4\ns_lshl_b32 {sT2}, {sT2}, 15\ns_add_u32 {sT2}, {sT2}, {sT0}")
        e(f"s_and_b32 {sT3}, {sJ}, 3\ns_lshl_b32 {sT3}, {sT3}, 10\ns_add_u32 {sT2}, {sT2}, {sT3}")
        e(f"s_add_u32 {sT2}, {sT2}, 4096")
        for T in (4, 5, 6, 7, 0, 1, 2, 3):
            d = WK + 4 * (T & 3)
            for k in range(4):
                r = ACC + 8 * T + 2 * k
                e(f"v_cvt_pk_bf16_f32 {v(d+k)}, {v(r)}, {v(r+1)}")
            if T < 4:
                e(f"buffer_store_dwordx4 {v(d,4)}, {v(vL16B)}, {srd(R_WS)}, {sT1} offen offset:{1024*T} sc1")
            else:
                e(f"buffer_store_dwordx4 {v(d,4)}, {v(vL16B)}, {srd(R_WS)}, {sT2} offen sc1")
                e(f"s_add_u32 {sT2}, {sT2}, 32768")
        self.stamp(13)
        e.wait_all()
        e("s_barrier")
        e(f"s_and_b32 {sT3}, {sJ}, 3")
        self.send_flags(4, TAG_PART, "0xf0000", sT3)
        self.epoch_bump()
        self.stamp(14)
        self.finish()

    def build(self):
        e = self.e
        self.entry()
        snap = e.begin_region()
        pend, nst = self.pending_stamp, self.nstamp
        self.ssm()
        e.vm, e.lg, e.hist = list(snap["vm"]), list(snap["lg"]), []
        self.pending_stamp, self.nstamp = pend, nst
        e.label("L_mlp")
        self.mlp()
        e.label("L_end")
        e("s_endpgm")
        ref = open(f"cdna_kernels/{NAME}.s.ref").read()
        head = ref.split("; Override launch")[0]
        out = head
        out += "; Persistent kernel: one workgroup per CU, SSM chain and MLP chain on separate workgroup sets.\n"
        out += f"; @launch grid=(256,1,1) block=(256,1,1) lds={LDS_BYTES}\n"
        out += '.amdgcn_target "amdgcn-amd-amdhsa--gfx950"\n.text\n'
        out += f".globl {KERNEL}\n.p2align 8\n.type {KERNEL},@function\n{KERNEL}:\n"
        out += e.text()
        out += f""".section .rodata,"a"
.p2align 6
.amdhsa_kernel {KERNEL}
  .amdhsa_next_free_vgpr 512
  .amdhsa_next_free_sgpr 102
  .amdhsa_accum_offset 256
  .amdhsa_group_segment_fixed_size 0
  .amdhsa_kernarg_size 120
  .amdhsa_user_sgpr_count 2
  .amdhsa_user_sgpr_kernarg_segment_ptr 1
  .amdhsa_system_sgpr_workgroup_id_x 1
  .amdhsa_float_denorm_mode_32 3
.end_amdhsa_kernel
"""
        return out


def parse_cfg(args):
    cfg = {}
    for s in args:
        k, val = s.split("=")
        cfg[k] = type(DEFAULTS[k])(int(val))
    return cfg


if __name__ == "__main__":
    path = sys.argv[1]
    g = Gen(**parse_cfg(sys.argv[2:]))
    open(path, "w").write(g.build())
    print(path, "lines", len(g.e.lines), "nop slots", g.e.nops)
```

```python
import os
import sys

sys.path.insert(0, os.path.dirname(os.path.abspath(__file__)))
from emit import Emitter

NAME = "parallel_sum__ssm_conv_s5__dense_activation_relu__prompt"
KERNEL = NAME + "_kernel"

INBOX = 0x0
CARRY = 0x40000
XNS = 0x300000
XNM = 0x580000
HS = 0x800000
HM = 0xD00000
PART = 0x1300000
STAMP = 0x1700000
WS_USED = 0x1800000

LDS_BYTES = 163840
SCR = 143360
SPIN_LIMIT = 1 << 15

TAG_HID2, TAG_XN, TAG_HID, TAG_PART, TAG_CARRY, TAG_HID3 = 16, 32, 48, 64, 80, 96

DEFAULTS = dict(
    diag=False,
    chain_bit=2,
    swap=True, ri1=1, rx1=1, rj1=1, ri2=1, rx2=1, rj2=0, codepf=True,
    pre_a=1, pre_ln=0, pre_st=1, pre_b=2, mpre_a=1, mpre_st=1, mpre_b=6,  a_pre=4, skip_at=14, lazy0=10, lazy_gap=3, rest_a=100, rest_b=100, a_pre2=4, peek=38, defer=0, quiet_s=2, cap=115, lat_a=4, lat_d=8, warm_s=0, warm_m=29, st_gap=2, flag01=15, flag2=15, test0=6, test1=8, test2=26,
    rbits=2, mix=0, lead=5, t19=0, t23=0, quiet=4, touch=True,
    ab_nomfma=False, ab_nobread=False, ab_noaload=False, ab_nodma=False, a_flag=1, blkstamp=False, clk=False, blkclk=False, probe=-1, stepstamp=-1, dump=False, probe_ch=0,
)

P_X, P_LRE, P_LIM, P_BRE, P_BIM, P_CRE, P_CIM, P_LDT = 16, 18, 20, 22, 24, 26, 28, 30
P_DSK, P_BX, P_W1, P_W2, P_OUT, P_DBG, P_WS = 32, 34, 36, 38, 40, 42, 44
R_X, R_WS, R_1A, R_1B, R_2A, R_2B, R_OUT, R_TMP = 48, 52, 56, 60, 64, 68, 72, 76
sRB, sJ, sW, sEC, sE, sCH, sOWN, sSPIN = "s3", "s4", "s5", "s6", "s7", "s8", "s9", "s10"
sT0, sT1, sT2, sT3 = "s11", "s12", "s13", "s14"
sWO1, sWO2, sWO1B = "s80", "s81", "s82"
sA, sABEG, sAEND = "s83", "s84", "s85"
sM0A, sM0B = "s86", "s87"
sHALF = "s[94:95]"
sME = "s47"
sEX = "s[88:89]"
sMSK = [f"s[{90+2*k}:{91+2*k}]" for k in range(4)]
sST = ["s[98:99]", "s[100:101]"]


def v(a, n=1):
    return f"v{a}" if n == 1 else f"v[{a}:{a+n-1}]"


def a(b, n=1):
    return f"a{b}" if n == 1 else f"a[{b}:{b+n-1}]"


def srd(b):
    return f"s[{b}:{b+3}]"


vTID, vLANE, vL16B, vE, vINB, vFLG, vSTAMP = 0, 1, 2, 3, 4, 5, 6


class Gen:
    def __init__(self, **cfg):
        self.c = dict(DEFAULTS)
        self.c.update(cfg)
        self.e = Emitter()
        self.nstamp = 0
        self.chain = -1
        self.pending_stamp = None
        self.afl = {0: "", 1: "sc1", 2: "nt", 3: "sc0"}[self.c["a_flag"]]

    def stamp(self, k):
        if self.c["probe"] >= 0:
            if k == 0:
                self.e("s_memrealtime s[98:99]\ns_memrealtime s[100:101]")
            elif k == self.c["probe"] and self.chain == self.c["probe_ch"]:
                self.e("s_memrealtime s[100:101]")
        if not self.c["diag"]:
            return
        e = self.e
        self.flush_stamp()
        reg = sST[self.nstamp & 1]
        self.nstamp += 1
        e(f"s_memtime {reg}" if 16 <= k < 44 and self.c["blkclk"] else f"s_memrealtime {reg}")
        self.pending_stamp = (k, reg)
        if k < 16 and self.c["clk"]:
            self.flush_stamp()
            e(f"s_memtime {reg}")
            self.pending_stamp = (k + 48, reg)

    def flush_stamp(self):
        if self.pending_stamp:
            k, reg = self.pending_stamp
            lo = reg[2:].split(":")[0]
            self.e(f"v_writelane_b32 {v(vSTAMP)}, s{lo}, {k}")
            self.pending_stamp = None

    def mk_srd(self, r, ptr, nbytes):
        e = self.e
        e(f"s_mov_b32 s{r}, s{ptr}\ns_mov_b32 s{r+1}, s{ptr+1}")
        e(f"s_mov_b32 s{r+2}, {nbytes}\ns_mov_b32 s{r+3}, 0x20000")

    def mk_srd_sel(self, r, p_lo, p_hi, nbytes):
        e = self.e
        e(f"s_cselect_b32 s{r}, s{p_lo}, s{p_hi}\ns_cselect_b32 s{r+1}, s{p_lo+1}, s{p_hi+1}")
        e(f"s_mov_b32 s{r+2}, {nbytes}\ns_mov_b32 s{r+3}, 0x20000")

    def cmul(self, d, x, y):
        e = self.e
        e(f"v_pk_mul_f32 {v(d,2)}, {v(x,2)}, {v(y,2)} op_sel:[0,0] op_sel_hi:[0,1]")
        e(f"v_pk_fma_f32 {v(d,2)}, {v(x,2)}, {v(y,2)}, {v(d,2)} op_sel:[1,1,0] op_sel_hi:[1,0,1] neg_lo:[1,0,0]")

    def cfma(self, d, x, y, z):
        e = self.e
        e(f"v_pk_fma_f32 {v(d,2)}, {v(x,2)}, {v(y,2)}, {v(z,2)} op_sel:[0,0,0] op_sel_hi:[0,1,1]")
        e(f"v_pk_fma_f32 {v(d,2)}, {v(x,2)}, {v(y,2)}, {v(d,2)} op_sel:[1,1,0] op_sel_hi:[1,0,1] neg_lo:[1,0,0]")

    def round_bf16(self, r):
        e = self.e
        e(f"v_cvt_pk_bf16_f32 {v(r)}, {v(r)}, {v(r)}\nv_lshlrev_b32 {v(r)}, 16, {v(r)}")

    def rot_init(self, dst, nb, stride, ph):
        e, c = self.e, self.c
        ri, rx, rj, rb = c[f"ri{ph}"], c[f"rx{ph}"], c[f"rj{ph}"], c["rbits"]
        e(f"s_and_b32 {sT0}, {sRB}, {(1 << rb) - 1}\ns_mul_i32 {sT0}, {sT0}, {nb * ri}\ns_lshr_b32 {sT0}, {sT0}, {rb}")
        e(f"s_lshr_b32 {sT1}, {sRB}, {rb}\ns_mul_i32 {sT1}, {sT1}, {rx}\ns_add_u32 {sT0}, {sT0}, {sT1}")
        if rj:
            jb = 2 if c["mix"] else 5 - rb
            e(f"s_and_b32 {sT1}, {sJ}, {(1 << jb) - 1}\ns_mul_i32 {sT1}, {sT1}, {nb * rj}")
            e(f"s_lshr_b32 {sT1}, {sT1}, {jb}\ns_add_u32 {sT0}, {sT0}, {sT1}")
        e(f"s_mul_hi_u32 {sT1}, {sT0}, {(2**32 + nb - 1) // nb}\ns_mul_i32 {sT1}, {sT1}, {nb}")
        e(f"s_sub_u32 {sT0}, {sT0}, {sT1}\ns_mul_i32 {dst}, {sT0}, {stride}")

    @staticmethod
    def adv(reg, stride, end, beg):
        return [f"s_add_u32 {reg}, {reg}, {stride}", f"s_cmp_eq_u32 {reg}, {end}",
                f"s_cselect_b32 {reg}, {beg}, {reg}"]

    def send_flags(self, line, tag, lanes, word):
        e = self.e
        skip = e.newlabel("nosend")
        e(f"s_cmp_lg_u32 {sW}, 0\ns_cbranch_scc1 {skip}")
        s0 = e.begin_region()
        e(f"v_add_u32 {v(vFLG)}, {tag}, {v(vE)}")
        e(f"s_lshl_b32 {sT0}, {word}, 2\ns_add_u32 {sT0}, {sT0}, {INBOX + 128*line}")
        e(f"s_mov_b64 exec, {lanes}")
        e(f"buffer_store_dword {v(vFLG)}, {v(vINB)}, {srd(R_WS)}, {sT0} offen sc1")
        e("s_mov_b64 exec, -1")
        e.end_region(s0, skip)

    def poll(self, line, tag, nwords, tmp, tmp2, span=0):
        e = self.e
        lp, out = e.newlabel("poll"), e.newlabel("polled")
        e(f"v_and_b32 {v(tmp2)}, {nwords-1}, {v(vLANE)}\nv_lshlrev_b32 {v(tmp2)}, 2, {v(tmp2)}")
        e(f"s_add_u32 {sT0}, {sOWN}, {INBOX + 128*line}\ns_add_u32 {sT1}, {sE}, {tag}")
        e.label(lp)
        e(f"buffer_load_dword {v(tmp)}, {v(tmp2)}, {srd(R_WS)}, {sT0} offen sc1")
        e(f"s_cmp_eq_u32 {sSPIN}, 0")
        e.wait_all(lg=False)
        e(f"s_cbranch_scc1 {out}\ns_sub_u32 {sSPIN}, {sSPIN}, 1")
        if span:
            e(f"v_subrev_u32 {v(tmp)}, {sT1}, {v(tmp)}\nv_cmp_gt_u32 vcc, {span}, {v(tmp)}")
        else:
            e(f"v_cmp_eq_u32 vcc, {sT1}, {v(tmp)}")
        e(f"s_cmp_eq_u64 vcc, exec\ns_cbranch_scc0 {lp}")
        e.label(out)

    def entry(self):
        e, c = self.e, self.c
        X = 96
        e("s_cmp_ge_u32 s2, 256\ns_cbranch_scc1 L_end")
        e("s_load_dwordx2 s[44:45], s[0:1], 112\ns_load_dwordx16 s[16:31], s[0:1], 0")
        e("s_load_dwordx8 s[32:39], s[0:1], 64\ns_load_dwordx4 s[40:43], s[0:1], 96")
        if c["diag"]:
            e(f"v_mov_b32 {v(vSTAMP)}, 0")
        self.stamp(0)
        e(f"s_lshr_b32 {sT0}, s2, 3\ns_bfe_u32 {sCH}, s2, {0x10000 + (0, 3, 7)[c['mix']]}")
        if c["swap"]:
            e(f"s_xor_b32 {sCH}, {sCH}, 1")
        if c["codepf"]:
            skip, here = e.newlabel("nopf"), e.newlabel("pc")
            e("s_getpc_b64 s[88:89]")
            e.label(here)
            e(f"s_cmp_eq_u32 {sCH}, 0\ns_cselect_b32 {sT1}, 0, L_mlp-{here}")
            e(f"s_mov_b32 {sT2}, L_end-{here}\ns_cselect_b32 {sT2}, L_mlp-{here}, {sT2}")
            if c["mix"] == 0:
                e(f"s_lshl_b32 {sT3}, {sT0}, 7")
            else:
                e(f"s_bfe_u32 {sT3}, s2, {0x40000 + (0, 4, 3)[c['mix']]}\ns_lshl_b32 {sT3}, {sT3}, 7")
            e(f"s_add_u32 {sT3}, {sT3}, {sT1}")
            e(f"v_lshl_add_u32 v12, v0, {11 if c['mix'] else 12}, {sT3}\nv_cmp_gt_u32 vcc, {sT2}, v12")
            e(f"s_and_saveexec_b64 s[90:91], vcc\ns_cbranch_execz {skip}")
            s0 = e.begin_region()
            e("v_mov_b32 v13, s89\nv_add_co_u32 v12, vcc, s88, v12\nv_addc_co_u32 v13, vcc, 0, v13, vcc")
            e("global_load_dword v255, v[12:13], off")
            e.vm[-1]["dst"] = set()
            e.end_region(s0, skip)
            e("s_mov_b64 exec, -1")
        if c["mix"]:
            e(f"s_bfe_u32 {sT0}, s2, {0x40000 + (0, 4, 3)[c['mix']]}\ns_and_b32 {sJ}, {sT0}, 3\ns_and_b32 {sT1}, s2, 1")
            e(f"s_lshl_b32 {sT1}, {sT1}, 2\ns_add_u32 {sJ}, {sJ}, {sT1}\ns_lshr_b32 {sT0}, {sT0}, 2\ns_bfe_u32 {sT1}, s2, 0x20001")
            e(f"s_lshr_b32 {sT2}, {sT1}, 1\ns_xor_b32 {sT1}, {sT1}, {sT2}")
            e(f"s_lshl_b32 {sT1}, {sT1}, 2\ns_add_u32 {sRB}, {sT1}, {sT0}")
        elif c["rbits"] == 2:
            e(f"s_and_b32 {sJ}, {sT0}, 7\ns_lshr_b32 {sT0}, {sT0}, 3\ns_bfe_u32 {sT1}, s2, 0x20001")
            e(f"s_lshr_b32 {sT2}, {sT1}, 1\ns_xor_b32 {sT1}, {sT1}, {sT2}")
            e(f"s_lshl_b32 {sT1}, {sT1}, 2\ns_add_u32 {sRB}, {sT1}, {sT0}")
        elif c["rbits"] == 3:
            e(f"s_and_b32 {sJ}, {sT0}, 3\ns_and_b32 {sT1}, s2, 2\ns_lshl_b32 {sT1}, {sT1}, 1\ns_add_u32 {sJ}, {sJ}, {sT1}")
            e(f"s_lshr_b32 {sT0}, {sT0}, 2\ns_and_b32 {sT1}, s2, 4\ns_lshl_b32 {sT1}, {sT1}, 1\ns_add_u32 {sRB}, {sT1}, {sT0}")
        else:
            e(f"s_and_b32 {sJ}, {sT0}, 1\ns_and_b32 {sT1}, s2, 6\ns_add_u32 {sJ}, {sJ}, {sT1}\ns_lshr_b32 {sRB}, {sT0}, 1")
        e("v_lshrrev_b32 v8, 5, v0\nv_and_b32 v9, 31, v0")
        e("v_and_b32 v10, 1, v8\nv_lshlrev_b32 v10, 2, v10\nv_bfe_u32 v11, v8, 1, 1\nv_add_u32 v10, v10, v11")
        e("v_lshrrev_b32 v11, 2, v8\nv_lshl_add_u32 v10, v11, 3, v10")
        e("v_mul_u32_u24 v10, 0x500, v10\nv_lshl_add_u32 v10, v9, 4, v10")
        e(f"s_and_b32 {sT1}, {sJ}, 1\ns_lshl_b32 {sT2}, {sCH}, 3\ns_add_u32 {sT1}, {sT1}, {sT2}\ns_lshl_b32 {sT1}, {sT1}, 1")
        e(f"s_lshr_b32 {sT0}, {sJ}, 1\ns_lshl_b32 {sT0}, {sT0}, 5\ns_add_u32 {sT0}, {sT0}, {sT1}")
        e(f"s_lshl_b32 {sT1}, {sRB}, 7\ns_add_u32 {sT0}, {sT0}, {sT1}\ns_mul_i32 {sT0}, {sT0}, 1280")
        e(f"s_mov_b32 s{R_X+2}, {2048*1280}\ns_mov_b32 s{R_X+3}, 0x20000")
        e("s_mov_b32 s94, 0xffff\ns_mov_b32 s95, 0xffff")
        e(f"s_mov_b32 s{R_X}, s{P_X}\ns_mov_b32 s{R_X+1}, s{P_X+1}")
        for n in range(3):
            if n == 2:
                e(f"s_mov_b64 exec, {sHALF}")
            e(f"buffer_load_dwordx4 {v(X+4*n,4)}, v10, {srd(R_X)}, {sT0} offen offset:{512*n}")
        e("s_mov_b64 exec, -1")
        e(f"v_lshrrev_b32 v7, 6, v0\nv_and_b32 {v(vLANE)}, 63, v0")
        e(f"v_readfirstlane_b32 {sW}, v7")
        e(f"v_lshlrev_b32 {v(vL16B)}, 4, {v(vLANE)}")
        e(f"s_lshl_b32 {sOWN}, {sCH}, 4\ns_add_u32 {sOWN}, {sOWN}, {sRB}")
        e(f"s_lshl_b32 {sOWN}, {sOWN}, 3\ns_add_u32 {sOWN}, {sOWN}, {sJ}\ns_lshl_b32 {sOWN}, {sOWN}, 10")
        e(f"s_mov_b32 {sSPIN}, {SPIN_LIMIT}")
        self.mk_srd(R_WS, P_WS, WS_USED)
        e(f"s_lshl_b32 {sME}, {sCH}, 3\ns_add_u32 {sME}, {sME}, {sJ}\ns_lshl_b32 {sT0}, {sRB}, 13")
        e(f"v_and_b32 v11, 7, {v(vLANE)}\nv_lshl_add_u32 {v(vINB)}, v11, 10, {sT0}")
        e(f"v_bfe_u32 v11, {v(vLANE)}, 3, 1\nv_lshl_add_u32 {v(vINB)}, v11, 17, {v(vINB)}")
        e(f"s_add_u32 {sT1}, {sJ}, 120\ns_lshl_b32 {sT1}, {sT1}, 10\nv_mov_b32 v11, {sT1}")
        e(f"v_cmp_gt_u32 vcc, 16, {v(vLANE)}")
        e(f"v_cndmask_b32 {v(vINB)}, v11, {v(vINB)}, vcc")
        e(f"buffer_load_dword {v(vE)}, {v(vINB)}, {srd(R_WS)}, 0 offen sc1")
        if c["touch"]:
            e(f"v_and_b32 v11, 7, {v(vLANE)}\nv_lshlrev_b32 v11, 7, v11")
            e(f"buffer_load_dword v255, v11, {srd(R_WS)}, {sOWN} offen")
            e.vm[-1]["dst"] = set()
        e(f"s_cmp_eq_u32 {sCH}, 0\ns_cbranch_scc0 L_mlp")

    def ln_compute(self, X, U, scr, fill, fill_st, during_ack=None):
        e = self.e

        def parts(body):
            body(range(8))
            e(f"s_mov_b64 exec, {sHALF}")
            body(range(8, 12))
            e("s_mov_b64 exec, -1")

        def rowsum(r):
            e(f"v_add_f32 {v(r)}, {v(r)}, {v(r+1)}")
            for sh in (8, 4, 2, 1):
                e(f"v_add_f32_dpp {v(r)}, {v(r)}, {v(r)} row_ror:{sh} row_mask:0xf bank_mask:0xf")
            e(f"v_mov_b32 {v(r+1)}, {v(r)}\nv_permlane16_swap_b32 {v(r)}, {v(r+1)}\nv_add_f32 {v(r)}, {v(r)}, {v(r+1)}")

        def unpack(ks):
            for k in ks:
                e(f"v_lshlrev_b32 {v(U+2*k)}, 16, {v(X+k)}\nv_and_b32 {v(U+2*k+1)}, 0xffff0000, {v(X+k)}")
                if k == 0:
                    self.stamp(44)
                if k == 1:
                    e(f"v_pk_add_f32 v[12:13], {v(U,2)}, {v(U+2,2)}")
                elif k > 1:
                    e(f"v_pk_add_f32 v[12:13], v[12:13], {v(U+2*k,2)}")

        def centre(ks):
            for k in ks:
                e(f"v_pk_add_f32 {v(U+2*k,2)}, {v(U+2*k,2)}, v[14:15] op_sel_hi:[1,0] neg_lo:[0,1] neg_hi:[0,1]")
            for k in ks:
                if k == 0:
                    e(f"v_pk_mul_f32 v[12:13], {v(U,2)}, {v(U,2)}")
                else:
                    e(f"v_pk_fma_f32 v[12:13], {v(U+2*k,2)}, {v(U+2*k,2)}, v[12:13]")

        def scale(ks):
            for k in ks:
                e(f"v_pk_mul_f32 {v(U+2*k,2)}, {v(U+2*k,2)}, v[12:13] op_sel_hi:[1,0]")
                e(f"v_cvt_pk_bf16_f32 {v(X+k)}, {v(U+2*k)}, {v(U+2*k+1)}")
                if k & 3 == 3:
                    e(f"ds_write_b128 v10, {v(X+k-3,4)} offset:{1024*(k-3)}")

        inv_d = "0x3acccccd"
        e("v_and_b32 v10, 7, v9\nv_xor_b32 v10, v8, v10\nv_lshlrev_b32 v10, 4, v10\nv_lshl_add_u32 v10, v9, 7, v10")
        e(f"v_add_u32 v10, {scr}, v10\nv_lshrrev_b32 v8, 3, v0\nv_and_b32 v9, 7, v0\nv_xor_b32 v11, v8, v9")
        e(f"v_and_b32 v11, 7, v11\nv_lshlrev_b32 v11, 4, v11\nv_lshl_add_u32 v11, v8, 7, v11\nv_add_u32 v11, {scr}, v11")
        e("v_lshlrev_b32 v9, 4, v9\nv_lshl_add_u32 v9, v8, 8, v9")
        e(f"s_mul_i32 {sT2}, {sRB}, 163840\ns_mul_i32 {sT1}, {sJ}, 20480\ns_add_u32 {sT2}, {sT2}, {sT1}")
        e(f"s_lshl_b32 {sT1}, {sCH}, 7\ns_add_u32 {sT2}, {sT2}, {sT1}\ns_add_u32 s92, {sT2}, {XNS}")
        parts(unpack)
        for ins, tok in fill:
            e(ins, tok=tok)
        rowsum(12)
        e(f"v_mul_f32 v12, {inv_d}, v12\nv_mov_b32 v14, v12")
        self.round_bf16(14)
        e("v_sub_f32 v15, v12, v14")
        parts(centre)
        rowsum(12)
        e(f"v_mul_f32 v12, {inv_d}, v12\nv_fma_f32 v12, -v15, v15, v12\nv_max_f32 v12, 0, v12")
        self.round_bf16(12)
        e("v_add_f32 v12, 0x3727c5ac, v12")
        self.round_bf16(12)
        e("v_sqrt_f32 v12, v12")
        self.round_bf16(12)
        e("v_rcp_f32 v12, v12")
        parts(scale)
        self.stamp(45)
        e.wait_lg()
        e("s_barrier")
        for k in range(3):
            e(f"ds_read_b128 {v(X+4*k,4)}, v11 offset:{4096*k}")
        e(f"buffer_store_dwordx4 {v(X,4)}, v9, {srd(R_WS)}, s92 offen sc1", tok="xn")
        e(f"s_add_u32 {sT2}, s92, 8192\ns_add_u32 {sT3}, s92, 16384")
        e(f"buffer_store_dwordx4 {v(X+4,4)}, v9, {srd(R_WS)}, {sT2} offen sc1", tok="xn")
        skip = e.newlabel("third")
        e.wait_lg()
        e(f"s_cmp_gt_u32 {sW}, 1\ns_cbranch_scc1 {skip}")
        s0 = e.begin_region()
        e(f"buffer_store_dwordx4 {v(X+8,4)}, v9, {srd(R_WS)}, {sT3} offen sc1", tok="xn")
        e.end_region(s0, skip)
        self.stamp(46)
        e(f"v_readlane_b32 {sE}, {v(vE)}, {sME}\nv_readlane_b32 {sEC}, {v(vE)}, 16")
        for ins, tok in fill_st:
            e(ins, tok=tok)
        if during_ack:
            during_ack()
        e.wait_tok("xn", ("dma", 0))
        e.wait_lg()
        self.stamp(47)
        e("s_barrier")
        self.send_flags(2, TAG_XN, "0xffff", sME)

    @staticmethod
    def groups(instrs, tok=None):
        out, cur = [], []
        for ins in instrs:
            cur.append((ins, tok))
            if ins.startswith("buffer_"):
                out.append(cur)
                cur = []
        if cur:
            out[-1] += cur
        return out

    def pipeline(self, steps, dma, ns, nstream, early, visible, aitems, lazy={}, keep=False):
        e, c = self.e, self.c
        last = {st["blk"]: k for k, st in enumerate(steps) if st["last"]}
        b0 = steps[0]["blk"]
        blocks = [(b, 0) for b in early]
        if not c["ab_nodma"]:
            blocks += [(b - 1 + ns, last[b]) for b in sorted(last) if b > b0 and b - 1 + ns < nstream]
        ditems = [dict(r=max(r, lazy.get(b, 0)), d=last.get(b - 1, len(steps) + b), g=g)
                  for b, r in blocks for g in self.groups(dma(b), ("dma", b))]
        streams = [([] if c["ab_noaload"] else list(aitems), c["lat_a"]), (ditems, c["lat_d"])]
        credit = 0.0
        for k, st in enumerate(steps):
            credit = max(min(credit, 1.0), -1.0) + c["cap"] / 100 * len(st["mf"]) / 4 - len(st["vm"])
            credit -= sum(1 for g in st["alu"] for ins, _ in g if "buffer_" in ins)
            while True:
                heads = [(q[0]["d"] - lat, q) for q, lat in streams if q and q[0]["r"] <= k]
                if not heads:
                    break
                due = [h for h in heads if h[1][0]["d"] <= k + 1]
                if not due and (credit < 1 or st.get("quiet")):
                    break
                dl, q = min(due or heads, key=lambda h: h[0])
                st["vm"].append(q.pop(0)["g"])
                credit -= 1
        assert not streams[0][0] and all(it["r"] < it["d"] for it in aitems)
        if c["dump"]:
            for k, st in enumerate(steps):
                kinds = ["D%d" % g[-1][1][1] if g[-1][1] and g[-1][1][0] == "dma" else "A" for g in st["vm"]]
                print(self.chain, k, st["blk"], " ".join(kinds), "ST" if st["alu"] else "", "pre" if st.get("pre") else "")
        for ins in steps[0]["rd"]:
            e(ins)
        for k, st in enumerate(steps):
            b = st["blk"]
            if c["stepstamp"] >= 0:
                if 0 <= k + 100 * (b0 > 0) - c["stepstamp"] < 28:
                    self.stamp(16 + k + 100 * (b0 > 0) - c["stepstamp"])
            elif c["blkstamp"] and (k == 0 or steps[k - 1]["last"]):
                self.stamp(16 + b)
            nxt = steps[k + 1] if k + 1 < len(steps) else None
            if st["last"]:
                release = b > b0 and b - 1 + ns < nstream
                need_vis = nxt is not None and nxt["blk"] not in visible
                if need_vis:
                    e.wait_tok(("dma", nxt["blk"]))
                    visible.add(nxt["blk"])
                if st.get("pre"):
                    st["pre"]()
                if release or need_vis or st.get("post"):
                    e("s_barrier")
                if st.get("post"):
                    st["post"]()
            elif st.get("pre"):
                st["pre"]()
            rd = nxt["rd"] if nxt is not None and not c["ab_nobread"] else []
            mm, vm = st["mf"], st["vm"]
            slots = [[] for _ in mm]
            for n, ins in enumerate(rd):
                slots[n * len(mm) // len(rd)].append((ins, None))
            for n, g in enumerate(st["alu"]):
                slots[n * len(mm) // len(st["alu"])] += g
            for n, g in enumerate(vm):
                slots[(2 * n + 1) * len(mm) // (2 * len(vm))] += g
            for ins, fl in zip(mm, slots):
                e(ins)
                for f_, tok in fl:
                    e(f_, tok=tok)
        rest = [it["g"] for it in ditems]
        if keep:
            return rest
        self.emit_groups(rest)

    def record(self, fn):
        real, lines = self.e, []
        self.e = lambda text, tok=None: lines.extend(x for x in text.split("\n") if x)
        fn(self.e)
        self.e = real
        return [[(x, None)] for x in lines]

    def emit_groups(self, gs):
        for g in gs:
            for ins, tok in g:
                self.e(ins, tok=tok)

    def a_items(self, aloads, first, count, rel, use):
        return [dict(r=rel(gs), d=use(gs), g=g) for gs in range(first, count) for g in self.groups(aloads(gs))]

    @staticmethod
    def mk_steps(first_blk, nblk, nst, mfmas, breads):
        return [dict(blk=first_blk + n, last=st == nst - 1, mf=mfmas(n, st), rd=breads(n, st), vm=[], alu=[])
                for n in range(nblk) for st in range(nst)]

    def warm(self, descs, lines, pos, steps=None):
        e = self.e
        if steps is None and pos:
            e(f"s_bfe_u32 s93, {sOWN}, 0x7000a\ns_lshl_b32 s93, s93, 2\ns_add_u32 s93, s93, {sW}")
            e(f"s_mul_i32 s93, s93, {128 * lines}\nv_min_u32 v247, {lines - 1}, {v(vLANE)}\nv_lshlrev_b32 v247, 7, v247")
        for k, d in enumerate(descs):
            ld = f"buffer_load_dword v255, v247, {srd(d)}, s93 offen"
            if steps is None and pos == 1:
                e(ld, tok="junk")
            if steps is not None and pos > 1:
                steps[pos + k]["vm"].append([(ld, "junk")])

    def issue_dma(self, dma, blocks):
        for b in blocks:
            for ins in dma(b):
                self.e(ins, tok=("dma", b))

    def ssm(self):
        e, c = self.e, self.c
        NS, SLOT = 7, 20480
        vDB, vDC = 16, 21
        vRB, vRC = 26, 32
        vA1, vCH8, vTC, vTW, vTRW, vTRR = 44, 45, 46, 47, 7, 8
        vL, vL4, vSC, vWP = 48, 58, 68, 78
        vL8, vL128, vSCL = 88, 90, 92
        ACC, SP, WK = 96, 176, 196
        X, U = 96, 116
        AR, BB, SK = 0, 64, 144

        e(f"s_and_b32 {sT0}, {sW}, 1\nv_lshl_add_u32 {v(vCH8)}, {sT0}, 6, {v(vLANE)}")
        e(f"s_mul_i32 {sT0}, {sJ}, 160\nv_lshl_add_u32 v12, {v(vCH8)}, 1, {sT0}")
        for k, p in enumerate((P_LRE, P_LIM, P_LDT)):
            self.mk_srd(R_TMP, p, 1280)
            e(f"buffer_load_ushort {v(WK+k)}, v12, {srd(R_TMP)}, 0 offen")
        if c["touch"]:
            e(f"s_lshl_b32 {sT1}, {sJ}, 4\ns_sub_u32 {sT1}, {sT1}, {sRB}\ns_mul_i32 {sT1}, {sT1}, 1280")
            e(f"s_add_u32 {sT1}, {sT1}, {CARRY + 15*1280}\nv_min_u32 v12, 9, {v(vLANE)}\nv_lshlrev_b32 v12, 7, v12")
            e(f"buffer_load_dword v255, v12, {srd(R_WS)}, {sT1} offen")
            e.vm[-1]["dst"] = set()
        e(f"s_cmp_lt_u32 {sW}, 2")
        self.mk_srd_sel(R_1A, P_BRE, P_BIM, 819200)
        self.mk_srd_sel(R_1B, P_BIM, P_BRE, 819200)
        self.mk_srd_sel(R_2A, P_CRE, P_CIM, 819200)
        self.mk_srd_sel(R_2B, P_CIM, P_CRE, 819200)
        self.warm((R_2A, R_2B), 13, c["warm_s"])
        e(f"s_and_b32 {sT0}, {sW}, 1\ns_lshr_b32 {sT1}, {sW}, 1")
        e(f"s_mul_i32 {sM0A}, {sT1}, 10240\ns_mul_i32 {sT2}, {sT0}, 3072\ns_add_u32 {sM0A}, {sM0A}, {sT2}")
        e(f"s_xor_b32 {sT1}, {sT1}, 1\ns_mul_i32 {sM0B}, {sT1}, 10240\ns_lshl_b32 {sT2}, {sT0}, 11")
        e(f"s_add_u32 {sM0B}, {sM0B}, {sT2}\ns_add_u32 {sM0B}, {sM0B}, 6144")
        e(f"v_lshrrev_b32 v12, 3, {v(vLANE)}\nv_and_b32 v13, 7, {v(vLANE)}\nv_lshrrev_b32 v14, 1, v12")
        e("v_xor_b32 v13, v13, v14\nv_lshlrev_b32 v13, 4, v13\nv_mul_u32_u24 v12, 0x500, v12\nv_add_u32 v12, v12, v13")
        for i in range(5):
            imm = 1024 * (i if i < 3 else i - 3)
            if i < 3:
                e(f"s_mul_i32 {sT1}, {sT0}, 3\ns_add_u32 {sT1}, {sT1}, {i}")
            else:
                e(f"s_lshl_b32 {sT1}, {sT0}, 1\ns_add_u32 {sT1}, {sT1}, {3 + i}")
            e(f"s_and_b32 {sT2}, {sT1}, 1\ns_lshl_b32 {sT2}, {sT2}, 6\nv_xor_b32 v13, {sT2}, v12")
            e(f"s_mul_i32 {sT2}, {sJ}, 10\ns_add_u32 {sT2}, {sT2}, {sT1}\ns_mul_i32 {sT2}, {sT2}, 10240")
            e(f"s_sub_u32 {sT2}, {sT2}, {imm}\nv_add_u32 {v(vDB+i)}, {sT2}, v13")
            e(f"s_lshl_b32 {sT2}, {sJ}, 3\ns_add_u32 {sT2}, {sT2}, {sT1}")
            e(f"s_lshl_b32 {sT3}, {sJ}, 1\ns_add_u32 {sT3}, {sT3}, {sT1}\ns_add_u32 {sT3}, {sT3}, 56")
            e(f"s_cmp_lt_u32 {sT1}, 8\ns_cselect_b32 {sT2}, {sT2}, {sT3}\ns_mul_i32 {sT2}, {sT2}, 10240")
            e(f"s_sub_u32 {sT2}, {sT2}, {imm}\nv_add_u32 {v(vDC+i)}, {sT2}, v13")
        self.rot_init(sWO1, 10, 128, 1)
        self.rot_init(sWO2, 10, 128, 2)

        def dma(b):
            ph2 = b >= 10
            ra, rb_, vb, so = (R_2A, R_2B, vDC, sWO2) if ph2 else (R_1A, R_1B, vDB, sWO1)
            base = (b % NS) * SLOT
            out = [f"s_add_u32 m0, {sM0A}, {base}"]
            out += [f"buffer_load_dwordx4 {v(vb+i)}, {srd(ra)}, {so} offen offset:{1024*i} lds" for i in range(3)]
            out += [f"s_add_u32 m0, {sM0B}, {base}"]
            out += [f"buffer_load_dwordx4 {v(vb+3+i)}, {srd(rb_)}, {so} offen offset:{1024*i} lds" for i in range(2)]
            return out + self.adv(so, 128, 1280, 0)

        pa, pl, pb = c["pre_a"], c["pre_ln"] + c["pre_st"], c["pre_b"]
        self.issue_dma(dma, range(pa))
        def consts():
            e(f"v_lshlrev_b32 {v(vCH8)}, 3, {v(vCH8)}\nv_add_u32 {v(vCH8)}, {SCR}, {v(vCH8)}")
            e(f"s_bitcmp0_b32 {sW}, 0\ns_cselect_b32 s88, -1, 0xffff\ns_cselect_b32 s89, -1, 0")
            skip = e.newlabel("noconst")
            e(f"s_cmp_gt_u32 {sW}, 1\ns_cbranch_scc1 {skip}")
            s0 = e.begin_region()
            e(f"s_mov_b64 exec, {sEX}")
            lre, lim, ldt = WK, WK + 1, WK + 2
            t = WK + 4
            for r in (lre, lim, ldt):
                e(f"v_lshlrev_b32 {v(r)}, 16, {v(r)}")
            log2e = "0x3fb8aa3b"
            e(f"v_mul_f32 {v(ldt)}, {log2e}, {v(ldt)}\nv_exp_f32 {v(ldt)}, {v(ldt)}")
            self.round_bf16(ldt)
            e(f"v_mul_f32 {v(t)}, {v(ldt)}, {v(lre)}\nv_mul_f32 {v(t+1)}, {v(ldt)}, {v(lim)}")
            e(f"v_mul_f32 {v(t)}, {log2e}, {v(t)}\nv_exp_f32 {v(t)}, {v(t)}")
            e(f"v_mul_f32 {v(t+1)}, 0.15915494, {v(t+1)}\nv_rndne_f32 {v(t+2)}, {v(t+1)}")
            e(f"v_sub_f32 {v(t+1)}, {v(t+1)}, {v(t+2)}")
            e(f"v_cos_f32 {v(t+2)}, {v(t+1)}\nv_sin_f32 {v(t+3)}, {v(t+1)}")
            L1 = WK + 8
            e(f"v_mul_f32 {v(L1)}, {v(t)}, {v(t+2)}\nv_mul_f32 {v(L1+1)}, {v(t)}, {v(t+3)}")
            e(f"v_mul_f32 {v(t)}, {v(lre)}, {v(lre)}\nv_fma_f32 {v(t)}, {v(lim)}, {v(lim)}, {v(t)}")
            e(f"v_rcp_f32 {v(t)}, {v(t)}\nv_add_f32 {v(t+1)}, -1.0, {v(L1)}\nv_add_f32 {v(t)}, {v(t)}, {v(t)}")
            e(f"v_mul_f32 {v(t+2)}, {v(t+1)}, {v(lre)}\nv_fma_f32 {v(t+2)}, {v(L1+1)}, {v(lim)}, {v(t+2)}")
            e(f"v_mul_f32 {v(t+3)}, {v(L1+1)}, {v(lre)}\nv_fma_f32 {v(t+3)}, -{v(t+1)}, {v(lim)}, {v(t+3)}")
            e(f"v_mul_f32 {v(vSCL)}, {v(t+2)}, {v(t)}\nv_mul_f32 {v(vSCL+1)}, {v(t+3)}, {v(t)}")
            L2, L4 = WK + 10, WK + 12
            self.cmul(L2, L1, L1)
            self.cmul(L4, L2, L2)
            self.cmul(vL8, L4, L4)
            e(f"ds_write_b64 {v(vCH8)}, {v(L1,2)} offset:10240")
            e(f"ds_write_b64 {v(vCH8)}, {v(L4,2)} offset:10880")
            e(f"ds_write_b64 {v(vCH8)}, {v(vSCL,2)} offset:11520")
            e(f"ds_write_b64 {v(vCH8)}, {v(vSCL,2)}")
            prev = vSCL
            for s in range(1, 16):
                d = WK + 14 + 2 * (s & 1)
                self.cmul(d, vL8, prev)
                e(f"ds_write_b64 {v(vCH8)}, {v(d,2)} offset:{640*s}")
                prev = d
            self.cmul(L1, vL8, vL8)
            self.cmul(L2, L1, L1)
            self.cmul(L1, L2, L2)
            self.cmul(vL128, L1, L1)
            e(f"ds_write_b64 {v(vCH8)}, {v(vL128,2)} offset:12160")
            e("s_mov_b64 exec, -1")
            e.wait_lg()
            e.end_region(s0, skip)

        SXN, SXR, SXP, SPF, SPR = SK, SK + 16, SK + 32, SK + 48, SK + 56
        vDS, vXM, vXP = 250, 94, 95
        sK = ["s90", "s91", "s96", "s97"]
        one = lambda *ins: [(i_, None) for i_ in ins]
        skip_ld = [one(f"buffer_load_dwordx4 {a(SXN + 8*f + 4*m,4)}, {v(vA1 if m else vL16B)}, {srd(R_WS)}, {sK[0]} "
                       f"offen offset:{1024*f} sc1") for f in range(2) for m in range(2)]
        skip_ld += [one("s_mov_b32 exec_hi, 0", f"buffer_load_dwordx4 {a(SPF + 4*m,4)}, {v(vA1 if m else vL16B)}, "
                        f"{srd(R_WS)}, {sK[1]} offen sc1", "s_mov_b64 exec, -1") for m in range(2)]
        skip_ld += [one(f"buffer_load_dwordx4 {a(SXR + 8*f + 4*m,4)}, {v(vXM)}, {srd(R_X)}, {sK[2]} "
                        f"offen offset:{2560*m + 64*f}") for m in range(2) for f in range(2)]
        skip_ld += [one("s_mov_b32 exec_lo, 0", f"buffer_load_dwordx4 {a(SPR + 4*m,4)}, {v(vXP)}, {srd(R_X)}, {sK[3]} "
                        f"offen offset:{2560*m}", "s_mov_b64 exec, -1") for m in range(2)]

        e(f"v_and_b32 v12, 15, {v(vLANE)}\nv_lshrrev_b32 v13, 4, {v(vLANE)}\nv_lshrrev_b32 v14, 1, v12")
        e("v_xor_b32 v15, v13, v14\nv_lshlrev_b32 v15, 4, v15\nv_lshl_add_u32 v15, v12, 7, v15")
        for k in range(3):
            e(f"v_add_u32 {v(vRB+2*k)}, {61440*k}, v15\nv_xor_b32 {v(vRB+2*k+1)}, 64, {v(vRB+2*k)}")
        e("v_and_b32 v15, 1, v13\nv_xor_b32 v15, v15, v14\nv_lshlrev_b32 v15, 4, v15\nv_lshl_add_u32 v15, v12, 7, v15")
        e("v_lshrrev_b32 v14, 1, v13\nv_mul_u32_u24 v14, 0x2800, v14\nv_add_u32 v15, v15, v14")
        for k in range(3):
            e(f"v_add_u32 {v(vRC+4*k)}, {61440*k}, v15")
            for st in range(1, 4):
                e(f"v_xor_b32 {v(vRC+4*k+st)}, {32*st}, {v(vRC+4*k)}")
        e(f"v_lshlrev_b32 {v(vTC)}, 3, v12\nv_add_u32 {v(vTC)}, {SCR}, {v(vTC)}")
        e(f"v_lshl_add_u32 v14, {sW}, 2, v13\nv_mul_u32_u24 v14, 0x280, v14\nv_add_u32 {v(vTW)}, v14, {v(vTC)}")
        e(f"v_add_u32 {v(vA1)}, 20480, {v(vL16B)}")
        e(f"s_mul_i32 {sABEG}, {sRB}, 163840\ns_mul_i32 {sT0}, {sW}, 40960\ns_add_u32 {sABEG}, {sABEG}, {sT0}")
        e(f"s_add_u32 {sABEG}, {sABEG}, {XNS}\ns_add_u32 {sAEND}, {sABEG}, 20480")
        self.rot_init(sA, 10, 2048, 1)
        e(f"s_add_u32 {sA}, {sA}, {sABEG}")

        def late_setup(e):

            def rowoff(d, i):
                e(f"v_lshrrev_b32 {v(d)}, 2, {v(i)}\nv_lshlrev_b32 {v(d)}, 3, {v(d)}\nv_and_b32 v15, 1, {v(i)}")
                e(f"v_lshl_add_u32 {v(d)}, v15, 2, {v(d)}\nv_bfe_u32 v15, {v(i)}, 1, 1\nv_add_u32 {v(d)}, {v(d)}, v15")
                e(f"v_mul_u32_u24 {v(d)}, 0x500, {v(d)}")
            e(f"s_lshl_b32 {sK[0]}, {sJ}, 11\ns_add_u32 {sK[0]}, {sK[0]}, {sABEG}")
            e(f"s_lshl_b32 {sK[1]}, {sJ}, 9\ns_add_u32 {sK[1]}, {sK[1]}, {sABEG}\ns_add_u32 {sK[1]}, {sK[1]}, 16384")
            e(f"v_lshrrev_b32 v12, 2, {v(vLANE)}")
            rowoff(vXM, 12)
            e(f"v_and_b32 v15, 3, {v(vLANE)}\nv_lshl_add_u32 {v(vXM)}, v15, 4, {v(vXM)}")
            e(f"v_bfe_u32 v12, {v(vLANE)}, 1, 4")
            rowoff(vXP, 12)
            e(f"v_and_b32 v15, 1, {v(vLANE)}\nv_lshl_add_u32 {v(vXP)}, v15, 4, {v(vXP)}")
            e(f"s_lshl_b32 {sT0}, {sRB}, 2\ns_add_u32 {sT0}, {sT0}, {sW}\ns_mul_i32 {sT0}, {sT0}, 40960")
            e(f"s_lshl_b32 {sK[2]}, {sJ}, 7\ns_add_u32 {sK[2]}, {sK[2]}, {sT0}")
            e(f"s_lshl_b32 {sK[3]}, {sJ}, 5\ns_add_u32 {sK[3]}, {sK[3]}, {sT0}\ns_add_u32 {sK[3]}, {sK[3]}, 1024")
            self.mk_srd(R_TMP, P_DSK, 1280)
            e(f"v_and_b32 v12, 15, {v(vLANE)}\nv_lshlrev_b32 v12, 1, v12")
            e(f"s_lshl_b32 {sT1}, {sJ}, 7\ns_lshl_b32 {sT2}, {sJ}, 5\ns_add_u32 {sT2}, {sT2}, 1024")
            for T in range(5):
                so, imm = (sT1, 32 * T) if T < 4 else (sT2, 0)
                e(f"buffer_load_ushort {v(vDS+T)}, v12, {srd(R_TMP)}, {so} offen offset:{imm}")
            e(f"v_and_b32 v12, 15, {v(vLANE)}\nv_lshrrev_b32 v13, 4, {v(vLANE)}")
            e("v_lshrrev_b32 v14, 3, v12\nv_lshlrev_b32 v14, 2, v14\nv_xor_b32 v14, v14, v12\nv_lshlrev_b32 v14, 5, v14")
            e("v_lshrrev_b32 v15, 2, v12\nv_xor_b32 v15, v15, v13\nv_lshl_add_u32 v14, v15, 3, v14")
            e(f"s_lshl_b32 {sT0}, {sW}, 11\ns_add_u32 {sT0}, {sT0}, {SCR + 12288}\nv_add_u32 {v(vTRW)}, {sT0}, v14")
            for j2 in range(2):
                e(f"v_and_b32 v14, 1, v13\nv_xor_b32 v14, {j2}, v14\nv_lshlrev_b32 v14, 2, v14")
                e(f"v_lshl_add_u32 v14, v13, 3, v14\nv_bfe_u32 v15, {v(vLANE)}, 2, 2\nv_add_u32 v14, v14, v15")
                e(f"v_lshlrev_b32 v14, 5, v14\nv_lshlrev_b32 v15, 1, v13\nv_add_u32 v15, {j2}, v15")
                e(f"v_xor_b32 v15, v15, {v(vLANE)}\nv_and_b32 v15, 3, v15\nv_lshl_add_u32 v14, v15, 3, v14")
                e(f"v_add_u32 {v(vTRR+j2)}, {sT0}, v14")

        self.stamp(1)
        toks = lambda r: [(i, ("dma", b)) for b in r for i in dma(b)]
        self.ln_compute(X, U, 6 * SLOT, toks(range(pa, pa + c["pre_ln"])), toks(range(pa + c["pre_ln"], pa + pl)), consts)
        self.stamp(2)
        self.issue_dma(dma, range(pa + pl, pa + pl + pb))

        visible = {0}
        for g in range(5):
            e(f"ds_read_b64 {v(vL+2*g,2)}, {v(vTC)} offset:{10240 + 128*g}")
            e(f"ds_read_b64 {v(vL4+2*g,2)}, {v(vTC)} offset:{10880 + 128*g}")
            e(f"ds_read_b64 {v(vSC+2*g,2)}, {v(vTC)} offset:{11520 + 128*g}")
            e(f"ds_read_b64 {v(vWP+2*g,2)}, {v(vTW)} offset:{128*g}")
        e(f"ds_read_b64 {v(vL128,2)}, {v(vCH8)} offset:12160")
        self.stamp(3)
        self.poll(2, TAG_XN, 16, 12, 13)
        self.stamp(4)

        acc = lambda g, cp, m: ACC + ((g * 2 + cp) * 2 + m) * 4

        def aload1(gs):
            st = gs & 1
            r = AR + (gs % 8) * 8
            out = [f"buffer_load_dwordx4 {a(r,4)}, {v(vL16B)}, {srd(R_WS)}, {sA} offen offset:{1024*st} {self.afl}",
                   f"buffer_load_dwordx4 {a(r+4,4)}, {v(vA1)}, {srd(R_WS)}, {sA} offen offset:{1024*st} {self.afl}"]
            return out + (self.adv(sA, 2048, sAEND, sABEG) if st else [])

        def bread1(n, st):
            slot = n % NS
            base, off = vRB + 2 * (slot // 3) + st, (slot % 3) * SLOT
            return [f"ds_read_b128 {a(BB + 40*st + 4*(2*g+cp),4)}, {v(base)} offset:{off + cp*10240 + g*2048}"
                    for g in range(5) for cp in range(2)]

        def mfma1(n, st):
            gs = 2 * n + st
            return [f"v_mfma_f32_16x16x32_bf16 {v(acc(g,cp,m),4)}, {a(AR + (gs%8)*8 + 4*m,4)}, "
                    f"{a(BB + 40*st + 4*(2*g+cp),4)}, {v(acc(g,cp,m),4) if gs else 0}"
                    for g in range(5) for cp in range(2) for m in range(2)]

        steps = self.mk_steps(0, 10, 2, mfma1, bread1)
        items = self.a_items(aload1, c["a_pre"] // 2, 20, lambda g: g - 7, lambda g: g)
        self.warm((R_2A, R_2B), 13, c["warm_s"], steps)
        late = self.record(late_setup)
        for n, g in enumerate(late):
            steps[1 + n * 8 // len(late)]["alu"].append(g)
        for k in range(c["warm_s"] + 2, c["warm_s"] + 2 + c["quiet_s"]):
            steps[k]["quiet"] = c["warm_s"] > 1
        for n, g in enumerate(skip_ld):
            steps[c["skip_at"] + n // 2]["vm"].append(g)
        for gs in range(c["a_pre"] // 2):
            e("\n".join(aload1(gs)))
        lazy = {10 + n: c["lazy0"] + c["lazy_gap"] * n for n in range(7)}
        upto = 10 + NS - c["defer"]
        rest = self.pipeline(steps, dma, NS, min(upto, 9 + NS), range(pa + pl + pb, NS), visible, items, lazy, keep=True)
        if not c["defer"]:
            rest += self.groups(dma(9 + NS), ("dma", 9 + NS))
        cutp = [len(rest) * c[k] // 100 for k in ("rest_a", "rest_b")]
        self.stamp(5)

        pair = lambda g, cp, jj: acc(g, cp, jj >> 1) + 2 * (jj & 1)
        LR = "op_sel:[0,0,0] op_sel_hi:[0,1,1]"
        LI = "op_sel:[1,0,0] op_sel_hi:[1,1,1]"
        NEG = "neg_lo:[1,0,0] neg_hi:[1,0,0]"
        for g in range(5):
            Lg = v(vL + 2 * g, 2)
            sre, sim = pair(g, 0, 0), pair(g, 1, 0)
            for jj in range(1, 4):
                dre, dim = (WK, WK + 2) if jj == 2 else (SP + 4 * g, SP + 4 * g + 2)
                e(f"v_pk_fma_f32 {v(dre,2)}, {Lg}, {v(sre,2)}, {v(pair(g,0,jj),2)} {LR}")
                e(f"v_pk_fma_f32 {v(dim,2)}, {Lg}, {v(sim,2)}, {v(pair(g,1,jj),2)} {LR}")
                e(f"v_pk_fma_f32 {v(dre,2)}, {Lg}, {v(sim,2)}, {v(dre,2)} {LI} {NEG}")
                e(f"v_pk_fma_f32 {v(dim,2)}, {Lg}, {v(sre,2)}, {v(dim,2)} {LI}")
                sre, sim = dre, dim
            l4r, l4i, d = vL4 + 2 * g, vL4 + 2 * g + 1, WK + 4 + 2 * (g & 1)
            e(f"v_fma_f32 {v(d)}, {v(l4r)}, {v(sre)}, {v(sre+1)}")
            e(f"v_fma_f32 {v(d+1)}, {v(l4r)}, {v(sim)}, {v(sim+1)}")
            e(f"v_fma_f32 {v(d)}, -{v(l4i)}, {v(sim)}, {v(d)}")
            e(f"v_fma_f32 {v(d+1)}, {v(l4i)}, {v(sre)}, {v(d+1)}")
            e(f"ds_write_b64 {v(vTW)}, {v(d,2)} offset:{128*g}")
        e.wait_lg()
        e("s_barrier")
        self.stamp(6)

        skip = e.newlabel("nocomb")
        e(f"s_cmp_gt_u32 {sW}, 1\ns_cbranch_scc1 {skip}")
        s0 = e.begin_region()
        e(f"s_mov_b64 exec, {sEX}")
        SL = WK
        for s in range(16):
            e(f"ds_read_b64 {v(SL+2*s,2)}, {v(vCH8)} offset:{640*s}")
        for s in range(1, 16):
            e(f"v_pk_fma_f32 {v(SL+2*s,2)}, {v(vL8,2)}, {v(SL+2*s-2,2)}, {v(SL+2*s,2)} {LR}")
            e(f"v_pk_fma_f32 {v(SL+2*s,2)}, {v(vL8,2)}, {v(SL+2*s-2,2)}, {v(SL+2*s,2)} "
              "op_sel:[1,1,0] op_sel_hi:[1,0,1] neg_lo:[1,0,0]")
        MSG = SL + 30
        e(f"v_subrev_u32 v12, {SCR}, {v(vCH8)}\nv_lshlrev_b32 v12, 1, v12")
        e(f"s_add_u32 {sT0}, {sEC}, {TAG_CARRY}\nv_mov_b32 {v(MSG+2)}, {sT0}\nv_mov_b32 {v(MSG+3)}, {sT0}")
        e(f"s_lshl_b32 {sT1}, {sJ}, 4\ns_sub_u32 {sT1}, {sT1}, {sRB}\ns_mul_i32 {sT1}, {sT1}, 1280")
        e(f"s_add_u32 {sT1}, {sT1}, {CARRY + 15*1280}")
        e(f"buffer_store_dwordx4 {v(MSG,4)}, v12, {srd(R_WS)}, {sT1} offen sc1")
        e(f"v_mov_b32 v14, 0\nv_mov_b32 v15, 0\nds_write_b64 {v(vCH8)}, v[14:15]")
        for s in range(1, 16):
            d = WK + 36 + 2 * (s & 1)
            self.cmul(d, vSCL, SL + 2 * s - 2)
            e(f"ds_write_b64 {v(vCH8)}, {v(d,2)} offset:{640*s}")
        e("s_mov_b64 exec, -1")
        e.end_region(s0, skip)
        self.emit_groups(rest[:cutp[0]])
        self.stamp(7)

        def scale_pairs(g, re, im):
            Sg = v(vSC + 2 * g, 2)
            e(f"v_pk_mul_f32 v[14:15], {Sg}, {v(im,2)} op_sel:[1,0] op_sel_hi:[1,1] neg_lo:[1,0] neg_hi:[1,0]")
            e(f"v_pk_mul_f32 {v(im,2)}, {Sg}, {v(im,2)} op_sel:[0,0] op_sel_hi:[0,1]")
            e(f"v_pk_fma_f32 {v(im,2)}, {Sg}, {v(re,2)}, {v(im,2)} {LI}")
            e(f"v_pk_fma_f32 {v(re,2)}, {Sg}, {v(re,2)}, v[14:15] {LR}")
        for g in range(5):
            scale_pairs(g, SP + 4 * g, SP + 4 * g + 2)
            for jj in range(4):
                scale_pairs(g, pair(g, 0, jj), pair(g, 1, jj))
        self.stamp(8)

        skip = e.newlabel("nocarry")
        e(f"s_cmp_lt_u32 {sW}, 2\ns_cbranch_scc1 {skip}")
        s0 = e.begin_region()
        e(f"s_lshl_b32 {sT0}, {sJ}, 4\ns_sub_u32 {sT0}, {sT0}, {sRB}\ns_mul_i32 {sT0}, {sT0}, 1280")
        e(f"s_add_u32 {sT0}, {sT0}, {CARRY + 16*1280}")
        e(f"s_add_u32 s{R_TMP}, s{P_WS}, {sT0}\ns_addc_u32 s{R_TMP+1}, s{P_WS+1}, 0")
        e(f"s_mul_i32 s{R_TMP+2}, {sRB}, 1280\ns_mov_b32 s{R_TMP+3}, 0x20000")
        e(f"s_add_u32 {sT1}, {sEC}, {TAG_CARRY}\ns_mul_i32 {sT1}, {sT1}, {sRB}")
        e(f"s_mov_b64 exec, {sEX}")
        MG = 196
        vMA = [10, 11, 12, 13, 14]
        e(f"v_subrev_u32 v10, {SCR}, {v(vCH8)}\nv_lshlrev_b32 v10, 1, v10")
        for k in range(1, 5):
            e(f"v_add_u32 v{10+k}, {3840*k}, v10")
        lp, out = e.newlabel("cpoll"), e.newlabel("cpolled")
        e.label(lp)
        mreg = lambda dl: MG + 4 * dl if dl < 13 else (vDB, vRB)[dl - 13]
        for dl in range(15):
            e(f"buffer_load_dwordx3 {v(mreg(dl),3)}, v{vMA[dl//3]}, {srd(R_TMP)}, 0 offen offset:{1280*(dl%3)} sc1")
        e(f"s_cmp_eq_u32 {sSPIN}, 0")
        e.wait_all(lg=False)
        e(f"s_cbranch_scc1 {out}\ns_sub_u32 {sSPIN}, {sSPIN}, 1")
        e(f"v_add3_u32 v15, {v(mreg(0)+2)}, {v(mreg(1)+2)}, {v(mreg(2)+2)}")
        for k in range(3, 15, 2):
            e(f"v_add3_u32 v15, v15, {v(mreg(k)+2)}, {v(mreg(k+1)+2)}")
        e(f"v_cmp_eq_u32 vcc, {sT1}, v15")
        e(f"s_cmp_eq_u64 vcc, exec\ns_cbranch_scc0 {lp}")
        e.label(out)
        for dl in range(13, -1, -1):
            x, y = mreg(dl), mreg(dl + 1)
            e(f"v_pk_fma_f32 {v(x,2)}, {v(vL128,2)}, {v(y,2)}, {v(x,2)} {LR}")
            e(f"v_pk_fma_f32 {v(x,2)}, {v(vL128,2)}, {v(y,2)}, {v(x,2)} op_sel:[1,1,0] op_sel_hi:[1,0,1] neg_lo:[1,0,0]")
        e(f"ds_write_b64 {v(vCH8)}, {v(mreg(0),2)} offset:10240")
        e("s_mov_b64 exec, -1")
        e.end_region(s0, skip)
        e.wait_all(vm=False)
        e("s_barrier")
        self.stamp(9)

        PG = WK
        for g in range(5):
            e(f"ds_read_b64 {v(PG+4*g,2)}, {v(vTW)} offset:{128*g}")
            e(f"ds_read_b64 {v(PG+4*g+2,2)}, {v(vTC)} offset:{10240 + 128*g}")
        e(f"s_mul_i32 {sABEG}, {sRB}, 327680\ns_mul_i32 {sT0}, {sW}, 81920\ns_add_u32 {sABEG}, {sABEG}, {sT0}")
        e(f"s_add_u32 {sABEG}, {sABEG}, {HS}\ns_add_u32 {sAEND}, {sABEG}, 40960")
        e(f"s_mul_i32 {sT2}, {sJ}, 5120\ns_add_u32 {sT2}, {sT2}, {sABEG}")
        e(f"v_add_u32 {v(vA1)}, 40960, {v(vL16B)}")
        HF = WK + 20
        CV = 12

        def pass2(fl):
            for g in range(5):
                p, gg, w_ = PG + 4 * g, PG + 4 * g + 2, vWP + 2 * g
                hre, him = SP + 4 * g, SP + 4 * g + 2
                l4r, l4i = vL4 + 2 * g, vL4 + 2 * g + 1
                e(f"v_fma_f32 {v(p)}, {v(w_)}, {v(gg)}, {v(p)}\nv_fma_f32 {v(p+1)}, {v(w_)}, {v(gg+1)}, {v(p+1)}")
                e(f"v_fma_f32 {v(p)}, -{v(w_+1)}, {v(gg+1)}, {v(p)}\nv_fma_f32 {v(p+1)}, {v(w_+1)}, {v(gg)}, {v(p+1)}")
                e(f"v_fma_f32 {v(hre+1)}, {v(l4r)}, {v(p)}, {v(hre)}\nv_fma_f32 {v(him+1)}, {v(l4r)}, {v(p+1)}, {v(him)}")
                e(f"v_fma_f32 {v(hre+1)}, -{v(l4i)}, {v(p+1)}, {v(hre+1)}\nv_fma_f32 {v(him+1)}, {v(l4i)}, {v(p)}, {v(him+1)}")
                e(f"v_mov_b32 {v(hre)}, {v(p)}\nv_mov_b32 {v(him)}, {v(p+1)}")
                Lg = v(vL + 2 * g, 2)
                for jj in range(4):
                    ur, ui = pair(g, 0, jj), pair(g, 1, jj)
                    e(f"v_pk_fma_f32 {v(ur,2)}, {Lg}, {v(hre,2)}, {v(ur,2)} {LR}")
                    e(f"v_pk_fma_f32 {v(ui,2)}, {Lg}, {v(him,2)}, {v(ui,2)} {LR}")
                    e(f"v_pk_fma_f32 {v(ur,2)}, {Lg}, {v(him,2)}, {v(ur,2)} {LI} {NEG}")
                    e(f"v_pk_fma_f32 {v(ui,2)}, {Lg}, {v(hre,2)}, {v(ui,2)} {LI}")
                    hre, him = ur, ui
                for m in range(2):
                    for cp in range(2):
                        r, sg, d = acc(g, cp, m), "-" if cp else "", CV + 2 * cp
                        e(f"v_cvt_pk_bf16_f32 {v(d)}, {sg}{v(r)}, {sg}{v(r+1)}")
                        e(f"v_cvt_pk_bf16_f32 {v(d+1)}, {sg}{v(r+2)}, {sg}{v(r+3)}")
                        e(f"ds_write_b64 {v(vTRW)}, {v(d,2)} offset:{1024*m + 512*cp}")
                hf = HF + 8 * (g & 1)
                for m in range(2):
                    for j2 in range(2):
                        e(f"ds_read_b64_tr_b16 {v(hf + 4*m + 2*j2,2)}, {v(vTRR+j2)} offset:{1024*m}")
                if g:
                    store_h(g - 1, fl)
                    mid = rest[cutp[0]:cutp[1]]
                    self.emit_groups(mid[(g - 1) * len(mid) // 4:g * len(mid) // 4])
            store_h(4, fl)

        def store_h(g, fl):
            hf = HF + 8 * (g & 1)
            if g == 4:
                e(f"s_add_u32 {sT2}, {sT2}, 4096")
            for m in range(2):
                e(f"buffer_store_dwordx4 {v(hf+4*m,4)}, {v(vA1 if m else vL16B)}, {srd(R_WS)}, {sT2} offen offset:{1024*(g&3)} sc1", tok="h")
        e.wait_lg()
        pass2("sc1")
        self.stamp(10)
        self.emit_groups(rest[cutp[1]:])
        e(f"v_and_b32 v12, 15, {v(vLANE)}\nv_lshrrev_b32 v13, 4, {v(vLANE)}")
        e("v_lshl_add_u32 v14, v12, 2, v13\nv_lshlrev_b32 v14, 2, v14")
        e("v_and_b32 v13, 1, v13\nv_lshl_add_u32 v13, v12, 1, v13\nv_lshlrev_b32 v13, 2, v13\nv_add_u32 v13, 0x80, v13")
        for k in range(16):
            e(f"ds_bpermute_b32 {a(SXP+k)}, v14, {a(SXR+k)}")
        e("s_mov_b32 exec_lo, 0")
        for k in range(8):
            e(f"ds_bpermute_b32 {a(SPF+k)}, v13, {a(SPR+k)}")
        e("s_mov_b64 exec, -1")
        e.wait_tok("h", ("dma", 10))
        e.wait_lg()
        e("s_barrier")
        self.send_flags(3, TAG_HID, "0xff", sJ)
        visible.add(10)

        acc2 = lambda T, m: ACC + (T * 2 + m) * 4
        e(f"v_and_b32 v12, 15, {v(vLANE)}\nv_lshrrev_b32 v13, 1, v12\nv_bfe_u32 v14, {v(vLANE)}, 4, 1")
        e("v_lshlrev_b32 v14, 2, v14\nv_sub_u32 v13, v13, v14\nv_and_b32 v12, 1, v12\nv_lshlrev_b32 v12, 4, v12")
        for k in range(4):
            e(f"v_cmp_eq_u32 {sMSK[k]}, {k}, v13")
        e(f"v_cmp_gt_u32 vcc, 32, {v(vLANE)}\nv_mov_b32 v15, 0x3f80")
        SEL = WK
        pick = [(v(vDS+T), "0") if T % 2 == 0 else ("0", v(vDS+T)) for T in range(4)]
        pick += [(v(vDS+4), "v15"), ("v15", "0"), ("0", "v15")]
        for n, (lo, hi) in enumerate(pick):
            e(f"v_cndmask_b32 v14, {hi}, {lo}, vcc\nv_lshlrev_b32 v14, v12, v14")
            for k in range(4):
                e(f"v_cndmask_b32 {v(SEL+4*n+k)}, 0, v14, {sMSK[k]}")
        for T in range(5):
            for m in range(2):
                src = SXN + 8 * (T >> 1) + 4 * m if T < 4 else SPF + 4 * m
                e(f"v_mfma_f32_16x16x32_bf16 {v(acc2(T,m),4)}, {a(src,4)}, {v(SEL+4*T,4)}, 0")
        for T in range(4):
            for m in range(2):
                e(f"v_mfma_f32_16x16x32_bf16 {v(acc2(T,m),4)}, {a(SXP + 8*(T>>1) + 4*m,4)}, {v(SEL+20+4*(T&1),4)}, {v(acc2(T,m),4)}")
        self.rot_init(sA, 10, 4096, 2)
        e(f"s_add_u32 {sA}, {sA}, {sABEG}")
        self.poll(3, TAG_HID, 8, 12, 13)
        self.stamp(11)

        def aload2(gs):
            st = gs & 3
            r = AR + (gs % 8) * 8
            out = [f"buffer_load_dwordx4 {a(r,4)}, {v(vL16B)}, {srd(R_WS)}, {sA} offen offset:{1024*st} {self.afl}",
                   f"buffer_load_dwordx4 {a(r+4,4)}, {v(vA1)}, {srd(R_WS)}, {sA} offen offset:{1024*st} {self.afl}"]
            return out + (self.adv(sA, 4096, sAEND, sABEG) if st == 3 else [])

        def bread2(n, st):
            slot = (10 + n) % NS
            base, off = vRC + 4 * (slot // 3) + st, (slot % 3) * SLOT
            return [f"ds_read_b128 {a(BB + 20*(st&1) + 4*T,4)}, {v(base)} offset:{off + T*2048}" for T in range(5)]

        def mfma2(n, st):
            gs = 4 * n + st
            return [f"v_mfma_f32_16x16x32_bf16 {v(acc2(T,m),4)}, {a(AR + (gs%8)*8 + 4*m,4)}, "
                    f"{a(BB + 20*(st&1) + 4*T,4)}, {v(acc2(T,m),4)}" for T in range(5) for m in range(2)]

        steps = self.mk_steps(10, 10, 4, mfma2, bread2)
        items = self.a_items(aload2, c["a_pre2"], 40, lambda g: g - 7, lambda g: g)
        for gs in range(c["a_pre2"]):
            e("\n".join(aload2(gs)))
        PL, sGOT, sPA, sPB = 176, "s93", "s46", "s1"
        part_ld = [f"buffer_load_dwordx4 {v(PL+4*k,4)}, {v(vL16B)}, {srd(R_WS)}, {sPB if k >= 4 else sPA} "
                   f"offen offset:{1024*(k&3)} sc1" for k in range(8)]

        def out_setup():
            self.mk_srd(R_OUT, P_OUT, 2048 * 2560)
            e(f"v_lshrrev_b32 v8, 4, {v(vLANE)}\nv_mul_u32_u24 v8, 0x5000, v8\nv_and_b32 v9, 15, {v(vLANE)}")
            e(f"v_lshl_add_u32 v8, v9, 2, v8\ns_mul_i32 {sT0}, {sJ}, 192\ns_sub_u32 {sT0}, 2048, {sT0}")
            e(f"v_add_u32 v9, {sT0}, v8")
            e(f"s_lshl_b32 {sPA}, {sOWN}, 5\ns_lshl_b32 {sT0}, {sW}, 13\ns_add_u32 {sPA}, {sPA}, {sT0}")
            e(f"s_add_u32 {sPA}, {sPA}, {PART}\ns_add_u32 {sPB}, {sPA}, 4096")
            e(f"s_lshl_b32 {sT0}, {sRB}, 2\ns_add_u32 {sT0}, {sT0}, {sW}\ns_mul_i32 {sT0}, {sT0}, 81920")
            e(f"s_lshl_b32 {sT1}, {sJ}, 8\ns_add_u32 {sT0}, {sT0}, {sT1}")
            for m in range(2):
                for r in range(4):
                    e(f"s_add_u32 {rows[4*m+r]}, {sT0}, {(4*(r&1) + 2*m + (r>>1)) * 2560}")
            e(f"v_and_b32 v11, 3, {v(vLANE)}\nv_lshlrev_b32 v11, 2, v11\ns_add_u32 {sGOT}, {sOWN}, {INBOX + 512}")

        def early():
            skip = e.newlabel("notyet")
            e(f"s_add_u32 {sT1}, {sE}, {TAG_PART}\nv_cmp_eq_u32 vcc, {sT1}, v10")
            e(f"s_cmp_eq_u64 vcc, exec\ns_cselect_b32 {sGOT}, 1, 0\ns_cbranch_scc0 {skip}")
            s0 = e.begin_region()
            e("\n".join(part_ld), tok="junk")
            e.end_region(s0, skip)
        rows = ["s88", "s89", "s90", "s91", "s94", "s95", "s96", "s97"]
        steps[c["peek"] - 4]["pre"] = out_setup
        steps[c["peek"] - 4]["vm"].append([(f"buffer_load_dword v10, v11, {srd(R_WS)}, {sGOT} offen sc1", None)])
        steps[c["peek"]]["pre"] = early
        self.pipeline(steps, dma, NS, 20, range(upto, 10 + NS), visible, items)
        self.stamp(12)

        late = e.newlabel("late")
        e(f"s_cmp_eq_u32 {sGOT}, 1\ns_cbranch_scc1 {late}")
        s0 = e.begin_region()
        self.poll(4, TAG_PART, 4, 12, 13)
        e("\n".join(part_ld), tok="junk")
        e.end_region(s0, late)
        self.stamp(13)
        e.wait_all(lg=False)
        for k in range(8):
            T = min(k, 4)
            for i in range(4):
                d = acc2(T, i >> 1) + 2 * (i & 1)
                t0 = 12 + 2 * (i & 1)
                e(f"v_lshlrev_b32 {v(t0)}, 16, {v(PL+4*k+i)}\nv_and_b32 {v(t0+1)}, 0xffff0000, {v(PL+4*k+i)}")
                e(f"v_pk_add_f32 {v(d,2)}, {v(d,2)}, {v(t0,2)}")
            if k < 4 or k == 7:
                for m in range(2):
                    for r in range(4):
                        e(f"buffer_store_dword {v(acc2(T,m)+r)}, {'v8' if T < 4 else 'v9'}, {srd(R_OUT)}, "
                          f"{rows[4*m+r]} offen offset:{64*T if T < 4 else 0}")
        self.epoch_bump()
        self.stamp(14)
        self.finish()

    def epoch_bump(self):
        e = self.e
        skip = e.newlabel("nobump")
        e(f"s_cmp_lg_u32 {sW}, 0\ns_cbranch_scc1 {skip}")
        s0 = e.begin_region()
        e(f"s_add_u32 {sT0}, {sE}, 0x100\nv_mov_b32 v12, {sT0}\nv_mov_b32 v13, 0\ns_mov_b64 exec, 1")
        e(f"buffer_store_dword v12, v13, {srd(R_WS)}, {sOWN} offen sc1")
        e("s_mov_b64 exec, -1")
        e.end_region(s0, skip)

    def finish(self):
        e = self.e
        if self.c["probe"] >= 0:
            e.wait_all()
            self.stamp(15)
            lp = e.newlabel("probe")
            e("s_sub_u32 s100, s100, s98\ns_lshl_b32 s100, s100, 2\ns_add_u32 s100, s100, 4000")
            e.label(lp)
            e("s_memrealtime s[96:97]\ns_sub_u32 s96, s96, s98\ns_cmp_lt_u32 s96, s100")
            e(f"s_cbranch_scc1 {lp}")
        if self.c["diag"]:
            e.wait_all()
            self.stamp(15)
            self.flush_stamp()
            e(f"s_lshr_b32 {sT0}, {sOWN}, 10\ns_lshl_b32 {sT0}, {sT0}, 2\ns_add_u32 {sT0}, {sT0}, {sW}")
            e(f"s_lshl_b32 {sT0}, {sT0}, 8\ns_add_u32 {sT0}, {sT0}, {STAMP}")
            e(f"v_lshlrev_b32 v12, 2, {v(vLANE)}")
            e(f"buffer_store_dword {v(vSTAMP)}, v12, {srd(R_WS)}, {sT0} offen")
        e("s_endpgm")

    def check_flags(self, line, tag, tmp, tmp2):
        e = self.e
        issue = [f"v_and_b32 {v(tmp2)}, 7, {v(vLANE)}", f"v_lshlrev_b32 {v(tmp2)}, 2, {v(tmp2)}",
                 f"s_add_u32 s46, {sOWN}, {INBOX + 128*line}",
                 f"buffer_load_dword {v(tmp)}, {v(tmp2)}, {srd(R_WS)}, s46 offen sc1"]

        def test():
            ok = e.newlabel("ready")
            e(f"s_add_u32 {sT1}, {sE}, {tag}\nv_cmp_eq_u32 vcc, {sT1}, {v(tmp)}")
            e(f"s_cmp_eq_u64 vcc, exec\ns_cbranch_scc1 {ok}")
            s0 = e.begin_region()
            self.poll(line, tag, 8, tmp, tmp2)
            e.end_region(s0, ok)
        return issue, test

    def mlp(self):
        e, c = self.e, self.c
        NS, SLOT, NSTREAM = 8, 20480, 27
        vD1, vD2 = 16, 20
        vR1, vR2 = 26, 30
        vA1, vA2 = 34, 36
        ACC1, ACC, WK = 96, 128, 192
        X, U = 96, 116
        XA, BB = 0, 160
        sM0C, sH, sHS, sR2 = "s15", "s89", "s90", "s91"
        LINES, TAGS = (3, 5, 6), (TAG_HID, TAG_HID2, TAG_HID3)

        self.mk_srd(R_1A, P_W1, 640 * 3072)
        self.mk_srd(R_2A, P_W2, 1536 * 1280)
        self.warm((R_2A,), 30, c["warm_m"])
        e(f"s_lshl_b32 {sM0B}, {sW}, 12\ns_lshl_b32 {sM0C}, {sW}, 10\ns_add_u32 {sM0C}, {sM0C}, 16384")
        e(f"v_lshrrev_b32 v12, 3, {v(vLANE)}\nv_and_b32 v13, 7, {v(vLANE)}\nv_and_b32 v14, 2, v12")
        e("v_xor_b32 v14, v13, v14\nv_lshlrev_b32 v14, 4, v14\nv_mul_u32_u24 v15, 0xc00, v12\nv_add_u32 v14, v14, v15")
        e(f"s_and_b32 {sT0}, {sW}, 1\ns_mul_i32 {sT0}, {sT0}, 98304\ns_mul_i32 {sT1}, {sJ}, 384")
        e(f"s_add_u32 {sT0}, {sT0}, {sT1}")
        for i in range(4):
            e(f"s_add_u32 {sT2}, {sT0}, {23552*i}\nv_add_u32 {v(vD1+i)}, {sT2}, v14")
            if i & 1:
                e(f"v_xor_b32 {v(vD1+i)}, 64, {v(vD1+i)}")
        self.rot_init(sA, 10, 2048, 1)
        e(f"s_lshr_b32 {sT2}, {sW}, 1\ns_lshl_b32 {sT2}, {sT2}, 11\ns_add_u32 {sWO1}, {sA}, {sT2}")
        e(f"s_cmp_eq_u32 {sWO1}, 20480\ns_cselect_b32 {sWO1}, 0, {sWO1}\ns_mul_i32 {sWO1}, {sWO1}, 96")

        def wrap(reg, inc):
            return [f"s_add_u32 {reg}, {reg}, {inc}", f"s_sub_u32 {sT3}, {reg}, 1966080", f"s_cselect_b32 {reg}, {reg}, {sT3}"]

        def dma(b):
            base = (b % NS) * SLOT
            ld = lambda r, d, so, imm: f"buffer_load_dwordx4 {v(r)}, {srd(d)}, {so} offen offset:{imm} lds"
            if b < 15:
                return ([f"s_add_u32 m0, {sM0B}, {base}"] + [ld(vD1 + i, R_1A, sWO1, 1024 * i) for i in range(4)]
                        + wrap(sWO1, 393216 + (128 if b % 5 == 4 else 0)))
            return ([f"s_add_u32 m0, {sM0B}, {base}"] + [ld(vD2 + i, R_2A, sWO2, 1024 * i) for i in range(4)]
                    + [f"s_add_u32 m0, {sM0C}, {base}", ld(vD2 + 4, R_2A, sWO2, 0)]
                    + wrap(sWO2, 491520 + (81920 if (b - 15) % 4 == 3 else 0)))

        pa, pl, pb = c["mpre_a"], c["pre_ln"] + c["mpre_st"], c["mpre_b"]
        self.issue_dma(dma, range(pa))
        e(f"v_lshrrev_b32 v12, 3, {v(vLANE)}\nv_and_b32 v13, 7, {v(vLANE)}")
        e("v_and_b32 v14, 6, v12\nv_xor_b32 v14, v13, v14\nv_lshlrev_b32 v14, 4, v14")
        e("v_mul_u32_u24 v15, 0x500, v12\nv_add_u32 v14, v14, v15")

        def row0(sub):
            e(f"s_and_b32 {sT3}, {sub}, 1\ns_lshl_b32 {sT3}, {sT3}, 5\ns_bfe_u32 {sub}, {sub}, 0x10001")
            e(f"s_mul_i32 {sub}, {sub}, 192\ns_add_u32 {sub}, {sub}, {sT3}")
        e(f"s_add_u32 {sT0}, {sJ}, {sW}")
        row0(sT0)
        e(f"s_mul_i32 {sT0}, {sT0}, 1280\ns_lshl_b32 {sT1}, {sJ}, 7\ns_add_u32 {sT0}, {sT0}, {sT1}")
        for i in range(4):
            e(f"s_add_u32 {sT1}, {sT0}, {9216*i}\nv_add_u32 {v(vD2+i)}, {sT1}, v14")
        e(f"s_mov_b32 {sT0}, {sJ}")
        row0(sT0)
        e(f"s_lshl_b32 {sT1}, {sW}, 3\ns_add_u32 {sT0}, {sT0}, {sT1}\ns_mul_i32 {sT0}, {sT0}, 1280")
        e(f"s_lshr_b32 {sT1}, {sJ}, 2\ns_lshl_b32 {sT1}, {sT1}, 7\ns_add_u32 {sT0}, {sT0}, {sT1}")
        e(f"s_add_u32 {sT0}, {sT0}, 1024\nv_add_u32 {v(vD2+4)}, {sT0}, v14")
        self.rot_init(sR2, 4, 4096, 2)
        e(f"s_mul_i32 {sWO2}, {sR2}, 120")
        e(f"v_bfe_u32 v12, {v(vLANE)}, 2, 2\nv_lshrrev_b32 v13, 4, {v(vLANE)}\nv_and_b32 v14, 3, {v(vLANE)}")
        e("v_lshlrev_b32 v14, 3, v14\nv_and_b32 v10, 1, v13\nv_lshrrev_b32 v11, 1, v12\nv_lshl_add_u32 v10, v10, 1, v11")
        e("v_lshl_add_u32 v14, v10, 5, v14")
        for r, sh in ((vR1, 3), (vR2, 2)):
            e(f"v_lshl_add_u32 v15, v13, {sh}, v12\nv_lshl_add_u32 v15, v15, 7, v14")
            for f in range(4):
                e(f"v_xor_b32 {v(r+f)}, {32*f}, v15")
        for p in range(4):
            e(f"s_add_u32 {sT0}, {sJ}, {p}\ns_and_b32 {sT0}, {sT0}, 3\ns_lshl_b32 {sT0}, {sT0}, 10")
            e(f"v_add_u32 {v(vA2+2*p)}, {sT0}, {v(vL16B)}\nv_add_u32 {v(vA2+2*p+1)}, 49152, {v(vA2+2*p)}")
        e(f"v_add_u32 {v(vA1)}, 20480, {v(vL16B)}\nv_add_u32 {v(vA1+1)}, 49152, {v(vL16B)}")
        e(f"s_mul_i32 {sABEG}, {sRB}, 163840\ns_mul_i32 {sT0}, {sW}, 40960\ns_add_u32 {sABEG}, {sABEG}, {sT0}")
        e(f"s_add_u32 {sABEG}, {sABEG}, {XNS}\ns_add_u32 {sAEND}, {sABEG}, 20480\ns_add_u32 {sA}, {sA}, {sABEG}")
        e(f"s_mul_i32 {sH}, {sRB}, 393216\ns_mul_i32 {sT0}, {sW}, 98304\ns_add_u32 {sH}, {sH}, {sT0}")
        e(f"s_add_u32 {sH}, {sH}, {HM}\ns_lshl_b32 {sHS}, {sJ}, 11\ns_add_u32 {sHS}, {sHS}, {sH}")
        self.stamp(1)
        toks = lambda r: [(i, ("dma", b)) for b in r for i in dma(b)]
        self.ln_compute(X, U, SCR, toks(range(pa, pa + c["pre_ln"])), toks(range(pa + c["pre_ln"], pa + pl)))
        self.stamp(2)
        self.issue_dma(dma, range(pa + pl, pa + pl + pb))
        visible = {0}
        self.stamp(3)
        self.poll(2, TAG_XN, 16, 12, 13)
        self.stamp(4)

        cur = {vR1: 0, vR2: 0}
        par = [0]

        def step(b, last, reg, offs, mk):
            want = (b % NS) // 3
            d, cur[reg] = (want - cur[reg]) * 61440, want
            rd = [f"v_add_u32 {v(reg+f)}, {d & 0xFFFFFFFF}, {v(reg+f)}" for f in range(4)] if d else []
            so = (b % NS) % 3 * SLOT
            par[0] ^= 1
            bb = BB + 32 * par[0]
            rd += [f"ds_read_b64_tr_b16 {a(bb + 4*n + 2*j2,2)}, {v(reg + (n & 3))} offset:{so + o + dj*j2}"
                   for n, (o, dj) in enumerate(offs) for j2 in range(2)]
            mf = [mk(n, m, bb + 4 * n) for n in range(len(offs)) for m in range(2)]
            return dict(blk=b, last=last, mf=mf, rd=rd, vm=[], alu=[])

        mf16 = lambda d, x, y, first: f"v_mfma_f32_16x16x32_bf16 {v(d,4)}, {a(x,4)}, {a(y,4)}, {0 if first else v(d,4)}"
        steps = []
        for r in range(3):
            acc = ACC1 + 32 * (r & 1)
            for gs in range(20):
                steps.append(step(5 * r + gs // 4, gs & 3 == 3, vR1, [((gs & 3) * 4096, 512)] * 4,
                                  lambda n, m, w_: mf16(acc + 8 * n + 4 * m, w_, XA + 8 * gs + 4 * m, gs == 0)))
        for gs in range(48):
            p = gs & 3
            offs = [(p * 4096, 2048)] * 4 + ([(16384, 2048)] * 4 if p == 0 else [])
            steps.append(step(15 + gs // 4, p == 3, vR2, offs,
                              lambda n, m, w_: mf16(ACC + 8 * n + 4 * m, XA + 8 * (gs % 16) + 4 * m, w_, gs == 0)))

        def aload1(gs):
            out = [f"buffer_load_dwordx4 {a(XA + 8*gs + 4*m,4)}, {v(vA1 if m else vL16B)}, {srd(R_WS)}, {sA} "
                   f"offen offset:{1024*(gs&1)} {self.afl}" for m in range(2)]
            return out + (self.adv(sA, 2048, sAEND, sABEG) if gs & 1 else [])

        def aload2(gs):
            out = []
            if gs % 16 == 0:
                out += [f"s_add_u32 {sABEG}, {sH}, {1024*gs}", f"s_add_u32 {sAEND}, {sABEG}, 16384", f"s_add_u32 {sA}, {sR2}, {sABEG}"]
            out += [f"buffer_load_dwordx4 {a(XA + 8*(gs%16) + 4*m,4)}, {v(vA2 + 2*(gs&3) + m)}, {srd(R_WS)}, {sA} "
                    f"offen {self.afl}" for m in range(2)]
            return out + (self.adv(sA, 4096, sAEND, sABEG) if gs & 3 == 3 else [])

        def relu_store(r, u, m):
            acc, d = ACC1 + 32 * (r & 1), WK + 4 * (2 * u + m)
            src = [acc + 8 * (2 * u + h) + 4 * m + 2 * k for h in range(2) for k in range(2)]
            out = [[(f"v_cvt_pk_bf16_f32 {v(d+k)}, {v(src[k])}, {v(src[k]+1)}", None)] for k in range(4)]
            out += [[(f"v_pk_max_i16 {v(d+k)}, {v(d+k)}, 0", None)] for k in range(4)]
            out[-1].append((f"buffer_store_dwordx4 {v(d,4)}, {v(vA1+1 if m else vL16B)}, {srd(R_WS)}, {sHS} "
                            f"offen offset:{1024*u} sc1", ("h", r)))
            if u and m:
                out[-1].append((f"s_add_u32 {sHS}, {sHS}, 16384", None))
            return out

        apre = c["a_pre"] // 2
        items = self.a_items(aload1, apre, 20, lambda g: 0, lambda g: g)
        self.warm((R_2A,), 30, c["warm_m"], steps)
        for r, at in ((1, c["t19"]), (2, c["t23"])):
            if at:
                ld = [f"s_mul_i32 s92, {sR2}, 120", f"s_add_u32 s92, s92, {81920 * r}"]
                ld += [f"buffer_load_dwordx4 v[240:243], {v(vD2+i)}, {srd(R_2A)}, s92 offen offset:{1024*(i&3)}" for i in range(5)]
                for n, g in enumerate(self.groups(ld, "junk")):
                    steps[at + n // 3]["vm"].append(g)
        lazy = {}
        for at in (c["t19"], c["t23"], c["warm_m"]):
            for k in range(at + 2, at + 2 + c["quiet"]):
                steps[k]["quiet"] = bool(at)
        tests = (40 + c["test0"], 60 + c["test1"], 60 + c["test2"])
        for r in range(3):
            base = 20 * (r + 1)
            for n in range(4):
                steps[base + 1 + c["st_gap"] * n]["alu"] += relu_store(r, n >> 1, n & 1)
            fl = steps[base + (c["flag01"] if r < 2 else c["flag2"])]
            assert fl["last"]
            fl["pre"] = lambda r=r: e.wait_tok(("h", r))
            fl["post"] = lambda r=r: self.send_flags(LINES[r], TAGS[r], "0xff00", sJ)
            issue, test = self.check_flags(LINES[r], TAGS[r], 10, 11)
            steps[tests[r] - c["lead"]]["vm"] += self.groups(issue)
            assert "pre" not in steps[tests[r]]
            steps[tests[r]]["pre"] = test
        items += self.a_items(aload2, 0, 48, lambda g: max(tests[g // 16], 41 + g if g < 16 else 45 + g), lambda g: 60 + g)
        sPM, sPX = "s96", "s97"

        def part_store(T):
            d = WK + 4 * (T & 3)
            out = [[(f"v_cvt_pk_bf16_f32 {v(d+k)}, {v(ACC + 8*T + 2*k)}, {v(ACC + 8*T + 2*k + 1)}", None)] for k in range(4)]
            if T < 4:
                out[-1].append((f"buffer_store_dwordx4 {v(d,4)}, {v(vL16B)}, {srd(R_WS)}, {sPM} offen offset:{1024*T} sc1", None))
            else:
                out[-1].append((f"buffer_store_dwordx4 {v(d,4)}, {v(vL16B)}, {srd(R_WS)}, {sPX} offen sc1", None))
                out[-1].append((f"s_add_u32 {sPX}, {sPX}, 32768", None))
            return out

        def part_setup():
            e(f"s_lshl_b32 {sT0}, {sRB}, 18\ns_lshl_b32 {sT1}, {sW}, 13\ns_add_u32 {sT0}, {sT0}, {sT1}\ns_add_u32 {sT0}, {sT0}, {PART}")
            e(f"s_lshl_b32 {sPM}, {sJ}, 15\ns_add_u32 {sPM}, {sPM}, {sT0}")
            e(f"s_and_b32 {sPX}, {sJ}, 4\ns_lshl_b32 {sPX}, {sPX}, 15\ns_add_u32 {sPX}, {sPX}, {sT0}")
            e(f"s_and_b32 {sT1}, {sJ}, 3\ns_lshl_b32 {sT1}, {sT1}, 10\ns_add_u32 {sPX}, {sPX}, {sT1}")
            e(f"s_add_u32 {sPX}, {sPX}, 4096")
        steps[104]["pre"] = part_setup
        for n, k in enumerate((105, 106, 107, 107)):
            steps[k]["alu"] += part_store(4 + n)
        for gs in range(apre):
            e("\n".join(aload1(gs)))
        self.pipeline(steps, dma, NS, NSTREAM, range(pa + pl + pb, NS), visible, items)
        self.stamp(12)

        for T in range(4):
            self.emit_groups(part_store(T))
        self.stamp(13)
        e.wait_all()
        e("s_barrier")
        e(f"s_and_b32 {sT3}, {sJ}, 3")
        e(f"s_and_b32 {sT2}, {sJ}, 4\ns_lshl_b32 s92, 15, {sT2}\ns_mov_b32 s93, 0")
        self.send_flags(4, TAG_PART, "s[92:93]", sT3)
        self.epoch_bump()
        self.stamp(14)
        self.finish()

    def build(self):
        e = self.e
        self.entry()
        snap = e.begin_region()
        pend, nst = self.pending_stamp, self.nstamp
        self.chain = 0
        self.ssm()
        self.chain = 1
        e.vm, e.lg, e.hist = list(snap["vm"]), list(snap["lg"]), []
        self.pending_stamp, self.nstamp = pend, nst
        e.label("L_mlp")
        self.mlp()
        e.label("L_end")
        e("s_endpgm")
        ref = open(f"cdna_kernels/{NAME}.s.ref").read()
        head = ref.split("; Override launch")[0]
        out = head
        out += "; Persistent kernel: one workgroup per CU, SSM chain and MLP chain on separate workgroup sets.\n"
        out += f"; @launch grid=(256,1,1) block=(256,1,1) lds={LDS_BYTES}\n"
        out += '.amdgcn_target "amdgcn-amd-amdhsa--gfx950"\n.text\n'
        out += f".globl {KERNEL}\n.p2align 8\n.type {KERNEL},@function\n{KERNEL}:\n"
        out += e.text()
        out += f""".section .rodata,"a"
.p2align 6
.amdhsa_kernel {KERNEL}
  .amdhsa_next_free_vgpr 512
  .amdhsa_next_free_sgpr 102
  .amdhsa_accum_offset 256
  .amdhsa_group_segment_fixed_size 0
  .amdhsa_kernarg_size 120
  .amdhsa_user_sgpr_count 2
  .amdhsa_user_sgpr_kernarg_segment_ptr 1
  .amdhsa_system_sgpr_workgroup_id_x 1
  .amdhsa_float_denorm_mode_32 3
.end_amdhsa_kernel
"""
        return out


def parse_cfg(args):
    cfg = {}
    for s in args:
        k, val = s.split("=")
        cfg[k] = type(DEFAULTS[k])(int(val))
    return cfg


if __name__ == "__main__":
    path = sys.argv[1]
    g = Gen(**parse_cfg(sys.argv[2:]))
    open(path, "w").write(g.build())
    print(path, "lines", len(g.e.lines), "nop slots", g.e.nops)
```

```python
import os
import sys

sys.path.insert(0, os.path.dirname(os.path.abspath(__file__)))
from emit import Emitter

NAME = "parallel_sum__ssm_conv_s5__dense_activation_relu__prompt"
KERNEL = NAME + "_kernel"

INBOX = 0x0
CARRY = 0x40000
XNS = 0x300000
XNM = 0x580000
HS = 0x800000
HM = 0xD00000
PART = 0x1300000
STAMP = 0x1700000
WS_USED = 0x1800000

LDS_BYTES = 163840
SCR = 143360
SPIN_LIMIT = 1 << 15

TAG_HID2, TAG_XN, TAG_HID, TAG_PART, TAG_CARRY, TAG_HID3 = 16, 32, 48, 64, 80, 96

DEFAULTS = dict(
    diag=False,
    chain_bit=2,
    swap=True, ri1=1, rx1=1, rj1=1, ri2=1, rx2=1, rj2=0, codepf=True,
    pre_a=1, pre_ln=0, pre_st=1, pre_b=2, mpre_a=1, mpre_st=1, mpre_b=6,  a_pre=4, ma_pre=4, skip_at=14, lazy0=10, lazy_gap=3, rest_p1=0, rest_a=100, rest_b=100, rest_c=100, a_pre2=4, peek=38, peek_lead=4, defer=1, quiet_s=2, pw_xn=1, pw_hid=0, pw_hm=0, pw_part=1, tmaj=1, ptouch=1, htouch=0, cap=115, cap_s1=115, cap_s2=115, lat_a=6, lat_d=8, warm_s=0, warm_m=29, st_gap=2, flag01=15, flag2=15, test0=6, test1=8, test2=26,
    rbits=2, mix=0, lead=5, t19=0, t23=0, quiet=4, touch=True,
    ab_nomfma=False, ab_nobread=False, ab_noaload=False, ab_nodma=False, a_flag=1, blkstamp=False, clk=False, blkclk=False, probe=-1, stepstamp=-1, dump=False, probe_ch=0,
)

P_X, P_LRE, P_LIM, P_BRE, P_BIM, P_CRE, P_CIM, P_LDT = 16, 18, 20, 22, 24, 26, 28, 30
P_DSK, P_BX, P_W1, P_W2, P_OUT, P_DBG, P_WS = 32, 34, 36, 38, 40, 42, 44
R_X, R_WS, R_1A, R_1B, R_2A, R_2B, R_OUT, R_TMP = 48, 52, 56, 60, 64, 68, 72, 76
sRB, sJ, sW, sEC, sE, sCH, sOWN, sSPIN = "s3", "s4", "s5", "s6", "s7", "s8", "s9", "s10"
sT0, sT1, sT2, sT3 = "s11", "s12", "s13", "s14"
sWO1, sWO2, sWO1B = "s80", "s81", "s82"
sA, sABEG, sAEND = "s83", "s84", "s85"
sM0A, sM0B = "s86", "s87"
sHALF = "s[94:95]"
sME = "s47"
sEX = "s[88:89]"
sMSK = [f"s[{90+2*k}:{91+2*k}]" for k in range(4)]
sST = ["s[98:99]", "s[100:101]"]


def v(a, n=1):
    return f"v{a}" if n == 1 else f"v[{a}:{a+n-1}]"


def a(b, n=1):
    return f"a{b}" if n == 1 else f"a[{b}:{b+n-1}]"


def srd(b):
    return f"s[{b}:{b+3}]"


vTID, vLANE, vL16B, vE, vINB, vFLG, vSTAMP = 0, 1, 2, 3, 4, 5, 6


class Gen:
    def __init__(self, **cfg):
        self.c = dict(DEFAULTS)
        self.c.update(cfg)
        self.e = Emitter()
        self.nstamp = 0
        self.chain = -1
        self.pending_stamp = None
        self.afl = {0: "", 1: "sc1", 2: "nt", 3: "sc0"}[self.c["a_flag"]]

    def stamp(self, k):
        if self.c["probe"] >= 0:
            if k == 0:
                self.e("s_memrealtime s[98:99]\ns_memrealtime s[100:101]")
            elif k == self.c["probe"] and self.chain == self.c["probe_ch"]:
                self.e("s_memrealtime s[100:101]")
        if not self.c["diag"]:
            return
        e = self.e
        self.flush_stamp()
        reg = sST[self.nstamp & 1]
        self.nstamp += 1
        e(f"s_memtime {reg}" if 16 <= k < 44 and self.c["blkclk"] else f"s_memrealtime {reg}")
        self.pending_stamp = (k, reg)
        if k < 16 and self.c["clk"]:
            self.flush_stamp()
            e(f"s_memtime {reg}")
            self.pending_stamp = (k + 48, reg)

    def flush_stamp(self):
        if self.pending_stamp:
            k, reg = self.pending_stamp
            lo = reg[2:].split(":")[0]
            self.e(f"v_writelane_b32 {v(vSTAMP)}, s{lo}, {k}")
            self.pending_stamp = None

    def mk_srd(self, r, ptr, nbytes):
        e = self.e
        e(f"s_mov_b32 s{r}, s{ptr}\ns_mov_b32 s{r+1}, s{ptr+1}")
        e(f"s_mov_b32 s{r+2}, {nbytes}\ns_mov_b32 s{r+3}, 0x20000")

    def mk_srd_sel(self, r, p_lo, p_hi, nbytes):
        e = self.e
        e(f"s_cselect_b32 s{r}, s{p_lo}, s{p_hi}\ns_cselect_b32 s{r+1}, s{p_lo+1}, s{p_hi+1}")
        e(f"s_mov_b32 s{r+2}, {nbytes}\ns_mov_b32 s{r+3}, 0x20000")

    def cmul(self, d, x, y):
        e = self.e
        e(f"v_pk_mul_f32 {v(d,2)}, {v(x,2)}, {v(y,2)} op_sel:[0,0] op_sel_hi:[0,1]")
        e(f"v_pk_fma_f32 {v(d,2)}, {v(x,2)}, {v(y,2)}, {v(d,2)} op_sel:[1,1,0] op_sel_hi:[1,0,1] neg_lo:[1,0,0]")

    def cfma(self, d, x, y, z):
        e = self.e
        e(f"v_pk_fma_f32 {v(d,2)}, {v(x,2)}, {v(y,2)}, {v(z,2)} op_sel:[0,0,0] op_sel_hi:[0,1,1]")
        e(f"v_pk_fma_f32 {v(d,2)}, {v(x,2)}, {v(y,2)}, {v(d,2)} op_sel:[1,1,0] op_sel_hi:[1,0,1] neg_lo:[1,0,0]")

    def round_bf16(self, r):
        e = self.e
        e(f"v_cvt_pk_bf16_f32 {v(r)}, {v(r)}, {v(r)}\nv_lshlrev_b32 {v(r)}, 16, {v(r)}")

    def rot_init(self, dst, nb, stride, ph):
        e, c = self.e, self.c
        ri, rx, rj, rb = c[f"ri{ph}"], c[f"rx{ph}"], c[f"rj{ph}"], c["rbits"]
        e(f"s_and_b32 {sT0}, {sRB}, {(1 << rb) - 1}\ns_mul_i32 {sT0}, {sT0}, {nb * ri}\ns_lshr_b32 {sT0}, {sT0}, {rb}")
        e(f"s_lshr_b32 {sT1}, {sRB}, {rb}\ns_mul_i32 {sT1}, {sT1}, {rx}\ns_add_u32 {sT0}, {sT0}, {sT1}")
        if rj:
            jb = 2 if c["mix"] else 5 - rb
            e(f"s_and_b32 {sT1}, {sJ}, {(1 << jb) - 1}\ns_mul_i32 {sT1}, {sT1}, {nb * rj}")
            e(f"s_lshr_b32 {sT1}, {sT1}, {jb}\ns_add_u32 {sT0}, {sT0}, {sT1}")
        e(f"s_mul_hi_u32 {sT1}, {sT0}, {(2**32 + nb - 1) // nb}\ns_mul_i32 {sT1}, {sT1}, {nb}")
        e(f"s_sub_u32 {sT0}, {sT0}, {sT1}\ns_mul_i32 {dst}, {sT0}, {stride}")

    @staticmethod
    def adv(reg, stride, end, beg):
        return [f"s_add_u32 {reg}, {reg}, {stride}", f"s_cmp_eq_u32 {reg}, {end}",
                f"s_cselect_b32 {reg}, {beg}, {reg}"]

    def send_flags(self, line, tag, lanes, word):
        e = self.e
        skip = e.newlabel("nosend")
        e(f"s_cmp_lg_u32 {sW}, 0\ns_cbranch_scc1 {skip}")
        s0 = e.begin_region()
        e(f"v_add_u32 {v(vFLG)}, {tag}, {v(vE)}")
        e(f"s_lshl_b32 {sT0}, {word}, 2\ns_add_u32 {sT0}, {sT0}, {INBOX + 128*line}")
        e(f"s_mov_b64 exec, {lanes}")
        e(f"buffer_store_dword {v(vFLG)}, {v(vINB)}, {srd(R_WS)}, {sT0} offen sc1")
        e("s_mov_b64 exec, -1")
        e.end_region(s0, skip)

    def send_wave(self, line, tag, lanes, word, shift):
        e = self.e
        e(f"v_add_u32 {v(vFLG)}, {tag}, {v(vE)}\ns_lshl_b32 {sT0}, {sW}, {shift}\ns_add_u32 {sT0}, {sT0}, {word}")
        e(f"s_lshl_b32 {sT0}, {sT0}, 2\ns_add_u32 {sT0}, {sT0}, {INBOX + 128*line}\ns_mov_b64 exec, {lanes}")
        e(f"buffer_store_dword {v(vFLG)}, {v(vINB)}, {srd(R_WS)}, {sT0} offen sc1")
        e("s_mov_b64 exec, -1")

    def word_addr(self, kind, r):
        if not self.c["pw_" + kind]:
            return [f"v_and_b32 {v(r)}, {dict(xn=15, hid=7, hm=7, part=3)[kind]}, {v(vLANE)}", f"v_lshlrev_b32 {v(r)}, 2, {v(r)}"]
        if kind == "xn":
            return [f"v_and_b32 {v(r)}, 2, {v(vLANE)}", f"v_and_b32 v15, 1, {v(vLANE)}", f"v_lshl_add_u32 {v(r)}, {v(r)}, 2, v15",
                    f"v_lshl_add_u32 {v(r)}, {sW}, 1, {v(r)}", f"v_lshlrev_b32 {v(r)}, 2, {v(r)}"]
        n = {"hid": 3, "hm": 3, "part": 2}[kind]
        return [f"v_and_b32 {v(r)}, {(1 << n) - 1}, {v(vLANE)}", f"v_lshl_add_u32 {v(r)}, {sW}, {n}, {v(r)}",
                f"v_lshlrev_b32 {v(r)}, 2, {v(r)}"]

    def poll(self, line, tag, nwords, tmp, tmp2, span=0, touch=()):
        e = self.e
        lp, out = e.newlabel("poll"), e.newlabel("polled")
        e("\n".join(self.word_addr(nwords, tmp2)))
        e(f"s_add_u32 {sT0}, {sOWN}, {INBOX + 128*line}\ns_add_u32 {sT1}, {sE}, {tag}")
        e.label(lp)
        e(f"buffer_load_dword {v(tmp)}, {v(tmp2)}, {srd(R_WS)}, {sT0} offen sc1")
        e("\n".join(touch), tok="junk")
        e(f"s_cmp_eq_u32 {sSPIN}, 0")
        e.wait_all(lg=False)
        e(f"s_cbranch_scc1 {out}\ns_sub_u32 {sSPIN}, {sSPIN}, 1")
        if span:
            e(f"v_subrev_u32 {v(tmp)}, {sT1}, {v(tmp)}\nv_cmp_gt_u32 vcc, {span}, {v(tmp)}")
        else:
            e(f"v_cmp_eq_u32 vcc, {sT1}, {v(tmp)}")
        e(f"s_cmp_eq_u64 vcc, exec\ns_cbranch_scc0 {lp}")
        e.label(out)

    def entry(self):
        e, c = self.e, self.c
        X = 96
        e("s_cmp_ge_u32 s2, 256\ns_cbranch_scc1 L_end")
        e("s_load_dwordx2 s[44:45], s[0:1], 112\ns_load_dwordx16 s[16:31], s[0:1], 0")
        e("s_load_dwordx8 s[32:39], s[0:1], 64\ns_load_dwordx4 s[40:43], s[0:1], 96")
        if c["diag"]:
            e(f"v_mov_b32 {v(vSTAMP)}, 0")
        self.stamp(0)
        e(f"s_lshr_b32 {sT0}, s2, 3\ns_bfe_u32 {sCH}, s2, {0x10000 + (0, 3, 7)[c['mix']]}")
        if c["swap"]:
            e(f"s_xor_b32 {sCH}, {sCH}, 1")
        if c["codepf"]:
            skip, here = e.newlabel("nopf"), e.newlabel("pc")
            e("s_getpc_b64 s[88:89]")
            e.label(here)
            e(f"s_cmp_eq_u32 {sCH}, 0\ns_cselect_b32 {sT1}, 0, L_mlp-{here}")
            e(f"s_mov_b32 {sT2}, L_end-{here}\ns_cselect_b32 {sT2}, L_mlp-{here}, {sT2}")
            if c["mix"] == 0:
                e(f"s_lshl_b32 {sT3}, {sT0}, 7")
            else:
                e(f"s_bfe_u32 {sT3}, s2, {0x40000 + (0, 4, 3)[c['mix']]}\ns_lshl_b32 {sT3}, {sT3}, 7")
            e(f"s_add_u32 {sT3}, {sT3}, {sT1}")
            e(f"v_lshl_add_u32 v12, v0, {11 if c['mix'] else 12}, {sT3}\nv_cmp_gt_u32 vcc, {sT2}, v12")
            e(f"s_and_saveexec_b64 s[90:91], vcc\ns_cbranch_execz {skip}")
            s0 = e.begin_region()
            e("v_mov_b32 v13, s89\nv_add_co_u32 v12, vcc, s88, v12\nv_addc_co_u32 v13, vcc, 0, v13, vcc")
            e("global_load_dword v255, v[12:13], off")
            e.vm[-1]["dst"] = set()
            e.end_region(s0, skip)
            e("s_mov_b64 exec, -1")
        if c["mix"]:
            e(f"s_bfe_u32 {sT0}, s2, {0x40000 + (0, 4, 3)[c['mix']]}\ns_and_b32 {sJ}, {sT0}, 3\ns_and_b32 {sT1}, s2, 1")
            e(f"s_lshl_b32 {sT1}, {sT1}, 2\ns_add_u32 {sJ}, {sJ}, {sT1}\ns_lshr_b32 {sT0}, {sT0}, 2\ns_bfe_u32 {sT1}, s2, 0x20001")
            e(f"s_lshr_b32 {sT2}, {sT1}, 1\ns_xor_b32 {sT1}, {sT1}, {sT2}")
            e(f"s_lshl_b32 {sT1}, {sT1}, 2\ns_add_u32 {sRB}, {sT1}, {sT0}")
        elif c["rbits"] == 2:
            e(f"s_and_b32 {sJ}, {sT0}, 7\ns_lshr_b32 {sT0}, {sT0}, 3\ns_bfe_u32 {sT1}, s2, 0x20001")
            e(f"s_lshr_b32 {sT2}, {sT1}, 1\ns_xor_b32 {sT1}, {sT1}, {sT2}")
            e(f"s_lshl_b32 {sT1}, {sT1}, 2\ns_add_u32 {sRB}, {sT1}, {sT0}")
        elif c["rbits"] == 3:
            e(f"s_and_b32 {sJ}, {sT0}, 3\ns_and_b32 {sT1}, s2, 2\ns_lshl_b32 {sT1}, {sT1}, 1\ns_add_u32 {sJ}, {sJ}, {sT1}")
            e(f"s_lshr_b32 {sT0}, {sT0}, 2\ns_and_b32 {sT1}, s2, 4\ns_lshl_b32 {sT1}, {sT1}, 1\ns_add_u32 {sRB}, {sT1}, {sT0}")
        else:
            e(f"s_and_b32 {sJ}, {sT0}, 1\ns_and_b32 {sT1}, s2, 6\ns_add_u32 {sJ}, {sJ}, {sT1}\ns_lshr_b32 {sRB}, {sT0}, 1")
        e("v_lshrrev_b32 v8, 5, v0\nv_and_b32 v9, 31, v0")
        e("v_and_b32 v10, 1, v8\nv_lshlrev_b32 v10, 2, v10\nv_bfe_u32 v11, v8, 1, 1\nv_add_u32 v10, v10, v11")
        e("v_lshrrev_b32 v11, 2, v8\nv_lshl_add_u32 v10, v11, 3, v10")
        e("v_mul_u32_u24 v10, 0x500, v10\nv_lshl_add_u32 v10, v9, 4, v10")
        e(f"s_and_b32 {sT1}, {sJ}, 1\ns_lshl_b32 {sT2}, {sCH}, 3\ns_add_u32 {sT1}, {sT1}, {sT2}\ns_lshl_b32 {sT1}, {sT1}, 1")
        e(f"s_lshr_b32 {sT0}, {sJ}, 1\ns_lshl_b32 {sT0}, {sT0}, 5\ns_add_u32 {sT0}, {sT0}, {sT1}")
        e(f"s_lshl_b32 {sT1}, {sRB}, 7\ns_add_u32 {sT0}, {sT0}, {sT1}\ns_mul_i32 {sT0}, {sT0}, 1280")
        e(f"s_mov_b32 s{R_X+2}, {2048*1280}\ns_mov_b32 s{R_X+3}, 0x20000")
        e("s_mov_b32 s94, 0xffff\ns_mov_b32 s95, 0xffff")
        e(f"s_mov_b32 s{R_X}, s{P_X}\ns_mov_b32 s{R_X+1}, s{P_X+1}")
        for n in range(3):
            if n == 2:
                e(f"s_mov_b64 exec, {sHALF}")
            e(f"buffer_load_dwordx4 {v(X+4*n,4)}, v10, {srd(R_X)}, {sT0} offen offset:{512*n}")
        e("s_mov_b64 exec, -1")
        e(f"v_lshrrev_b32 v7, 6, v0\nv_and_b32 {v(vLANE)}, 63, v0")
        e(f"v_readfirstlane_b32 {sW}, v7")
        e(f"v_lshlrev_b32 {v(vL16B)}, 4, {v(vLANE)}")
        e(f"s_lshl_b32 {sOWN}, {sCH}, 4\ns_add_u32 {sOWN}, {sOWN}, {sRB}")
        e(f"s_lshl_b32 {sOWN}, {sOWN}, 3\ns_add_u32 {sOWN}, {sOWN}, {sJ}\ns_lshl_b32 {sOWN}, {sOWN}, 10")
        e(f"s_mov_b32 {sSPIN}, {SPIN_LIMIT}")
        self.mk_srd(R_WS, P_WS, WS_USED)
        e(f"s_lshl_b32 {sME}, {sCH}, 3\ns_add_u32 {sME}, {sME}, {sJ}\ns_lshl_b32 {sT0}, {sRB}, 13")
        e(f"v_and_b32 v11, 7, {v(vLANE)}\nv_lshl_add_u32 {v(vINB)}, v11, 10, {sT0}")
        e(f"v_bfe_u32 v11, {v(vLANE)}, 3, 1\nv_lshl_add_u32 {v(vINB)}, v11, 17, {v(vINB)}")
        e(f"s_add_u32 {sT1}, {sJ}, 120\ns_lshl_b32 {sT1}, {sT1}, 10\nv_mov_b32 v11, {sT1}")
        e(f"v_cmp_gt_u32 vcc, 16, {v(vLANE)}")
        e(f"v_cndmask_b32 {v(vINB)}, v11, {v(vINB)}, vcc")
        e(f"buffer_load_dword {v(vE)}, {v(vINB)}, {srd(R_WS)}, 0 offen sc1")
        if c["touch"]:
            e(f"v_and_b32 v11, 7, {v(vLANE)}\nv_lshlrev_b32 v11, 7, v11")
            e(f"buffer_load_dword v255, v11, {srd(R_WS)}, {sOWN} offen")
            e.vm[-1]["dst"] = set()
        e(f"s_cmp_eq_u32 {sCH}, 0\ns_cbranch_scc0 L_mlp")

    def ln_compute(self, X, U, scr, fill, fill_st, during_ack=None):
        e = self.e

        def parts(body):
            body(range(8))
            e(f"s_mov_b64 exec, {sHALF}")
            body(range(8, 12))
            e("s_mov_b64 exec, -1")

        def rowsum(r):
            e(f"v_add_f32 {v(r)}, {v(r)}, {v(r+1)}")
            for sh in (8, 4, 2, 1):
                e(f"v_add_f32_dpp {v(r)}, {v(r)}, {v(r)} row_ror:{sh} row_mask:0xf bank_mask:0xf")
            e(f"v_mov_b32 {v(r+1)}, {v(r)}\nv_permlane16_swap_b32 {v(r)}, {v(r+1)}\nv_add_f32 {v(r)}, {v(r)}, {v(r+1)}")

        def unpack(ks):
            for k in ks:
                e(f"v_lshlrev_b32 {v(U+2*k)}, 16, {v(X+k)}\nv_and_b32 {v(U+2*k+1)}, 0xffff0000, {v(X+k)}")
                if k == 0:
                    self.stamp(44)
                if k == 1:
                    e(f"v_pk_add_f32 v[12:13], {v(U,2)}, {v(U+2,2)}")
                elif k > 1:
                    e(f"v_pk_add_f32 v[12:13], v[12:13], {v(U+2*k,2)}")

        def centre(ks):
            for k in ks:
                e(f"v_pk_add_f32 {v(U+2*k,2)}, {v(U+2*k,2)}, v[14:15] op_sel_hi:[1,0] neg_lo:[0,1] neg_hi:[0,1]")
            for k in ks:
                if k == 0:
                    e(f"v_pk_mul_f32 v[12:13], {v(U,2)}, {v(U,2)}")
                else:
                    e(f"v_pk_fma_f32 v[12:13], {v(U+2*k,2)}, {v(U+2*k,2)}, v[12:13]")

        def scale(ks):
            for k in ks:
                e(f"v_pk_mul_f32 {v(U+2*k,2)}, {v(U+2*k,2)}, v[12:13] op_sel_hi:[1,0]")
                e(f"v_cvt_pk_bf16_f32 {v(X+k)}, {v(U+2*k)}, {v(U+2*k+1)}")
                if k & 3 == 3:
                    e(f"ds_write_b128 v10, {v(X+k-3,4)} offset:{1024*(k-3)}")

        inv_d = "0x3acccccd"
        e("v_and_b32 v10, 7, v9\nv_xor_b32 v10, v8, v10\nv_lshlrev_b32 v10, 4, v10\nv_lshl_add_u32 v10, v9, 7, v10")
        e(f"v_add_u32 v10, {scr}, v10\nv_lshrrev_b32 v8, 3, v0\nv_and_b32 v9, 7, v0\nv_xor_b32 v11, v8, v9")
        e(f"v_and_b32 v11, 7, v11\nv_lshlrev_b32 v11, 4, v11\nv_lshl_add_u32 v11, v8, 7, v11\nv_add_u32 v11, {scr}, v11")
        e("v_lshlrev_b32 v9, 4, v9\nv_lshl_add_u32 v9, v8, 8, v9")
        e(f"s_mul_i32 {sT2}, {sRB}, 163840\ns_mul_i32 {sT1}, {sJ}, 20480\ns_add_u32 {sT2}, {sT2}, {sT1}")
        e(f"s_lshl_b32 {sT1}, {sCH}, 7\ns_add_u32 {sT2}, {sT2}, {sT1}\ns_add_u32 s92, {sT2}, {XNS}")
        parts(unpack)
        for ins, tok in fill:
            e(ins, tok=tok)
        rowsum(12)
        e(f"v_mul_f32 v12, {inv_d}, v12\nv_mov_b32 v14, v12")
        self.round_bf16(14)
        e("v_sub_f32 v15, v12, v14")
        parts(centre)
        rowsum(12)
        e(f"v_mul_f32 v12, {inv_d}, v12\nv_fma_f32 v12, -v15, v15, v12\nv_max_f32 v12, 0, v12")
        self.round_bf16(12)
        e("v_add_f32 v12, 0x3727c5ac, v12")
        self.round_bf16(12)
        e("v_sqrt_f32 v12, v12")
        self.round_bf16(12)
        e("v_rcp_f32 v12, v12")
        parts(scale)
        self.stamp(45)
        e.wait_lg()
        e("s_barrier")
        for k in range(3):
            e(f"ds_read_b128 {v(X+4*k,4)}, v11 offset:{4096*k}")
        e(f"buffer_store_dwordx4 {v(X,4)}, v9, {srd(R_WS)}, s92 offen sc1", tok="xn")
        e(f"s_add_u32 {sT2}, s92, 8192\ns_add_u32 {sT3}, s92, 16384")
        e(f"buffer_store_dwordx4 {v(X+4,4)}, v9, {srd(R_WS)}, {sT2} offen sc1", tok="xn")
        skip = e.newlabel("third")
        e.wait_lg()
        e(f"s_cmp_gt_u32 {sW}, 1\ns_cbranch_scc1 {skip}")
        s0 = e.begin_region()
        e(f"buffer_store_dwordx4 {v(X+8,4)}, v9, {srd(R_WS)}, {sT3} offen sc1", tok="xn")
        e.end_region(s0, skip)
        self.stamp(46)
        e(f"v_readlane_b32 {sE}, {v(vE)}, {sME}\nv_readlane_b32 {sEC}, {v(vE)}, 16")
        for ins, tok in fill_st:
            e(ins, tok=tok)
        if during_ack:
            during_ack()
        e.wait_tok("xn", ("dma", 0))
        e.wait_lg()
        self.stamp(47)
        e("s_barrier")
        self.send_flags(2, TAG_XN, "0xffff", sME)

    @staticmethod
    def groups(instrs, tok=None):
        out, cur = [], []
        for ins in instrs:
            cur.append((ins, tok))
            if ins.startswith("buffer_"):
                out.append(cur)
                cur = []
        if cur:
            out[-1] += cur
        return out

    def pipeline(self, steps, dma, ns, nstream, early, visible, aitems, lazy={}, keep=False, cap="cap"):
        e, c = self.e, self.c
        last = {st["blk"]: k for k, st in enumerate(steps) if st["last"]}
        b0 = steps[0]["blk"]
        blocks = [(b, 0) for b in early]
        if not c["ab_nodma"]:
            blocks += [(b - 1 + ns, last[b]) for b in sorted(last) if b > b0 and b - 1 + ns < nstream]
        ditems = [dict(r=max(r, lazy.get(b, 0)), d=last.get(b - 1, len(steps) + b), g=g)
                  for b, r in blocks for g in self.groups(dma(b), ("dma", b))]
        streams = [([] if c["ab_noaload"] else list(aitems), c["lat_a"]), (ditems, c["lat_d"])]
        credit = 0.0
        for k, st in enumerate(steps):
            credit = max(min(credit, 1.0), -1.0) + c[cap] / 100 * len(st["mf"]) / 4 - len(st["vm"])
            credit -= sum(1 for g in st["alu"] for ins, _ in g if "buffer_" in ins)
            while True:
                heads = [(q[0]["d"] - lat, q) for q, lat in streams if q and q[0]["r"] <= k]
                if not heads:
                    break
                due = [h for h in heads if h[1][0]["d"] <= k + 1]
                if not due and (credit < 1 or st.get("quiet")):
                    break
                dl, q = min(due or heads, key=lambda h: h[0])
                st["vm"].append(q.pop(0)["g"])
                credit -= 1
        assert not streams[0][0] and all(it["r"] < it["d"] for it in aitems)
        if c["dump"]:
            for k, st in enumerate(steps):
                kinds = ["D%d" % g[-1][1][1] if g[-1][1] and g[-1][1][0] == "dma" else "A" for g in st["vm"]]
                print(self.chain, k, st["blk"], " ".join(kinds), "ST" if st["alu"] else "", "pre" if st.get("pre") else "")
        for ins in steps[0]["rd"]:
            e(ins)
        for k, st in enumerate(steps):
            b = st["blk"]
            if c["stepstamp"] >= 0:
                if 0 <= k + 100 * (b0 > 0) - c["stepstamp"] < 28:
                    self.stamp(16 + k + 100 * (b0 > 0) - c["stepstamp"])
            elif c["blkstamp"] and (k == 0 or steps[k - 1]["last"]):
                self.stamp(16 + b)
            nxt = steps[k + 1] if k + 1 < len(steps) else None
            if st["last"]:
                release = b > b0 and b - 1 + ns < nstream
                need_vis = nxt is not None and nxt["blk"] not in visible
                if need_vis:
                    e.wait_tok(("dma", nxt["blk"]))
                    visible.add(nxt["blk"])
                if st.get("pre"):
                    st["pre"]()
                if release or need_vis or st.get("post"):
                    e("s_barrier")
                if st.get("post"):
                    st["post"]()
            elif st.get("pre"):
                st["pre"]()
            rd = nxt["rd"] if nxt is not None and not c["ab_nobread"] else []
            mm, vm = st["mf"], st["vm"]
            slots = [[] for _ in mm]
            for n, ins in enumerate(rd):
                slots[n * len(mm) // len(rd)].append((ins, None))
            for n, g in enumerate(st["alu"]):
                slots[n * len(mm) // len(st["alu"])] += g
            for n, g in enumerate(vm):
                slots[(2 * n + 1) * len(mm) // (2 * len(vm))] += g
            for ins, fl in zip(mm, slots):
                e(ins)
                for f_, tok in fl:
                    e(f_, tok=tok)
        rest = [it["g"] for it in ditems]
        if keep:
            return rest
        self.emit_groups(rest)

    def record(self, fn):
        real, lines = self.e, []
        self.e = lambda text, tok=None: lines.extend(x for x in text.split("\n") if x)
        fn(self.e)
        self.e = real
        return [[(x, None)] for x in lines]

    def emit_groups(self, gs):
        for g in gs:
            for ins, tok in g:
                self.e(ins, tok=tok)

    def a_items(self, aloads, first, count, rel, use):
        return [dict(r=rel(gs), d=use(gs), g=g) for gs in range(first, count) for g in self.groups(aloads(gs))]

    @staticmethod
    def mk_steps(first_blk, nblk, nst, mfmas, breads):
        return [dict(blk=first_blk + n, last=st == nst - 1, mf=mfmas(n, st), rd=breads(n, st), vm=[], alu=[])
                for n in range(nblk) for st in range(nst)]

    def warm(self, descs, lines, pos, steps=None):
        e = self.e
        if steps is None and pos:
            e(f"s_bfe_u32 s93, {sOWN}, 0x7000a\ns_lshl_b32 s93, s93, 2\ns_add_u32 s93, s93, {sW}")
            e(f"s_mul_i32 s93, s93, {128 * lines}\nv_min_u32 v247, {lines - 1}, {v(vLANE)}\nv_lshlrev_b32 v247, 7, v247")
        for k, d in enumerate(descs):
            ld = f"buffer_load_dword v255, v247, {srd(d)}, s93 offen"
            if steps is None and pos == 1:
                e(ld, tok="junk")
            if steps is not None and pos > 1:
                steps[pos + k]["vm"].append([(ld, "junk")])

    def issue_dma(self, dma, blocks):
        for b in blocks:
            for ins in dma(b):
                self.e(ins, tok=("dma", b))

    def ssm(self):
        e, c = self.e, self.c
        NS, SLOT = 7, 20480
        vDB, vDC = 16, 21
        vRB, vRC = 26, 32
        vA1, vCH8, vTC, vTW, vTRW, vTRR = 44, 45, 46, 47, 7, 8
        vL, vL4, vSC, vWP = 48, 58, 68, 78
        vL8, vL128, vSCL = 88, 90, 92
        ACC, SP, WK = 96, 176, 196
        X, U = 96, 116
        AR, BB, SK = 0, 64, 144

        e(f"s_and_b32 {sT0}, {sW}, 1\nv_lshl_add_u32 {v(vCH8)}, {sT0}, 6, {v(vLANE)}")
        e(f"s_mul_i32 {sT0}, {sJ}, 160\nv_lshl_add_u32 v12, {v(vCH8)}, 1, {sT0}")
        for k, p in enumerate((P_LRE, P_LIM, P_LDT)):
            self.mk_srd(R_TMP, p, 1280)
            e(f"buffer_load_ushort {v(WK+k)}, v12, {srd(R_TMP)}, 0 offen")
        if c["touch"]:
            e(f"s_lshl_b32 {sT1}, {sJ}, 4\ns_sub_u32 {sT1}, {sT1}, {sRB}\ns_mul_i32 {sT1}, {sT1}, 1280")
            e(f"s_add_u32 {sT1}, {sT1}, {CARRY + 15*1280}\nv_min_u32 v12, 9, {v(vLANE)}\nv_lshlrev_b32 v12, 7, v12")
            e(f"buffer_load_dword v255, v12, {srd(R_WS)}, {sT1} offen")
            e.vm[-1]["dst"] = set()
        e(f"s_cmp_lt_u32 {sW}, 2")
        self.mk_srd_sel(R_1A, P_BRE, P_BIM, 819200)
        self.mk_srd_sel(R_1B, P_BIM, P_BRE, 819200)
        self.mk_srd_sel(R_2A, P_CRE, P_CIM, 819200)
        self.mk_srd_sel(R_2B, P_CIM, P_CRE, 819200)
        self.warm((R_2A, R_2B), 13, c["warm_s"])
        e(f"s_and_b32 {sT0}, {sW}, 1\ns_lshr_b32 {sT1}, {sW}, 1")
        e(f"s_mul_i32 {sM0A}, {sT1}, 10240\ns_mul_i32 {sT2}, {sT0}, 3072\ns_add_u32 {sM0A}, {sM0A}, {sT2}")
        e(f"s_xor_b32 {sT1}, {sT1}, 1\ns_mul_i32 {sM0B}, {sT1}, 10240\ns_lshl_b32 {sT2}, {sT0}, 11")
        e(f"s_add_u32 {sM0B}, {sM0B}, {sT2}\ns_add_u32 {sM0B}, {sM0B}, 6144")
        e(f"v_lshrrev_b32 v12, 3, {v(vLANE)}\nv_and_b32 v13, 7, {v(vLANE)}\nv_lshrrev_b32 v14, 1, v12")
        e("v_xor_b32 v13, v13, v14\nv_lshlrev_b32 v13, 4, v13\nv_mul_u32_u24 v12, 0x500, v12\nv_add_u32 v12, v12, v13")
        for i in range(5):
            imm = 1024 * (i if i < 3 else i - 3)
            if i < 3:
                e(f"s_mul_i32 {sT1}, {sT0}, 3\ns_add_u32 {sT1}, {sT1}, {i}")
            else:
                e(f"s_lshl_b32 {sT1}, {sT0}, 1\ns_add_u32 {sT1}, {sT1}, {3 + i}")
            e(f"s_and_b32 {sT2}, {sT1}, 1\ns_lshl_b32 {sT2}, {sT2}, 6\nv_xor_b32 v13, {sT2}, v12")
            e(f"s_mul_i32 {sT2}, {sJ}, 10\ns_add_u32 {sT2}, {sT2}, {sT1}\ns_mul_i32 {sT2}, {sT2}, 10240")
            e(f"s_sub_u32 {sT2}, {sT2}, {imm}\nv_add_u32 {v(vDB+i)}, {sT2}, v13")
            e(f"s_lshl_b32 {sT2}, {sJ}, 3\ns_add_u32 {sT2}, {sT2}, {sT1}")
            e(f"s_lshl_b32 {sT3}, {sJ}, 1\ns_add_u32 {sT3}, {sT3}, {sT1}\ns_add_u32 {sT3}, {sT3}, 56")
            e(f"s_cmp_lt_u32 {sT1}, 8\ns_cselect_b32 {sT2}, {sT2}, {sT3}\ns_mul_i32 {sT2}, {sT2}, 10240")
            e(f"s_sub_u32 {sT2}, {sT2}, {imm}\nv_add_u32 {v(vDC+i)}, {sT2}, v13")
        self.rot_init(sWO1, 10, 128, 1)
        self.rot_init(sWO2, 10, 128, 2)

        def dma(b):
            ph2 = b >= 10
            ra, rb_, vb, so = (R_2A, R_2B, vDC, sWO2) if ph2 else (R_1A, R_1B, vDB, sWO1)
            base = (b % NS) * SLOT
            out = [f"s_add_u32 m0, {sM0A}, {base}"]
            out += [f"buffer_load_dwordx4 {v(vb+i)}, {srd(ra)}, {so} offen offset:{1024*i} lds" for i in range(3)]
            out += [f"s_add_u32 m0, {sM0B}, {base}"]
            out += [f"buffer_load_dwordx4 {v(vb+3+i)}, {srd(rb_)}, {so} offen offset:{1024*i} lds" for i in range(2)]
            return out + self.adv(so, 128, 1280, 0)

        pa, pl, pb = c["pre_a"], c["pre_ln"] + c["pre_st"], c["pre_b"]
        self.issue_dma(dma, range(pa))
        def consts():
            e(f"v_lshlrev_b32 {v(vCH8)}, 3, {v(vCH8)}\nv_add_u32 {v(vCH8)}, {SCR}, {v(vCH8)}")
            e(f"s_bitcmp0_b32 {sW}, 0\ns_cselect_b32 s88, -1, 0xffff\ns_cselect_b32 s89, -1, 0")
            skip = e.newlabel("noconst")
            e(f"s_cmp_gt_u32 {sW}, 1\ns_cbranch_scc1 {skip}")
            s0 = e.begin_region()
            e(f"s_mov_b64 exec, {sEX}")
            lre, lim, ldt = WK, WK + 1, WK + 2
            t = WK + 4
            for r in (lre, lim, ldt):
                e(f"v_lshlrev_b32 {v(r)}, 16, {v(r)}")
            log2e = "0x3fb8aa3b"
            e(f"v_mul_f32 {v(ldt)}, {log2e}, {v(ldt)}\nv_exp_f32 {v(ldt)}, {v(ldt)}")
            self.round_bf16(ldt)
            e(f"v_mul_f32 {v(t)}, {v(ldt)}, {v(lre)}\nv_mul_f32 {v(t+1)}, {v(ldt)}, {v(lim)}")
            e(f"v_mul_f32 {v(t)}, {log2e}, {v(t)}\nv_exp_f32 {v(t)}, {v(t)}")
            e(f"v_mul_f32 {v(t+1)}, 0.15915494, {v(t+1)}\nv_rndne_f32 {v(t+2)}, {v(t+1)}")
            e(f"v_sub_f32 {v(t+1)}, {v(t+1)}, {v(t+2)}")
            e(f"v_cos_f32 {v(t+2)}, {v(t+1)}\nv_sin_f32 {v(t+3)}, {v(t+1)}")
            L1 = WK + 8
            e(f"v_mul_f32 {v(L1)}, {v(t)}, {v(t+2)}\nv_mul_f32 {v(L1+1)}, {v(t)}, {v(t+3)}")
            e(f"v_mul_f32 {v(t)}, {v(lre)}, {v(lre)}\nv_fma_f32 {v(t)}, {v(lim)}, {v(lim)}, {v(t)}")
            e(f"v_rcp_f32 {v(t)}, {v(t)}\nv_add_f32 {v(t+1)}, -1.0, {v(L1)}\nv_add_f32 {v(t)}, {v(t)}, {v(t)}")
            e(f"v_mul_f32 {v(t+2)}, {v(t+1)}, {v(lre)}\nv_fma_f32 {v(t+2)}, {v(L1+1)}, {v(lim)}, {v(t+2)}")
            e(f"v_mul_f32 {v(t+3)}, {v(L1+1)}, {v(lre)}\nv_fma_f32 {v(t+3)}, -{v(t+1)}, {v(lim)}, {v(t+3)}")
            e(f"v_mul_f32 {v(vSCL)}, {v(t+2)}, {v(t)}\nv_mul_f32 {v(vSCL+1)}, {v(t+3)}, {v(t)}")
            L2, L4 = WK + 10, WK + 12
            self.cmul(L2, L1, L1)
            self.cmul(L4, L2, L2)
            self.cmul(vL8, L4, L4)
            e(f"ds_write_b64 {v(vCH8)}, {v(L1,2)} offset:10240")
            e(f"ds_write_b64 {v(vCH8)}, {v(L4,2)} offset:10880")
            e(f"ds_write_b64 {v(vCH8)}, {v(vSCL,2)} offset:11520")
            e(f"ds_write_b64 {v(vCH8)}, {v(vSCL,2)}")
            prev = vSCL
            for s in range(1, 16):
                d = WK + 14 + 2 * (s & 1)
                self.cmul(d, vL8, prev)
                e(f"ds_write_b64 {v(vCH8)}, {v(d,2)} offset:{640*s}")
                prev = d
            self.cmul(L1, vL8, vL8)
            self.cmul(L2, L1, L1)
            self.cmul(L1, L2, L2)
            self.cmul(vL128, L1, L1)
            e(f"ds_write_b64 {v(vCH8)}, {v(vL128,2)} offset:12160")
            e("s_mov_b64 exec, -1")
            e.wait_lg()
            e.end_region(s0, skip)

        SXN, SXR, SXP, SPF, SPR = SK, SK + 16, SK + 32, SK + 48, SK + 56
        vDS, vXM, vXP = 250, 94, 95
        sK = ["s90", "s91", "s96", "s97"]
        one = lambda *ins: [(i_, None) for i_ in ins]
        skip_ld = [one(f"buffer_load_dwordx4 {a(SXN + 8*f + 4*m,4)}, {v(vA1 if m else vL16B)}, {srd(R_WS)}, {sK[0]} "
                       f"offen offset:{1024*f} sc1") for f in range(2) for m in range(2)]
        skip_ld += [one("s_mov_b32 exec_hi, 0", f"buffer_load_dwordx4 {a(SPF + 4*m,4)}, {v(vA1 if m else vL16B)}, "
                        f"{srd(R_WS)}, {sK[1]} offen sc1", "s_mov_b64 exec, -1") for m in range(2)]
        skip_ld += [one(f"buffer_load_dwordx4 {a(SXR + 8*f + 4*m,4)}, {v(vXM)}, {srd(R_X)}, {sK[2]} "
                        f"offen offset:{2560*m + 64*f}") for m in range(2) for f in range(2)]
        skip_ld += [one("s_mov_b32 exec_lo, 0", f"buffer_load_dwordx4 {a(SPR + 4*m,4)}, {v(vXP)}, {srd(R_X)}, {sK[3]} "
                        f"offen offset:{2560*m}", "s_mov_b64 exec, -1") for m in range(2)]

        e(f"v_and_b32 v12, 15, {v(vLANE)}\nv_lshrrev_b32 v13, 4, {v(vLANE)}\nv_lshrrev_b32 v14, 1, v12")
        e("v_xor_b32 v15, v13, v14\nv_lshlrev_b32 v15, 4, v15\nv_lshl_add_u32 v15, v12, 7, v15")
        for k in range(3):
            e(f"v_add_u32 {v(vRB+2*k)}, {61440*k}, v15\nv_xor_b32 {v(vRB+2*k+1)}, 64, {v(vRB+2*k)}")
        e("v_and_b32 v15, 1, v13\nv_xor_b32 v15, v15, v14\nv_lshlrev_b32 v15, 4, v15\nv_lshl_add_u32 v15, v12, 7, v15")
        e("v_lshrrev_b32 v14, 1, v13\nv_mul_u32_u24 v14, 0x2800, v14\nv_add_u32 v15, v15, v14")
        for k in range(3):
            e(f"v_add_u32 {v(vRC+4*k)}, {61440*k}, v15")
            for st in range(1, 4):
                e(f"v_xor_b32 {v(vRC+4*k+st)}, {32*st}, {v(vRC+4*k)}")
        e(f"v_lshlrev_b32 {v(vTC)}, 3, v12\nv_add_u32 {v(vTC)}, {SCR}, {v(vTC)}")
        e(f"v_lshl_add_u32 v14, {sW}, 2, v13\nv_mul_u32_u24 v14, 0x280, v14\nv_add_u32 {v(vTW)}, v14, {v(vTC)}")
        e(f"v_add_u32 {v(vA1)}, 20480, {v(vL16B)}")
        e(f"s_mul_i32 {sABEG}, {sRB}, 163840\ns_mul_i32 {sT0}, {sW}, 40960\ns_add_u32 {sABEG}, {sABEG}, {sT0}")
        e(f"s_add_u32 {sABEG}, {sABEG}, {XNS}\ns_add_u32 {sAEND}, {sABEG}, 20480")
        self.rot_init(sA, 10, 2048, 1)
        e(f"s_add_u32 {sA}, {sA}, {sABEG}")

        def late_setup(e):

            def rowoff(d, i):
                e(f"v_lshrrev_b32 {v(d)}, 2, {v(i)}\nv_lshlrev_b32 {v(d)}, 3, {v(d)}\nv_and_b32 v15, 1, {v(i)}")
                e(f"v_lshl_add_u32 {v(d)}, v15, 2, {v(d)}\nv_bfe_u32 v15, {v(i)}, 1, 1\nv_add_u32 {v(d)}, {v(d)}, v15")
                e(f"v_mul_u32_u24 {v(d)}, 0x500, {v(d)}")
            e(f"s_lshl_b32 {sK[0]}, {sJ}, 11\ns_add_u32 {sK[0]}, {sK[0]}, {sABEG}")
            e(f"s_lshl_b32 {sK[1]}, {sJ}, 9\ns_add_u32 {sK[1]}, {sK[1]}, {sABEG}\ns_add_u32 {sK[1]}, {sK[1]}, 16384")
            e(f"v_lshrrev_b32 v12, 2, {v(vLANE)}")
            rowoff(vXM, 12)
            e(f"v_and_b32 v15, 3, {v(vLANE)}\nv_lshl_add_u32 {v(vXM)}, v15, 4, {v(vXM)}")
            e(f"v_bfe_u32 v12, {v(vLANE)}, 1, 4")
            rowoff(vXP, 12)
            e(f"v_and_b32 v15, 1, {v(vLANE)}\nv_lshl_add_u32 {v(vXP)}, v15, 4, {v(vXP)}")
            e(f"s_lshl_b32 {sT0}, {sRB}, 2\ns_add_u32 {sT0}, {sT0}, {sW}\ns_mul_i32 {sT0}, {sT0}, 40960")
            e(f"s_lshl_b32 {sK[2]}, {sJ}, 7\ns_add_u32 {sK[2]}, {sK[2]}, {sT0}")
            e(f"s_lshl_b32 {sK[3]}, {sJ}, 5\ns_add_u32 {sK[3]}, {sK[3]}, {sT0}\ns_add_u32 {sK[3]}, {sK[3]}, 1024")
            self.mk_srd(R_TMP, P_DSK, 1280)
            e(f"v_and_b32 v12, 15, {v(vLANE)}\nv_lshlrev_b32 v12, 1, v12")
            e(f"s_lshl_b32 {sT1}, {sJ}, 7\ns_lshl_b32 {sT2}, {sJ}, 5\ns_add_u32 {sT2}, {sT2}, 1024")
            for T in range(5):
                so, imm = (sT1, 32 * T) if T < 4 else (sT2, 0)
                e(f"buffer_load_ushort {v(vDS+T)}, v12, {srd(R_TMP)}, {so} offen offset:{imm}")
            e(f"v_and_b32 v12, 15, {v(vLANE)}\nv_lshrrev_b32 v13, 4, {v(vLANE)}")
            e("v_lshrrev_b32 v14, 3, v12\nv_lshlrev_b32 v14, 2, v14\nv_xor_b32 v14, v14, v12\nv_lshlrev_b32 v14, 5, v14")
            e("v_lshrrev_b32 v15, 2, v12\nv_xor_b32 v15, v15, v13\nv_lshl_add_u32 v14, v15, 3, v14")
            e(f"s_lshl_b32 {sT0}, {sW}, 11\ns_add_u32 {sT0}, {sT0}, {SCR + 12288}\nv_add_u32 {v(vTRW)}, {sT0}, v14")
            for j2 in range(2):
                e(f"v_and_b32 v14, 1, v13\nv_xor_b32 v14, {j2}, v14\nv_lshlrev_b32 v14, 2, v14")
                e(f"v_lshl_add_u32 v14, v13, 3, v14\nv_bfe_u32 v15, {v(vLANE)}, 2, 2\nv_add_u32 v14, v14, v15")
                e(f"v_lshlrev_b32 v14, 5, v14\nv_lshlrev_b32 v15, 1, v13\nv_add_u32 v15, {j2}, v15")
                e(f"v_xor_b32 v15, v15, {v(vLANE)}\nv_and_b32 v15, 3, v15\nv_lshl_add_u32 v14, v15, 3, v14")
                e(f"v_add_u32 {v(vTRR+j2)}, {sT0}, v14")

        self.stamp(1)
        toks = lambda r: [(i, ("dma", b)) for b in r for i in dma(b)]
        self.ln_compute(X, U, 6 * SLOT, toks(range(pa, pa + c["pre_ln"])), toks(range(pa + c["pre_ln"], pa + pl)), consts)
        self.stamp(2)
        self.issue_dma(dma, range(pa + pl, pa + pl + pb))

        visible = {0}
        for g in range(5):
            e(f"ds_read_b64 {v(vL+2*g,2)}, {v(vTC)} offset:{10240 + 128*g}")
            e(f"ds_read_b64 {v(vL4+2*g,2)}, {v(vTC)} offset:{10880 + 128*g}")
            e(f"ds_read_b64 {v(vSC+2*g,2)}, {v(vTC)} offset:{11520 + 128*g}")
            e(f"ds_read_b64 {v(vWP+2*g,2)}, {v(vTW)} offset:{128*g}")
        e(f"ds_read_b64 {v(vL128,2)}, {v(vCH8)} offset:12160")
        self.stamp(3)
        self.poll(2, TAG_XN, "xn", 12, 13)
        self.stamp(4)

        acc = lambda g, cp, m: ACC + ((g * 2 + cp) * 2 + m) * 4

        def aload1(gs):
            st = gs & 1
            r = AR + (gs % 8) * 8
            out = [f"buffer_load_dwordx4 {a(r,4)}, {v(vL16B)}, {srd(R_WS)}, {sA} offen offset:{1024*st} {self.afl}",
                   f"buffer_load_dwordx4 {a(r+4,4)}, {v(vA1)}, {srd(R_WS)}, {sA} offen offset:{1024*st} {self.afl}"]
            return out + (self.adv(sA, 2048, sAEND, sABEG) if st else [])

        def bread1(n, st):
            slot = n % NS
            base, off = vRB + 2 * (slot // 3) + st, (slot % 3) * SLOT
            return [f"ds_read_b128 {a(BB + 40*st + 4*(2*g+cp),4)}, {v(base)} offset:{off + cp*10240 + g*2048}"
                    for g in range(5) for cp in range(2)]

        def mfma1(n, st):
            gs = 2 * n + st
            return [f"v_mfma_f32_16x16x32_bf16 {v(acc(g,cp,m),4)}, {a(AR + (gs%8)*8 + 4*m,4)}, "
                    f"{a(BB + 40*st + 4*(2*g+cp),4)}, {v(acc(g,cp,m),4) if gs else 0}"
                    for g in range(5) for cp in range(2) for m in range(2)]

        steps = self.mk_steps(0, 10, 2, mfma1, bread1)
        items = self.a_items(aload1, c["a_pre"] // 2, 20, lambda g: g - 7, lambda g: g)
        self.warm((R_2A, R_2B), 13, c["warm_s"], steps)
        late = self.record(late_setup)
        for n, g in enumerate(late):
            steps[1 + n * 8 // len(late)]["alu"].append(g)
        for k in range(c["warm_s"] + 2, c["warm_s"] + 2 + c["quiet_s"]):
            steps[k]["quiet"] = c["warm_s"] > 1
        if c["skip_at"] < 20:
            for n, g in enumerate(skip_ld):
                steps[c["skip_at"] + n // 2]["vm"].append(g)
        for gs in range(c["a_pre"] // 2):
            e("\n".join(aload1(gs)))
        lazy = {10 + n: c["lazy0"] + c["lazy_gap"] * n for n in range(7)}
        upto = 10 + NS - c["defer"]
        rest = self.pipeline(steps, dma, NS, min(upto, 9 + NS), range(pa + pl + pb, NS), visible, items, lazy, keep=True, cap="cap_s1")
        if not c["defer"]:
            rest += self.groups(dma(9 + NS), ("dma", 9 + NS))
        n16 = 0 if c["defer"] else 5
        p1 = rest[:min(len(rest) - n16, c["rest_p1"])]
        rest = rest[len(p1):]
        cutp = [len(rest) * c[k] // 100 for k in ("rest_a", "rest_b", "rest_c")]
        self.stamp(5)

        pair = lambda g, cp, jj: acc(g, cp, jj >> 1) + 2 * (jj & 1)
        LR = "op_sel:[0,0,0] op_sel_hi:[0,1,1]"
        LI = "op_sel:[1,0,0] op_sel_hi:[1,1,1]"
        NEG = "neg_lo:[1,0,0] neg_hi:[1,0,0]"
        for g in range(5):
            Lg = v(vL + 2 * g, 2)
            sre, sim = pair(g, 0, 0), pair(g, 1, 0)
            for jj in range(1, 4):
                dre, dim = (WK, WK + 2) if jj == 2 else (SP + 4 * g, SP + 4 * g + 2)
                e(f"v_pk_fma_f32 {v(dre,2)}, {Lg}, {v(sre,2)}, {v(pair(g,0,jj),2)} {LR}")
                e(f"v_pk_fma_f32 {v(dim,2)}, {Lg}, {v(sim,2)}, {v(pair(g,1,jj),2)} {LR}")
                e(f"v_pk_fma_f32 {v(dre,2)}, {Lg}, {v(sim,2)}, {v(dre,2)} {LI} {NEG}")
                e(f"v_pk_fma_f32 {v(dim,2)}, {Lg}, {v(sre,2)}, {v(dim,2)} {LI}")
                sre, sim = dre, dim
            l4r, l4i, d = vL4 + 2 * g, vL4 + 2 * g + 1, WK + 4 + 2 * (g & 1)
            e(f"v_fma_f32 {v(d)}, {v(l4r)}, {v(sre)}, {v(sre+1)}")
            e(f"v_fma_f32 {v(d+1)}, {v(l4r)}, {v(sim)}, {v(sim+1)}")
            e(f"v_fma_f32 {v(d)}, -{v(l4i)}, {v(sim)}, {v(d)}")
            e(f"v_fma_f32 {v(d+1)}, {v(l4i)}, {v(sre)}, {v(d+1)}")
            e(f"ds_write_b64 {v(vTW)}, {v(d,2)} offset:{128*g}")
            self.emit_groups(p1[g * len(p1) // 5:(g + 1) * len(p1) // 5])
        e.wait_lg()
        e("s_barrier")
        self.stamp(6)

        skip = e.newlabel("nocomb")
        e(f"s_cmp_gt_u32 {sW}, 1\ns_cbranch_scc1 {skip}")
        s0 = e.begin_region()
        e(f"s_mov_b64 exec, {sEX}")
        SL = WK
        for s in range(16):
            e(f"ds_read_b64 {v(SL+2*s,2)}, {v(vCH8)} offset:{640*s}")
        for s in range(1, 16):
            e(f"v_pk_fma_f32 {v(SL+2*s,2)}, {v(vL8,2)}, {v(SL+2*s-2,2)}, {v(SL+2*s,2)} {LR}")
            e(f"v_pk_fma_f32 {v(SL+2*s,2)}, {v(vL8,2)}, {v(SL+2*s-2,2)}, {v(SL+2*s,2)} "
              "op_sel:[1,1,0] op_sel_hi:[1,0,1] neg_lo:[1,0,0]")
        MSG = SL + 30
        e(f"v_subrev_u32 v12, {SCR}, {v(vCH8)}\nv_lshlrev_b32 v12, 1, v12")
        e(f"s_add_u32 {sT0}, {sEC}, {TAG_CARRY}\nv_mov_b32 {v(MSG+2)}, {sT0}\nv_mov_b32 {v(MSG+3)}, {sT0}")
        e(f"s_lshl_b32 {sT1}, {sJ}, 4\ns_sub_u32 {sT1}, {sT1}, {sRB}\ns_mul_i32 {sT1}, {sT1}, 1280")
        e(f"s_add_u32 {sT1}, {sT1}, {CARRY + 15*1280}")
        e(f"buffer_store_dwordx4 {v(MSG,4)}, v12, {srd(R_WS)}, {sT1} offen sc1")
        e(f"v_mov_b32 v14, 0\nv_mov_b32 v15, 0\nds_write_b64 {v(vCH8)}, v[14:15]")
        for s in range(1, 16):
            d = WK + 36 + 2 * (s & 1)
            self.cmul(d, vSCL, SL + 2 * s - 2)
            e(f"ds_write_b64 {v(vCH8)}, {v(d,2)} offset:{640*s}")
        e("s_mov_b64 exec, -1")
        e.end_region(s0, skip)
        self.emit_groups(rest[:cutp[0]])
        if c["skip_at"] == 20:
            self.emit_groups(skip_ld)
        self.stamp(7)

        def scale_pairs(g, re, im):
            Sg = v(vSC + 2 * g, 2)
            e(f"v_pk_mul_f32 v[14:15], {Sg}, {v(im,2)} op_sel:[1,0] op_sel_hi:[1,1] neg_lo:[1,0] neg_hi:[1,0]")
            e(f"v_pk_mul_f32 {v(im,2)}, {Sg}, {v(im,2)} op_sel:[0,0] op_sel_hi:[0,1]")
            e(f"v_pk_fma_f32 {v(im,2)}, {Sg}, {v(re,2)}, {v(im,2)} {LI}")
            e(f"v_pk_fma_f32 {v(re,2)}, {Sg}, {v(re,2)}, v[14:15] {LR}")
        for g in range(5):
            scale_pairs(g, SP + 4 * g, SP + 4 * g + 2)
            for jj in range(4):
                scale_pairs(g, pair(g, 0, jj), pair(g, 1, jj))
        self.stamp(8)

        skip = e.newlabel("nocarry")
        e(f"s_cmp_lt_u32 {sW}, 2\ns_cbranch_scc1 {skip}")
        s0 = e.begin_region()
        e(f"s_lshl_b32 {sT0}, {sJ}, 4\ns_sub_u32 {sT0}, {sT0}, {sRB}\ns_mul_i32 {sT0}, {sT0}, 1280")
        e(f"s_add_u32 {sT0}, {sT0}, {CARRY + 16*1280}")
        e(f"s_add_u32 s{R_TMP}, s{P_WS}, {sT0}\ns_addc_u32 s{R_TMP+1}, s{P_WS+1}, 0")
        e(f"s_mul_i32 s{R_TMP+2}, {sRB}, 1280\ns_mov_b32 s{R_TMP+3}, 0x20000")
        e(f"s_add_u32 {sT1}, {sEC}, {TAG_CARRY}\ns_mul_i32 {sT1}, {sT1}, {sRB}")
        e(f"s_mov_b64 exec, {sEX}")
        MG = 196
        vMA = [10, 11, 12, 13, 14]
        e(f"v_subrev_u32 v10, {SCR}, {v(vCH8)}\nv_lshlrev_b32 v10, 1, v10")
        for k in range(1, 5):
            e(f"v_add_u32 v{10+k}, {3840*k}, v10")
        lp, out = e.newlabel("cpoll"), e.newlabel("cpolled")
        e.label(lp)
        mreg = lambda dl: MG + 4 * dl if dl < 13 else (vDB, vRB)[dl - 13]
        for dl in range(15):
            e(f"buffer_load_dwordx3 {v(mreg(dl),3)}, v{vMA[dl//3]}, {srd(R_TMP)}, 0 offen offset:{1280*(dl%3)} sc1")
        e(f"s_cmp_eq_u32 {sSPIN}, 0")
        e.wait_all(lg=False)
        e(f"s_cbranch_scc1 {out}\ns_sub_u32 {sSPIN}, {sSPIN}, 1")
        e(f"v_add3_u32 v15, {v(mreg(0)+2)}, {v(mreg(1)+2)}, {v(mreg(2)+2)}")
        for k in range(3, 15, 2):
            e(f"v_add3_u32 v15, v15, {v(mreg(k)+2)}, {v(mreg(k+1)+2)}")
        e(f"v_cmp_eq_u32 vcc, {sT1}, v15")
        e(f"s_cmp_eq_u64 vcc, exec\ns_cbranch_scc0 {lp}")
        e.label(out)
        for dl in range(13, -1, -1):
            x, y = mreg(dl), mreg(dl + 1)
            e(f"v_pk_fma_f32 {v(x,2)}, {v(vL128,2)}, {v(y,2)}, {v(x,2)} {LR}")
            e(f"v_pk_fma_f32 {v(x,2)}, {v(vL128,2)}, {v(y,2)}, {v(x,2)} op_sel:[1,1,0] op_sel_hi:[1,0,1] neg_lo:[1,0,0]")
        e(f"ds_write_b64 {v(vCH8)}, {v(mreg(0),2)} offset:10240")
        e("s_mov_b64 exec, -1")
        e.end_region(s0, skip)
        e.wait_all(vm=False)
        e("s_barrier")
        if c["skip_at"] == 21:
            self.emit_groups(skip_ld)
        self.stamp(9)

        PG = WK
        for g in range(5):
            e(f"ds_read_b64 {v(PG+4*g,2)}, {v(vTW)} offset:{128*g}")
            e(f"ds_read_b64 {v(PG+4*g+2,2)}, {v(vTC)} offset:{10240 + 128*g}")
        e(f"s_mul_i32 {sABEG}, {sRB}, 327680\ns_mul_i32 {sT0}, {sW}, 81920\ns_add_u32 {sABEG}, {sABEG}, {sT0}")
        e(f"s_add_u32 {sABEG}, {sABEG}, {HS}\ns_add_u32 {sAEND}, {sABEG}, 40960")
        e(f"s_mul_i32 {sT2}, {sJ}, 5120\ns_add_u32 {sT2}, {sT2}, {sABEG}")
        e(f"v_add_u32 {v(vA1)}, 40960, {v(vL16B)}")
        HF = WK + 20
        CV = 12

        def pass2(fl):
            for g in range(5):
                p, gg, w_ = PG + 4 * g, PG + 4 * g + 2, vWP + 2 * g
                hre, him = SP + 4 * g, SP + 4 * g + 2
                l4r, l4i = vL4 + 2 * g, vL4 + 2 * g + 1
                e(f"v_fma_f32 {v(p)}, {v(w_)}, {v(gg)}, {v(p)}\nv_fma_f32 {v(p+1)}, {v(w_)}, {v(gg+1)}, {v(p+1)}")
                e(f"v_fma_f32 {v(p)}, -{v(w_+1)}, {v(gg+1)}, {v(p)}\nv_fma_f32 {v(p+1)}, {v(w_+1)}, {v(gg)}, {v(p+1)}")
                e(f"v_fma_f32 {v(hre+1)}, {v(l4r)}, {v(p)}, {v(hre)}\nv_fma_f32 {v(him+1)}, {v(l4r)}, {v(p+1)}, {v(him)}")
                e(f"v_fma_f32 {v(hre+1)}, -{v(l4i)}, {v(p+1)}, {v(hre+1)}\nv_fma_f32 {v(him+1)}, {v(l4i)}, {v(p)}, {v(him+1)}")
                e(f"v_mov_b32 {v(hre)}, {v(p)}\nv_mov_b32 {v(him)}, {v(p+1)}")
                Lg = v(vL + 2 * g, 2)
                for jj in range(4):
                    ur, ui = pair(g, 0, jj), pair(g, 1, jj)
                    e(f"v_pk_fma_f32 {v(ur,2)}, {Lg}, {v(hre,2)}, {v(ur,2)} {LR}")
                    e(f"v_pk_fma_f32 {v(ui,2)}, {Lg}, {v(him,2)}, {v(ui,2)} {LR}")
                    e(f"v_pk_fma_f32 {v(ur,2)}, {Lg}, {v(him,2)}, {v(ur,2)} {LI} {NEG}")
                    e(f"v_pk_fma_f32 {v(ui,2)}, {Lg}, {v(hre,2)}, {v(ui,2)} {LI}")
                    hre, him = ur, ui
                for m in range(2):
                    for cp in range(2):
                        r, sg, d = acc(g, cp, m), "-" if cp else "", CV + 2 * cp
                        e(f"v_cvt_pk_bf16_f32 {v(d)}, {sg}{v(r)}, {sg}{v(r+1)}")
                        e(f"v_cvt_pk_bf16_f32 {v(d+1)}, {sg}{v(r+2)}, {sg}{v(r+3)}")
                        e(f"ds_write_b64 {v(vTRW)}, {v(d,2)} offset:{1024*m + 512*cp}")
                hf = HF + 8 * (g & 1)
                for m in range(2):
                    for j2 in range(2):
                        e(f"ds_read_b64_tr_b16 {v(hf + 4*m + 2*j2,2)}, {v(vTRR+j2)} offset:{1024*m}")
                if g:
                    store_h(g - 1, fl)
                    mid = rest[cutp[0]:cutp[1]]
                    self.emit_groups(mid[(g - 1) * len(mid) // 4:g * len(mid) // 4])
            store_h(4, fl)

        def store_h(g, fl):
            hf = HF + 8 * (g & 1)
            if g == 4:
                e(f"s_add_u32 {sT2}, {sT2}, 4096")
            for m in range(2):
                e(f"buffer_store_dwordx4 {v(hf+4*m,4)}, {v(vA1 if m else vL16B)}, {srd(R_WS)}, {sT2} offen offset:{1024*(g&3)} sc1", tok="h")
        e.wait_lg()
        pass2("sc1")
        self.stamp(10)
        self.emit_groups(rest[cutp[1]:cutp[2]])
        e(f"v_and_b32 v12, 15, {v(vLANE)}\nv_lshrrev_b32 v13, 4, {v(vLANE)}")
        e("v_lshl_add_u32 v14, v12, 2, v13\nv_lshlrev_b32 v14, 2, v14")
        e("v_and_b32 v13, 1, v13\nv_lshl_add_u32 v13, v12, 1, v13\nv_lshlrev_b32 v13, 2, v13\nv_add_u32 v13, 0x80, v13")
        for k in range(16):
            e(f"ds_bpermute_b32 {a(SXP+k)}, v14, {a(SXR+k)}")
        e("s_mov_b32 exec_lo, 0")
        for k in range(8):
            e(f"ds_bpermute_b32 {a(SPF+k)}, v13, {a(SPR+k)}")
        e("s_mov_b64 exec, -1")
        e.wait_tok("h")
        if c["pw_hid"]:
            self.send_wave(3, TAG_HID, "0xff", sJ, 3)
        e.wait_tok(("dma", 10))
        e.wait_lg()
        e("s_barrier")
        if not c["pw_hid"]:
            self.send_flags(3, TAG_HID, "0xff", sJ)
        self.emit_groups(rest[cutp[2]:])
        visible.add(10)

        acc2 = lambda T, m: ACC + (T * 2 + m) * 4
        e(f"v_and_b32 v12, 15, {v(vLANE)}\nv_lshrrev_b32 v13, 1, v12\nv_bfe_u32 v14, {v(vLANE)}, 4, 1")
        e("v_lshlrev_b32 v14, 2, v14\nv_sub_u32 v13, v13, v14\nv_and_b32 v12, 1, v12\nv_lshlrev_b32 v12, 4, v12")
        for k in range(4):
            e(f"v_cmp_eq_u32 {sMSK[k]}, {k}, v13")
        e(f"v_cmp_gt_u32 vcc, 32, {v(vLANE)}\nv_mov_b32 v15, 0x3f80")
        SEL = WK
        pick = [(v(vDS+T), "0") if T % 2 == 0 else ("0", v(vDS+T)) for T in range(4)]
        pick += [(v(vDS+4), "v15"), ("v15", "0"), ("0", "v15")]
        for n, (lo, hi) in enumerate(pick):
            e(f"v_cndmask_b32 v14, {hi}, {lo}, vcc\nv_lshlrev_b32 v14, v12, v14")
            for k in range(4):
                e(f"v_cndmask_b32 {v(SEL+4*n+k)}, 0, v14, {sMSK[k]}")
        for T in range(5):
            for m in range(2):
                src = SXN + 8 * (T >> 1) + 4 * m if T < 4 else SPF + 4 * m
                e(f"v_mfma_f32_16x16x32_bf16 {v(acc2(T,m),4)}, {a(src,4)}, {v(SEL+4*T,4)}, 0")
        for T in range(4):
            for m in range(2):
                e(f"v_mfma_f32_16x16x32_bf16 {v(acc2(T,m),4)}, {a(SXP + 8*(T>>1) + 4*m,4)}, {v(SEL+20+4*(T&1),4)}, {v(acc2(T,m),4)}")
        self.rot_init(sA, 10, 4096, 2)
        e(f"s_add_u32 {sA}, {sA}, {sABEG}")
        self.poll(3, TAG_HID, "hid", 12, 13, touch=[
            f"buffer_load_dwordx4 {a(AR + 4*k,4)}, {v(vA1 if k & 1 else vL16B)}, {srd(R_WS)}, {sA} offen offset:{1024*(k>>1)} sc1"
            for k in range(2 * c["htouch"])])
        self.stamp(11)

        def aload2(gs):
            st = gs & 3
            r = AR + (gs % 8) * 8
            out = [f"buffer_load_dwordx4 {a(r,4)}, {v(vL16B)}, {srd(R_WS)}, {sA} offen offset:{1024*st} {self.afl}",
                   f"buffer_load_dwordx4 {a(r+4,4)}, {v(vA1)}, {srd(R_WS)}, {sA} offen offset:{1024*st} {self.afl}"]
            return out + (self.adv(sA, 4096, sAEND, sABEG) if st == 3 else [])

        def bread2(n, st):
            slot = (10 + n) % NS
            base, off = vRC + 4 * (slot // 3) + st, (slot % 3) * SLOT
            return [f"ds_read_b128 {a(BB + 20*(st&1) + 4*T,4)}, {v(base)} offset:{off + T*2048}" for T in range(5)]

        def mfma2(n, st):
            gs = 4 * n + st
            return [f"v_mfma_f32_16x16x32_bf16 {v(acc2(T,m),4)}, {a(AR + (gs%8)*8 + 4*m,4)}, "
                    f"{a(BB + 20*(st&1) + 4*T,4)}, {v(acc2(T,m),4)}" for T in range(5) for m in range(2)]

        steps = self.mk_steps(10, 10, 4, mfma2, bread2)
        items = self.a_items(aload2, c["a_pre2"], 40, lambda g: g - 7, lambda g: g)
        for gs in range(c["a_pre2"]):
            e("\n".join(aload2(gs)))
        PL, sGOT, sPA, sPB = 176, "s93", "s46", "s1"
        part_ld = [f"buffer_load_dwordx4 {v(PL+4*k,4)}, {v(vL16B)}, {srd(R_WS)}, {sPB if k >= 4 else sPA} "
                   f"offen offset:{1024*(k&3)} sc1" for k in range(8)]

        def out_setup():
            self.mk_srd(R_OUT, P_OUT, 2048 * 2560)
            e(f"v_lshrrev_b32 v8, 4, {v(vLANE)}\nv_mul_u32_u24 v8, 0x5000, v8\nv_and_b32 v9, 15, {v(vLANE)}")
            e(f"v_lshl_add_u32 v8, v9, 2, v8\ns_mul_i32 {sT0}, {sJ}, 192\ns_sub_u32 {sT0}, 2048, {sT0}")
            e(f"v_add_u32 v9, {sT0}, v8")
            e(f"s_lshl_b32 {sPA}, {sOWN}, 5\ns_lshl_b32 {sT0}, {sW}, 13\ns_add_u32 {sPA}, {sPA}, {sT0}")
            e(f"s_add_u32 {sPA}, {sPA}, {PART}\ns_add_u32 {sPB}, {sPA}, 4096")
            e(f"s_lshl_b32 {sT0}, {sRB}, 2\ns_add_u32 {sT0}, {sT0}, {sW}\ns_mul_i32 {sT0}, {sT0}, 81920")
            e(f"s_lshl_b32 {sT1}, {sJ}, 8\ns_add_u32 {sT0}, {sT0}, {sT1}")
            for m in range(2):
                for r in range(4):
                    e(f"s_add_u32 {rows[4*m+r]}, {sT0}, {(4*(r&1) + 2*m + (r>>1)) * 2560}")
            e("\n".join(self.word_addr("part", 11)) + f"\ns_add_u32 {sGOT}, {sOWN}, {INBOX + 512}")

        def early():
            skip = e.newlabel("notyet")
            e(f"s_add_u32 {sT1}, {sE}, {TAG_PART}\nv_cmp_eq_u32 vcc, {sT1}, v10")
            e(f"s_cmp_eq_u64 vcc, exec\ns_cselect_b32 {sGOT}, 1, 0\ns_cbranch_scc0 {skip}")
            s0 = e.begin_region()
            e("\n".join(part_ld), tok="junk")
            e.end_region(s0, skip)
        rows = ["s88", "s89", "s90", "s91", "s94", "s95", "s96", "s97"]
        steps[30]["pre"] = out_setup
        steps[c["peek"] - c["peek_lead"]]["vm"].append([(f"buffer_load_dword v10, v11, {srd(R_WS)}, {sGOT} offen sc1", None)])
        steps[c["peek"]]["pre"] = early
        self.pipeline(steps, dma, NS, 20, range(upto, 10 + NS), visible, items, cap="cap_s2")
        self.stamp(12)

        late = e.newlabel("late")
        e(f"s_cmp_eq_u32 {sGOT}, 1\ns_cbranch_scc1 {late}")
        s0 = e.begin_region()
        self.poll(4, TAG_PART, "part", 12, 13, touch=part_ld if c["ptouch"] else ())
        e("\n".join(part_ld), tok="junk")
        e.end_region(s0, late)
        self.stamp(13)
        e.wait_all(lg=False)
        for k in range(8):
            T = min(k, 4)
            for i in range(4):
                d = acc2(T, i >> 1) + 2 * (i & 1)
                t0 = 12 + 2 * (i & 1)
                e(f"v_lshlrev_b32 {v(t0)}, 16, {v(PL+4*k+i)}\nv_and_b32 {v(t0+1)}, 0xffff0000, {v(PL+4*k+i)}")
                e(f"v_pk_add_f32 {v(d,2)}, {v(d,2)}, {v(t0,2)}")
            if k < 4 or k == 7:
                for m in range(2):
                    for r in range(4):
                        e(f"buffer_store_dword {v(acc2(T,m)+r)}, {'v8' if T < 4 else 'v9'}, {srd(R_OUT)}, "
                          f"{rows[4*m+r]} offen offset:{64*T if T < 4 else 0}")
        self.epoch_bump()
        self.stamp(14)
        self.finish()

    def epoch_bump(self):
        e = self.e
        skip = e.newlabel("nobump")
        e("s_barrier")
        e(f"s_cmp_lg_u32 {sW}, 0\ns_cbranch_scc1 {skip}")
        s0 = e.begin_region()
        e(f"s_add_u32 {sT0}, {sE}, 0x100\nv_mov_b32 v12, {sT0}\nv_mov_b32 v13, 0\ns_mov_b64 exec, 1")
        e(f"buffer_store_dword v12, v13, {srd(R_WS)}, {sOWN} offen sc1")
        e("s_mov_b64 exec, -1")
        e.end_region(s0, skip)

    def finish(self):
        e = self.e
        if self.c["probe"] >= 0:
            e.wait_all()
            self.stamp(15)
            lp = e.newlabel("probe")
            e("s_sub_u32 s100, s100, s98\ns_lshl_b32 s100, s100, 2\ns_add_u32 s100, s100, 4000")
            e.label(lp)
            e("s_memrealtime s[96:97]\ns_sub_u32 s96, s96, s98\ns_cmp_lt_u32 s96, s100")
            e(f"s_cbranch_scc1 {lp}")
        if self.c["diag"]:
            e.wait_all()
            self.stamp(15)
            self.flush_stamp()
            e(f"s_lshr_b32 {sT0}, {sOWN}, 10\ns_lshl_b32 {sT0}, {sT0}, 2\ns_add_u32 {sT0}, {sT0}, {sW}")
            e(f"s_lshl_b32 {sT0}, {sT0}, 8\ns_add_u32 {sT0}, {sT0}, {STAMP}")
            e(f"v_lshlrev_b32 v12, 2, {v(vLANE)}")
            e(f"buffer_store_dword {v(vSTAMP)}, v12, {srd(R_WS)}, {sT0} offen")
        e("s_endpgm")

    def check_flags(self, line, tag, tmp, tmp2):
        e = self.e
        issue = self.word_addr("hm", tmp2) + [
                 f"s_add_u32 s46, {sOWN}, {INBOX + 128*line}",
                 f"buffer_load_dword {v(tmp)}, {v(tmp2)}, {srd(R_WS)}, s46 offen sc1"]

        def test():
            ok = e.newlabel("ready")
            e(f"s_add_u32 {sT1}, {sE}, {tag}\nv_cmp_eq_u32 vcc, {sT1}, {v(tmp)}")
            e(f"s_cmp_eq_u64 vcc, exec\ns_cbranch_scc1 {ok}")
            s0 = e.begin_region()
            self.poll(line, tag, "hm", tmp, tmp2)
            e.end_region(s0, ok)
        return issue, test

    def mlp(self):
        e, c = self.e, self.c
        NS, SLOT, NSTREAM = 8, 20480, 27
        vD1, vD2 = 16, 20
        vR1, vR2 = 26, 30
        vA1, vA2 = 34, 36
        ACC1, ACC, WK = 96, 128, 192
        X, U = 96, 116
        XA, BB = 0, 160
        sM0C, sH, sHS, sR2 = "s15", "s89", "s90", "s91"
        LINES, TAGS = (3, 5, 6), (TAG_HID, TAG_HID2, TAG_HID3)

        self.mk_srd(R_1A, P_W1, 640 * 3072)
        self.mk_srd(R_2A, P_W2, 1536 * 1280)
        self.warm((R_2A,), 30, c["warm_m"])
        e(f"s_lshl_b32 {sM0B}, {sW}, 12\ns_lshl_b32 {sM0C}, {sW}, 10\ns_add_u32 {sM0C}, {sM0C}, 16384")
        e(f"v_lshrrev_b32 v12, 3, {v(vLANE)}\nv_and_b32 v13, 7, {v(vLANE)}\nv_and_b32 v14, 2, v12")
        e("v_xor_b32 v14, v13, v14\nv_lshlrev_b32 v14, 4, v14\nv_mul_u32_u24 v15, 0xc00, v12\nv_add_u32 v14, v14, v15")
        e(f"s_and_b32 {sT0}, {sW}, 1\ns_mul_i32 {sT0}, {sT0}, 98304\ns_mul_i32 {sT1}, {sJ}, 384")
        e(f"s_add_u32 {sT0}, {sT0}, {sT1}")
        for i in range(4):
            e(f"s_add_u32 {sT2}, {sT0}, {23552*i}\nv_add_u32 {v(vD1+i)}, {sT2}, v14")
            if i & 1:
                e(f"v_xor_b32 {v(vD1+i)}, 64, {v(vD1+i)}")
        self.rot_init(sA, 10, 2048, 1)
        e(f"s_lshr_b32 {sT2}, {sW}, 1\ns_lshl_b32 {sT2}, {sT2}, 11\ns_add_u32 {sWO1}, {sA}, {sT2}")
        e(f"s_cmp_eq_u32 {sWO1}, 20480\ns_cselect_b32 {sWO1}, 0, {sWO1}\ns_mul_i32 {sWO1}, {sWO1}, 96")

        def wrap(reg, inc):
            return [f"s_add_u32 {reg}, {reg}, {inc}", f"s_sub_u32 {sT3}, {reg}, 1966080", f"s_cselect_b32 {reg}, {reg}, {sT3}"]

        def dma(b):
            base = (b % NS) * SLOT
            ld = lambda r, d, so, imm: f"buffer_load_dwordx4 {v(r)}, {srd(d)}, {so} offen offset:{imm} lds"
            if b < 15:
                return ([f"s_add_u32 m0, {sM0B}, {base}"] + [ld(vD1 + i, R_1A, sWO1, 1024 * i) for i in range(4)]
                        + wrap(sWO1, 393216 + (128 if b % 5 == 4 else 0)))
            return ([f"s_add_u32 m0, {sM0B}, {base}"] + [ld(vD2 + i, R_2A, sWO2, 1024 * i) for i in range(4)]
                    + [f"s_add_u32 m0, {sM0C}, {base}", ld(vD2 + 4, R_2A, sWO2, 0)]
                    + wrap(sWO2, 491520 + (81920 if (b - 15) % 4 == 3 else 0)))

        pa, pl, pb = c["mpre_a"], c["pre_ln"] + c["mpre_st"], c["mpre_b"]
        self.issue_dma(dma, range(pa))
        e(f"v_lshrrev_b32 v12, 3, {v(vLANE)}\nv_and_b32 v13, 7, {v(vLANE)}")
        e("v_and_b32 v14, 6, v12\nv_xor_b32 v14, v13, v14\nv_lshlrev_b32 v14, 4, v14")
        e("v_mul_u32_u24 v15, 0x500, v12\nv_add_u32 v14, v14, v15")

        def row0(sub):
            e(f"s_and_b32 {sT3}, {sub}, 1\ns_lshl_b32 {sT3}, {sT3}, 5\ns_bfe_u32 {sub}, {sub}, 0x10001")
            e(f"s_mul_i32 {sub}, {sub}, 192\ns_add_u32 {sub}, {sub}, {sT3}")
        e(f"s_add_u32 {sT0}, {sJ}, {sW}")
        row0(sT0)
        e(f"s_mul_i32 {sT0}, {sT0}, 1280\ns_lshl_b32 {sT1}, {sJ}, 7\ns_add_u32 {sT0}, {sT0}, {sT1}")
        for i in range(4):
            e(f"s_add_u32 {sT1}, {sT0}, {9216*i}\nv_add_u32 {v(vD2+i)}, {sT1}, v14")
        e(f"s_mov_b32 {sT0}, {sJ}")
        row0(sT0)
        e(f"s_lshl_b32 {sT1}, {sW}, 3\ns_add_u32 {sT0}, {sT0}, {sT1}\ns_mul_i32 {sT0}, {sT0}, 1280")
        e(f"s_lshr_b32 {sT1}, {sJ}, 2\ns_lshl_b32 {sT1}, {sT1}, 7\ns_add_u32 {sT0}, {sT0}, {sT1}")
        e(f"s_add_u32 {sT0}, {sT0}, 1024\nv_add_u32 {v(vD2+4)}, {sT0}, v14")
        self.rot_init(sR2, 4, 4096, 2)
        e(f"s_mul_i32 {sWO2}, {sR2}, 120")
        e(f"v_bfe_u32 v12, {v(vLANE)}, 2, 2\nv_lshrrev_b32 v13, 4, {v(vLANE)}\nv_and_b32 v14, 3, {v(vLANE)}")
        e("v_lshlrev_b32 v14, 3, v14\nv_and_b32 v10, 1, v13\nv_lshrrev_b32 v11, 1, v12\nv_lshl_add_u32 v10, v10, 1, v11")
        e("v_lshl_add_u32 v14, v10, 5, v14")
        for r, sh in ((vR1, 3), (vR2, 2)):
            e(f"v_lshl_add_u32 v15, v13, {sh}, v12\nv_lshl_add_u32 v15, v15, 7, v14")
            for f in range(4):
                e(f"v_xor_b32 {v(r+f)}, {32*f}, v15")
        for p in range(4):
            e(f"s_add_u32 {sT0}, {sJ}, {p}\ns_and_b32 {sT0}, {sT0}, 3\ns_lshl_b32 {sT0}, {sT0}, 10")
            e(f"v_add_u32 {v(vA2+2*p)}, {sT0}, {v(vL16B)}\nv_add_u32 {v(vA2+2*p+1)}, 49152, {v(vA2+2*p)}")
        e(f"v_add_u32 {v(vA1)}, 20480, {v(vL16B)}\nv_add_u32 {v(vA1+1)}, 49152, {v(vL16B)}")
        e(f"s_mul_i32 {sABEG}, {sRB}, 163840\ns_mul_i32 {sT0}, {sW}, 40960\ns_add_u32 {sABEG}, {sABEG}, {sT0}")
        e(f"s_add_u32 {sABEG}, {sABEG}, {XNS}\ns_add_u32 {sAEND}, {sABEG}, 20480\ns_add_u32 {sA}, {sA}, {sABEG}")
        e(f"s_mul_i32 {sH}, {sRB}, 393216\ns_mul_i32 {sT0}, {sW}, 98304\ns_add_u32 {sH}, {sH}, {sT0}")
        e(f"s_add_u32 {sH}, {sH}, {HM}\ns_lshl_b32 {sHS}, {sJ}, 11\ns_add_u32 {sHS}, {sHS}, {sH}")
        self.stamp(1)
        toks = lambda r: [(i, ("dma", b)) for b in r for i in dma(b)]
        self.ln_compute(X, U, SCR, toks(range(pa, pa + c["pre_ln"])), toks(range(pa + c["pre_ln"], pa + pl)))
        self.stamp(2)
        self.issue_dma(dma, range(pa + pl, pa + pl + pb))
        visible = {0}
        self.stamp(3)
        self.poll(2, TAG_XN, "xn", 12, 13)
        self.stamp(4)

        cur = {vR1: 0, vR2: 0}
        par = [0]

        def step(b, last, reg, offs, mk, tile=None):
            want = (b % NS) // 3
            d, cur[reg] = (want - cur[reg]) * 61440, want
            rd = [f"v_add_u32 {v(reg+f)}, {d & 0xFFFFFFFF}, {v(reg+f)}" for f in range(4)] if d else []
            so = (b % NS) % 3 * SLOT
            par[0] ^= 1
            bb = BB + 32 * par[0]
            rd += [f"ds_read_b64_tr_b16 {a(bb + 4*n + 2*j2,2)}, {v(reg + (n & 3 if tile is None else tile))} offset:{so + o + dj*j2}"
                   for n, (o, dj) in enumerate(offs) for j2 in range(2)]
            mf = [mk(n, m, bb + 4 * n) for n in range(len(offs)) for m in range(2)]
            return dict(blk=b, last=last, mf=mf, rd=rd, vm=[], alu=[])

        mf16 = lambda d, x, y, first: f"v_mfma_f32_16x16x32_bf16 {v(d,4)}, {a(x,4)}, {a(y,4)}, {0 if first else v(d,4)}"
        steps = []
        for r in range(3):
            acc = ACC1 + 32 * (r & 1)
            for gs in range(20):
                steps.append(step(5 * r + gs // 4, gs & 3 == 3, vR1, [((gs & 3) * 4096, 512)] * 4,
                                  lambda n, m, w_: mf16(acc + 8 * n + 4 * m, w_, XA + 8 * gs + 4 * m, gs == 0)))
        for gs in range(44 if c["tmaj"] else 48):
            p = gs & 3
            offs = [(p * 4096, 2048)] * 4 + ([(16384, 2048)] * 4 if p == 0 else [])
            steps.append(step(15 + gs // 4, p == 3, vR2, offs,
                              lambda n, m, w_: mf16(ACC + 8 * n + 4 * m, XA + 8 * (gs % 16) + 4 * m, w_, gs == 0)))
        if c["tmaj"]:
            steps.append(step(26, False, vR2, [(16384, 2048)] * 4,
                              lambda n, m, w_: mf16(ACC + 32 + 8 * n + 4 * m, XA + 96 + 4 * m, w_, False)))
            for T in range(4):
                steps.append(step(26, T == 3, vR2, [(p * 4096, 2048) for p in range(4)],
                                  lambda n, m, w_: mf16(ACC + 8 * T + 4 * m, XA + 96 + 8 * n + 4 * m, w_, False), tile=T))

        def aload1(gs):
            out = [f"buffer_load_dwordx4 {a(XA + 8*gs + 4*m,4)}, {v(vA1 if m else vL16B)}, {srd(R_WS)}, {sA} "
                   f"offen offset:{1024*(gs&1)} {self.afl}" for m in range(2)]
            return out + (self.adv(sA, 2048, sAEND, sABEG) if gs & 1 else [])

        def aload2(gs):
            out = []
            if gs % 16 == 0:
                out += [f"s_add_u32 {sABEG}, {sH}, {1024*gs}", f"s_add_u32 {sAEND}, {sABEG}, 16384", f"s_add_u32 {sA}, {sR2}, {sABEG}"]
            out += [f"buffer_load_dwordx4 {a(XA + 8*(gs%16) + 4*m,4)}, {v(vA2 + 2*(gs&3) + m)}, {srd(R_WS)}, {sA} "
                    f"offen {self.afl}" for m in range(2)]
            return out + (self.adv(sA, 4096, sAEND, sABEG) if gs & 3 == 3 else [])

        def relu_store(r, u, m):
            acc, d = ACC1 + 32 * (r & 1), WK + 4 * (2 * u + m)
            src = [acc + 8 * (2 * u + h) + 4 * m + 2 * k for h in range(2) for k in range(2)]
            out = [[(f"v_cvt_pk_bf16_f32 {v(d+k)}, {v(src[k])}, {v(src[k]+1)}", None)] for k in range(4)]
            out += [[(f"v_pk_max_i16 {v(d+k)}, {v(d+k)}, 0", None)] for k in range(4)]
            out[-1].append((f"buffer_store_dwordx4 {v(d,4)}, {v(vA1+1 if m else vL16B)}, {srd(R_WS)}, {sHS} "
                            f"offen offset:{1024*u} sc1", ("h", r)))
            if u and m:
                out[-1].append((f"s_add_u32 {sHS}, {sHS}, 16384", None))
            return out

        apre = c["ma_pre"]
        items = self.a_items(aload1, apre, 20, lambda g: 0, lambda g: g)
        self.warm((R_2A,), 30, c["warm_m"], steps)
        for r, at in ((1, c["t19"]), (2, c["t23"])):
            if at:
                ld = [f"s_mul_i32 s92, {sR2}, 120", f"s_add_u32 s92, s92, {81920 * r}"]
                ld += [f"buffer_load_dwordx4 v[240:243], {v(vD2+i)}, {srd(R_2A)}, s92 offen offset:{1024*(i&3)}" for i in range(5)]
                for n, g in enumerate(self.groups(ld, "junk")):
                    steps[at + n // 3]["vm"].append(g)
        lazy = {}
        for at in (c["t19"], c["t23"], c["warm_m"]):
            for k in range(at + 2, at + 2 + c["quiet"]):
                steps[k]["quiet"] = bool(at)
        tests = (40 + c["test0"], 60 + c["test1"], 60 + c["test2"])
        for r in range(3):
            base = 20 * (r + 1)
            for n in range(4):
                steps[base + 1 + c["st_gap"] * n]["alu"] += relu_store(r, n >> 1, n & 1)
            fl = steps[base + (c["flag01"] if r < 2 else c["flag2"])]
            if c["pw_hm"]:
                fl["pre"] = lambda r=r: (e.wait_tok(("h", r)), self.send_wave(LINES[r], TAGS[r], "0xff00", sJ, 3))
            else:
                assert fl["last"]
                fl["pre"] = lambda r=r: e.wait_tok(("h", r))
                fl["post"] = lambda r=r: self.send_flags(LINES[r], TAGS[r], "0xff00", sJ)
            issue, test = self.check_flags(LINES[r], TAGS[r], 10, 11)
            steps[tests[r] - c["lead"]]["vm"] += self.groups(issue)
            assert "pre" not in steps[tests[r]]
            steps[tests[r]]["pre"] = test
        items += self.a_items(aload2, 0, 48, lambda g: max(tests[g // 16], 41 + g if g < 16 else 45 + g), lambda g: min(60 + g, 105) if c["tmaj"] else 60 + g)
        sPM, sPX = "s96", "s97"

        def part_store(T):
            d = WK + 4 * (T & 3)
            out = [[(f"v_cvt_pk_bf16_f32 {v(d+k)}, {v(ACC + 8*T + 2*k)}, {v(ACC + 8*T + 2*k + 1)}", None)] for k in range(4)]
            if T < 4:
                out[-1].append((f"buffer_store_dwordx4 {v(d,4)}, {v(vL16B)}, {srd(R_WS)}, {sPM} offen offset:{1024*T} sc1", None))
            else:
                out[-1].append((f"buffer_store_dwordx4 {v(d,4)}, {v(vL16B)}, {srd(R_WS)}, {sPX} offen sc1", None))
                out[-1].append((f"s_add_u32 {sPX}, {sPX}, 32768", None))
            return out

        def part_setup():
            e(f"s_lshl_b32 {sT0}, {sRB}, 18\ns_lshl_b32 {sT1}, {sW}, 13\ns_add_u32 {sT0}, {sT0}, {sT1}\ns_add_u32 {sT0}, {sT0}, {PART}")
            e(f"s_lshl_b32 {sPM}, {sJ}, 15\ns_add_u32 {sPM}, {sPM}, {sT0}")
            e(f"s_and_b32 {sPX}, {sJ}, 4\ns_lshl_b32 {sPX}, {sPX}, 15\ns_add_u32 {sPX}, {sPX}, {sT0}")
            e(f"s_and_b32 {sT1}, {sJ}, 3\ns_lshl_b32 {sT1}, {sT1}, 10\ns_add_u32 {sPX}, {sPX}, {sT1}")
            e(f"s_add_u32 {sPX}, {sPX}, 4096")
        steps[104]["pre"] = part_setup
        for n, k in enumerate((105, 105, 106, 106) if c["tmaj"] else (105, 106, 107, 107)):
            steps[k]["alu"] += part_store(4 + n)
        if c["tmaj"]:
            steps[107]["alu"] += part_store(0) + part_store(1)
            steps[108]["alu"] += part_store(2)
        for gs in range(apre):
            e("\n".join(aload1(gs)))
        self.pipeline(steps, dma, NS, NSTREAM, range(pa + pl + pb, NS), visible, items)
        self.stamp(12)

        for T in range(3 if c["tmaj"] else 0, 4):
            self.emit_groups(part_store(T))
        self.stamp(13)
        e(f"s_and_b32 {sT3}, {sJ}, 3\ns_and_b32 {sT2}, {sJ}, 4\ns_lshl_b32 s92, 15, {sT2}\ns_mov_b32 s93, 0")
        e.wait_all()
        if c["pw_part"]:
            self.send_wave(4, TAG_PART, "s[92:93]", sT3, 2)
        else:
            e("s_barrier")
            self.send_flags(4, TAG_PART, "s[92:93]", sT3)
        self.epoch_bump()
        self.stamp(14)
        self.finish()

    def build(self):
        e = self.e
        self.entry()
        snap = e.begin_region()
        pend, nst = self.pending_stamp, self.nstamp
        self.chain = 0
        self.ssm()
        self.chain = 1
        e.vm, e.lg, e.hist = list(snap["vm"]), list(snap["lg"]), []
        self.pending_stamp, self.nstamp = pend, nst
        e.label("L_mlp")
        self.mlp()
        e.label("L_end")
        e("s_endpgm")
        ref = open(f"cdna_kernels/{NAME}.s.ref").read()
        head = ref.split("; Override launch")[0]
        out = head
        out += "; Persistent kernel: one workgroup per CU, SSM chain and MLP chain on separate workgroup sets.\n"
        out += f"; @launch grid=(256,1,1) block=(256,1,1) lds={LDS_BYTES}\n"
        out += '.amdgcn_target "amdgcn-amd-amdhsa--gfx950"\n.text\n'
        out += f".globl {KERNEL}\n.p2align 8\n.type {KERNEL},@function\n{KERNEL}:\n"
        out += e.text()
        out += f""".section .rodata,"a"
.p2align 6
.amdhsa_kernel {KERNEL}
  .amdhsa_next_free_vgpr 512
  .amdhsa_next_free_sgpr 102
  .amdhsa_accum_offset 256
  .amdhsa_group_segment_fixed_size 0
  .amdhsa_kernarg_size 120
  .amdhsa_user_sgpr_count 2
  .amdhsa_user_sgpr_kernarg_segment_ptr 1
  .amdhsa_system_sgpr_workgroup_id_x 1
  .amdhsa_float_denorm_mode_32 3
.end_amdhsa_kernel
"""
        return out


def parse_cfg(args):
    cfg = {}
    for s in args:
        k, val = s.split("=")
        cfg[k] = type(DEFAULTS[k])(int(val))
    return cfg


if __name__ == "__main__":
    path = sys.argv[1]
    g = Gen(**parse_cfg(sys.argv[2:]))
    open(path, "w").write(g.build())
    print(path, "lines", len(g.e.lines), "nop slots", g.e.nops)
```

```python
import re

_REG = re.compile(r"(?<![\w.])(-?\|?)([vas])(\d+|\[(\d+):(\d+)\])")
TRANS = ("v_exp_f32", "v_log_f32", "v_rcp_f32", "v_rsq_f32", "v_sqrt_f32", "v_sin_f32", "v_cos_f32")


def regs_of(op):
    op = op.strip()
    out = set()
    if op in ("vcc", "vcc_lo", "vcc_hi"):
        return {"vcc"}
    if op in ("exec", "m0"):
        return {op}
    m = _REG.match(op)
    if m:
        k = m.group(2)
        if m.group(4) is not None:
            out |= {f"{k}{i}" for i in range(int(m.group(4)), int(m.group(5)) + 1)}
        else:
            out.add(f"{k}{m.group(3)}")
    return out


def split_ops(rest):
    ops, depth, cur = [], 0, ""
    for ch in rest:
        if ch in "[(":
            depth += 1
        if ch in "])":
            depth -= 1
        if ch == "," and depth == 0:
            ops.append(cur.strip())
            cur = ""
        else:
            cur += ch
    if cur.strip():
        ops.append(cur.strip())
    mods = ""
    if ops:
        parts = ops[-1].split(None, 1)
        ops[-1] = parts[0]
        mods = parts[1] if len(parts) > 1 else ""
    return ops, mods


class Ins:
    def __init__(self, text):
        self.text = text
        p = text.split(None, 1)
        self.m = m = p[0]
        ops, mods = split_ops(p[1]) if len(p) > 1 else ([], "")
        self.ops, self.mods = ops, mods
        R = [regs_of(o) for o in ops]
        U = lambda l: set().union(*l) if l else set()
        self.mfma = m.startswith("v_mfma")
        self.valu = m.startswith("v_") and not self.mfma
        self.vmem = m.startswith(("buffer_", "global_"))
        self.ds = m.startswith("ds_")
        self.smem = m.startswith(("s_load", "s_memtime", "s_memrealtime"))
        self.salu = m.startswith("s_") and not self.smem
        self.dpp = "row_" in mods or "quad_perm" in mods
        self.trans = m.replace("_e32", "").replace("_e64", "") in TRANS
        self.passes = 0
        self.srcc = set()
        self.srcab = set()
        self.store_data = set()
        self.lds_dma = False
        w, r = set(), set()
        if self.mfma:
            self.passes = 8 if "32x32" in m else 4
            w, r = R[0], U(R[1:])
            self.srcab, self.srcc = R[1] | R[2], R[3]
        elif self.valu:
            if m.startswith("v_permlane"):
                w = r = U(R)
            elif m.startswith(("v_add_co", "v_sub_co", "v_addc_co", "v_subb_co")):
                w, r = R[0] | R[1], U(R[2:])
            else:
                w, r = R[0], U(R[1:])
                if m.startswith(("v_fmac", "v_dot2c", "v_writelane")) or self.dpp:
                    r = r | R[0]
        elif self.vmem:
            self.lds_dma = " lds" in " " + mods
            if self.lds_dma:
                r = U(R) | {"m0"}
            elif "_load" in m:
                w, r = R[0], U(R[1:])
            else:
                r = U(R)
                if m.endswith(("x3", "x4")):
                    self.store_data = R[0]
        elif self.ds:
            if m.startswith(("ds_read", "ds_bpermute", "ds_permute", "ds_swizzle")):
                w, r = R[0], U(R[1:])
            else:
                r = U(R)
        elif self.smem:
            w, r = R[0], U(R[1:])
        elif self.salu:
            if m.startswith(("s_cmp", "s_cbranch", "s_branch", "s_waitcnt", "s_nop", "s_barrier",
                             "s_endpgm", "s_sleep", "s_setprio", "s_bitcmp")):
                r = U(R)
            else:
                w, r = R[0], U(R[1:])
                if "saveexec" in m:
                    w, r = w | {"exec"}, r | {"exec"}
                if m.startswith(("s_addk", "s_mulk", "s_bitset")):
                    r = r | R[0]
        self.w, self.r = w, r


def is_s(x):
    return x[0] == "s" or x == "vcc"


class Emitter:
    def __init__(self):
        self.lines = []
        self.slot = 0
        self.hist = []
        self.vm = []
        self.lg = []
        self.nlab = 0
        self.nops = 0

    def raw(self, text):
        self.lines.append(text)

    def comment(self, text):
        self.lines.append("    ; " + text)

    def label(self, name):
        self.lines.append(name + ":")

    def newlabel(self, stem):
        self.nlab += 1
        return f"L_{stem}_{self.nlab}"

    def _need(self, c):
        need = 0
        for slot, p in self.hist:
            ws = 0
            if p.valu:
                pv = {x for x in p.w if not is_s(x) and x not in ("exec", "m0")}
                ps = {x for x in p.w if is_s(x)}
                if c.mfma and pv & c.r:
                    ws = max(ws, 2)
                if c.valu and pv & c.r:
                    if c.dpp or c.m.startswith("v_permlane"):
                        ws = max(ws, 2)
                    if c.m.startswith(("v_readlane", "v_readfirstlane")):
                        ws = max(ws, 1)
                    if p.trans:
                        ws = max(ws, 1)
                if ps & c.r:
                    if c.vmem:
                        ws = max(ws, 5)
                    elif c.m.startswith(("v_readlane", "v_writelane")):
                        ws = max(ws, 4)
                    elif c.valu:
                        ws = max(ws, 2)
                    else:
                        ws = max(ws, 1)
            if p.mfma:
                far = 12 if p.passes == 8 else 8
                if c.mfma:
                    if p.w & c.srcab:
                        ws = max(ws, far)
                    if p.w & c.srcc and not (p.w == c.srcc and p.passes == c.passes):
                        ws = max(ws, far - 2)
                    if p.w & c.w and not (p.w == c.srcc and p.passes == c.passes):
                        ws = max(ws, far)
                elif p.w & (c.r | c.w):
                    ws = max(ws, far)
                if c.valu and p.srcc & c.w:
                    ws = max(ws, 7 if p.passes == 8 else 3)
            if p.salu and "m0" in p.w and c.lds_dma:
                ws = max(ws, 1)
            if p.store_data & c.w:
                ws = max(ws, 2 if c.valu else 1)
            if ws:
                need = max(need, slot + 1 + ws - self.slot)
        return need

    def _out(self, ins, slots=1):
        self.lines.append("    " + ins.text)
        self.hist.append((self.slot + slots - 1, ins))
        self.slot += slots
        self.hist = [h for h in self.hist if self.slot - h[0] <= 14]

    @staticmethod
    def _younger(q, idx):
        return sum(1 for o in q[idx + 1:] if not o["maybe"])

    def _wait(self, vm=None, lg=None):
        parts = []
        if vm is not None:
            n = min(self._younger(self.vm, vm), 63)
            parts.append(f"vmcnt({n})")
            self.vm = self.vm[vm + 1:]
        if lg is not None:
            if any(o["smem"] for o in self.lg):
                n, self.lg = 0, []
            else:
                n = min(self._younger(self.lg, lg), 15)
                self.lg = self.lg[lg + 1:]
            parts.append(f"lgkmcnt({n})")
        if parts:
            self._out(Ins("s_waitcnt " + " ".join(parts)))

    @staticmethod
    def _last(q, pred):
        idx = None
        for i, o in enumerate(q):
            if pred(o):
                idx = i
        return idx

    def __call__(self, text, tok=None):
        for line in text.split("\n"):
            line = line.strip()
            if line:
                self._one(line, tok)

    def _one(self, text, tok):
        c = Ins(text)
        touch = c.r | c.w
        self._wait(self._last(self.vm, lambda o: o["dst"] & touch),
                   self._last(self.lg, lambda o: o["dst"] & touch))
        need = self._need(c)
        while need > 0:
            k = min(need, 16)
            self._out(Ins(f"s_nop {k-1}"), k)
            self.nops += k
            need -= k
        slots = 1
        if c.m == "s_nop":
            slots = int(c.ops[0]) + 1
        self._out(c, slots)
        if c.vmem:
            self.vm.append({"dst": set() if tok == "junk" else c.w, "tok": tok, "maybe": False})
        elif c.ds or c.smem:
            self.lg.append({"dst": c.w, "tok": tok, "maybe": False, "smem": c.smem})

    def wait_for(self, instrs):
        touch = set()
        for t in instrs:
            c = Ins(t)
            touch |= c.r | c.w
        self._wait(self._last(self.vm, lambda o: o["dst"] & touch),
                   self._last(self.lg, lambda o: o["dst"] & touch))

    def wait_tok(self, *toks):
        self._wait(self._last(self.vm, lambda o: o["tok"] in toks),
                   self._last(self.lg, lambda o: o["tok"] in toks))

    def wait_all(self, vm=True, lg=True):
        parts = []
        if vm:
            parts.append("vmcnt(0)")
            self.vm = []
        if lg:
            parts.append("lgkmcnt(0)")
            self.lg = []
        self._out(Ins("s_waitcnt " + " ".join(parts)))

    def wait_lg(self):
        if self.lg:
            self.wait_all(vm=False)

    def begin_region(self):
        return {"slot": self.slot, "hist": list(self.hist),
                "vm": [o for o in self.vm], "lg": [o for o in self.lg]}

    def end_region(self, snap, label):
        for name in ("vm", "lg"):
            before = snap[name]
            ids = {id(o) for o in before}
            inside = [o for o in getattr(self, name) if id(o) not in ids]
            for o in inside:
                assert not o["dst"], f"load result pending at region end: {o}"
                o["maybe"] = True
            setattr(self, name, before + inside)
        shift = self.slot - snap["slot"]
        self.hist = [(s + shift, i) for s, i in snap["hist"]] + self.hist
        self.label(label)

    def text(self):
        return "\n".join(self.lines) + "\n"
```

```python
import os
import sys

sys.path.insert(0, os.path.dirname(os.path.abspath(__file__)))
from emit import Emitter

NAME = "parallel_sum__ssm_conv_s5__dense_activation_relu__prompt"
KERNEL = NAME + "_kernel"

INBOX = 0x0
CARRY = 0x40000
XNS = 0x300000
HS = 0x800000
HM = 0xD00000
PART = 0x1300000
STAMP = 0x1700000
WS_USED = 0x1800000

LDS_BYTES = 163840
SCR = 143360
SPIN_LIMIT = 1 << 15

TAG_HID2, TAG_XN, TAG_HID, TAG_PART, TAG_CARRY, TAG_HID3 = 16, 32, 48, 64, 80, 96

DEFAULTS = dict(
    pre_a=1, pre_st=1, pre_b=2, mpre_a=1, mpre_st=1, mpre_b=6,
    a_pre=2, a_pre2=4, ma_pre=4, cap=115, lat_a=6, lat_d=8, waits=2, span=75,
    skip_at=14, lazy0=10, lazy_gap=3, defer=1, peek=38,
    warm_m=29, quiet=4, flag01=15, flag2=15, test0=6, test1=8, test2=26, lead=5,
    diag=False, jitter=0, blkstamp=False, blkclk=False, stepstamp=-1, dump=False,
)

P_X, P_LRE, P_LIM, P_BRE, P_BIM, P_CRE, P_CIM, P_LDT = 16, 18, 20, 22, 24, 26, 28, 30
P_DSK, P_BX, P_W1, P_W2, P_OUT, P_DBG, P_WS = 32, 34, 36, 38, 40, 42, 44
R_X, R_WS, R_1A, R_1B, R_2A, R_2B, R_OUT, R_TMP = 48, 52, 56, 60, 64, 68, 72, 76
sRB, sJ, sW, sEC, sE, sCH, sOWN, sSPIN = "s3", "s4", "s5", "s6", "s7", "s8", "s9", "s10"
sT0, sT1, sT2, sT3 = "s11", "s12", "s13", "s14"
sWO1, sWO2 = "s80", "s81"
sA, sABEG, sAEND = "s83", "s84", "s85"
sM0A, sM0B = "s86", "s87"
sHALF = "s[94:95]"
sME = "s47"
sEX = "s[88:89]"
sMSK = [f"s[{90+2*k}:{91+2*k}]" for k in range(4)]
sST = ["s[98:99]", "s[100:101]"]


def v(a, n=1):
    return f"v{a}" if n == 1 else f"v[{a}:{a+n-1}]"


def a(b, n=1):
    return f"a{b}" if n == 1 else f"a[{b}:{b+n-1}]"


def srd(b):
    return f"s[{b}:{b+3}]"


vTID, vLANE, vL16B, vE, vINB, vFLG, vSTAMP = 0, 1, 2, 3, 4, 5, 6


class Gen:
    def __init__(self, **cfg):
        self.c = dict(DEFAULTS)
        self.c.update(cfg)
        self.e = Emitter()
        self.nstamp = 0
        self.chain = -1
        self.pending_stamp = None

    def stamp(self, k):
        if self.c["jitter"] and 0 < k < 15:
            e, lp, out = self.e, self.e.newlabel("jit"), self.e.newlabel("jitend")
            e(f"s_lshl_b32 s98, s2, 2\ns_add_u32 s98, s98, {sW}\ns_add_u32 s98, s98, {977 * k + self.c['jitter']}")
            e("s_mul_i32 s98, s98, 0x9e3779b1\ns_lshr_b32 s99, s98, 15\ns_xor_b32 s98, s98, s99\ns_mul_i32 s98, s98, 0x85ebca6b")
            e(f"s_lshr_b32 s99, s98, 30\ns_cmp_lg_u32 s99, 0\ns_cbranch_scc1 {out}\ns_bfe_u32 s98, s98, 0x60008")
            e.label(lp)
            e(f"s_sleep 8\ns_sub_u32 s98, s98, 1\ns_cbranch_scc0 {lp}")
            e.label(out)
        if not self.c["diag"]:
            return
        e = self.e
        self.flush_stamp()
        reg = sST[self.nstamp & 1]
        self.nstamp += 1
        e(f"s_memtime {reg}" if 16 <= k < 44 and self.c["blkclk"] else f"s_memrealtime {reg}")
        self.pending_stamp = (k, reg)

    def flush_stamp(self):
        if self.pending_stamp:
            k, reg = self.pending_stamp
            lo = reg[2:].split(":")[0]
            self.e(f"v_writelane_b32 {v(vSTAMP)}, s{lo}, {k}")
            self.pending_stamp = None

    def mk_srd(self, r, ptr, nbytes):
        e = self.e
        e(f"s_mov_b32 s{r}, s{ptr}\ns_mov_b32 s{r+1}, s{ptr+1}")
        e(f"s_mov_b32 s{r+2}, {nbytes}\ns_mov_b32 s{r+3}, 0x20000")

    def mk_srd_sel(self, r, p_lo, p_hi, nbytes):
        e = self.e
        e(f"s_cselect_b32 s{r}, s{p_lo}, s{p_hi}\ns_cselect_b32 s{r+1}, s{p_lo+1}, s{p_hi+1}")
        e(f"s_mov_b32 s{r+2}, {nbytes}\ns_mov_b32 s{r+3}, 0x20000")

    def cmul(self, d, x, y):
        e = self.e
        e(f"v_pk_mul_f32 {v(d,2)}, {v(x,2)}, {v(y,2)} op_sel:[0,0] op_sel_hi:[0,1]")
        e(f"v_pk_fma_f32 {v(d,2)}, {v(x,2)}, {v(y,2)}, {v(d,2)} op_sel:[1,1,0] op_sel_hi:[1,0,1] neg_lo:[1,0,0]")

    def round_bf16(self, r):
        e = self.e
        e(f"v_cvt_pk_bf16_f32 {v(r)}, {v(r)}, {v(r)}\nv_lshlrev_b32 {v(r)}, 16, {v(r)}")

    def rot_init(self, dst, nb, stride, by_j):
        e = self.e
        e(f"s_and_b32 {sT0}, {sRB}, 3\ns_mul_i32 {sT0}, {sT0}, {nb}\ns_lshr_b32 {sT0}, {sT0}, 2")
        e(f"s_lshr_b32 {sT1}, {sRB}, 2\ns_add_u32 {sT0}, {sT0}, {sT1}")
        if by_j:
            e(f"s_mul_i32 {sT1}, {sJ}, {nb}\ns_lshr_b32 {sT1}, {sT1}, 3\ns_add_u32 {sT0}, {sT0}, {sT1}")
        e(f"s_mul_hi_u32 {sT1}, {sT0}, {(2**32 + nb - 1) // nb}\ns_mul_i32 {sT1}, {sT1}, {nb}")
        e(f"s_sub_u32 {sT0}, {sT0}, {sT1}\ns_mul_i32 {dst}, {sT0}, {stride}")

    @staticmethod
    def adv(reg, stride, end, beg):
        return [f"s_add_u32 {reg}, {reg}, {stride}", f"s_cmp_eq_u32 {reg}, {end}",
                f"s_cselect_b32 {reg}, {beg}, {reg}"]

    def send_flags(self, line, tag, lanes, word):
        e = self.e
        skip = e.newlabel("nosend")
        e(f"s_cmp_lg_u32 {sW}, 0\ns_cbranch_scc1 {skip}")
        s0 = e.begin_region()
        e(f"v_add_u32 {v(vFLG)}, {tag}, {v(vE)}")
        e(f"s_lshl_b32 {sT0}, {word}, 2\ns_add_u32 {sT0}, {sT0}, {INBOX + 128*line}")
        e(f"s_mov_b64 exec, {lanes}")
        e(f"buffer_store_dword {v(vFLG)}, {v(vINB)}, {srd(R_WS)}, {sT0} offen sc1")
        e("s_mov_b64 exec, -1")
        e.end_region(s0, skip)

    def send_wave(self, line, tag, lanes, word, shift):
        e = self.e
        e(f"v_add_u32 {v(vFLG)}, {tag}, {v(vE)}\ns_lshl_b32 {sT0}, {sW}, {shift}\ns_add_u32 {sT0}, {sT0}, {word}")
        e(f"s_lshl_b32 {sT0}, {sT0}, 2\ns_add_u32 {sT0}, {sT0}, {INBOX + 128*line}\ns_mov_b64 exec, {lanes}")
        e(f"buffer_store_dword {v(vFLG)}, {v(vINB)}, {srd(R_WS)}, {sT0} offen sc1")
        e("s_mov_b64 exec, -1")

    @staticmethod
    def word_addr(kind, r):
        if kind == "xn":
            return [f"v_and_b32 {v(r)}, 2, {v(vLANE)}", f"v_and_b32 v15, 1, {v(vLANE)}", f"v_lshl_add_u32 {v(r)}, {v(r)}, 2, v15",
                    f"v_lshl_add_u32 {v(r)}, {sW}, 1, {v(r)}", f"v_lshlrev_b32 {v(r)}, 2, {v(r)}"]
        if kind == "part":
            return [f"v_and_b32 {v(r)}, 3, {v(vLANE)}", f"v_lshl_add_u32 {v(r)}, {sW}, 2, {v(r)}", f"v_lshlrev_b32 {v(r)}, 2, {v(r)}"]
        return [f"v_and_b32 {v(r)}, 7, {v(vLANE)}", f"v_lshlrev_b32 {v(r)}, 2, {v(r)}"]

    def poll(self, line, tag, kind, tmp, tmp2, touch=()):
        e = self.e
        lp, out = e.newlabel("poll"), e.newlabel("polled")
        e("\n".join(self.word_addr(kind, tmp2)))
        e(f"s_add_u32 {sT0}, {sOWN}, {INBOX + 128*line}\ns_add_u32 {sT1}, {sE}, {tag}")
        e.label(lp)
        e(f"buffer_load_dword {v(tmp)}, {v(tmp2)}, {srd(R_WS)}, {sT0} offen sc1")
        e("\n".join(touch), tok="junk")
        e(f"s_cmp_eq_u32 {sSPIN}, 0")
        e.wait_all(lg=False)
        e(f"s_cbranch_scc1 {out}\ns_sub_u32 {sSPIN}, {sSPIN}, 1")
        e(f"v_cmp_eq_u32 vcc, {sT1}, {v(tmp)}")
        e(f"s_cmp_eq_u64 vcc, exec\ns_cbranch_scc0 {lp}")
        e.label(out)

    def entry(self):
        e, c = self.e, self.c
        X = 96
        e("s_cmp_ge_u32 s2, 256\ns_cbranch_scc1 L_end")
        e("s_load_dwordx2 s[44:45], s[0:1], 112\ns_load_dwordx16 s[16:31], s[0:1], 0")
        e("s_load_dwordx8 s[32:39], s[0:1], 64\ns_load_dwordx4 s[40:43], s[0:1], 96")
        if c["diag"]:
            e(f"v_mov_b32 {v(vSTAMP)}, 0")
        self.stamp(0)
        e(f"s_lshr_b32 {sT0}, s2, 3\ns_and_b32 {sCH}, s2, 1\ns_xor_b32 {sCH}, {sCH}, 1")
        skip, here = e.newlabel("nopf"), e.newlabel("pc")
        e("s_getpc_b64 s[88:89]")
        e.label(here)
        e(f"s_cmp_eq_u32 {sCH}, 0\ns_cselect_b32 {sT1}, 0, L_mlp-{here}")
        e(f"s_mov_b32 {sT2}, L_end-{here}\ns_cselect_b32 {sT2}, L_mlp-{here}, {sT2}")
        e(f"s_lshl_b32 {sT3}, {sT0}, 7\ns_add_u32 {sT3}, {sT3}, {sT1}")
        e(f"v_lshl_add_u32 v12, v0, 12, {sT3}\nv_cmp_gt_u32 vcc, {sT2}, v12")
        e(f"s_and_saveexec_b64 s[90:91], vcc\ns_cbranch_execz {skip}")
        s0 = e.begin_region()
        e("v_mov_b32 v13, s89\nv_add_co_u32 v12, vcc, s88, v12\nv_addc_co_u32 v13, vcc, 0, v13, vcc")
        e("global_load_dword v255, v[12:13], off", tok="junk")
        e.end_region(s0, skip)
        e("s_mov_b64 exec, -1")
        e(f"s_and_b32 {sJ}, {sT0}, 7\ns_lshr_b32 {sT0}, {sT0}, 3\ns_bfe_u32 {sT1}, s2, 0x20001")
        e(f"s_lshr_b32 {sT2}, {sT1}, 1\ns_xor_b32 {sT1}, {sT1}, {sT2}")
        e(f"s_lshl_b32 {sT1}, {sT1}, 2\ns_add_u32 {sRB}, {sT1}, {sT0}")
        e("v_lshrrev_b32 v8, 5, v0\nv_and_b32 v9, 31, v0")
        e("v_and_b32 v10, 1, v8\nv_lshlrev_b32 v10, 2, v10\nv_bfe_u32 v11, v8, 1, 1\nv_add_u32 v10, v10, v11")
        e("v_lshrrev_b32 v11, 2, v8\nv_lshl_add_u32 v10, v11, 3, v10")
        e("v_mul_u32_u24 v10, 0x500, v10\nv_lshl_add_u32 v10, v9, 4, v10")
        e(f"s_and_b32 {sT1}, {sJ}, 1\ns_lshl_b32 {sT2}, {sCH}, 3\ns_add_u32 {sT1}, {sT1}, {sT2}\ns_lshl_b32 {sT1}, {sT1}, 1")
        e(f"s_lshr_b32 {sT0}, {sJ}, 1\ns_lshl_b32 {sT0}, {sT0}, 5\ns_add_u32 {sT0}, {sT0}, {sT1}")
        e(f"s_lshl_b32 {sT1}, {sRB}, 7\ns_add_u32 {sT0}, {sT0}, {sT1}\ns_mul_i32 {sT0}, {sT0}, 1280")
        e(f"s_mov_b32 s{R_X+2}, {2048*1280}\ns_mov_b32 s{R_X+3}, 0x20000")
        e("s_mov_b32 s94, 0xffff\ns_mov_b32 s95, 0xffff")
        e(f"s_mov_b32 s{R_X}, s{P_X}\ns_mov_b32 s{R_X+1}, s{P_X+1}")
        for n in range(3):
            if n == 2:
                e(f"s_mov_b64 exec, {sHALF}")
            e(f"buffer_load_dwordx4 {v(X+4*n,4)}, v10, {srd(R_X)}, {sT0} offen offset:{512*n}")
        e("s_mov_b64 exec, -1")
        e(f"v_lshrrev_b32 v7, 6, v0\nv_and_b32 {v(vLANE)}, 63, v0")
        e(f"v_readfirstlane_b32 {sW}, v7")
        e(f"v_lshlrev_b32 {v(vL16B)}, 4, {v(vLANE)}")
        e(f"s_lshl_b32 {sOWN}, {sCH}, 4\ns_add_u32 {sOWN}, {sOWN}, {sRB}")
        e(f"s_lshl_b32 {sOWN}, {sOWN}, 3\ns_add_u32 {sOWN}, {sOWN}, {sJ}\ns_lshl_b32 {sOWN}, {sOWN}, 10")
        e(f"s_mov_b32 {sSPIN}, {SPIN_LIMIT}")
        self.mk_srd(R_WS, P_WS, WS_USED)
        e(f"s_lshl_b32 {sME}, {sCH}, 3\ns_add_u32 {sME}, {sME}, {sJ}\ns_lshl_b32 {sT0}, {sRB}, 13")
        e(f"v_and_b32 v11, 7, {v(vLANE)}\nv_lshl_add_u32 {v(vINB)}, v11, 10, {sT0}")
        e(f"v_bfe_u32 v11, {v(vLANE)}, 3, 1\nv_lshl_add_u32 {v(vINB)}, v11, 17, {v(vINB)}")
        e(f"s_add_u32 {sT1}, {sJ}, 120\ns_lshl_b32 {sT1}, {sT1}, 10\nv_mov_b32 v11, {sT1}")
        e(f"v_cmp_gt_u32 vcc, 16, {v(vLANE)}")
        e(f"v_cndmask_b32 {v(vINB)}, v11, {v(vINB)}, vcc")
        e(f"buffer_load_dword {v(vE)}, {v(vINB)}, {srd(R_WS)}, 0 offen sc1")
        e(f"v_and_b32 v11, 7, {v(vLANE)}\nv_lshlrev_b32 v11, 7, v11")
        e(f"buffer_load_dword v255, v11, {srd(R_WS)}, {sOWN} offen", tok="junk")
        e(f"s_cmp_eq_u32 {sCH}, 0\ns_cbranch_scc0 L_mlp")

    def ln_compute(self, X, U, scr, fill_st, during_ack=None):
        e = self.e

        def parts(body):
            body(range(8))
            e(f"s_mov_b64 exec, {sHALF}")
            body(range(8, 12))
            e("s_mov_b64 exec, -1")

        def rowsum(r):
            e(f"v_add_f32 {v(r)}, {v(r)}, {v(r+1)}")
            for sh in (8, 4, 2, 1):
                e(f"v_add_f32_dpp {v(r)}, {v(r)}, {v(r)} row_ror:{sh} row_mask:0xf bank_mask:0xf")
            e(f"v_mov_b32 {v(r+1)}, {v(r)}\nv_permlane16_swap_b32 {v(r)}, {v(r+1)}\nv_add_f32 {v(r)}, {v(r)}, {v(r+1)}")

        def unpack(ks):
            for k in ks:
                e(f"v_lshlrev_b32 {v(U+2*k)}, 16, {v(X+k)}\nv_and_b32 {v(U+2*k+1)}, 0xffff0000, {v(X+k)}")
                if k == 0:
                    self.stamp(44)
                if k == 1:
                    e(f"v_pk_add_f32 v[12:13], {v(U,2)}, {v(U+2,2)}")
                elif k > 1:
                    e(f"v_pk_add_f32 v[12:13], v[12:13], {v(U+2*k,2)}")

        def centre(ks):
            for k in ks:
                e(f"v_pk_add_f32 {v(U+2*k,2)}, {v(U+2*k,2)}, v[14:15] op_sel_hi:[1,0] neg_lo:[0,1] neg_hi:[0,1]")
            for k in ks:
                if k == 0:
                    e(f"v_pk_mul_f32 v[12:13], {v(U,2)}, {v(U,2)}")
                else:
                    e(f"v_pk_fma_f32 v[12:13], {v(U+2*k,2)}, {v(U+2*k,2)}, v[12:13]")

        def scale(ks):
            for k in ks:
                e(f"v_pk_mul_f32 {v(U+2*k,2)}, {v(U+2*k,2)}, v[12:13] op_sel_hi:[1,0]")
                e(f"v_cvt_pk_bf16_f32 {v(X+k)}, {v(U+2*k)}, {v(U+2*k+1)}")
                if k & 3 == 3:
                    e(f"ds_write_b128 v10, {v(X+k-3,4)} offset:{1024*(k-3)}")

        inv_d = "0x3acccccd"
        e("v_and_b32 v10, 7, v9\nv_xor_b32 v10, v8, v10\nv_lshlrev_b32 v10, 4, v10\nv_lshl_add_u32 v10, v9, 7, v10")
        e(f"v_add_u32 v10, {scr}, v10\nv_lshrrev_b32 v8, 3, v0\nv_and_b32 v9, 7, v0\nv_xor_b32 v11, v8, v9")
        e(f"v_and_b32 v11, 7, v11\nv_lshlrev_b32 v11, 4, v11\nv_lshl_add_u32 v11, v8, 7, v11\nv_add_u32 v11, {scr}, v11")
        e("v_lshlrev_b32 v9, 4, v9\nv_lshl_add_u32 v9, v8, 8, v9")
        e(f"s_mul_i32 {sT2}, {sRB}, 163840\ns_mul_i32 {sT1}, {sJ}, 20480\ns_add_u32 {sT2}, {sT2}, {sT1}")
        e(f"s_lshl_b32 {sT1}, {sCH}, 7\ns_add_u32 {sT2}, {sT2}, {sT1}\ns_add_u32 s92, {sT2}, {XNS}")
        parts(unpack)
        rowsum(12)
        e(f"v_mul_f32 v12, {inv_d}, v12\nv_mov_b32 v14, v12")
        self.round_bf16(14)
        e("v_sub_f32 v15, v12, v14")
        parts(centre)
        rowsum(12)
        e(f"v_mul_f32 v12, {inv_d}, v12\nv_fma_f32 v12, -v15, v15, v12\nv_max_f32 v12, 0, v12")
        self.round_bf16(12)
        e("v_add_f32 v12, 0x3727c5ac, v12")
        self.round_bf16(12)
        e("v_sqrt_f32 v12, v12")
        self.round_bf16(12)
        e("v_rcp_f32 v12, v12")
        parts(scale)
        self.stamp(45)
        e.wait_lg()
        e("s_barrier")
        for k in range(3):
            e(f"ds_read_b128 {v(X+4*k,4)}, v11 offset:{4096*k}")
        e(f"buffer_store_dwordx4 {v(X,4)}, v9, {srd(R_WS)}, s92 offen sc1", tok="xn")
        e(f"s_add_u32 {sT2}, s92, 8192\ns_add_u32 {sT3}, s92, 16384")
        e(f"buffer_store_dwordx4 {v(X+4,4)}, v9, {srd(R_WS)}, {sT2} offen sc1", tok="xn")
        skip = e.newlabel("third")
        e.wait_lg()
        e(f"s_cmp_gt_u32 {sW}, 1\ns_cbranch_scc1 {skip}")
        s0 = e.begin_region()
        e(f"buffer_store_dwordx4 {v(X+8,4)}, v9, {srd(R_WS)}, {sT3} offen sc1", tok="xn")
        e.end_region(s0, skip)
        self.stamp(46)
        e(f"v_readlane_b32 {sE}, {v(vE)}, {sME}\nv_readlane_b32 {sEC}, {v(vE)}, 16")
        for ins, tok in fill_st:
            e(ins, tok=tok)
        if during_ack:
            during_ack()
        e.wait_tok("xn", ("dma", 0))
        e.wait_lg()
        self.stamp(47)
        e("s_barrier")
        self.send_flags(2, TAG_XN, "0xffff", sME)

    @staticmethod
    def groups(instrs, tok=None):
        out, cur = [], []
        for ins in instrs:
            cur.append((ins, tok))
            if ins.startswith("buffer_"):
                out.append(cur)
                cur = []
        if cur:
            out[-1] += cur
        return out

    def pipeline(self, steps, dma, ns, nstream, early, visible, aitems, lazy={}, keep=False):
        e, c = self.e, self.c
        last = {st["blk"]: k for k, st in enumerate(steps) if st["last"]}
        b0 = steps[0]["blk"]
        blocks = [(b, 0) for b in early]
        blocks += [(b - 1 + ns, last[b]) for b in sorted(last) if b > b0 and b - 1 + ns < nstream]
        ditems = [dict(r=max(r, lazy.get(b, 0)), d=last.get(b - 1, len(steps) + b), g=g)
                  for b, r in blocks for g in self.groups(dma(b), ("dma", b))]
        streams = [(list(aitems), c["lat_a"]), (ditems, c["lat_d"])]
        credit = 0.0
        for k, st in enumerate(steps):
            credit = max(min(credit, 1.0), -1.0) + c["cap"] / 100 * len(st["mf"]) / 4 - len(st["vm"])
            credit -= sum(1 for g in st["alu"] for ins, _ in g if "buffer_" in ins)
            while True:
                heads = [(q[0]["d"] - lat, q) for q, lat in streams if q and q[0]["r"] <= k]
                if not heads:
                    break
                due = [h for h in heads if h[1][0]["d"] <= k + 1]
                if not due and (credit < 1 or st.get("quiet")):
                    break
                dl, q = min(due or heads, key=lambda h: h[0])
                st["vm"].append(q.pop(0)["g"])
                credit -= 1
        assert not streams[0][0] and all(it["r"] < it["d"] for it in aitems)
        if c["dump"]:
            for k, st in enumerate(steps):
                kinds = ["D%d" % g[-1][1][1] if g[-1][1] and g[-1][1][0] == "dma" else "A" for g in st["vm"]]
                print(self.chain, k, st["blk"], " ".join(kinds), "ST" if st["alu"] else "", "pre" if st.get("pre") else "")
        for ins in steps[0]["rd"]:
            e(ins)
        for k, st in enumerate(steps):
            b = st["blk"]
            if c["stepstamp"] >= 0:
                if 0 <= k + 100 * (b0 > 0) - c["stepstamp"] < 28:
                    self.stamp(16 + k + 100 * (b0 > 0) - c["stepstamp"])
            elif c["blkstamp"] and (k == 0 or steps[k - 1]["last"]):
                self.stamp(16 + b)
            nxt = steps[k + 1] if k + 1 < len(steps) else None
            if st["last"]:
                release = b > b0 and b - 1 + ns < nstream
                need_vis = nxt is not None and nxt["blk"] not in visible
                if need_vis:
                    e.wait_tok(("dma", nxt["blk"]))
                    visible.add(nxt["blk"])
                if st.get("pre"):
                    st["pre"]()
                if release or need_vis or st.get("post"):
                    e("s_barrier")
                if st.get("post"):
                    st["post"]()
            elif st.get("pre"):
                st["pre"]()
            rd = nxt["rd"] if nxt is not None else []
            mm, vm = st["mf"], st["vm"]
            slots = [[] for _ in mm]
            nm, nw, span = len(mm), c["waits"], c["span"]
            for n, ins in enumerate(rd):
                slots[n * nm * span // (100 * len(rd))].append((ins, None))
            for n, g in enumerate(st["alu"]):
                slots[n * nm // len(st["alu"])] += g
            for n, g in enumerate(vm):
                slots[(2 * n + 1) * nm // (2 * len(vm))] += g
            cuts = [n * nm // nw for n in range(nw + 1)]
            for n, (ins, fl) in enumerate(zip(mm, slots)):
                if n in cuts:
                    e.wait_for(mm[n:cuts[cuts.index(n) + 1]])
                e(ins)
                for f_, tok in fl:
                    e(f_, tok=tok)
        rest = [it["g"] for it in ditems]
        if keep:
            return rest
        self.emit_groups(rest)

    def record(self, fn):
        real, lines = self.e, []
        self.e = lambda text, tok=None: lines.extend(x for x in text.split("\n") if x)
        fn(self.e)
        self.e = real
        return [[(x, None)] for x in lines]

    def emit_groups(self, gs):
        for g in gs:
            for ins, tok in g:
                self.e(ins, tok=tok)

    def a_items(self, aloads, first, count, rel, use):
        return [dict(r=rel(gs), d=use(gs), g=g) for gs in range(first, count) for g in self.groups(aloads(gs))]

    @staticmethod
    def mk_steps(first_blk, nblk, nst, mfmas, breads):
        return [dict(blk=first_blk + n, last=st == nst - 1, mf=mfmas(n, st), rd=breads(n, st), vm=[], alu=[])
                for n in range(nblk) for st in range(nst)]

    def issue_dma(self, dma, blocks):
        for b in blocks:
            for ins in dma(b):
                self.e(ins, tok=("dma", b))

    def ssm(self):
        e, c = self.e, self.c
        NS, SLOT = 7, 20480
        vDB, vDC = 16, 21
        vRB, vRC = 26, 32
        vA1, vCH8, vTC, vTW, vTRW, vTRR = 44, 45, 46, 47, 7, 8
        vL, vL4, vSC, vWP = 48, 58, 68, 78
        vL8, vL128, vSCL = 88, 90, 92
        ACC, SP, WK = 96, 176, 196
        X, U = 96, 116
        AR, BB, SK = 0, 64, 144

        e(f"s_and_b32 {sT0}, {sW}, 1\nv_lshl_add_u32 {v(vCH8)}, {sT0}, 6, {v(vLANE)}")
        e(f"s_mul_i32 {sT0}, {sJ}, 160\nv_lshl_add_u32 v12, {v(vCH8)}, 1, {sT0}")
        for k, p in enumerate((P_LRE, P_LIM, P_LDT)):
            self.mk_srd(R_TMP, p, 1280)
            e(f"buffer_load_ushort {v(WK+k)}, v12, {srd(R_TMP)}, 0 offen")
        e(f"s_lshl_b32 {sT1}, {sJ}, 4\ns_sub_u32 {sT1}, {sT1}, {sRB}\ns_mul_i32 {sT1}, {sT1}, 1280")
        e(f"s_add_u32 {sT1}, {sT1}, {CARRY + 15*1280}\nv_min_u32 v12, 9, {v(vLANE)}\nv_lshlrev_b32 v12, 7, v12")
        e(f"buffer_load_dword v255, v12, {srd(R_WS)}, {sT1} offen", tok="junk")
        e(f"s_cmp_lt_u32 {sW}, 2")
        self.mk_srd_sel(R_1A, P_BRE, P_BIM, 819200)
        self.mk_srd_sel(R_1B, P_BIM, P_BRE, 819200)
        self.mk_srd_sel(R_2A, P_CRE, P_CIM, 819200)
        self.mk_srd_sel(R_2B, P_CIM, P_CRE, 819200)
        e(f"s_and_b32 {sT0}, {sW}, 1\ns_lshr_b32 {sT1}, {sW}, 1")
        e(f"s_mul_i32 {sM0A}, {sT1}, 10240\ns_mul_i32 {sT2}, {sT0}, 3072\ns_add_u32 {sM0A}, {sM0A}, {sT2}")
        e(f"s_xor_b32 {sT1}, {sT1}, 1\ns_mul_i32 {sM0B}, {sT1}, 10240\ns_lshl_b32 {sT2}, {sT0}, 11")
        e(f"s_add_u32 {sM0B}, {sM0B}, {sT2}\ns_add_u32 {sM0B}, {sM0B}, 6144")
        e(f"v_lshrrev_b32 v12, 3, {v(vLANE)}\nv_and_b32 v13, 7, {v(vLANE)}\nv_lshrrev_b32 v14, 1, v12")
        e("v_xor_b32 v13, v13, v14\nv_lshlrev_b32 v13, 4, v13\nv_mul_u32_u24 v12, 0x500, v12\nv_add_u32 v12, v12, v13")
        for i in range(5):
            imm = 1024 * (i if i < 3 else i - 3)
            if i < 3:
                e(f"s_mul_i32 {sT1}, {sT0}, 3\ns_add_u32 {sT1}, {sT1}, {i}")
            else:
                e(f"s_lshl_b32 {sT1}, {sT0}, 1\ns_add_u32 {sT1}, {sT1}, {3 + i}")
            e(f"s_and_b32 {sT2}, {sT1}, 1\ns_lshl_b32 {sT2}, {sT2}, 6\nv_xor_b32 v13, {sT2}, v12")
            e(f"s_mul_i32 {sT2}, {sJ}, 10\ns_add_u32 {sT2}, {sT2}, {sT1}\ns_mul_i32 {sT2}, {sT2}, 10240")
            e(f"s_sub_u32 {sT2}, {sT2}, {imm}\nv_add_u32 {v(vDB+i)}, {sT2}, v13")
            e(f"s_lshl_b32 {sT2}, {sJ}, 3\ns_add_u32 {sT2}, {sT2}, {sT1}")
            e(f"s_lshl_b32 {sT3}, {sJ}, 1\ns_add_u32 {sT3}, {sT3}, {sT1}\ns_add_u32 {sT3}, {sT3}, 56")
            e(f"s_cmp_lt_u32 {sT1}, 8\ns_cselect_b32 {sT2}, {sT2}, {sT3}\ns_mul_i32 {sT2}, {sT2}, 10240")
            e(f"s_sub_u32 {sT2}, {sT2}, {imm}\nv_add_u32 {v(vDC+i)}, {sT2}, v13")
        self.rot_init(sWO1, 10, 128, True)
        self.rot_init(sWO2, 10, 128, False)

        def dma(b):
            ph2 = b >= 10
            ra, rb_, vb, so = (R_2A, R_2B, vDC, sWO2) if ph2 else (R_1A, R_1B, vDB, sWO1)
            base = (b % NS) * SLOT
            out = [f"s_add_u32 m0, {sM0A}, {base}"]
            out += [f"buffer_load_dwordx4 {v(vb+i)}, {srd(ra)}, {so} offen offset:{1024*i} lds" for i in range(3)]
            out += [f"s_add_u32 m0, {sM0B}, {base}"]
            out += [f"buffer_load_dwordx4 {v(vb+3+i)}, {srd(rb_)}, {so} offen offset:{1024*i} lds" for i in range(2)]
            return out + self.adv(so, 128, 1280, 0)

        pa, pl, pb = c["pre_a"], c["pre_st"], c["pre_b"]
        self.issue_dma(dma, range(pa))
        def consts():
            e(f"v_lshlrev_b32 {v(vCH8)}, 3, {v(vCH8)}\nv_add_u32 {v(vCH8)}, {SCR}, {v(vCH8)}")
            e(f"s_bitcmp0_b32 {sW}, 0\ns_cselect_b32 s88, -1, 0xffff\ns_cselect_b32 s89, -1, 0")
            skip = e.newlabel("noconst")
            e(f"s_cmp_gt_u32 {sW}, 1\ns_cbranch_scc1 {skip}")
            s0 = e.begin_region()
            e(f"s_mov_b64 exec, {sEX}")
            lre, lim, ldt = WK, WK + 1, WK + 2
            t = WK + 4
            for r in (lre, lim, ldt):
                e(f"v_lshlrev_b32 {v(r)}, 16, {v(r)}")
            log2e = "0x3fb8aa3b"
            e(f"v_mul_f32 {v(ldt)}, {log2e}, {v(ldt)}\nv_exp_f32 {v(ldt)}, {v(ldt)}")
            self.round_bf16(ldt)
            e(f"v_mul_f32 {v(t)}, {v(ldt)}, {v(lre)}\nv_mul_f32 {v(t+1)}, {v(ldt)}, {v(lim)}")
            e(f"v_mul_f32 {v(t)}, {log2e}, {v(t)}\nv_exp_f32 {v(t)}, {v(t)}")
            e(f"v_mul_f32 {v(t+1)}, 0.15915494, {v(t+1)}\nv_rndne_f32 {v(t+2)}, {v(t+1)}")
            e(f"v_sub_f32 {v(t+1)}, {v(t+1)}, {v(t+2)}")
            e(f"v_cos_f32 {v(t+2)}, {v(t+1)}\nv_sin_f32 {v(t+3)}, {v(t+1)}")
            L1 = WK + 8
            e(f"v_mul_f32 {v(L1)}, {v(t)}, {v(t+2)}\nv_mul_f32 {v(L1+1)}, {v(t)}, {v(t+3)}")
            e(f"v_mul_f32 {v(t)}, {v(lre)}, {v(lre)}\nv_fma_f32 {v(t)}, {v(lim)}, {v(lim)}, {v(t)}")
            e(f"v_rcp_f32 {v(t)}, {v(t)}\nv_add_f32 {v(t+1)}, -1.0, {v(L1)}\nv_add_f32 {v(t)}, {v(t)}, {v(t)}")
            e(f"v_mul_f32 {v(t+2)}, {v(t+1)}, {v(lre)}\nv_fma_f32 {v(t+2)}, {v(L1+1)}, {v(lim)}, {v(t+2)}")
            e(f"v_mul_f32 {v(t+3)}, {v(L1+1)}, {v(lre)}\nv_fma_f32 {v(t+3)}, -{v(t+1)}, {v(lim)}, {v(t+3)}")
            e(f"v_mul_f32 {v(vSCL)}, {v(t+2)}, {v(t)}\nv_mul_f32 {v(vSCL+1)}, {v(t+3)}, {v(t)}")
            L2, L4 = WK + 10, WK + 12
            self.cmul(L2, L1, L1)
            self.cmul(L4, L2, L2)
            self.cmul(vL8, L4, L4)
            e(f"ds_write_b64 {v(vCH8)}, {v(L1,2)} offset:10240")
            e(f"ds_write_b64 {v(vCH8)}, {v(L4,2)} offset:10880")
            e(f"ds_write_b64 {v(vCH8)}, {v(vSCL,2)} offset:11520")
            e(f"ds_write_b64 {v(vCH8)}, {v(vSCL,2)}")
            prev = vSCL
            for s in range(1, 16):
                d = WK + 14 + 2 * (s & 1)
                self.cmul(d, vL8, prev)
                e(f"ds_write_b64 {v(vCH8)}, {v(d,2)} offset:{640*s}")
                prev = d
            self.cmul(L1, vL8, vL8)
            self.cmul(L2, L1, L1)
            self.cmul(L1, L2, L2)
            self.cmul(vL128, L1, L1)
            e(f"ds_write_b64 {v(vCH8)}, {v(vL128,2)} offset:12160")
            e("s_mov_b64 exec, -1")
            e.wait_lg()
            e.end_region(s0, skip)

        SXN, SXR, SXP, SPF, SPR = SK, SK + 16, SK + 32, SK + 48, SK + 56
        vDS, vXM, vXP = 250, 94, 95
        sK = ["s90", "s91", "s96", "s97"]
        one = lambda *ins: [(i_, None) for i_ in ins]
        skip_ld = [one(f"buffer_load_dwordx4 {a(SXN + 8*f + 4*m,4)}, {v(vA1 if m else vL16B)}, {srd(R_WS)}, {sK[0]} "
                       f"offen offset:{1024*f} sc1") for f in range(2) for m in range(2)]
        skip_ld += [one("s_mov_b32 exec_hi, 0", f"buffer_load_dwordx4 {a(SPF + 4*m,4)}, {v(vA1 if m else vL16B)}, "
                        f"{srd(R_WS)}, {sK[1]} offen sc1", "s_mov_b64 exec, -1") for m in range(2)]
        skip_ld += [one(f"buffer_load_dwordx4 {a(SXR + 8*f + 4*m,4)}, {v(vXM)}, {srd(R_X)}, {sK[2]} "
                        f"offen offset:{2560*m + 64*f}") for m in range(2) for f in range(2)]
        skip_ld += [one("s_mov_b32 exec_lo, 0", f"buffer_load_dwordx4 {a(SPR + 4*m,4)}, {v(vXP)}, {srd(R_X)}, {sK[3]} "
                        f"offen offset:{2560*m}", "s_mov_b64 exec, -1") for m in range(2)]

        e(f"v_and_b32 v12, 15, {v(vLANE)}\nv_lshrrev_b32 v13, 4, {v(vLANE)}\nv_lshrrev_b32 v14, 1, v12")
        e("v_xor_b32 v15, v13, v14\nv_lshlrev_b32 v15, 4, v15\nv_lshl_add_u32 v15, v12, 7, v15")
        for k in range(3):
            e(f"v_add_u32 {v(vRB+2*k)}, {61440*k}, v15\nv_xor_b32 {v(vRB+2*k+1)}, 64, {v(vRB+2*k)}")
        e("v_and_b32 v15, 1, v13\nv_xor_b32 v15, v15, v14\nv_lshlrev_b32 v15, 4, v15\nv_lshl_add_u32 v15, v12, 7, v15")
        e("v_lshrrev_b32 v14, 1, v13\nv_mul_u32_u24 v14, 0x2800, v14\nv_add_u32 v15, v15, v14")
        for k in range(3):
            e(f"v_add_u32 {v(vRC+4*k)}, {61440*k}, v15")
            for st in range(1, 4):
                e(f"v_xor_b32 {v(vRC+4*k+st)}, {32*st}, {v(vRC+4*k)}")
        e(f"v_lshlrev_b32 {v(vTC)}, 3, v12\nv_add_u32 {v(vTC)}, {SCR}, {v(vTC)}")
        e(f"v_lshl_add_u32 v14, {sW}, 2, v13\nv_mul_u32_u24 v14, 0x280, v14\nv_add_u32 {v(vTW)}, v14, {v(vTC)}")
        e(f"v_add_u32 {v(vA1)}, 20480, {v(vL16B)}")
        e(f"s_mul_i32 {sABEG}, {sRB}, 163840\ns_mul_i32 {sT0}, {sW}, 40960\ns_add_u32 {sABEG}, {sABEG}, {sT0}")
        e(f"s_add_u32 {sABEG}, {sABEG}, {XNS}\ns_add_u32 {sAEND}, {sABEG}, 20480")
        self.rot_init(sA, 10, 2048, True)
        e(f"s_add_u32 {sA}, {sA}, {sABEG}")

        def late_setup(e):

            def rowoff(d, i):
                e(f"v_lshrrev_b32 {v(d)}, 2, {v(i)}\nv_lshlrev_b32 {v(d)}, 3, {v(d)}\nv_and_b32 v15, 1, {v(i)}")
                e(f"v_lshl_add_u32 {v(d)}, v15, 2, {v(d)}\nv_bfe_u32 v15, {v(i)}, 1, 1\nv_add_u32 {v(d)}, {v(d)}, v15")
                e(f"v_mul_u32_u24 {v(d)}, 0x500, {v(d)}")
            e(f"s_lshl_b32 {sK[0]}, {sJ}, 11\ns_add_u32 {sK[0]}, {sK[0]}, {sABEG}")
            e(f"s_lshl_b32 {sK[1]}, {sJ}, 9\ns_add_u32 {sK[1]}, {sK[1]}, {sABEG}\ns_add_u32 {sK[1]}, {sK[1]}, 16384")
            e(f"v_lshrrev_b32 v12, 2, {v(vLANE)}")
            rowoff(vXM, 12)
            e(f"v_and_b32 v15, 3, {v(vLANE)}\nv_lshl_add_u32 {v(vXM)}, v15, 4, {v(vXM)}")
            e(f"v_bfe_u32 v12, {v(vLANE)}, 1, 4")
            rowoff(vXP, 12)
            e(f"v_and_b32 v15, 1, {v(vLANE)}\nv_lshl_add_u32 {v(vXP)}, v15, 4, {v(vXP)}")
            e(f"s_lshl_b32 {sT0}, {sRB}, 2\ns_add_u32 {sT0}, {sT0}, {sW}\ns_mul_i32 {sT0}, {sT0}, 40960")
            e(f"s_lshl_b32 {sK[2]}, {sJ}, 7\ns_add_u32 {sK[2]}, {sK[2]}, {sT0}")
            e(f"s_lshl_b32 {sK[3]}, {sJ}, 5\ns_add_u32 {sK[3]}, {sK[3]}, {sT0}\ns_add_u32 {sK[3]}, {sK[3]}, 1024")
            self.mk_srd(R_TMP, P_DSK, 1280)
            e(f"v_and_b32 v12, 15, {v(vLANE)}\nv_lshlrev_b32 v12, 1, v12")
            e(f"s_lshl_b32 {sT1}, {sJ}, 7\ns_lshl_b32 {sT2}, {sJ}, 5\ns_add_u32 {sT2}, {sT2}, 1024")
            for T in range(5):
                so, imm = (sT1, 32 * T) if T < 4 else (sT2, 0)
                e(f"buffer_load_ushort {v(vDS+T)}, v12, {srd(R_TMP)}, {so} offen offset:{imm}")
            e(f"v_and_b32 v12, 15, {v(vLANE)}\nv_lshrrev_b32 v13, 4, {v(vLANE)}")
            e("v_lshrrev_b32 v14, 3, v12\nv_lshlrev_b32 v14, 2, v14\nv_xor_b32 v14, v14, v12\nv_lshlrev_b32 v14, 5, v14")
            e("v_lshrrev_b32 v15, 2, v12\nv_xor_b32 v15, v15, v13\nv_lshl_add_u32 v14, v15, 3, v14")
            e(f"s_lshl_b32 {sT0}, {sW}, 11\ns_add_u32 {sT0}, {sT0}, {SCR + 12288}\nv_add_u32 {v(vTRW)}, {sT0}, v14")
            for j2 in range(2):
                e(f"v_and_b32 v14, 1, v13\nv_xor_b32 v14, {j2}, v14\nv_lshlrev_b32 v14, 2, v14")
                e(f"v_lshl_add_u32 v14, v13, 3, v14\nv_bfe_u32 v15, {v(vLANE)}, 2, 2\nv_add_u32 v14, v14, v15")
                e(f"v_lshlrev_b32 v14, 5, v14\nv_lshlrev_b32 v15, 1, v13\nv_add_u32 v15, {j2}, v15")
                e(f"v_xor_b32 v15, v15, {v(vLANE)}\nv_and_b32 v15, 3, v15\nv_lshl_add_u32 v14, v15, 3, v14")
                e(f"v_add_u32 {v(vTRR+j2)}, {sT0}, v14")

        self.stamp(1)
        toks = lambda r: [(i, ("dma", b)) for b in r for i in dma(b)]
        self.ln_compute(X, U, 6 * SLOT, toks(range(pa, pa + pl)), consts)
        self.stamp(2)
        self.issue_dma(dma, range(pa + pl, pa + pl + pb))

        visible = {0}
        for g in range(5):
            e(f"ds_read_b64 {v(vL+2*g,2)}, {v(vTC)} offset:{10240 + 128*g}")
            e(f"ds_read_b64 {v(vL4+2*g,2)}, {v(vTC)} offset:{10880 + 128*g}")
            e(f"ds_read_b64 {v(vSC+2*g,2)}, {v(vTC)} offset:{11520 + 128*g}")
            e(f"ds_read_b64 {v(vWP+2*g,2)}, {v(vTW)} offset:{128*g}")
        e(f"ds_read_b64 {v(vL128,2)}, {v(vCH8)} offset:12160")
        self.stamp(3)
        self.poll(2, TAG_XN, "xn", 12, 13)
        self.stamp(4)

        acc = lambda g, cp, m: ACC + ((g * 2 + cp) * 2 + m) * 4

        def aload1(gs):
            st = gs & 1
            r = AR + (gs % 8) * 8
            out = [f"buffer_load_dwordx4 {a(r,4)}, {v(vL16B)}, {srd(R_WS)}, {sA} offen offset:{1024*st} sc1",
                   f"buffer_load_dwordx4 {a(r+4,4)}, {v(vA1)}, {srd(R_WS)}, {sA} offen offset:{1024*st} sc1"]
            return out + (self.adv(sA, 2048, sAEND, sABEG) if st else [])

        def bread1(n, st):
            slot = n % NS
            base, off = vRB + 2 * (slot // 3) + st, (slot % 3) * SLOT
            return [f"ds_read_b128 {a(BB + 40*st + 4*(2*g+cp),4)}, {v(base)} offset:{off + cp*10240 + g*2048}"
                    for g in range(5) for cp in range(2)]

        def mfma1(n, st):
            gs = 2 * n + st
            return [f"v_mfma_f32_16x16x32_bf16 {v(acc(g,cp,m),4)}, {a(AR + (gs%8)*8 + 4*m,4)}, "
                    f"{a(BB + 40*st + 4*(2*g+cp),4)}, {v(acc(g,cp,m),4) if gs else 0}"
                    for g in range(5) for cp in range(2) for m in range(2)]

        steps = self.mk_steps(0, 10, 2, mfma1, bread1)
        items = self.a_items(aload1, c["a_pre"], 20, lambda g: g - 7, lambda g: g)
        late = self.record(late_setup)
        for n, g in enumerate(late):
            steps[1 + n * 8 // len(late)]["alu"].append(g)
        for n, g in enumerate(skip_ld):
            steps[c["skip_at"] + n // 2]["vm"].append(g)
        for gs in range(c["a_pre"]):
            e("\n".join(aload1(gs)))
        lazy = {10 + n: c["lazy0"] + c["lazy_gap"] * n for n in range(7)}
        upto = 10 + NS - c["defer"]
        rest = self.pipeline(steps, dma, NS, min(upto, 9 + NS), range(pa + pl + pb, NS), visible, items, lazy, keep=True)
        if not c["defer"]:
            rest += self.groups(dma(9 + NS), ("dma", 9 + NS))
        self.stamp(5)

        pair = lambda g, cp, jj: acc(g, cp, jj >> 1) + 2 * (jj & 1)
        LR = "op_sel:[0,0,0] op_sel_hi:[0,1,1]"
        LI = "op_sel:[1,0,0] op_sel_hi:[1,1,1]"
        NEG = "neg_lo:[1,0,0] neg_hi:[1,0,0]"
        for g in range(5):
            Lg = v(vL + 2 * g, 2)
            sre, sim = pair(g, 0, 0), pair(g, 1, 0)
            for jj in range(1, 4):
                dre, dim = (WK, WK + 2) if jj == 2 else (SP + 4 * g, SP + 4 * g + 2)
                e(f"v_pk_fma_f32 {v(dre,2)}, {Lg}, {v(sre,2)}, {v(pair(g,0,jj),2)} {LR}")
                e(f"v_pk_fma_f32 {v(dim,2)}, {Lg}, {v(sim,2)}, {v(pair(g,1,jj),2)} {LR}")
                e(f"v_pk_fma_f32 {v(dre,2)}, {Lg}, {v(sim,2)}, {v(dre,2)} {LI} {NEG}")
                e(f"v_pk_fma_f32 {v(dim,2)}, {Lg}, {v(sre,2)}, {v(dim,2)} {LI}")
                sre, sim = dre, dim
            l4r, l4i, d = vL4 + 2 * g, vL4 + 2 * g + 1, WK + 4 + 2 * (g & 1)
            e(f"v_fma_f32 {v(d)}, {v(l4r)}, {v(sre)}, {v(sre+1)}")
            e(f"v_fma_f32 {v(d+1)}, {v(l4r)}, {v(sim)}, {v(sim+1)}")
            e(f"v_fma_f32 {v(d)}, -{v(l4i)}, {v(sim)}, {v(d)}")
            e(f"v_fma_f32 {v(d+1)}, {v(l4i)}, {v(sre)}, {v(d+1)}")
            e(f"ds_write_b64 {v(vTW)}, {v(d,2)} offset:{128*g}")
        e.wait_lg()
        e("s_barrier")
        self.stamp(6)

        skip = e.newlabel("nocomb")
        e(f"s_cmp_gt_u32 {sW}, 1\ns_cbranch_scc1 {skip}")
        s0 = e.begin_region()
        e(f"s_mov_b64 exec, {sEX}")
        SL = WK
        for s in range(16):
            e(f"ds_read_b64 {v(SL+2*s,2)}, {v(vCH8)} offset:{640*s}")
        for s in range(1, 16):
            e(f"v_pk_fma_f32 {v(SL+2*s,2)}, {v(vL8,2)}, {v(SL+2*s-2,2)}, {v(SL+2*s,2)} {LR}")
            e(f"v_pk_fma_f32 {v(SL+2*s,2)}, {v(vL8,2)}, {v(SL+2*s-2,2)}, {v(SL+2*s,2)} "
              "op_sel:[1,1,0] op_sel_hi:[1,0,1] neg_lo:[1,0,0]")
        MSG = SL + 30
        e(f"v_subrev_u32 v12, {SCR}, {v(vCH8)}\nv_lshlrev_b32 v12, 1, v12")
        e(f"s_add_u32 {sT0}, {sEC}, {TAG_CARRY}\nv_mov_b32 {v(MSG+2)}, {sT0}\nv_mov_b32 {v(MSG+3)}, {sT0}")
        e(f"s_lshl_b32 {sT1}, {sJ}, 4\ns_sub_u32 {sT1}, {sT1}, {sRB}\ns_mul_i32 {sT1}, {sT1}, 1280")
        e(f"s_add_u32 {sT1}, {sT1}, {CARRY + 15*1280}")
        e(f"buffer_store_dwordx4 {v(MSG,4)}, v12, {srd(R_WS)}, {sT1} offen sc1")
        e(f"v_mov_b32 v14, 0\nv_mov_b32 v15, 0\nds_write_b64 {v(vCH8)}, v[14:15]")
        for s in range(1, 16):
            d = WK + 36 + 2 * (s & 1)
            self.cmul(d, vSCL, SL + 2 * s - 2)
            e(f"ds_write_b64 {v(vCH8)}, {v(d,2)} offset:{640*s}")
        e("s_mov_b64 exec, -1")
        e.end_region(s0, skip)
        self.emit_groups(rest)
        self.stamp(7)

        def scale_pairs(g, re, im):
            Sg = v(vSC + 2 * g, 2)
            e(f"v_pk_mul_f32 v[14:15], {Sg}, {v(im,2)} op_sel:[1,0] op_sel_hi:[1,1] neg_lo:[1,0] neg_hi:[1,0]")
            e(f"v_pk_mul_f32 {v(im,2)}, {Sg}, {v(im,2)} op_sel:[0,0] op_sel_hi:[0,1]")
            e(f"v_pk_fma_f32 {v(im,2)}, {Sg}, {v(re,2)}, {v(im,2)} {LI}")
            e(f"v_pk_fma_f32 {v(re,2)}, {Sg}, {v(re,2)}, v[14:15] {LR}")
        for g in range(5):
            scale_pairs(g, SP + 4 * g, SP + 4 * g + 2)
            for jj in range(4):
                scale_pairs(g, pair(g, 0, jj), pair(g, 1, jj))
        self.stamp(8)

        skip = e.newlabel("nocarry")
        e(f"s_cmp_lt_u32 {sW}, 2\ns_cbranch_scc1 {skip}")
        s0 = e.begin_region()
        e(f"s_lshl_b32 {sT0}, {sJ}, 4\ns_sub_u32 {sT0}, {sT0}, {sRB}\ns_mul_i32 {sT0}, {sT0}, 1280")
        e(f"s_add_u32 {sT0}, {sT0}, {CARRY + 16*1280}")
        e(f"s_add_u32 s{R_TMP}, s{P_WS}, {sT0}\ns_addc_u32 s{R_TMP+1}, s{P_WS+1}, 0")
        e(f"s_mul_i32 s{R_TMP+2}, {sRB}, 1280\ns_mov_b32 s{R_TMP+3}, 0x20000")
        e(f"s_add_u32 {sT1}, {sEC}, {TAG_CARRY}\ns_mul_i32 {sT1}, {sT1}, {sRB}")
        e(f"s_mov_b64 exec, {sEX}")
        MG = 196
        vMA = [10, 11, 12, 13, 14]
        e(f"v_subrev_u32 v10, {SCR}, {v(vCH8)}\nv_lshlrev_b32 v10, 1, v10")
        for k in range(1, 5):
            e(f"v_add_u32 v{10+k}, {3840*k}, v10")
        lp, out = e.newlabel("cpoll"), e.newlabel("cpolled")
        e.label(lp)
        mreg = lambda dl: MG + 4 * dl if dl < 13 else (vDB, vRB)[dl - 13]
        for dl in range(15):
            e(f"buffer_load_dwordx3 {v(mreg(dl),3)}, v{vMA[dl//3]}, {srd(R_TMP)}, 0 offen offset:{1280*(dl%3)} sc1")
        e(f"s_cmp_eq_u32 {sSPIN}, 0")
        e.wait_all(lg=False)
        e(f"s_cbranch_scc1 {out}\ns_sub_u32 {sSPIN}, {sSPIN}, 1")
        e(f"v_add3_u32 v15, {v(mreg(0)+2)}, {v(mreg(1)+2)}, {v(mreg(2)+2)}")
        for k in range(3, 15, 2):
            e(f"v_add3_u32 v15, v15, {v(mreg(k)+2)}, {v(mreg(k+1)+2)}")
        e(f"v_cmp_eq_u32 vcc, {sT1}, v15")
        e(f"s_cmp_eq_u64 vcc, exec\ns_cbranch_scc0 {lp}")
        e.label(out)
        for dl in range(13, -1, -1):
            x, y = mreg(dl), mreg(dl + 1)
            e(f"v_pk_fma_f32 {v(x,2)}, {v(vL128,2)}, {v(y,2)}, {v(x,2)} {LR}")
            e(f"v_pk_fma_f32 {v(x,2)}, {v(vL128,2)}, {v(y,2)}, {v(x,2)} op_sel:[1,1,0] op_sel_hi:[1,0,1] neg_lo:[1,0,0]")
        e(f"ds_write_b64 {v(vCH8)}, {v(mreg(0),2)} offset:10240")
        e("s_mov_b64 exec, -1")
        e.end_region(s0, skip)
        e.wait_all(vm=False)
        e("s_barrier")
        self.stamp(9)

        PG = WK
        for g in range(5):
            e(f"ds_read_b64 {v(PG+4*g,2)}, {v(vTW)} offset:{128*g}")
            e(f"ds_read_b64 {v(PG+4*g+2,2)}, {v(vTC)} offset:{10240 + 128*g}")
        e(f"s_mul_i32 {sABEG}, {sRB}, 327680\ns_mul_i32 {sT0}, {sW}, 81920\ns_add_u32 {sABEG}, {sABEG}, {sT0}")
        e(f"s_add_u32 {sABEG}, {sABEG}, {HS}\ns_add_u32 {sAEND}, {sABEG}, 40960")
        e(f"s_mul_i32 {sT2}, {sJ}, 5120\ns_add_u32 {sT2}, {sT2}, {sABEG}")
        e(f"v_add_u32 {v(vA1)}, 40960, {v(vL16B)}")
        HF = WK + 20
        CV = 12

        def pass2():
            for g in range(5):
                p, gg, w_ = PG + 4 * g, PG + 4 * g + 2, vWP + 2 * g
                hre, him = SP + 4 * g, SP + 4 * g + 2
                l4r, l4i = vL4 + 2 * g, vL4 + 2 * g + 1
                e(f"v_fma_f32 {v(p)}, {v(w_)}, {v(gg)}, {v(p)}\nv_fma_f32 {v(p+1)}, {v(w_)}, {v(gg+1)}, {v(p+1)}")
                e(f"v_fma_f32 {v(p)}, -{v(w_+1)}, {v(gg+1)}, {v(p)}\nv_fma_f32 {v(p+1)}, {v(w_+1)}, {v(gg)}, {v(p+1)}")
                e(f"v_fma_f32 {v(hre+1)}, {v(l4r)}, {v(p)}, {v(hre)}\nv_fma_f32 {v(him+1)}, {v(l4r)}, {v(p+1)}, {v(him)}")
                e(f"v_fma_f32 {v(hre+1)}, -{v(l4i)}, {v(p+1)}, {v(hre+1)}\nv_fma_f32 {v(him+1)}, {v(l4i)}, {v(p)}, {v(him+1)}")
                e(f"v_mov_b32 {v(hre)}, {v(p)}\nv_mov_b32 {v(him)}, {v(p+1)}")
                Lg = v(vL + 2 * g, 2)
                for jj in range(4):
                    ur, ui = pair(g, 0, jj), pair(g, 1, jj)
                    e(f"v_pk_fma_f32 {v(ur,2)}, {Lg}, {v(hre,2)}, {v(ur,2)} {LR}")
                    e(f"v_pk_fma_f32 {v(ui,2)}, {Lg}, {v(him,2)}, {v(ui,2)} {LR}")
                    e(f"v_pk_fma_f32 {v(ur,2)}, {Lg}, {v(him,2)}, {v(ur,2)} {LI} {NEG}")
                    e(f"v_pk_fma_f32 {v(ui,2)}, {Lg}, {v(hre,2)}, {v(ui,2)} {LI}")
                    hre, him = ur, ui
                for m in range(2):
                    for cp in range(2):
                        r, sg, d = acc(g, cp, m), "-" if cp else "", CV + 2 * cp
                        e(f"v_cvt_pk_bf16_f32 {v(d)}, {sg}{v(r)}, {sg}{v(r+1)}")
                        e(f"v_cvt_pk_bf16_f32 {v(d+1)}, {sg}{v(r+2)}, {sg}{v(r+3)}")
                        e(f"ds_write_b64 {v(vTRW)}, {v(d,2)} offset:{1024*m + 512*cp}")
                hf = HF + 8 * (g & 1)
                for m in range(2):
                    for j2 in range(2):
                        e(f"ds_read_b64_tr_b16 {v(hf + 4*m + 2*j2,2)}, {v(vTRR+j2)} offset:{1024*m}")
                if g:
                    store_h(g - 1)
            store_h(4)

        def store_h(g):
            hf = HF + 8 * (g & 1)
            if g == 4:
                e(f"s_add_u32 {sT2}, {sT2}, 4096")
            for m in range(2):
                e(f"buffer_store_dwordx4 {v(hf+4*m,4)}, {v(vA1 if m else vL16B)}, {srd(R_WS)}, {sT2} offen offset:{1024*(g&3)} sc1", tok="h")
        e.wait_lg()
        pass2()
        self.stamp(10)
        e(f"v_and_b32 v12, 15, {v(vLANE)}\nv_lshrrev_b32 v13, 4, {v(vLANE)}")
        e("v_lshl_add_u32 v14, v12, 2, v13\nv_lshlrev_b32 v14, 2, v14")
        e("v_and_b32 v13, 1, v13\nv_lshl_add_u32 v13, v12, 1, v13\nv_lshlrev_b32 v13, 2, v13\nv_add_u32 v13, 0x80, v13")
        for k in range(16):
            e(f"ds_bpermute_b32 {a(SXP+k)}, v14, {a(SXR+k)}")
        e("s_mov_b32 exec_lo, 0")
        for k in range(8):
            e(f"ds_bpermute_b32 {a(SPF+k)}, v13, {a(SPR+k)}")
        e("s_mov_b64 exec, -1")
        e.wait_tok("h", ("dma", 10))
        e.wait_lg()
        e("s_barrier")
        self.send_flags(3, TAG_HID, "0xff", sJ)
        visible.add(10)

        acc2 = lambda T, m: ACC + (T * 2 + m) * 4
        e(f"v_and_b32 v12, 15, {v(vLANE)}\nv_lshrrev_b32 v13, 1, v12\nv_bfe_u32 v14, {v(vLANE)}, 4, 1")
        e("v_lshlrev_b32 v14, 2, v14\nv_sub_u32 v13, v13, v14\nv_and_b32 v12, 1, v12\nv_lshlrev_b32 v12, 4, v12")
        for k in range(4):
            e(f"v_cmp_eq_u32 {sMSK[k]}, {k}, v13")
        e(f"v_cmp_gt_u32 vcc, 32, {v(vLANE)}\nv_mov_b32 v15, 0x3f80")
        SEL = WK
        pick = [(v(vDS+T), "0") if T % 2 == 0 else ("0", v(vDS+T)) for T in range(4)]
        pick += [(v(vDS+4), "v15"), ("v15", "0"), ("0", "v15")]
        for n, (lo, hi) in enumerate(pick):
            e(f"v_cndmask_b32 v14, {hi}, {lo}, vcc\nv_lshlrev_b32 v14, v12, v14")
            for k in range(4):
                e(f"v_cndmask_b32 {v(SEL+4*n+k)}, 0, v14, {sMSK[k]}")
        for T in range(5):
            for m in range(2):
                src = SXN + 8 * (T >> 1) + 4 * m if T < 4 else SPF + 4 * m
                e(f"v_mfma_f32_16x16x32_bf16 {v(acc2(T,m),4)}, {a(src,4)}, {v(SEL+4*T,4)}, 0")
        for T in range(4):
            for m in range(2):
                e(f"v_mfma_f32_16x16x32_bf16 {v(acc2(T,m),4)}, {a(SXP + 8*(T>>1) + 4*m,4)}, {v(SEL+20+4*(T&1),4)}, {v(acc2(T,m),4)}")
        self.rot_init(sA, 10, 4096, False)
        e(f"s_add_u32 {sA}, {sA}, {sABEG}")
        self.poll(3, TAG_HID, "hid", 12, 13)
        self.stamp(11)

        def aload2(gs):
            st = gs & 3
            r = AR + (gs % 8) * 8
            out = [f"buffer_load_dwordx4 {a(r,4)}, {v(vL16B)}, {srd(R_WS)}, {sA} offen offset:{1024*st} sc1",
                   f"buffer_load_dwordx4 {a(r+4,4)}, {v(vA1)}, {srd(R_WS)}, {sA} offen offset:{1024*st} sc1"]
            return out + (self.adv(sA, 4096, sAEND, sABEG) if st == 3 else [])

        def bread2(n, st):
            slot = (10 + n) % NS
            base, off = vRC + 4 * (slot // 3) + st, (slot % 3) * SLOT
            return [f"ds_read_b128 {a(BB + 20*(st&1) + 4*T,4)}, {v(base)} offset:{off + T*2048}" for T in range(5)]

        def mfma2(n, st):
            gs = 4 * n + st
            return [f"v_mfma_f32_16x16x32_bf16 {v(acc2(T,m),4)}, {a(AR + (gs%8)*8 + 4*m,4)}, "
                    f"{a(BB + 20*(st&1) + 4*T,4)}, {v(acc2(T,m),4)}" for T in range(5) for m in range(2)]

        steps = self.mk_steps(10, 10, 4, mfma2, bread2)
        items = self.a_items(aload2, c["a_pre2"], 40, lambda g: g - 7, lambda g: g)
        for gs in range(c["a_pre2"]):
            e("\n".join(aload2(gs)))
        PL, sGOT, sPA, sPB = 176, "s93", "s46", "s1"
        part_ld = [f"buffer_load_dwordx4 {v(PL+4*k,4)}, {v(vL16B)}, {srd(R_WS)}, {sPB if k >= 4 else sPA} "
                   f"offen offset:{1024*(k&3)} sc1" for k in range(8)]

        def out_setup():
            self.mk_srd(R_OUT, P_OUT, 2048 * 2560)
            e(f"v_lshrrev_b32 v8, 4, {v(vLANE)}\nv_mul_u32_u24 v8, 0x5000, v8\nv_and_b32 v9, 15, {v(vLANE)}")
            e(f"v_lshl_add_u32 v8, v9, 2, v8\ns_mul_i32 {sT0}, {sJ}, 192\ns_sub_u32 {sT0}, 2048, {sT0}")
            e(f"v_add_u32 v9, {sT0}, v8")
            e(f"s_lshl_b32 {sPA}, {sOWN}, 5\ns_lshl_b32 {sT0}, {sW}, 13\ns_add_u32 {sPA}, {sPA}, {sT0}")
            e(f"s_add_u32 {sPA}, {sPA}, {PART}\ns_add_u32 {sPB}, {sPA}, 4096")
            e(f"s_lshl_b32 {sT0}, {sRB}, 2\ns_add_u32 {sT0}, {sT0}, {sW}\ns_mul_i32 {sT0}, {sT0}, 81920")
            e(f"s_lshl_b32 {sT1}, {sJ}, 8\ns_add_u32 {sT0}, {sT0}, {sT1}")
            for m in range(2):
                for r in range(4):
                    e(f"s_add_u32 {rows[4*m+r]}, {sT0}, {(4*(r&1) + 2*m + (r>>1)) * 2560}")
            e("\n".join(self.word_addr("part", 11)) + f"\ns_add_u32 {sGOT}, {sOWN}, {INBOX + 512}")

        def early():
            skip = e.newlabel("notyet")
            e(f"s_add_u32 {sT1}, {sE}, {TAG_PART}\nv_cmp_eq_u32 vcc, {sT1}, v10")
            e(f"s_cmp_eq_u64 vcc, exec\ns_cselect_b32 {sGOT}, 1, 0\ns_cbranch_scc0 {skip}")
            s0 = e.begin_region()
            e("\n".join(part_ld), tok="junk")
            e.end_region(s0, skip)
        rows = ["s88", "s89", "s90", "s91", "s94", "s95", "s96", "s97"]
        steps[26]["pre"] = out_setup
        steps[c["peek"] - 4]["vm"].append([(f"buffer_load_dword v10, v11, {srd(R_WS)}, {sGOT} offen sc1", None)])
        steps[c["peek"]]["pre"] = early
        self.pipeline(steps, dma, NS, 20, range(upto, 10 + NS), visible, items)
        self.stamp(12)

        late = e.newlabel("late")
        e(f"s_cmp_eq_u32 {sGOT}, 1\ns_cbranch_scc1 {late}")
        s0 = e.begin_region()
        self.poll(4, TAG_PART, "part", 12, 13, touch=part_ld)
        e("\n".join(part_ld), tok="junk")
        e.end_region(s0, late)
        self.stamp(13)
        e.wait_all(lg=False)
        for k in range(8):
            T = min(k, 4)
            for i in range(4):
                d = acc2(T, i >> 1) + 2 * (i & 1)
                t0 = 12 + 2 * (i & 1)
                e(f"v_lshlrev_b32 {v(t0)}, 16, {v(PL+4*k+i)}\nv_and_b32 {v(t0+1)}, 0xffff0000, {v(PL+4*k+i)}")
                e(f"v_pk_add_f32 {v(d,2)}, {v(d,2)}, {v(t0,2)}")
            if k < 4 or k == 7:
                for m in range(2):
                    for r in range(4):
                        e(f"buffer_store_dword {v(acc2(T,m)+r)}, {'v8' if T < 4 else 'v9'}, {srd(R_OUT)}, "
                          f"{rows[4*m+r]} offen offset:{64*T if T < 4 else 0}")
        self.epoch_bump()
        self.stamp(14)
        self.finish()

    def epoch_bump(self):
        e = self.e
        skip = e.newlabel("nobump")
        e("s_barrier")
        e(f"s_cmp_lg_u32 {sW}, 0\ns_cbranch_scc1 {skip}")
        s0 = e.begin_region()
        e(f"s_add_u32 {sT0}, {sE}, 0x100\nv_mov_b32 v12, {sT0}\nv_mov_b32 v13, 0\ns_mov_b64 exec, 1")
        e(f"buffer_store_dword v12, v13, {srd(R_WS)}, {sOWN} offen sc1")
        e("s_mov_b64 exec, -1")
        e.end_region(s0, skip)

    def finish(self):
        e = self.e
        if self.c["diag"]:
            e.wait_all()
            self.stamp(15)
            self.flush_stamp()
            e(f"s_lshr_b32 {sT0}, {sOWN}, 10\ns_lshl_b32 {sT0}, {sT0}, 2\ns_add_u32 {sT0}, {sT0}, {sW}")
            e(f"s_lshl_b32 {sT0}, {sT0}, 8\ns_add_u32 {sT0}, {sT0}, {STAMP}")
            e(f"v_lshlrev_b32 v12, 2, {v(vLANE)}")
            e(f"buffer_store_dword {v(vSTAMP)}, v12, {srd(R_WS)}, {sT0} offen")
        e("s_endpgm")

    def check_flags(self, line, tag, tmp, tmp2):
        e = self.e
        issue = self.word_addr("hid", tmp2) + [
                 f"s_add_u32 s46, {sOWN}, {INBOX + 128*line}",
                 f"buffer_load_dword {v(tmp)}, {v(tmp2)}, {srd(R_WS)}, s46 offen sc1"]

        def test():
            ok = e.newlabel("ready")
            e(f"s_add_u32 {sT1}, {sE}, {tag}\nv_cmp_eq_u32 vcc, {sT1}, {v(tmp)}")
            e(f"s_cmp_eq_u64 vcc, exec\ns_cbranch_scc1 {ok}")
            s0 = e.begin_region()
            self.poll(line, tag, "hid", tmp, tmp2)
            e.end_region(s0, ok)
        return issue, test

    def mlp(self):
        e, c = self.e, self.c
        NS, SLOT, NSTREAM = 8, 20480, 27
        vD1, vD2 = 16, 20
        vR1, vR2 = 26, 30
        vA1, vA2 = 34, 36
        ACC1, ACC, WK = 96, 128, 192
        X, U = 96, 116
        XA, BB = 0, 160
        sM0C, sH, sHS, sR2 = "s15", "s89", "s90", "s91"
        LINES, TAGS = (3, 5, 6), (TAG_HID, TAG_HID2, TAG_HID3)

        self.mk_srd(R_1A, P_W1, 640 * 3072)
        self.mk_srd(R_2A, P_W2, 1536 * 1280)
        e(f"s_bfe_u32 s93, {sOWN}, 0x7000a\ns_lshl_b32 s93, s93, 2\ns_add_u32 s93, s93, {sW}")
        e(f"s_mul_i32 s93, s93, 3840\nv_min_u32 v247, 29, {v(vLANE)}\nv_lshlrev_b32 v247, 7, v247")
        e(f"s_lshl_b32 {sM0B}, {sW}, 12\ns_lshl_b32 {sM0C}, {sW}, 10\ns_add_u32 {sM0C}, {sM0C}, 16384")
        e(f"v_lshrrev_b32 v12, 3, {v(vLANE)}\nv_and_b32 v13, 7, {v(vLANE)}\nv_and_b32 v14, 2, v12")
        e("v_xor_b32 v14, v13, v14\nv_lshlrev_b32 v14, 4, v14\nv_mul_u32_u24 v15, 0xc00, v12\nv_add_u32 v14, v14, v15")
        e(f"s_and_b32 {sT0}, {sW}, 1\ns_mul_i32 {sT0}, {sT0}, 98304\ns_mul_i32 {sT1}, {sJ}, 384")
        e(f"s_add_u32 {sT0}, {sT0}, {sT1}")
        for i in range(4):
            e(f"s_add_u32 {sT2}, {sT0}, {23552*i}\nv_add_u32 {v(vD1+i)}, {sT2}, v14")
            if i & 1:
                e(f"v_xor_b32 {v(vD1+i)}, 64, {v(vD1+i)}")
        self.rot_init(sA, 10, 2048, True)
        e(f"s_lshr_b32 {sT2}, {sW}, 1\ns_lshl_b32 {sT2}, {sT2}, 11\ns_add_u32 {sWO1}, {sA}, {sT2}")
        e(f"s_cmp_eq_u32 {sWO1}, 20480\ns_cselect_b32 {sWO1}, 0, {sWO1}\ns_mul_i32 {sWO1}, {sWO1}, 96")

        def wrap(reg, inc):
            return [f"s_add_u32 {reg}, {reg}, {inc}", f"s_sub_u32 {sT3}, {reg}, 1966080", f"s_cselect_b32 {reg}, {reg}, {sT3}"]

        def dma(b):
            base = (b % NS) * SLOT
            ld = lambda r, d, so, imm: f"buffer_load_dwordx4 {v(r)}, {srd(d)}, {so} offen offset:{imm} lds"
            if b < 15:
                return ([f"s_add_u32 m0, {sM0B}, {base}"] + [ld(vD1 + i, R_1A, sWO1, 1024 * i) for i in range(4)]
                        + wrap(sWO1, 393216 + (128 if b % 5 == 4 else 0)))
            return ([f"s_add_u32 m0, {sM0B}, {base}"] + [ld(vD2 + i, R_2A, sWO2, 1024 * i) for i in range(4)]
                    + [f"s_add_u32 m0, {sM0C}, {base}", ld(vD2 + 4, R_2A, sWO2, 0)]
                    + wrap(sWO2, 491520 + (81920 if (b - 15) % 4 == 3 else 0)))

        pa, pl, pb = c["mpre_a"], c["mpre_st"], c["mpre_b"]
        self.issue_dma(dma, range(pa))
        e(f"v_lshrrev_b32 v12, 3, {v(vLANE)}\nv_and_b32 v13, 7, {v(vLANE)}")
        e("v_and_b32 v14, 6, v12\nv_xor_b32 v14, v13, v14\nv_lshlrev_b32 v14, 4, v14")
        e("v_mul_u32_u24 v15, 0x500, v12\nv_add_u32 v14, v14, v15")

        def row0(sub):
            e(f"s_and_b32 {sT3}, {sub}, 1\ns_lshl_b32 {sT3}, {sT3}, 5\ns_bfe_u32 {sub}, {sub}, 0x10001")
            e(f"s_mul_i32 {sub}, {sub}, 192\ns_add_u32 {sub}, {sub}, {sT3}")
        e(f"s_add_u32 {sT0}, {sJ}, {sW}")
        row0(sT0)
        e(f"s_mul_i32 {sT0}, {sT0}, 1280\ns_lshl_b32 {sT1}, {sJ}, 7\ns_add_u32 {sT0}, {sT0}, {sT1}")
        for i in range(4):
            e(f"s_add_u32 {sT1}, {sT0}, {9216*i}\nv_add_u32 {v(vD2+i)}, {sT1}, v14")
        e(f"s_mov_b32 {sT0}, {sJ}")
        row0(sT0)
        e(f"s_lshl_b32 {sT1}, {sW}, 3\ns_add_u32 {sT0}, {sT0}, {sT1}\ns_mul_i32 {sT0}, {sT0}, 1280")
        e(f"s_lshr_b32 {sT1}, {sJ}, 2\ns_lshl_b32 {sT1}, {sT1}, 7\ns_add_u32 {sT0}, {sT0}, {sT1}")
        e(f"s_add_u32 {sT0}, {sT0}, 1024\nv_add_u32 {v(vD2+4)}, {sT0}, v14")
        self.rot_init(sR2, 4, 4096, False)
        e(f"s_mul_i32 {sWO2}, {sR2}, 120")
        e(f"v_bfe_u32 v12, {v(vLANE)}, 2, 2\nv_lshrrev_b32 v13, 4, {v(vLANE)}\nv_and_b32 v14, 3, {v(vLANE)}")
        e("v_lshlrev_b32 v14, 3, v14\nv_and_b32 v10, 1, v13\nv_lshrrev_b32 v11, 1, v12\nv_lshl_add_u32 v10, v10, 1, v11")
        e("v_lshl_add_u32 v14, v10, 5, v14")
        for r, sh in ((vR1, 3), (vR2, 2)):
            e(f"v_lshl_add_u32 v15, v13, {sh}, v12\nv_lshl_add_u32 v15, v15, 7, v14")
            for f in range(4):
                e(f"v_xor_b32 {v(r+f)}, {32*f}, v15")
        for p in range(4):
            e(f"s_add_u32 {sT0}, {sJ}, {p}\ns_and_b32 {sT0}, {sT0}, 3\ns_lshl_b32 {sT0}, {sT0}, 10")
            e(f"v_add_u32 {v(vA2+2*p)}, {sT0}, {v(vL16B)}\nv_add_u32 {v(vA2+2*p+1)}, 49152, {v(vA2+2*p)}")
        e(f"v_add_u32 {v(vA1)}, 20480, {v(vL16B)}\nv_add_u32 {v(vA1+1)}, 49152, {v(vL16B)}")
        e(f"s_mul_i32 {sABEG}, {sRB}, 163840\ns_mul_i32 {sT0}, {sW}, 40960\ns_add_u32 {sABEG}, {sABEG}, {sT0}")
        e(f"s_add_u32 {sABEG}, {sABEG}, {XNS}\ns_add_u32 {sAEND}, {sABEG}, 20480\ns_add_u32 {sA}, {sA}, {sABEG}")
        e(f"s_mul_i32 {sH}, {sRB}, 393216\ns_mul_i32 {sT0}, {sW}, 98304\ns_add_u32 {sH}, {sH}, {sT0}")
        e(f"s_add_u32 {sH}, {sH}, {HM}\ns_lshl_b32 {sHS}, {sJ}, 11\ns_add_u32 {sHS}, {sHS}, {sH}")
        self.stamp(1)
        toks = lambda r: [(i, ("dma", b)) for b in r for i in dma(b)]
        self.ln_compute(X, U, SCR, toks(range(pa, pa + pl)))
        self.stamp(2)
        self.issue_dma(dma, range(pa + pl, pa + pl + pb))
        visible = {0}
        self.stamp(3)
        self.poll(2, TAG_XN, "xn", 12, 13)
        self.stamp(4)

        cur = {vR1: 0, vR2: 0}
        par = [0]

        def step(b, last, reg, offs, mk, tile=None):
            want = (b % NS) // 3
            d, cur[reg] = (want - cur[reg]) * 61440, want
            rd = [f"v_add_u32 {v(reg+f)}, {d & 0xFFFFFFFF}, {v(reg+f)}" for f in range(4)] if d else []
            so = (b % NS) % 3 * SLOT
            par[0] ^= 1
            bb = BB + 32 * par[0]
            rd += [f"ds_read_b64_tr_b16 {a(bb + 4*n + 2*j2,2)}, {v(reg + (n & 3 if tile is None else tile))} offset:{so + o + dj*j2}"
                   for n, (o, dj) in enumerate(offs) for j2 in range(2)]
            mf = [mk(n, m, bb + 4 * n) for n in range(len(offs)) for m in range(2)]
            return dict(blk=b, last=last, mf=mf, rd=rd, vm=[], alu=[])

        mf16 = lambda d, x, y, first: f"v_mfma_f32_16x16x32_bf16 {v(d,4)}, {a(x,4)}, {a(y,4)}, {0 if first else v(d,4)}"
        steps = []
        for r in range(3):
            acc = ACC1 + 32 * (r & 1)
            for gs in range(20):
                steps.append(step(5 * r + gs // 4, gs & 3 == 3, vR1, [((gs & 3) * 4096, 512)] * 4,
                                  lambda n, m, w_: mf16(acc + 8 * n + 4 * m, w_, XA + 8 * gs + 4 * m, gs == 0)))
        for gs in range(44):
            p = gs & 3
            offs = [(p * 4096, 2048)] * 4 + ([(16384, 2048)] * 4 if p == 0 else [])
            steps.append(step(15 + gs // 4, p == 3, vR2, offs,
                              lambda n, m, w_: mf16(ACC + 8 * n + 4 * m, XA + 8 * (gs % 16) + 4 * m, w_, gs == 0)))
        steps.append(step(26, False, vR2, [(16384, 2048)] * 4,
                          lambda n, m, w_: mf16(ACC + 32 + 8 * n + 4 * m, XA + 96 + 4 * m, w_, False)))
        for T in range(4):
            steps.append(step(26, T == 3, vR2, [(p * 4096, 2048) for p in range(4)],
                              lambda n, m, w_: mf16(ACC + 8 * T + 4 * m, XA + 96 + 8 * n + 4 * m, w_, False), tile=T))

        def aload1(gs):
            out = [f"buffer_load_dwordx4 {a(XA + 8*gs + 4*m,4)}, {v(vA1 if m else vL16B)}, {srd(R_WS)}, {sA} "
                   f"offen offset:{1024*(gs&1)} sc1" for m in range(2)]
            return out + (self.adv(sA, 2048, sAEND, sABEG) if gs & 1 else [])

        def aload2(gs):
            out = []
            if gs % 16 == 0:
                out += [f"s_add_u32 {sABEG}, {sH}, {1024*gs}", f"s_add_u32 {sAEND}, {sABEG}, 16384", f"s_add_u32 {sA}, {sR2}, {sABEG}"]
            out += [f"buffer_load_dwordx4 {a(XA + 8*(gs%16) + 4*m,4)}, {v(vA2 + 2*(gs&3) + m)}, {srd(R_WS)}, {sA} "
                    f"offen sc1" for m in range(2)]
            return out + (self.adv(sA, 4096, sAEND, sABEG) if gs & 3 == 3 else [])

        def relu_store(r, u, m):
            acc, d = ACC1 + 32 * (r & 1), WK + 4 * (2 * u + m)
            src = [acc + 8 * (2 * u + h) + 4 * m + 2 * k for h in range(2) for k in range(2)]
            out = [[(f"v_cvt_pk_bf16_f32 {v(d+k)}, {v(src[k])}, {v(src[k]+1)}", None)] for k in range(4)]
            out += [[(f"v_pk_max_i16 {v(d+k)}, {v(d+k)}, 0", None)] for k in range(4)]
            out[-1].append((f"buffer_store_dwordx4 {v(d,4)}, {v(vA1+1 if m else vL16B)}, {srd(R_WS)}, {sHS} "
                            f"offen offset:{1024*u} sc1", ("h", r)))
            if u and m:
                out[-1].append((f"s_add_u32 {sHS}, {sHS}, 16384", None))
            return out

        apre = c["ma_pre"]
        items = self.a_items(aload1, apre, 20, lambda g: 0, lambda g: g)
        steps[c["warm_m"]]["vm"].append([(f"buffer_load_dword v255, v247, {srd(R_2A)}, s93 offen", "junk")])
        for k in range(c["warm_m"] + 2, c["warm_m"] + 2 + c["quiet"]):
            steps[k]["quiet"] = True
        tests = (40 + c["test0"], 60 + c["test1"], 60 + c["test2"])
        for r in range(3):
            base = 20 * (r + 1)
            for n in range(4):
                steps[base + 1 + 2 * n]["alu"] += relu_store(r, n >> 1, n & 1)
            fl = steps[base + (c["flag01"] if r < 2 else c["flag2"])]
            assert fl["last"]
            fl["pre"] = lambda r=r: e.wait_tok(("h", r))
            fl["post"] = lambda r=r: self.send_flags(LINES[r], TAGS[r], "0xff00", sJ)
            issue, test = self.check_flags(LINES[r], TAGS[r], 10, 11)
            steps[tests[r] - c["lead"]]["vm"] += self.groups(issue)
            assert "pre" not in steps[tests[r]]
            steps[tests[r]]["pre"] = test
        items += self.a_items(aload2, 0, 48, lambda g: max(tests[g // 16], 41 + g if g < 16 else 45 + g), lambda g: min(60 + g, 105))
        sPM, sPX = "s96", "s97"

        def part_store(T):
            d = WK + 4 * (T & 3)
            out = [[(f"v_cvt_pk_bf16_f32 {v(d+k)}, {v(ACC + 8*T + 2*k)}, {v(ACC + 8*T + 2*k + 1)}", None)] for k in range(4)]
            if T < 4:
                out[-1].append((f"buffer_store_dwordx4 {v(d,4)}, {v(vL16B)}, {srd(R_WS)}, {sPM} offen offset:{1024*T} sc1", None))
            else:
                out[-1].append((f"buffer_store_dwordx4 {v(d,4)}, {v(vL16B)}, {srd(R_WS)}, {sPX} offen sc1", None))
                out[-1].append((f"s_add_u32 {sPX}, {sPX}, 32768", None))
            return out

        def part_setup():
            e(f"s_lshl_b32 {sT0}, {sRB}, 18\ns_lshl_b32 {sT1}, {sW}, 13\ns_add_u32 {sT0}, {sT0}, {sT1}\ns_add_u32 {sT0}, {sT0}, {PART}")
            e(f"s_lshl_b32 {sPM}, {sJ}, 15\ns_add_u32 {sPM}, {sPM}, {sT0}")
            e(f"s_and_b32 {sPX}, {sJ}, 4\ns_lshl_b32 {sPX}, {sPX}, 15\ns_add_u32 {sPX}, {sPX}, {sT0}")
            e(f"s_and_b32 {sT1}, {sJ}, 3\ns_lshl_b32 {sT1}, {sT1}, 10\ns_add_u32 {sPX}, {sPX}, {sT1}")
            e(f"s_add_u32 {sPX}, {sPX}, 4096")
        steps[100]["pre"] = part_setup
        for T, k in ((4, 105), (5, 105), (6, 106), (7, 106), (0, 107), (1, 107), (2, 108)):
            steps[k]["alu"] += part_store(T)
        for gs in range(apre):
            e("\n".join(aload1(gs)))
        self.pipeline(steps, dma, NS, NSTREAM, range(pa + pl + pb, NS), visible, items)
        self.stamp(12)

        self.emit_groups(part_store(3))
        self.stamp(13)
        e(f"s_and_b32 {sT3}, {sJ}, 3\ns_and_b32 {sT2}, {sJ}, 4\ns_lshl_b32 s92, 15, {sT2}\ns_mov_b32 s93, 0")
        e.wait_all()
        self.send_wave(4, TAG_PART, "s[92:93]", sT3, 2)
        self.epoch_bump()
        self.stamp(14)
        self.finish()

    def build(self):
        e = self.e
        self.entry()
        snap = e.begin_region()
        pend, nst = self.pending_stamp, self.nstamp
        self.chain = 0
        self.ssm()
        self.chain = 1
        e.vm, e.lg, e.hist = list(snap["vm"]), list(snap["lg"]), []
        self.pending_stamp, self.nstamp = pend, nst
        e.label("L_mlp")
        self.mlp()
        e.label("L_end")
        e("s_endpgm")
        ref = open(f"cdna_kernels/{NAME}.s.ref").read()
        head = ref.split("; Override launch")[0]
        out = head
        out += "; Persistent kernel: one workgroup per CU, SSM chain and MLP chain on separate workgroup sets.\n"
        out += f"; @launch grid=(256,1,1) block=(256,1,1) lds={LDS_BYTES}\n"
        out += '.amdgcn_target "amdgcn-amd-amdhsa--gfx950"\n.text\n'
        out += f".globl {KERNEL}\n.p2align 8\n.type {KERNEL},@function\n{KERNEL}:\n"
        out += e.text()
        out += f""".section .rodata,"a"
.p2align 6
.amdhsa_kernel {KERNEL}
  .amdhsa_next_free_vgpr 512
  .amdhsa_next_free_sgpr 102
  .amdhsa_accum_offset 256
  .amdhsa_group_segment_fixed_size 0
  .amdhsa_kernarg_size 120
  .amdhsa_user_sgpr_count 2
  .amdhsa_user_sgpr_kernarg_segment_ptr 1
  .amdhsa_system_sgpr_workgroup_id_x 1
  .amdhsa_float_denorm_mode_32 3
.end_amdhsa_kernel
"""
        return out


def parse_cfg(args):
    cfg = {}
    for s in args:
        k, val = s.split("=")
        cfg[k] = type(DEFAULTS[k])(int(val))
    return cfg


if __name__ == "__main__":
    path = sys.argv[1]
    g = Gen(**parse_cfg(sys.argv[2:]))
    open(path, "w").write(g.build())
    print(path, "lines", len(g.e.lines), "nop slots", g.e.nops)
```

```python
import os
import sys

sys.path.insert(0, os.path.dirname(os.path.abspath(__file__)))
from emit import Emitter

NAME = "parallel_sum__ssm_conv_s5__dense_activation_relu__prompt"
KERNEL = NAME + "_kernel"

INBOX = 0x0
CARRY = 0x40000
XNS = 0x300000
HS = 0x800000
HM = 0xD00000
PART = 0x1300000
STAMP = 0x1700000
WS_USED = 0x1800000

LDS_BYTES = 163840
SCR = 143360
SPIN_LIMIT = 1 << 15

TAG_HID2, TAG_XN, TAG_HID, TAG_PART, TAG_CARRY, TAG_HID3 = 16, 32, 48, 64, 80, 96

DEFAULTS = dict(
    pre_a=1, pre_st=1, pre_b=2, mpre_a=1, mpre_st=1, mpre_b=6,
    a_pre=2, a_pre2=4, ma_pre=4, cap=115, lat_a=6, lat_d=8, waits=2, span=75,
    skip_at=14, lazy0=10, lazy_gap=3, defer=1, peek=38, out_pol=0,
    warm_m=29, quiet=4, flag01=15, flag2=15, test0=6, test1=8, test2=26, lead=5,
    diag=False, jitter=0, blkstamp=False, blkclk=False, stepstamp=-1, dump=False,
)

P_X, P_LRE, P_LIM, P_BRE, P_BIM, P_CRE, P_CIM, P_LDT = 16, 18, 20, 22, 24, 26, 28, 30
P_DSK, P_BX, P_W1, P_W2, P_OUT, P_DBG, P_WS = 32, 34, 36, 38, 40, 42, 44
R_X, R_WS, R_1A, R_1B, R_2A, R_2B, R_OUT, R_TMP = 48, 52, 56, 60, 64, 68, 72, 76
sRB, sJ, sW, sEC, sE, sCH, sOWN, sSPIN = "s3", "s4", "s5", "s6", "s7", "s8", "s9", "s10"
sT0, sT1, sT2, sT3 = "s11", "s12", "s13", "s14"
sWO1, sWO2 = "s80", "s81"
sA, sABEG, sAEND = "s83", "s84", "s85"
sM0A, sM0B = "s86", "s87"
sHALF = "s[94:95]"
sME = "s47"
sEX = "s[88:89]"
sMSK = [f"s[{90+2*k}:{91+2*k}]" for k in range(4)]
sST = ["s[98:99]", "s[100:101]"]


def v(a, n=1):
    return f"v{a}" if n == 1 else f"v[{a}:{a+n-1}]"


def a(b, n=1):
    return f"a{b}" if n == 1 else f"a[{b}:{b+n-1}]"


def srd(b):
    return f"s[{b}:{b+3}]"


vTID, vLANE, vL16B, vE, vINB, vFLG, vSTAMP = 0, 1, 2, 3, 4, 5, 6


class Gen:
    def __init__(self, **cfg):
        self.c = dict(DEFAULTS)
        self.c.update(cfg)
        self.e = Emitter()
        self.nstamp = 0
        self.chain = -1
        self.pending_stamp = None

    def stamp(self, k):
        if self.c["jitter"] and 0 < k < 15:
            e, lp, out = self.e, self.e.newlabel("jit"), self.e.newlabel("jitend")
            e(f"s_lshl_b32 s98, s2, 2\ns_add_u32 s98, s98, {sW}\ns_add_u32 s98, s98, {977 * k + self.c['jitter']}")
            e("s_mul_i32 s98, s98, 0x9e3779b1\ns_lshr_b32 s99, s98, 15\ns_xor_b32 s98, s98, s99\ns_mul_i32 s98, s98, 0x85ebca6b")
            e(f"s_lshr_b32 s99, s98, 30\ns_cmp_lg_u32 s99, 0\ns_cbranch_scc1 {out}\ns_bfe_u32 s98, s98, 0x60008")
            e.label(lp)
            e(f"s_sleep 8\ns_sub_u32 s98, s98, 1\ns_cbranch_scc0 {lp}")
            e.label(out)
        if not self.c["diag"]:
            return
        e = self.e
        self.flush_stamp()
        reg = sST[self.nstamp & 1]
        self.nstamp += 1
        e(f"s_memtime {reg}" if 16 <= k < 44 and self.c["blkclk"] else f"s_memrealtime {reg}")
        self.pending_stamp = (k, reg)

    def flush_stamp(self):
        if self.pending_stamp:
            k, reg = self.pending_stamp
            lo = reg[2:].split(":")[0]
            self.e(f"v_writelane_b32 {v(vSTAMP)}, s{lo}, {k}")
            self.pending_stamp = None

    def mk_srd(self, r, ptr, nbytes):
        e = self.e
        e(f"s_mov_b32 s{r}, s{ptr}\ns_mov_b32 s{r+1}, s{ptr+1}")
        e(f"s_mov_b32 s{r+2}, {nbytes}\ns_mov_b32 s{r+3}, 0x20000")

    def mk_srd_sel(self, r, p_lo, p_hi, nbytes):
        e = self.e
        e(f"s_cselect_b32 s{r}, s{p_lo}, s{p_hi}\ns_cselect_b32 s{r+1}, s{p_lo+1}, s{p_hi+1}")
        e(f"s_mov_b32 s{r+2}, {nbytes}\ns_mov_b32 s{r+3}, 0x20000")

    def cmul(self, d, x, y):
        e = self.e
        e(f"v_pk_mul_f32 {v(d,2)}, {v(x,2)}, {v(y,2)} op_sel:[0,0] op_sel_hi:[0,1]")
        e(f"v_pk_fma_f32 {v(d,2)}, {v(x,2)}, {v(y,2)}, {v(d,2)} op_sel:[1,1,0] op_sel_hi:[1,0,1] neg_lo:[1,0,0]")

    def round_bf16(self, r):
        e = self.e
        e(f"v_cvt_pk_bf16_f32 {v(r)}, {v(r)}, {v(r)}\nv_lshlrev_b32 {v(r)}, 16, {v(r)}")

    def rot_init(self, dst, nb, stride, by_j):
        e = self.e
        e(f"s_and_b32 {sT0}, {sRB}, 3\ns_mul_i32 {sT0}, {sT0}, {nb}\ns_lshr_b32 {sT0}, {sT0}, 2")
        e(f"s_lshr_b32 {sT1}, {sRB}, 2\ns_add_u32 {sT0}, {sT0}, {sT1}")
        if by_j:
            e(f"s_mul_i32 {sT1}, {sJ}, {nb}\ns_lshr_b32 {sT1}, {sT1}, 3\ns_add_u32 {sT0}, {sT0}, {sT1}")
        e(f"s_mul_hi_u32 {sT1}, {sT0}, {(2**32 + nb - 1) // nb}\ns_mul_i32 {sT1}, {sT1}, {nb}")
        e(f"s_sub_u32 {sT0}, {sT0}, {sT1}\ns_mul_i32 {dst}, {sT0}, {stride}")

    @staticmethod
    def adv(reg, stride, end, beg):
        return [f"s_add_u32 {reg}, {reg}, {stride}", f"s_cmp_eq_u32 {reg}, {end}",
                f"s_cselect_b32 {reg}, {beg}, {reg}"]

    def send_flags(self, line, tag, lanes, word):
        e = self.e
        skip = e.newlabel("nosend")
        e(f"s_cmp_lg_u32 {sW}, 0\ns_cbranch_scc1 {skip}")
        s0 = e.begin_region()
        e(f"v_add_u32 {v(vFLG)}, {tag}, {v(vE)}")
        e(f"s_lshl_b32 {sT0}, {word}, 2\ns_add_u32 {sT0}, {sT0}, {INBOX + 128*line}")
        e(f"s_mov_b64 exec, {lanes}")
        e(f"buffer_store_dword {v(vFLG)}, {v(vINB)}, {srd(R_WS)}, {sT0} offen sc1")
        e("s_mov_b64 exec, -1")
        e.end_region(s0, skip)

    def send_wave(self, line, tag, lanes, word, shift):
        e = self.e
        e(f"v_add_u32 {v(vFLG)}, {tag}, {v(vE)}\ns_lshl_b32 {sT0}, {sW}, {shift}\ns_add_u32 {sT0}, {sT0}, {word}")
        e(f"s_lshl_b32 {sT0}, {sT0}, 2\ns_add_u32 {sT0}, {sT0}, {INBOX + 128*line}\ns_mov_b64 exec, {lanes}")
        e(f"buffer_store_dword {v(vFLG)}, {v(vINB)}, {srd(R_WS)}, {sT0} offen sc1")
        e("s_mov_b64 exec, -1")

    @staticmethod
    def word_addr(kind, r):
        if kind == "xn":
            return [f"v_and_b32 {v(r)}, 2, {v(vLANE)}", f"v_and_b32 v15, 1, {v(vLANE)}", f"v_lshl_add_u32 {v(r)}, {v(r)}, 2, v15",
                    f"v_lshl_add_u32 {v(r)}, {sW}, 1, {v(r)}", f"v_lshlrev_b32 {v(r)}, 2, {v(r)}"]
        if kind == "part":
            return [f"v_and_b32 {v(r)}, 3, {v(vLANE)}", f"v_lshl_add_u32 {v(r)}, {sW}, 2, {v(r)}", f"v_lshlrev_b32 {v(r)}, 2, {v(r)}"]
        return [f"v_and_b32 {v(r)}, 7, {v(vLANE)}", f"v_lshlrev_b32 {v(r)}, 2, {v(r)}"]

    def poll(self, line, tag, kind, tmp, tmp2, touch=()):
        e = self.e
        lp, out = e.newlabel("poll"), e.newlabel("polled")
        e("\n".join(self.word_addr(kind, tmp2)))
        e(f"s_add_u32 {sT0}, {sOWN}, {INBOX + 128*line}\ns_add_u32 {sT1}, {sE}, {tag}")
        e.label(lp)
        e(f"buffer_load_dword {v(tmp)}, {v(tmp2)}, {srd(R_WS)}, {sT0} offen sc1")
        e("\n".join(touch), tok="junk")
        e(f"s_cmp_eq_u32 {sSPIN}, 0")
        e.wait_all(lg=False)
        e(f"s_cbranch_scc1 {out}\ns_sub_u32 {sSPIN}, {sSPIN}, 1")
        e(f"v_cmp_eq_u32 vcc, {sT1}, {v(tmp)}")
        e(f"s_cmp_eq_u64 vcc, exec\ns_cbranch_scc0 {lp}")
        e.label(out)

    def entry(self):
        e, c = self.e, self.c
        X = 96
        e("s_cmp_ge_u32 s2, 256\ns_cbranch_scc1 L_end")
        e("s_load_dwordx2 s[44:45], s[0:1], 112\ns_load_dwordx16 s[16:31], s[0:1], 0")
        e("s_load_dwordx8 s[32:39], s[0:1], 64\ns_load_dwordx4 s[40:43], s[0:1], 96")
        if c["diag"]:
            e(f"v_mov_b32 {v(vSTAMP)}, 0")
        self.stamp(0)
        e(f"s_lshr_b32 {sT0}, s2, 3\ns_and_b32 {sCH}, s2, 1\ns_xor_b32 {sCH}, {sCH}, 1")
        skip, here = e.newlabel("nopf"), e.newlabel("pc")
        e("s_getpc_b64 s[88:89]")
        e.label(here)
        e(f"s_cmp_eq_u32 {sCH}, 0\ns_cselect_b32 {sT1}, 0, L_mlp-{here}")
        e(f"s_mov_b32 {sT2}, L_end-{here}\ns_cselect_b32 {sT2}, L_mlp-{here}, {sT2}")
        e(f"s_lshl_b32 {sT3}, {sT0}, 7\ns_add_u32 {sT3}, {sT3}, {sT1}")
        e(f"v_lshl_add_u32 v12, v0, 12, {sT3}\nv_cmp_gt_u32 vcc, {sT2}, v12")
        e(f"s_and_saveexec_b64 s[90:91], vcc\ns_cbranch_execz {skip}")
        s0 = e.begin_region()
        e("v_mov_b32 v13, s89\nv_add_co_u32 v12, vcc, s88, v12\nv_addc_co_u32 v13, vcc, 0, v13, vcc")
        e("global_load_dword v255, v[12:13], off", tok="junk")
        e.end_region(s0, skip)
        e("s_mov_b64 exec, -1")
        e(f"s_and_b32 {sJ}, {sT0}, 7\ns_lshr_b32 {sT0}, {sT0}, 3\ns_bfe_u32 {sT1}, s2, 0x20001")
        e(f"s_lshr_b32 {sT2}, {sT1}, 1\ns_xor_b32 {sT1}, {sT1}, {sT2}")
        e(f"s_lshl_b32 {sT1}, {sT1}, 2\ns_add_u32 {sRB}, {sT1}, {sT0}")
        e("v_lshrrev_b32 v8, 5, v0\nv_and_b32 v9, 31, v0")
        e("v_and_b32 v10, 1, v8\nv_lshlrev_b32 v10, 2, v10\nv_bfe_u32 v11, v8, 1, 1\nv_add_u32 v10, v10, v11")
        e("v_lshrrev_b32 v11, 2, v8\nv_lshl_add_u32 v10, v11, 3, v10")
        e("v_mul_u32_u24 v10, 0x500, v10\nv_lshl_add_u32 v10, v9, 4, v10")
        e(f"s_and_b32 {sT1}, {sJ}, 1\ns_lshl_b32 {sT2}, {sCH}, 3\ns_add_u32 {sT1}, {sT1}, {sT2}\ns_lshl_b32 {sT1}, {sT1}, 1")
        e(f"s_lshr_b32 {sT0}, {sJ}, 1\ns_lshl_b32 {sT0}, {sT0}, 5\ns_add_u32 {sT0}, {sT0}, {sT1}")
        e(f"s_lshl_b32 {sT1}, {sRB}, 7\ns_add_u32 {sT0}, {sT0}, {sT1}\ns_mul_i32 {sT0}, {sT0}, 1280")
        e(f"s_mov_b32 s{R_X+2}, {2048*1280}\ns_mov_b32 s{R_X+3}, 0x20000")
        e("s_mov_b32 s94, 0xffff\ns_mov_b32 s95, 0xffff")
        e(f"s_mov_b32 s{R_X}, s{P_X}\ns_mov_b32 s{R_X+1}, s{P_X+1}")
        for n in range(3):
            if n == 2:
                e(f"s_mov_b64 exec, {sHALF}")
            e(f"buffer_load_dwordx4 {v(X+4*n,4)}, v10, {srd(R_X)}, {sT0} offen offset:{512*n}")
        e("s_mov_b64 exec, -1")
        e(f"v_lshrrev_b32 v7, 6, v0\nv_and_b32 {v(vLANE)}, 63, v0")
        e(f"v_readfirstlane_b32 {sW}, v7")
        e(f"v_lshlrev_b32 {v(vL16B)}, 4, {v(vLANE)}")
        e(f"s_lshl_b32 {sOWN}, {sCH}, 4\ns_add_u32 {sOWN}, {sOWN}, {sRB}")
        e(f"s_lshl_b32 {sOWN}, {sOWN}, 3\ns_add_u32 {sOWN}, {sOWN}, {sJ}\ns_lshl_b32 {sOWN}, {sOWN}, 10")
        e(f"s_mov_b32 {sSPIN}, {SPIN_LIMIT}")
        self.mk_srd(R_WS, P_WS, WS_USED)
        e(f"s_lshl_b32 {sME}, {sCH}, 3\ns_add_u32 {sME}, {sME}, {sJ}\ns_lshl_b32 {sT0}, {sRB}, 13")
        e(f"v_and_b32 v11, 7, {v(vLANE)}\nv_lshl_add_u32 {v(vINB)}, v11, 10, {sT0}")
        e(f"v_bfe_u32 v11, {v(vLANE)}, 3, 1\nv_lshl_add_u32 {v(vINB)}, v11, 17, {v(vINB)}")
        e(f"s_add_u32 {sT1}, {sJ}, 120\ns_lshl_b32 {sT1}, {sT1}, 10\nv_mov_b32 v11, {sT1}")
        e(f"v_cmp_gt_u32 vcc, 16, {v(vLANE)}")
        e(f"v_cndmask_b32 {v(vINB)}, v11, {v(vINB)}, vcc")
        e(f"buffer_load_dword {v(vE)}, {v(vINB)}, {srd(R_WS)}, 0 offen sc1")
        e(f"v_and_b32 v11, 7, {v(vLANE)}\nv_lshlrev_b32 v11, 7, v11")
        e(f"buffer_load_dword v255, v11, {srd(R_WS)}, {sOWN} offen", tok="junk")
        e(f"s_cmp_eq_u32 {sCH}, 0\ns_cbranch_scc0 L_mlp")

    def ln_compute(self, X, U, scr, fill_st, during_ack=None):
        e = self.e

        def parts(body):
            body(range(8))
            e(f"s_mov_b64 exec, {sHALF}")
            body(range(8, 12))
            e("s_mov_b64 exec, -1")

        def rowsum(r):
            e(f"v_add_f32 {v(r)}, {v(r)}, {v(r+1)}")
            for sh in (8, 4, 2, 1):
                e(f"v_add_f32_dpp {v(r)}, {v(r)}, {v(r)} row_ror:{sh} row_mask:0xf bank_mask:0xf")
            e(f"v_mov_b32 {v(r+1)}, {v(r)}\nv_permlane16_swap_b32 {v(r)}, {v(r+1)}\nv_add_f32 {v(r)}, {v(r)}, {v(r+1)}")

        def unpack(ks):
            for k in ks:
                e(f"v_lshlrev_b32 {v(U+2*k)}, 16, {v(X+k)}\nv_and_b32 {v(U+2*k+1)}, 0xffff0000, {v(X+k)}")
                if k == 0:
                    self.stamp(44)
                if k == 1:
                    e(f"v_pk_add_f32 v[12:13], {v(U,2)}, {v(U+2,2)}")
                elif k > 1:
                    e(f"v_pk_add_f32 v[12:13], v[12:13], {v(U+2*k,2)}")

        def centre(ks):
            for k in ks:
                e(f"v_pk_add_f32 {v(U+2*k,2)}, {v(U+2*k,2)}, v[14:15] op_sel_hi:[1,0] neg_lo:[0,1] neg_hi:[0,1]")
            for k in ks:
                if k == 0:
                    e(f"v_pk_mul_f32 v[12:13], {v(U,2)}, {v(U,2)}")
                else:
                    e(f"v_pk_fma_f32 v[12:13], {v(U+2*k,2)}, {v(U+2*k,2)}, v[12:13]")

        def scale(ks):
            for k in ks:
                e(f"v_pk_mul_f32 {v(U+2*k,2)}, {v(U+2*k,2)}, v[12:13] op_sel_hi:[1,0]")
                e(f"v_cvt_pk_bf16_f32 {v(X+k)}, {v(U+2*k)}, {v(U+2*k+1)}")
                if k & 3 == 3:
                    e(f"ds_write_b128 v10, {v(X+k-3,4)} offset:{1024*(k-3)}")

        inv_d = "0x3acccccd"
        e("v_and_b32 v10, 7, v9\nv_xor_b32 v10, v8, v10\nv_lshlrev_b32 v10, 4, v10\nv_lshl_add_u32 v10, v9, 7, v10")
        e(f"v_add_u32 v10, {scr}, v10\nv_lshrrev_b32 v8, 3, v0\nv_and_b32 v9, 7, v0\nv_xor_b32 v11, v8, v9")
        e(f"v_and_b32 v11, 7, v11\nv_lshlrev_b32 v11, 4, v11\nv_lshl_add_u32 v11, v8, 7, v11\nv_add_u32 v11, {scr}, v11")
        e("v_lshlrev_b32 v9, 4, v9\nv_lshl_add_u32 v9, v8, 8, v9")
        e(f"s_mul_i32 {sT2}, {sRB}, 163840\ns_mul_i32 {sT1}, {sJ}, 20480\ns_add_u32 {sT2}, {sT2}, {sT1}")
        e(f"s_lshl_b32 {sT1}, {sCH}, 7\ns_add_u32 {sT2}, {sT2}, {sT1}\ns_add_u32 s92, {sT2}, {XNS}")
        parts(unpack)
        rowsum(12)
        e(f"v_mul_f32 v12, {inv_d}, v12\nv_mov_b32 v14, v12")
        self.round_bf16(14)
        e("v_sub_f32 v15, v12, v14")
        parts(centre)
        rowsum(12)
        e(f"v_mul_f32 v12, {inv_d}, v12\nv_fma_f32 v12, -v15, v15, v12\nv_max_f32 v12, 0, v12")
        self.round_bf16(12)
        e("v_add_f32 v12, 0x3727c5ac, v12")
        self.round_bf16(12)
        e("v_sqrt_f32 v12, v12")
        self.round_bf16(12)
        e("v_rcp_f32 v12, v12")
        parts(scale)
        self.stamp(45)
        e.wait_lg()
        e("s_barrier")
        for k in range(3):
            e(f"ds_read_b128 {v(X+4*k,4)}, v11 offset:{4096*k}")
        e(f"buffer_store_dwordx4 {v(X,4)}, v9, {srd(R_WS)}, s92 offen sc1", tok="xn")
        e(f"s_add_u32 {sT2}, s92, 8192\ns_add_u32 {sT3}, s92, 16384")
        e(f"buffer_store_dwordx4 {v(X+4,4)}, v9, {srd(R_WS)}, {sT2} offen sc1", tok="xn")
        skip = e.newlabel("third")
        e.wait_lg()
        e(f"s_cmp_gt_u32 {sW}, 1\ns_cbranch_scc1 {skip}")
        s0 = e.begin_region()
        e(f"buffer_store_dwordx4 {v(X+8,4)}, v9, {srd(R_WS)}, {sT3} offen sc1", tok="xn")
        e.end_region(s0, skip)
        self.stamp(46)
        e(f"v_readlane_b32 {sE}, {v(vE)}, {sME}\nv_readlane_b32 {sEC}, {v(vE)}, 16")
        for ins, tok in fill_st:
            e(ins, tok=tok)
        if during_ack:
            during_ack()
        e.wait_tok("xn", ("dma", 0))
        e.wait_lg()
        self.stamp(47)
        e("s_barrier")
        self.send_flags(2, TAG_XN, "0xffff", sME)

    @staticmethod
    def groups(instrs, tok=None):
        out, cur = [], []
        for ins in instrs:
            cur.append((ins, tok))
            if ins.startswith("buffer_"):
                out.append(cur)
                cur = []
        if cur:
            out[-1] += cur
        return out

    def pipeline(self, steps, dma, ns, nstream, early, visible, aitems, lazy={}, keep=False):
        e, c = self.e, self.c
        last = {st["blk"]: k for k, st in enumerate(steps) if st["last"]}
        b0 = steps[0]["blk"]
        blocks = [(b, 0) for b in early]
        blocks += [(b - 1 + ns, last[b]) for b in sorted(last) if b > b0 and b - 1 + ns < nstream]
        ditems = [dict(r=max(r, lazy.get(b, 0)), d=last.get(b - 1, len(steps) + b), g=g)
                  for b, r in blocks for g in self.groups(dma(b), ("dma", b))]
        for prev, it in zip(ditems, ditems[1:]):
            if " m0," in it["g"][0][0]:
                prev["g"].append(it["g"].pop(0))
        streams = [(list(aitems), c["lat_a"]), (ditems, c["lat_d"])]
        credit = 0.0
        for k, st in enumerate(steps):
            credit = max(min(credit, 1.0), -1.0) + c["cap"] / 100 * len(st["mf"]) / 4 - len(st["vm"])
            credit -= sum(1 for g in st["alu"] for ins, _ in g if "buffer_" in ins)
            while True:
                heads = [(q[0]["d"] - lat, q) for q, lat in streams if q and q[0]["r"] <= k]
                if not heads:
                    break
                due = [h for h in heads if h[1][0]["d"] <= k + 1]
                if not due and (credit < 1 or st.get("quiet")):
                    break
                dl, q = min(due or heads, key=lambda h: h[0])
                st["vm"].append(q.pop(0)["g"])
                credit -= 1
        assert not streams[0][0] and all(it["r"] < it["d"] for it in aitems)
        if c["dump"]:
            for k, st in enumerate(steps):
                kinds = ["D%d" % g[0][1][1] if g[0][1] and g[0][1][0] == "dma" else "A" for g in st["vm"]]
                print(self.chain, k, st["blk"], " ".join(kinds), "ST" if st["alu"] else "", "pre" if st.get("pre") else "")
        for ins in steps[0]["rd"]:
            e(ins)
        for k, st in enumerate(steps):
            b = st["blk"]
            if c["stepstamp"] >= 0:
                if 0 <= k + 100 * (b0 > 0) - c["stepstamp"] < 28:
                    self.stamp(16 + k + 100 * (b0 > 0) - c["stepstamp"])
            elif c["blkstamp"] and (k == 0 or steps[k - 1]["last"]):
                self.stamp(16 + b)
            nxt = steps[k + 1] if k + 1 < len(steps) else None
            if st["last"]:
                release = b > b0 and b - 1 + ns < nstream
                need_vis = nxt is not None and nxt["blk"] not in visible
                if need_vis:
                    e.wait_tok(("dma", nxt["blk"]))
                    visible.add(nxt["blk"])
                if st.get("pre"):
                    st["pre"]()
                if release or need_vis or st.get("post"):
                    e("s_barrier")
                if st.get("post"):
                    st["post"]()
            elif st.get("pre"):
                st["pre"]()
            rd = nxt["rd"] if nxt is not None else []
            mm, vm = st["mf"], st["vm"]
            slots = [[] for _ in mm]
            nm, nw, span = len(mm), c["waits"], c["span"]
            for n, ins in enumerate(rd):
                slots[n * nm * span // (100 * len(rd))].append((ins, None))
            for n, g in enumerate(st["alu"]):
                slots[n * nm // len(st["alu"])] += g
            for n, g in enumerate(vm):
                slots[(2 * n + 1) * nm // (2 * len(vm))] += g
            cuts = [n * nm // nw for n in range(nw + 1)]
            for n, (ins, fl) in enumerate(zip(mm, slots)):
                if n in cuts:
                    e.wait_for(mm[n:cuts[cuts.index(n) + 1]])
                e(ins)
                for f_, tok in fl:
                    e(f_, tok=tok)
        rest = [it["g"] for it in ditems]
        if keep:
            return rest
        self.emit_groups(rest)

    def record(self, fn):
        real, lines = self.e, []
        self.e = lambda text, tok=None: lines.extend(x for x in text.split("\n") if x)
        fn(self.e)
        self.e = real
        return [[(x, None)] for x in lines]

    def emit_groups(self, gs):
        for g in gs:
            for ins, tok in g:
                self.e(ins, tok=tok)

    def a_items(self, aloads, first, count, rel, use):
        return [dict(r=rel(gs), d=use(gs), g=g) for gs in range(first, count) for g in self.groups(aloads(gs))]

    @staticmethod
    def mk_steps(first_blk, nblk, nst, mfmas, breads):
        return [dict(blk=first_blk + n, last=st == nst - 1, mf=mfmas(n, st), rd=breads(n, st), vm=[], alu=[])
                for n in range(nblk) for st in range(nst)]

    def issue_dma(self, dma, blocks):
        for b in blocks:
            for ins in dma(b):
                self.e(ins, tok=("dma", b))

    def ssm(self):
        e, c = self.e, self.c
        NS, SLOT = 7, 20480
        vDB, vDC = 16, 21
        vRB, vRC = 26, 32
        vA1, vCH8, vTC, vTW, vTRW, vTRR = 44, 45, 46, 47, 7, 8
        vL, vL4, vSC, vWP = 48, 58, 68, 78
        vL8, vL128, vSCL = 88, 90, 92
        ACC, SP, WK = 96, 176, 196
        X, U = 96, 116
        AR, BB, SK = 0, 64, 144

        e(f"s_and_b32 {sT0}, {sW}, 1\nv_lshl_add_u32 {v(vCH8)}, {sT0}, 6, {v(vLANE)}")
        e(f"s_mul_i32 {sT0}, {sJ}, 160\nv_lshl_add_u32 v12, {v(vCH8)}, 1, {sT0}")
        for k, p in enumerate((P_LRE, P_LIM, P_LDT)):
            self.mk_srd(R_TMP, p, 1280)
            e(f"buffer_load_ushort {v(WK+k)}, v12, {srd(R_TMP)}, 0 offen")
        e(f"s_lshl_b32 {sT1}, {sJ}, 4\ns_sub_u32 {sT1}, {sT1}, {sRB}\ns_mul_i32 {sT1}, {sT1}, 1280")
        e(f"s_add_u32 {sT1}, {sT1}, {CARRY + 15*1280}\nv_min_u32 v12, 9, {v(vLANE)}\nv_lshlrev_b32 v12, 7, v12")
        e(f"buffer_load_dword v255, v12, {srd(R_WS)}, {sT1} offen", tok="junk")
        e(f"s_cmp_lt_u32 {sW}, 2")
        self.mk_srd_sel(R_1A, P_BRE, P_BIM, 819200)
        self.mk_srd_sel(R_1B, P_BIM, P_BRE, 819200)
        self.mk_srd_sel(R_2A, P_CRE, P_CIM, 819200)
        self.mk_srd_sel(R_2B, P_CIM, P_CRE, 819200)
        e(f"s_and_b32 {sT0}, {sW}, 1\ns_lshr_b32 {sT1}, {sW}, 1")
        e(f"s_mul_i32 {sM0A}, {sT1}, 10240\ns_mul_i32 {sT2}, {sT0}, 3072\ns_add_u32 {sM0A}, {sM0A}, {sT2}")
        e(f"s_xor_b32 {sT1}, {sT1}, 1\ns_mul_i32 {sM0B}, {sT1}, 10240\ns_lshl_b32 {sT2}, {sT0}, 11")
        e(f"s_add_u32 {sM0B}, {sM0B}, {sT2}\ns_add_u32 {sM0B}, {sM0B}, 6144")
        e(f"v_lshrrev_b32 v12, 3, {v(vLANE)}\nv_and_b32 v13, 7, {v(vLANE)}\nv_lshrrev_b32 v14, 1, v12")
        e("v_xor_b32 v13, v13, v14\nv_lshlrev_b32 v13, 4, v13\nv_mul_u32_u24 v12, 0x500, v12\nv_add_u32 v12, v12, v13")
        for i in range(5):
            imm = 1024 * (i if i < 3 else i - 3)
            if i < 3:
                e(f"s_mul_i32 {sT1}, {sT0}, 3\ns_add_u32 {sT1}, {sT1}, {i}")
            else:
                e(f"s_lshl_b32 {sT1}, {sT0}, 1\ns_add_u32 {sT1}, {sT1}, {3 + i}")
            e(f"s_and_b32 {sT2}, {sT1}, 1\ns_lshl_b32 {sT2}, {sT2}, 6\nv_xor_b32 v13, {sT2}, v12")
            e(f"s_mul_i32 {sT2}, {sJ}, 10\ns_add_u32 {sT2}, {sT2}, {sT1}\ns_mul_i32 {sT2}, {sT2}, 10240")
            e(f"s_sub_u32 {sT2}, {sT2}, {imm}\nv_add_u32 {v(vDB+i)}, {sT2}, v13")
            e(f"s_lshl_b32 {sT2}, {sJ}, 3\ns_add_u32 {sT2}, {sT2}, {sT1}")
            e(f"s_lshl_b32 {sT3}, {sJ}, 1\ns_add_u32 {sT3}, {sT3}, {sT1}\ns_add_u32 {sT3}, {sT3}, 56")
            e(f"s_cmp_lt_u32 {sT1}, 8\ns_cselect_b32 {sT2}, {sT2}, {sT3}\ns_mul_i32 {sT2}, {sT2}, 10240")
            e(f"s_sub_u32 {sT2}, {sT2}, {imm}\nv_add_u32 {v(vDC+i)}, {sT2}, v13")
        self.rot_init(sWO1, 10, 128, True)
        self.rot_init(sWO2, 10, 128, False)

        def dma(b):
            ph2 = b >= 10
            ra, rb_, vb, so = (R_2A, R_2B, vDC, sWO2) if ph2 else (R_1A, R_1B, vDB, sWO1)
            base = (b % NS) * SLOT
            out = [f"s_add_u32 m0, {sM0A}, {base}"]
            out += [f"buffer_load_dwordx4 {v(vb+i)}, {srd(ra)}, {so} offen offset:{1024*i} lds" for i in range(3)]
            out += [f"s_add_u32 m0, {sM0B}, {base}"]
            out += [f"buffer_load_dwordx4 {v(vb+3+i)}, {srd(rb_)}, {so} offen offset:{1024*i} lds" for i in range(2)]
            return out + self.adv(so, 128, 1280, 0)

        pa, pl, pb = c["pre_a"], c["pre_st"], c["pre_b"]
        self.issue_dma(dma, range(pa))
        def consts():
            e(f"v_lshlrev_b32 {v(vCH8)}, 3, {v(vCH8)}\nv_add_u32 {v(vCH8)}, {SCR}, {v(vCH8)}")
            e(f"s_bitcmp0_b32 {sW}, 0\ns_cselect_b32 s88, -1, 0xffff\ns_cselect_b32 s89, -1, 0")
            skip = e.newlabel("noconst")
            e(f"s_cmp_gt_u32 {sW}, 1\ns_cbranch_scc1 {skip}")
            s0 = e.begin_region()
            e(f"s_mov_b64 exec, {sEX}")
            lre, lim, ldt = WK, WK + 1, WK + 2
            t = WK + 4
            for r in (lre, lim, ldt):
                e(f"v_lshlrev_b32 {v(r)}, 16, {v(r)}")
            log2e = "0x3fb8aa3b"
            e(f"v_mul_f32 {v(ldt)}, {log2e}, {v(ldt)}\nv_exp_f32 {v(ldt)}, {v(ldt)}")
            self.round_bf16(ldt)
            e(f"v_mul_f32 {v(t)}, {v(ldt)}, {v(lre)}\nv_mul_f32 {v(t+1)}, {v(ldt)}, {v(lim)}")
            e(f"v_mul_f32 {v(t)}, {log2e}, {v(t)}\nv_exp_f32 {v(t)}, {v(t)}")
            e(f"v_mul_f32 {v(t+1)}, 0.15915494, {v(t+1)}\nv_rndne_f32 {v(t+2)}, {v(t+1)}")
            e(f"v_sub_f32 {v(t+1)}, {v(t+1)}, {v(t+2)}")
            e(f"v_cos_f32 {v(t+2)}, {v(t+1)}\nv_sin_f32 {v(t+3)}, {v(t+1)}")
            L1 = WK + 8
            e(f"v_mul_f32 {v(L1)}, {v(t)}, {v(t+2)}\nv_mul_f32 {v(L1+1)}, {v(t)}, {v(t+3)}")
            e(f"v_mul_f32 {v(t)}, {v(lre)}, {v(lre)}\nv_fma_f32 {v(t)}, {v(lim)}, {v(lim)}, {v(t)}")
            e(f"v_rcp_f32 {v(t)}, {v(t)}\nv_add_f32 {v(t+1)}, -1.0, {v(L1)}\nv_add_f32 {v(t)}, {v(t)}, {v(t)}")
            e(f"v_mul_f32 {v(t+2)}, {v(t+1)}, {v(lre)}\nv_fma_f32 {v(t+2)}, {v(L1+1)}, {v(lim)}, {v(t+2)}")
            e(f"v_mul_f32 {v(t+3)}, {v(L1+1)}, {v(lre)}\nv_fma_f32 {v(t+3)}, -{v(t+1)}, {v(lim)}, {v(t+3)}")
            e(f"v_mul_f32 {v(vSCL)}, {v(t+2)}, {v(t)}\nv_mul_f32 {v(vSCL+1)}, {v(t+3)}, {v(t)}")
            L2, L4 = WK + 10, WK + 12
            self.cmul(L2, L1, L1)
            self.cmul(L4, L2, L2)
            self.cmul(vL8, L4, L4)
            e(f"ds_write_b64 {v(vCH8)}, {v(L1,2)} offset:10240")
            e(f"ds_write_b64 {v(vCH8)}, {v(L4,2)} offset:10880")
            e(f"ds_write_b64 {v(vCH8)}, {v(vSCL,2)} offset:11520")
            e(f"ds_write_b64 {v(vCH8)}, {v(vSCL,2)}")
            prev = vSCL
            for s in range(1, 16):
                d = WK + 14 + 2 * (s & 1)
                self.cmul(d, vL8, prev)
                e(f"ds_write_b64 {v(vCH8)}, {v(d,2)} offset:{640*s}")
                prev = d
            self.cmul(L1, vL8, vL8)
            self.cmul(L2, L1, L1)
            self.cmul(L1, L2, L2)
            self.cmul(vL128, L1, L1)
            e(f"ds_write_b64 {v(vCH8)}, {v(vL128,2)} offset:12160")
            e("s_mov_b64 exec, -1")
            e.wait_lg()
            e.end_region(s0, skip)

        SXN, SXR, SXP, SPF, SPR = SK, SK + 16, SK + 32, SK + 48, SK + 56
        vDS, vXM, vXP = 250, 94, 95
        sK = ["s90", "s91", "s96", "s97"]
        one = lambda *ins: [(i_, None) for i_ in ins]
        skip_ld = [one(f"buffer_load_dwordx4 {a(SXN + 8*f + 4*m,4)}, {v(vA1 if m else vL16B)}, {srd(R_WS)}, {sK[0]} "
                       f"offen offset:{1024*f} sc1") for f in range(2) for m in range(2)]
        skip_ld += [one("s_mov_b32 exec_hi, 0", f"buffer_load_dwordx4 {a(SPF + 4*m,4)}, {v(vA1 if m else vL16B)}, "
                        f"{srd(R_WS)}, {sK[1]} offen sc1", "s_mov_b64 exec, -1") for m in range(2)]
        skip_ld += [one(f"buffer_load_dwordx4 {a(SXR + 8*f + 4*m,4)}, {v(vXM)}, {srd(R_X)}, {sK[2]} "
                        f"offen offset:{2560*m + 64*f}") for m in range(2) for f in range(2)]
        skip_ld += [one("s_mov_b32 exec_lo, 0", f"buffer_load_dwordx4 {a(SPR + 4*m,4)}, {v(vXP)}, {srd(R_X)}, {sK[3]} "
                        f"offen offset:{2560*m}", "s_mov_b64 exec, -1") for m in range(2)]

        e(f"v_and_b32 v12, 15, {v(vLANE)}\nv_lshrrev_b32 v13, 4, {v(vLANE)}\nv_lshrrev_b32 v14, 1, v12")
        e("v_xor_b32 v15, v13, v14\nv_lshlrev_b32 v15, 4, v15\nv_lshl_add_u32 v15, v12, 7, v15")
        for k in range(3):
            e(f"v_add_u32 {v(vRB+2*k)}, {61440*k}, v15\nv_xor_b32 {v(vRB+2*k+1)}, 64, {v(vRB+2*k)}")
        e("v_and_b32 v15, 1, v13\nv_xor_b32 v15, v15, v14\nv_lshlrev_b32 v15, 4, v15\nv_lshl_add_u32 v15, v12, 7, v15")
        e("v_lshrrev_b32 v14, 1, v13\nv_mul_u32_u24 v14, 0x2800, v14\nv_add_u32 v15, v15, v14")
        for k in range(3):
            e(f"v_add_u32 {v(vRC+4*k)}, {61440*k}, v15")
            for st in range(1, 4):
                e(f"v_xor_b32 {v(vRC+4*k+st)}, {32*st}, {v(vRC+4*k)}")
        e(f"v_lshlrev_b32 {v(vTC)}, 3, v12\nv_add_u32 {v(vTC)}, {SCR}, {v(vTC)}")
        e(f"v_lshl_add_u32 v14, {sW}, 2, v13\nv_mul_u32_u24 v14, 0x280, v14\nv_add_u32 {v(vTW)}, v14, {v(vTC)}")
        e(f"v_add_u32 {v(vA1)}, 20480, {v(vL16B)}")
        e(f"s_mul_i32 {sABEG}, {sRB}, 163840\ns_mul_i32 {sT0}, {sW}, 40960\ns_add_u32 {sABEG}, {sABEG}, {sT0}")
        e(f"s_add_u32 {sABEG}, {sABEG}, {XNS}\ns_add_u32 {sAEND}, {sABEG}, 20480")
        self.rot_init(sA, 10, 2048, True)
        e(f"s_add_u32 {sA}, {sA}, {sABEG}")

        def late_setup(e):

            def rowoff(d, i):
                e(f"v_lshrrev_b32 {v(d)}, 2, {v(i)}\nv_lshlrev_b32 {v(d)}, 3, {v(d)}\nv_and_b32 v15, 1, {v(i)}")
                e(f"v_lshl_add_u32 {v(d)}, v15, 2, {v(d)}\nv_bfe_u32 v15, {v(i)}, 1, 1\nv_add_u32 {v(d)}, {v(d)}, v15")
                e(f"v_mul_u32_u24 {v(d)}, 0x500, {v(d)}")
            e(f"s_lshl_b32 {sK[0]}, {sJ}, 11\ns_add_u32 {sK[0]}, {sK[0]}, {sABEG}")
            e(f"s_lshl_b32 {sK[1]}, {sJ}, 9\ns_add_u32 {sK[1]}, {sK[1]}, {sABEG}\ns_add_u32 {sK[1]}, {sK[1]}, 16384")
            e(f"v_lshrrev_b32 v12, 2, {v(vLANE)}")
            rowoff(vXM, 12)
            e(f"v_and_b32 v15, 3, {v(vLANE)}\nv_lshl_add_u32 {v(vXM)}, v15, 4, {v(vXM)}")
            e(f"v_bfe_u32 v12, {v(vLANE)}, 1, 4")
            rowoff(vXP, 12)
            e(f"v_and_b32 v15, 1, {v(vLANE)}\nv_lshl_add_u32 {v(vXP)}, v15, 4, {v(vXP)}")
            e(f"s_lshl_b32 {sT0}, {sRB}, 2\ns_add_u32 {sT0}, {sT0}, {sW}\ns_mul_i32 {sT0}, {sT0}, 40960")
            e(f"s_lshl_b32 {sK[2]}, {sJ}, 7\ns_add_u32 {sK[2]}, {sK[2]}, {sT0}")
            e(f"s_lshl_b32 {sK[3]}, {sJ}, 5\ns_add_u32 {sK[3]}, {sK[3]}, {sT0}\ns_add_u32 {sK[3]}, {sK[3]}, 1024")
            self.mk_srd(R_TMP, P_DSK, 1280)
            e(f"v_and_b32 v12, 15, {v(vLANE)}\nv_lshlrev_b32 v12, 1, v12")
            e(f"s_lshl_b32 {sT1}, {sJ}, 7\ns_lshl_b32 {sT2}, {sJ}, 5\ns_add_u32 {sT2}, {sT2}, 1024")
            for T in range(5):
                so, imm = (sT1, 32 * T) if T < 4 else (sT2, 0)
                e(f"buffer_load_ushort {v(vDS+T)}, v12, {srd(R_TMP)}, {so} offen offset:{imm}")
            e(f"v_and_b32 v12, 15, {v(vLANE)}\nv_lshrrev_b32 v13, 4, {v(vLANE)}")
            e("v_lshrrev_b32 v14, 3, v12\nv_lshlrev_b32 v14, 2, v14\nv_xor_b32 v14, v14, v12\nv_lshlrev_b32 v14, 5, v14")
            e("v_lshrrev_b32 v15, 2, v12\nv_xor_b32 v15, v15, v13\nv_lshl_add_u32 v14, v15, 3, v14")
            e(f"s_lshl_b32 {sT0}, {sW}, 11\ns_add_u32 {sT0}, {sT0}, {SCR + 12288}\nv_add_u32 {v(vTRW)}, {sT0}, v14")
            for j2 in range(2):
                e(f"v_and_b32 v14, 1, v13\nv_xor_b32 v14, {j2}, v14\nv_lshlrev_b32 v14, 2, v14")
                e(f"v_lshl_add_u32 v14, v13, 3, v14\nv_bfe_u32 v15, {v(vLANE)}, 2, 2\nv_add_u32 v14, v14, v15")
                e(f"v_lshlrev_b32 v14, 5, v14\nv_lshlrev_b32 v15, 1, v13\nv_add_u32 v15, {j2}, v15")
                e(f"v_xor_b32 v15, v15, {v(vLANE)}\nv_and_b32 v15, 3, v15\nv_lshl_add_u32 v14, v15, 3, v14")
                e(f"v_add_u32 {v(vTRR+j2)}, {sT0}, v14")

        self.stamp(1)
        toks = lambda r: [(i, ("dma", b)) for b in r for i in dma(b)]
        self.ln_compute(X, U, 6 * SLOT, toks(range(pa, pa + pl)), consts)
        self.stamp(2)
        self.issue_dma(dma, range(pa + pl, pa + pl + pb))

        visible = {0}
        for g in range(5):
            e(f"ds_read_b64 {v(vL+2*g,2)}, {v(vTC)} offset:{10240 + 128*g}")
            e(f"ds_read_b64 {v(vL4+2*g,2)}, {v(vTC)} offset:{10880 + 128*g}")
            e(f"ds_read_b64 {v(vSC+2*g,2)}, {v(vTC)} offset:{11520 + 128*g}")
            e(f"ds_read_b64 {v(vWP+2*g,2)}, {v(vTW)} offset:{128*g}")
        e(f"ds_read_b64 {v(vL128,2)}, {v(vCH8)} offset:12160")
        self.stamp(3)
        self.poll(2, TAG_XN, "xn", 12, 13)
        self.stamp(4)

        acc = lambda g, cp, m: ACC + ((g * 2 + cp) * 2 + m) * 4

        def aload1(gs):
            st = gs & 1
            r = AR + (gs % 8) * 8
            out = [f"buffer_load_dwordx4 {a(r,4)}, {v(vL16B)}, {srd(R_WS)}, {sA} offen offset:{1024*st} sc1",
                   f"buffer_load_dwordx4 {a(r+4,4)}, {v(vA1)}, {srd(R_WS)}, {sA} offen offset:{1024*st} sc1"]
            return out + (self.adv(sA, 2048, sAEND, sABEG) if st else [])

        def bread1(n, st):
            slot = n % NS
            base, off = vRB + 2 * (slot // 3) + st, (slot % 3) * SLOT
            return [f"ds_read_b128 {a(BB + 40*st + 4*(2*g+cp),4)}, {v(base)} offset:{off + cp*10240 + g*2048}"
                    for g in range(5) for cp in range(2)]

        def mfma1(n, st):
            gs = 2 * n + st
            return [f"v_mfma_f32_16x16x32_bf16 {v(acc(g,cp,m),4)}, {a(AR + (gs%8)*8 + 4*m,4)}, "
                    f"{a(BB + 40*st + 4*(2*g+cp),4)}, {v(acc(g,cp,m),4) if gs else 0}"
                    for g in range(5) for cp in range(2) for m in range(2)]

        steps = self.mk_steps(0, 10, 2, mfma1, bread1)
        items = self.a_items(aload1, c["a_pre"], 20, lambda g: g - 7, lambda g: g)
        late = self.record(late_setup)
        for n, g in enumerate(late):
            steps[1 + n * 8 // len(late)]["alu"].append(g)
        for n, g in enumerate(skip_ld):
            steps[c["skip_at"] + n // 2]["vm"].append(g)
        for gs in range(c["a_pre"]):
            e("\n".join(aload1(gs)))
        lazy = {10 + n: c["lazy0"] + c["lazy_gap"] * n for n in range(7)}
        upto = 10 + NS - c["defer"]
        rest = self.pipeline(steps, dma, NS, min(upto, 9 + NS), range(pa + pl + pb, NS), visible, items, lazy, keep=True)
        if not c["defer"]:
            rest += self.groups(dma(9 + NS), ("dma", 9 + NS))
        self.stamp(5)

        pair = lambda g, cp, jj: acc(g, cp, jj >> 1) + 2 * (jj & 1)
        LR = "op_sel:[0,0,0] op_sel_hi:[0,1,1]"
        LI = "op_sel:[1,0,0] op_sel_hi:[1,1,1]"
        NEG = "neg_lo:[1,0,0] neg_hi:[1,0,0]"
        for g in range(5):
            Lg = v(vL + 2 * g, 2)
            sre, sim = pair(g, 0, 0), pair(g, 1, 0)
            for jj in range(1, 4):
                dre, dim = (WK, WK + 2) if jj == 2 else (SP + 4 * g, SP + 4 * g + 2)
                e(f"v_pk_fma_f32 {v(dre,2)}, {Lg}, {v(sre,2)}, {v(pair(g,0,jj),2)} {LR}")
                e(f"v_pk_fma_f32 {v(dim,2)}, {Lg}, {v(sim,2)}, {v(pair(g,1,jj),2)} {LR}")
                e(f"v_pk_fma_f32 {v(dre,2)}, {Lg}, {v(sim,2)}, {v(dre,2)} {LI} {NEG}")
                e(f"v_pk_fma_f32 {v(dim,2)}, {Lg}, {v(sre,2)}, {v(dim,2)} {LI}")
                sre, sim = dre, dim
            l4r, l4i, d = vL4 + 2 * g, vL4 + 2 * g + 1, WK + 4 + 2 * (g & 1)
            e(f"v_fma_f32 {v(d)}, {v(l4r)}, {v(sre)}, {v(sre+1)}")
            e(f"v_fma_f32 {v(d+1)}, {v(l4r)}, {v(sim)}, {v(sim+1)}")
            e(f"v_fma_f32 {v(d)}, -{v(l4i)}, {v(sim)}, {v(d)}")
            e(f"v_fma_f32 {v(d+1)}, {v(l4i)}, {v(sre)}, {v(d+1)}")
            e(f"ds_write_b64 {v(vTW)}, {v(d,2)} offset:{128*g}")
        e.wait_lg()
        e("s_barrier")
        self.stamp(6)

        skip = e.newlabel("nocomb")
        e(f"s_cmp_gt_u32 {sW}, 1\ns_cbranch_scc1 {skip}")
        s0 = e.begin_region()
        e(f"s_mov_b64 exec, {sEX}")
        SL = WK
        for s in range(16):
            e(f"ds_read_b64 {v(SL+2*s,2)}, {v(vCH8)} offset:{640*s}")
        for s in range(1, 16):
            e(f"v_pk_fma_f32 {v(SL+2*s,2)}, {v(vL8,2)}, {v(SL+2*s-2,2)}, {v(SL+2*s,2)} {LR}")
            e(f"v_pk_fma_f32 {v(SL+2*s,2)}, {v(vL8,2)}, {v(SL+2*s-2,2)}, {v(SL+2*s,2)} "
              "op_sel:[1,1,0] op_sel_hi:[1,0,1] neg_lo:[1,0,0]")
        MSG = SL + 30
        e(f"v_subrev_u32 v12, {SCR}, {v(vCH8)}\nv_lshlrev_b32 v12, 1, v12")
        e(f"s_add_u32 {sT0}, {sEC}, {TAG_CARRY}\nv_mov_b32 {v(MSG+2)}, {sT0}\nv_mov_b32 {v(MSG+3)}, {sT0}")
        e(f"s_lshl_b32 {sT1}, {sJ}, 4\ns_sub_u32 {sT1}, {sT1}, {sRB}\ns_mul_i32 {sT1}, {sT1}, 1280")
        e(f"s_add_u32 {sT1}, {sT1}, {CARRY + 15*1280}")
        e(f"buffer_store_dwordx4 {v(MSG,4)}, v12, {srd(R_WS)}, {sT1} offen sc1")
        e(f"v_mov_b32 v14, 0\nv_mov_b32 v15, 0\nds_write_b64 {v(vCH8)}, v[14:15]")
        for s in range(1, 16):
            d = WK + 36 + 2 * (s & 1)
            self.cmul(d, vSCL, SL + 2 * s - 2)
            e(f"ds_write_b64 {v(vCH8)}, {v(d,2)} offset:{640*s}")
        e("s_mov_b64 exec, -1")
        e.end_region(s0, skip)
        self.emit_groups(rest)
        self.stamp(7)

        def scale_pairs(g, re, im):
            Sg = v(vSC + 2 * g, 2)
            e(f"v_pk_mul_f32 v[14:15], {Sg}, {v(im,2)} op_sel:[1,0] op_sel_hi:[1,1] neg_lo:[1,0] neg_hi:[1,0]")
            e(f"v_pk_mul_f32 {v(im,2)}, {Sg}, {v(im,2)} op_sel:[0,0] op_sel_hi:[0,1]")
            e(f"v_pk_fma_f32 {v(im,2)}, {Sg}, {v(re,2)}, {v(im,2)} {LI}")
            e(f"v_pk_fma_f32 {v(re,2)}, {Sg}, {v(re,2)}, v[14:15] {LR}")
        for g in range(5):
            scale_pairs(g, SP + 4 * g, SP + 4 * g + 2)
            for jj in range(4):
                scale_pairs(g, pair(g, 0, jj), pair(g, 1, jj))
        self.stamp(8)

        skip = e.newlabel("nocarry")
        e(f"s_cmp_lt_u32 {sW}, 2\ns_cbranch_scc1 {skip}")
        s0 = e.begin_region()
        e(f"s_lshl_b32 {sT0}, {sJ}, 4\ns_sub_u32 {sT0}, {sT0}, {sRB}\ns_mul_i32 {sT0}, {sT0}, 1280")
        e(f"s_add_u32 {sT0}, {sT0}, {CARRY + 16*1280}")
        e(f"s_add_u32 s{R_TMP}, s{P_WS}, {sT0}\ns_addc_u32 s{R_TMP+1}, s{P_WS+1}, 0")
        e(f"s_mul_i32 s{R_TMP+2}, {sRB}, 1280\ns_mov_b32 s{R_TMP+3}, 0x20000")
        e(f"s_add_u32 {sT1}, {sEC}, {TAG_CARRY}\ns_mul_i32 {sT1}, {sT1}, {sRB}")
        e(f"s_mov_b64 exec, {sEX}")
        MG = 196
        vMA = [10, 11, 12, 13, 14]
        e(f"v_subrev_u32 v10, {SCR}, {v(vCH8)}\nv_lshlrev_b32 v10, 1, v10")
        for k in range(1, 5):
            e(f"v_add_u32 v{10+k}, {3840*k}, v10")
        lp, out = e.newlabel("cpoll"), e.newlabel("cpolled")
        e.label(lp)
        mreg = lambda dl: MG + 4 * dl if dl < 13 else (vDB, vRB)[dl - 13]
        for dl in range(15):
            e(f"buffer_load_dwordx3 {v(mreg(dl),3)}, v{vMA[dl//3]}, {srd(R_TMP)}, 0 offen offset:{1280*(dl%3)} sc1")
        e(f"s_cmp_eq_u32 {sSPIN}, 0")
        e.wait_all(lg=False)
        e(f"s_cbranch_scc1 {out}\ns_sub_u32 {sSPIN}, {sSPIN}, 1")
        e(f"v_add3_u32 v15, {v(mreg(0)+2)}, {v(mreg(1)+2)}, {v(mreg(2)+2)}")
        for k in range(3, 15, 2):
            e(f"v_add3_u32 v15, v15, {v(mreg(k)+2)}, {v(mreg(k+1)+2)}")
        e(f"v_cmp_eq_u32 vcc, {sT1}, v15")
        e(f"s_cmp_eq_u64 vcc, exec\ns_cbranch_scc0 {lp}")
        e.label(out)
        for dl in range(13, -1, -1):
            x, y = mreg(dl), mreg(dl + 1)
            e(f"v_pk_fma_f32 {v(x,2)}, {v(vL128,2)}, {v(y,2)}, {v(x,2)} {LR}")
            e(f"v_pk_fma_f32 {v(x,2)}, {v(vL128,2)}, {v(y,2)}, {v(x,2)} op_sel:[1,1,0] op_sel_hi:[1,0,1] neg_lo:[1,0,0]")
        e(f"ds_write_b64 {v(vCH8)}, {v(mreg(0),2)} offset:10240")
        e("s_mov_b64 exec, -1")
        e.end_region(s0, skip)
        e.wait_all(vm=False)
        e("s_barrier")
        self.stamp(9)

        PG = WK
        for g in range(5):
            e(f"ds_read_b64 {v(PG+4*g,2)}, {v(vTW)} offset:{128*g}")
            e(f"ds_read_b64 {v(PG+4*g+2,2)}, {v(vTC)} offset:{10240 + 128*g}")
        e(f"s_mul_i32 {sABEG}, {sRB}, 327680\ns_mul_i32 {sT0}, {sW}, 81920\ns_add_u32 {sABEG}, {sABEG}, {sT0}")
        e(f"s_add_u32 {sABEG}, {sABEG}, {HS}\ns_add_u32 {sAEND}, {sABEG}, 40960")
        e(f"s_mul_i32 {sT2}, {sJ}, 5120\ns_add_u32 {sT2}, {sT2}, {sABEG}")
        e(f"v_add_u32 {v(vA1)}, 40960, {v(vL16B)}")
        HF = WK + 20
        CV = 12

        def pass2():
            for g in range(5):
                p, gg, w_ = PG + 4 * g, PG + 4 * g + 2, vWP + 2 * g
                hre, him = SP + 4 * g, SP + 4 * g + 2
                l4r, l4i = vL4 + 2 * g, vL4 + 2 * g + 1
                e(f"v_fma_f32 {v(p)}, {v(w_)}, {v(gg)}, {v(p)}\nv_fma_f32 {v(p+1)}, {v(w_)}, {v(gg+1)}, {v(p+1)}")
                e(f"v_fma_f32 {v(p)}, -{v(w_+1)}, {v(gg+1)}, {v(p)}\nv_fma_f32 {v(p+1)}, {v(w_+1)}, {v(gg)}, {v(p+1)}")
                e(f"v_fma_f32 {v(hre+1)}, {v(l4r)}, {v(p)}, {v(hre)}\nv_fma_f32 {v(him+1)}, {v(l4r)}, {v(p+1)}, {v(him)}")
                e(f"v_fma_f32 {v(hre+1)}, -{v(l4i)}, {v(p+1)}, {v(hre+1)}\nv_fma_f32 {v(him+1)}, {v(l4i)}, {v(p)}, {v(him+1)}")
                e(f"v_mov_b32 {v(hre)}, {v(p)}\nv_mov_b32 {v(him)}, {v(p+1)}")
                Lg = v(vL + 2 * g, 2)
                for jj in range(4):
                    ur, ui = pair(g, 0, jj), pair(g, 1, jj)
                    e(f"v_pk_fma_f32 {v(ur,2)}, {Lg}, {v(hre,2)}, {v(ur,2)} {LR}")
                    e(f"v_pk_fma_f32 {v(ui,2)}, {Lg}, {v(him,2)}, {v(ui,2)} {LR}")
                    e(f"v_pk_fma_f32 {v(ur,2)}, {Lg}, {v(him,2)}, {v(ur,2)} {LI} {NEG}")
                    e(f"v_pk_fma_f32 {v(ui,2)}, {Lg}, {v(hre,2)}, {v(ui,2)} {LI}")
                    hre, him = ur, ui
                for m in range(2):
                    for cp in range(2):
                        r, sg, d = acc(g, cp, m), "-" if cp else "", CV + 2 * cp
                        e(f"v_cvt_pk_bf16_f32 {v(d)}, {sg}{v(r)}, {sg}{v(r+1)}")
                        e(f"v_cvt_pk_bf16_f32 {v(d+1)}, {sg}{v(r+2)}, {sg}{v(r+3)}")
                        e(f"ds_write_b64 {v(vTRW)}, {v(d,2)} offset:{1024*m + 512*cp}")
                hf = HF + 8 * (g & 1)
                for m in range(2):
                    for j2 in range(2):
                        e(f"ds_read_b64_tr_b16 {v(hf + 4*m + 2*j2,2)}, {v(vTRR+j2)} offset:{1024*m}")
                if g:
                    store_h(g - 1)
            store_h(4)

        def store_h(g):
            hf = HF + 8 * (g & 1)
            if g == 4:
                e(f"s_add_u32 {sT2}, {sT2}, 4096")
            for m in range(2):
                e(f"buffer_store_dwordx4 {v(hf+4*m,4)}, {v(vA1 if m else vL16B)}, {srd(R_WS)}, {sT2} offen offset:{1024*(g&3)} sc1", tok="h")
        e.wait_lg()
        pass2()
        self.stamp(10)
        e(f"v_and_b32 v12, 15, {v(vLANE)}\nv_lshrrev_b32 v13, 4, {v(vLANE)}")
        e("v_lshl_add_u32 v14, v12, 2, v13\nv_lshlrev_b32 v14, 2, v14")
        e("v_and_b32 v13, 1, v13\nv_lshl_add_u32 v13, v12, 1, v13\nv_lshlrev_b32 v13, 2, v13\nv_add_u32 v13, 0x80, v13")
        for k in range(16):
            e(f"ds_bpermute_b32 {a(SXP+k)}, v14, {a(SXR+k)}")
        e("s_mov_b32 exec_lo, 0")
        for k in range(8):
            e(f"ds_bpermute_b32 {a(SPF+k)}, v13, {a(SPR+k)}")
        e("s_mov_b64 exec, -1")
        e.wait_tok("h", ("dma", 10))
        e.wait_lg()
        e("s_barrier")
        self.send_flags(3, TAG_HID, "0xff", sJ)
        visible.add(10)

        acc2 = lambda T, m: ACC + (T * 2 + m) * 4
        e(f"v_and_b32 v12, 15, {v(vLANE)}\nv_lshrrev_b32 v13, 1, v12\nv_bfe_u32 v14, {v(vLANE)}, 4, 1")
        e("v_lshlrev_b32 v14, 2, v14\nv_sub_u32 v13, v13, v14\nv_and_b32 v12, 1, v12\nv_lshlrev_b32 v12, 4, v12")
        for k in range(4):
            e(f"v_cmp_eq_u32 {sMSK[k]}, {k}, v13")
        e(f"v_cmp_gt_u32 vcc, 32, {v(vLANE)}\nv_mov_b32 v15, 0x3f80")
        SEL = WK
        pick = [(v(vDS+T), "0") if T % 2 == 0 else ("0", v(vDS+T)) for T in range(4)]
        pick += [(v(vDS+4), "v15"), ("v15", "0"), ("0", "v15")]
        for n, (lo, hi) in enumerate(pick):
            e(f"v_cndmask_b32 v14, {hi}, {lo}, vcc\nv_lshlrev_b32 v14, v12, v14")
            for k in range(4):
                e(f"v_cndmask_b32 {v(SEL+4*n+k)}, 0, v14, {sMSK[k]}")
        for T in range(5):
            for m in range(2):
                src = SXN + 8 * (T >> 1) + 4 * m if T < 4 else SPF + 4 * m
                e(f"v_mfma_f32_16x16x32_bf16 {v(acc2(T,m),4)}, {a(src,4)}, {v(SEL+4*T,4)}, 0")
        for T in range(4):
            for m in range(2):
                e(f"v_mfma_f32_16x16x32_bf16 {v(acc2(T,m),4)}, {a(SXP + 8*(T>>1) + 4*m,4)}, {v(SEL+20+4*(T&1),4)}, {v(acc2(T,m),4)}")
        self.rot_init(sA, 10, 4096, False)
        e(f"s_add_u32 {sA}, {sA}, {sABEG}")
        self.poll(3, TAG_HID, "hid", 12, 13)
        self.stamp(11)

        def aload2(gs):
            st = gs & 3
            r = AR + (gs % 8) * 8
            out = [f"buffer_load_dwordx4 {a(r,4)}, {v(vL16B)}, {srd(R_WS)}, {sA} offen offset:{1024*st} sc1",
                   f"buffer_load_dwordx4 {a(r+4,4)}, {v(vA1)}, {srd(R_WS)}, {sA} offen offset:{1024*st} sc1"]
            return out + (self.adv(sA, 4096, sAEND, sABEG) if st == 3 else [])

        def bread2(n, st):
            slot = (10 + n) % NS
            base, off = vRC + 4 * (slot // 3) + st, (slot % 3) * SLOT
            return [f"ds_read_b128 {a(BB + 20*(st&1) + 4*T,4)}, {v(base)} offset:{off + T*2048}" for T in range(5)]

        def mfma2(n, st):
            gs = 4 * n + st
            return [f"v_mfma_f32_16x16x32_bf16 {v(acc2(T,m),4)}, {a(AR + (gs%8)*8 + 4*m,4)}, "
                    f"{a(BB + 20*(st&1) + 4*T,4)}, {v(acc2(T,m),4)}" for T in range(5) for m in range(2)]

        steps = self.mk_steps(10, 10, 4, mfma2, bread2)
        items = self.a_items(aload2, c["a_pre2"], 40, lambda g: g - 7, lambda g: g)
        for gs in range(c["a_pre2"]):
            e("\n".join(aload2(gs)))
        PL, sGOT, sPA, sPB = 176, "s93", "s46", "s1"
        part_ld = [f"buffer_load_dwordx4 {v(PL+4*k,4)}, {v(vL16B)}, {srd(R_WS)}, {sPB if k >= 4 else sPA} "
                   f"offen offset:{1024*(k&3)} sc1" for k in range(8)]

        def out_setup():
            self.mk_srd(R_OUT, P_OUT, 2048 * 2560)
            e(f"v_lshrrev_b32 v8, 4, {v(vLANE)}\nv_mul_u32_u24 v8, 0x5000, v8\nv_and_b32 v9, 15, {v(vLANE)}")
            e(f"v_lshl_add_u32 v8, v9, 2, v8\ns_mul_i32 {sT0}, {sJ}, 192\ns_sub_u32 {sT0}, 2048, {sT0}")
            e(f"v_add_u32 v9, {sT0}, v8")
            e(f"s_lshl_b32 {sPA}, {sOWN}, 5\ns_lshl_b32 {sT0}, {sW}, 13\ns_add_u32 {sPA}, {sPA}, {sT0}")
            e(f"s_add_u32 {sPA}, {sPA}, {PART}\ns_add_u32 {sPB}, {sPA}, 4096")
            e(f"s_lshl_b32 {sT0}, {sRB}, 2\ns_add_u32 {sT0}, {sT0}, {sW}\ns_mul_i32 {sT0}, {sT0}, 81920")
            e(f"s_lshl_b32 {sT1}, {sJ}, 8\ns_add_u32 {sT0}, {sT0}, {sT1}")
            for m in range(2):
                for r in range(4):
                    e(f"s_add_u32 {rows[4*m+r]}, {sT0}, {(4*(r&1) + 2*m + (r>>1)) * 2560}")
            e("\n".join(self.word_addr("part", 11)) + f"\ns_add_u32 {sGOT}, {sOWN}, {INBOX + 512}")

        def early():
            skip = e.newlabel("notyet")
            e(f"s_add_u32 {sT1}, {sE}, {TAG_PART}\nv_cmp_eq_u32 vcc, {sT1}, v10")
            e(f"s_cmp_eq_u64 vcc, exec\ns_cselect_b32 {sGOT}, 1, 0\ns_cbranch_scc0 {skip}")
            s0 = e.begin_region()
            e("\n".join(part_ld), tok="junk")
            e.end_region(s0, skip)
        rows = ["s88", "s89", "s90", "s91", "s94", "s95", "s96", "s97"]
        steps[26]["pre"] = out_setup
        steps[c["peek"] - 4]["vm"].append([(f"buffer_load_dword v10, v11, {srd(R_WS)}, {sGOT} offen sc1", None)])
        steps[c["peek"]]["pre"] = early
        self.pipeline(steps, dma, NS, 20, range(upto, 10 + NS), visible, items)
        self.stamp(12)

        late = e.newlabel("late")
        e(f"s_cmp_eq_u32 {sGOT}, 1\ns_cbranch_scc1 {late}")
        s0 = e.begin_region()
        self.poll(4, TAG_PART, "part", 12, 13, touch=part_ld)
        e("\n".join(part_ld), tok="junk")
        e.end_region(s0, late)
        self.stamp(13)
        e.wait_all(lg=False)
        for k in range(8):
            T = min(k, 4)
            for i in range(4):
                d = acc2(T, i >> 1) + 2 * (i & 1)
                t0 = 12 + 2 * (i & 1)
                e(f"v_lshlrev_b32 {v(t0)}, 16, {v(PL+4*k+i)}\nv_and_b32 {v(t0+1)}, 0xffff0000, {v(PL+4*k+i)}")
                e(f"v_pk_add_f32 {v(d,2)}, {v(d,2)}, {v(t0,2)}")
            if k < 4 or k == 7:
                for m in range(2):
                    for r in range(4):
                        e(f"buffer_store_dword {v(acc2(T,m)+r)}, {'v8' if T < 4 else 'v9'}, {srd(R_OUT)}, "
                          f"{rows[4*m+r]} offen offset:{64*T if T < 4 else 0} {('', 'sc1', 'nt', 'sc0 sc1', 'sc1 nt')[c['out_pol']]}")
        self.epoch_bump()
        self.stamp(14)
        self.finish()

    def epoch_bump(self):
        e = self.e
        skip = e.newlabel("nobump")
        e("s_barrier")
        e(f"s_cmp_lg_u32 {sW}, 0\ns_cbranch_scc1 {skip}")
        s0 = e.begin_region()
        e(f"s_add_u32 {sT0}, {sE}, 0x100\nv_mov_b32 v12, {sT0}\nv_mov_b32 v13, 0\ns_mov_b64 exec, 1")
        e(f"buffer_store_dword v12, v13, {srd(R_WS)}, {sOWN} offen sc1")
        e("s_mov_b64 exec, -1")
        e.end_region(s0, skip)

    def finish(self):
        e = self.e
        if self.c["diag"]:
            e.wait_all()
            self.stamp(15)
            self.flush_stamp()
            e(f"s_lshr_b32 {sT0}, {sOWN}, 10\ns_lshl_b32 {sT0}, {sT0}, 2\ns_add_u32 {sT0}, {sT0}, {sW}")
            e(f"s_lshl_b32 {sT0}, {sT0}, 8\ns_add_u32 {sT0}, {sT0}, {STAMP}")
            e(f"v_lshlrev_b32 v12, 2, {v(vLANE)}")
            e(f"buffer_store_dword {v(vSTAMP)}, v12, {srd(R_WS)}, {sT0} offen")
        e("s_endpgm")

    def check_flags(self, line, tag, tmp, tmp2):
        e = self.e
        issue = self.word_addr("hid", tmp2) + [
                 f"s_add_u32 s46, {sOWN}, {INBOX + 128*line}",
                 f"buffer_load_dword {v(tmp)}, {v(tmp2)}, {srd(R_WS)}, s46 offen sc1"]

        def test():
            ok = e.newlabel("ready")
            e(f"s_add_u32 {sT1}, {sE}, {tag}\nv_cmp_eq_u32 vcc, {sT1}, {v(tmp)}")
            e(f"s_cmp_eq_u64 vcc, exec\ns_cbranch_scc1 {ok}")
            s0 = e.begin_region()
            self.poll(line, tag, "hid", tmp, tmp2)
            e.end_region(s0, ok)
        return issue, test

    def mlp(self):
        e, c = self.e, self.c
        NS, SLOT, NSTREAM = 8, 20480, 27
        vD1, vD2 = 16, 20
        vR1, vR2 = 26, 30
        vA1, vA2 = 34, 36
        ACC1, ACC, WK = 96, 128, 192
        X, U = 96, 116
        XA, BB = 0, 160
        sM0C, sH, sHS, sR2 = "s15", "s89", "s90", "s91"
        LINES, TAGS = (3, 5, 6), (TAG_HID, TAG_HID2, TAG_HID3)

        self.mk_srd(R_1A, P_W1, 640 * 3072)
        self.mk_srd(R_2A, P_W2, 1536 * 1280)
        e(f"s_bfe_u32 s93, {sOWN}, 0x7000a\ns_lshl_b32 s93, s93, 2\ns_add_u32 s93, s93, {sW}")
        e(f"s_mul_i32 s93, s93, 3840\nv_min_u32 v247, 29, {v(vLANE)}\nv_lshlrev_b32 v247, 7, v247")
        e(f"s_lshl_b32 {sM0B}, {sW}, 12\ns_lshl_b32 {sM0C}, {sW}, 10\ns_add_u32 {sM0C}, {sM0C}, 16384")
        e(f"v_lshrrev_b32 v12, 3, {v(vLANE)}\nv_and_b32 v13, 7, {v(vLANE)}\nv_and_b32 v14, 2, v12")
        e("v_xor_b32 v14, v13, v14\nv_lshlrev_b32 v14, 4, v14\nv_mul_u32_u24 v15, 0xc00, v12\nv_add_u32 v14, v14, v15")
        e(f"s_and_b32 {sT0}, {sW}, 1\ns_mul_i32 {sT0}, {sT0}, 98304\ns_mul_i32 {sT1}, {sJ}, 384")
        e(f"s_add_u32 {sT0}, {sT0}, {sT1}")
        for i in range(4):
            e(f"s_add_u32 {sT2}, {sT0}, {23552*i}\nv_add_u32 {v(vD1+i)}, {sT2}, v14")
            if i & 1:
                e(f"v_xor_b32 {v(vD1+i)}, 64, {v(vD1+i)}")
        self.rot_init(sA, 10, 2048, True)
        e(f"s_lshr_b32 {sT2}, {sW}, 1\ns_lshl_b32 {sT2}, {sT2}, 11\ns_add_u32 {sWO1}, {sA}, {sT2}")
        e(f"s_cmp_eq_u32 {sWO1}, 20480\ns_cselect_b32 {sWO1}, 0, {sWO1}\ns_mul_i32 {sWO1}, {sWO1}, 96")

        def wrap(reg, inc):
            return [f"s_add_u32 {reg}, {reg}, {inc}", f"s_sub_u32 {sT3}, {reg}, 1966080", f"s_cselect_b32 {reg}, {reg}, {sT3}"]

        def dma(b):
            base = (b % NS) * SLOT
            ld = lambda r, d, so, imm: f"buffer_load_dwordx4 {v(r)}, {srd(d)}, {so} offen offset:{imm} lds"
            if b < 15:
                return ([f"s_add_u32 m0, {sM0B}, {base}"] + [ld(vD1 + i, R_1A, sWO1, 1024 * i) for i in range(4)]
                        + wrap(sWO1, 393216 + (128 if b % 5 == 4 else 0)))
            return ([f"s_add_u32 m0, {sM0B}, {base}"] + [ld(vD2 + i, R_2A, sWO2, 1024 * i) for i in range(4)]
                    + [f"s_add_u32 m0, {sM0C}, {base}", ld(vD2 + 4, R_2A, sWO2, 0)]
                    + wrap(sWO2, 491520 + (81920 if (b - 15) % 4 == 3 else 0)))

        pa, pl, pb = c["mpre_a"], c["mpre_st"], c["mpre_b"]
        self.issue_dma(dma, range(pa))
        e(f"v_lshrrev_b32 v12, 3, {v(vLANE)}\nv_and_b32 v13, 7, {v(vLANE)}")
        e("v_and_b32 v14, 6, v12\nv_xor_b32 v14, v13, v14\nv_lshlrev_b32 v14, 4, v14")
        e("v_mul_u32_u24 v15, 0x500, v12\nv_add_u32 v14, v14, v15")

        def row0(sub):
            e(f"s_and_b32 {sT3}, {sub}, 1\ns_lshl_b32 {sT3}, {sT3}, 5\ns_bfe_u32 {sub}, {sub}, 0x10001")
            e(f"s_mul_i32 {sub}, {sub}, 192\ns_add_u32 {sub}, {sub}, {sT3}")
        e(f"s_add_u32 {sT0}, {sJ}, {sW}")
        row0(sT0)
        e(f"s_mul_i32 {sT0}, {sT0}, 1280\ns_lshl_b32 {sT1}, {sJ}, 7\ns_add_u32 {sT0}, {sT0}, {sT1}")
        for i in range(4):
            e(f"s_add_u32 {sT1}, {sT0}, {9216*i}\nv_add_u32 {v(vD2+i)}, {sT1}, v14")
        e(f"s_mov_b32 {sT0}, {sJ}")
        row0(sT0)
        e(f"s_lshl_b32 {sT1}, {sW}, 3\ns_add_u32 {sT0}, {sT0}, {sT1}\ns_mul_i32 {sT0}, {sT0}, 1280")
        e(f"s_lshr_b32 {sT1}, {sJ}, 2\ns_lshl_b32 {sT1}, {sT1}, 7\ns_add_u32 {sT0}, {sT0}, {sT1}")
        e(f"s_add_u32 {sT0}, {sT0}, 1024\nv_add_u32 {v(vD2+4)}, {sT0}, v14")
        self.rot_init(sR2, 4, 4096, False)
        e(f"s_mul_i32 {sWO2}, {sR2}, 120")
        e(f"v_bfe_u32 v12, {v(vLANE)}, 2, 2\nv_lshrrev_b32 v13, 4, {v(vLANE)}\nv_and_b32 v14, 3, {v(vLANE)}")
        e("v_lshlrev_b32 v14, 3, v14\nv_and_b32 v10, 1, v13\nv_lshrrev_b32 v11, 1, v12\nv_lshl_add_u32 v10, v10, 1, v11")
        e("v_lshl_add_u32 v14, v10, 5, v14")
        for r, sh in ((vR1, 3), (vR2, 2)):
            e(f"v_lshl_add_u32 v15, v13, {sh}, v12\nv_lshl_add_u32 v15, v15, 7, v14")
            for f in range(4):
                e(f"v_xor_b32 {v(r+f)}, {32*f}, v15")
        for p in range(4):
            e(f"s_add_u32 {sT0}, {sJ}, {p}\ns_and_b32 {sT0}, {sT0}, 3\ns_lshl_b32 {sT0}, {sT0}, 10")
            e(f"v_add_u32 {v(vA2+2*p)}, {sT0}, {v(vL16B)}\nv_add_u32 {v(vA2+2*p+1)}, 49152, {v(vA2+2*p)}")
        e(f"v_add_u32 {v(vA1)}, 20480, {v(vL16B)}\nv_add_u32 {v(vA1+1)}, 49152, {v(vL16B)}")
        e(f"s_mul_i32 {sABEG}, {sRB}, 163840\ns_mul_i32 {sT0}, {sW}, 40960\ns_add_u32 {sABEG}, {sABEG}, {sT0}")
        e(f"s_add_u32 {sABEG}, {sABEG}, {XNS}\ns_add_u32 {sAEND}, {sABEG}, 20480\ns_add_u32 {sA}, {sA}, {sABEG}")
        e(f"s_mul_i32 {sH}, {sRB}, 393216\ns_mul_i32 {sT0}, {sW}, 98304\ns_add_u32 {sH}, {sH}, {sT0}")
        e(f"s_add_u32 {sH}, {sH}, {HM}\ns_lshl_b32 {sHS}, {sJ}, 11\ns_add_u32 {sHS}, {sHS}, {sH}")
        self.stamp(1)
        toks = lambda r: [(i, ("dma", b)) for b in r for i in dma(b)]
        self.ln_compute(X, U, SCR, toks(range(pa, pa + pl)))
        self.stamp(2)
        self.issue_dma(dma, range(pa + pl, pa + pl + pb))
        visible = {0}
        self.stamp(3)
        self.poll(2, TAG_XN, "xn", 12, 13)
        self.stamp(4)

        cur = {vR1: 0, vR2: 0}
        par = [0]

        def step(b, last, reg, offs, mk, tile=None):
            want = (b % NS) // 3
            d, cur[reg] = (want - cur[reg]) * 61440, want
            rd = [f"v_add_u32 {v(reg+f)}, {d & 0xFFFFFFFF}, {v(reg+f)}" for f in range(4)] if d else []
            so = (b % NS) % 3 * SLOT
            par[0] ^= 1
            bb = BB + 32 * par[0]
            rd += [f"ds_read_b64_tr_b16 {a(bb + 4*n + 2*j2,2)}, {v(reg + (n & 3 if tile is None else tile))} offset:{so + o + dj*j2}"
                   for n, (o, dj) in enumerate(offs) for j2 in range(2)]
            mf = [mk(n, m, bb + 4 * n) for n in range(len(offs)) for m in range(2)]
            return dict(blk=b, last=last, mf=mf, rd=rd, vm=[], alu=[])

        mf16 = lambda d, x, y, first: f"v_mfma_f32_16x16x32_bf16 {v(d,4)}, {a(x,4)}, {a(y,4)}, {0 if first else v(d,4)}"
        steps = []
        for r in range(3):
            acc = ACC1 + 32 * (r & 1)
            for gs in range(20):
                steps.append(step(5 * r + gs // 4, gs & 3 == 3, vR1, [((gs & 3) * 4096, 512)] * 4,
                                  lambda n, m, w_: mf16(acc + 8 * n + 4 * m, w_, XA + 8 * gs + 4 * m, gs == 0)))
        for gs in range(44):
            p = gs & 3
            offs = [(p * 4096, 2048)] * 4 + ([(16384, 2048)] * 4 if p == 0 else [])
            steps.append(step(15 + gs // 4, p == 3, vR2, offs,
                              lambda n, m, w_: mf16(ACC + 8 * n + 4 * m, XA + 8 * (gs % 16) + 4 * m, w_, gs == 0)))
        steps.append(step(26, False, vR2, [(16384, 2048)] * 4,
                          lambda n, m, w_: mf16(ACC + 32 + 8 * n + 4 * m, XA + 96 + 4 * m, w_, False)))
        for T in range(4):
            steps.append(step(26, T == 3, vR2, [(p * 4096, 2048) for p in range(4)],
                              lambda n, m, w_: mf16(ACC + 8 * T + 4 * m, XA + 96 + 8 * n + 4 * m, w_, False), tile=T))

        def aload1(gs):
            out = [f"buffer_load_dwordx4 {a(XA + 8*gs + 4*m,4)}, {v(vA1 if m else vL16B)}, {srd(R_WS)}, {sA} "
                   f"offen offset:{1024*(gs&1)} sc1" for m in range(2)]
            return out + (self.adv(sA, 2048, sAEND, sABEG) if gs & 1 else [])

        def aload2(gs):
            out = []
            if gs % 16 == 0:
                out += [f"s_add_u32 {sABEG}, {sH}, {1024*gs}", f"s_add_u32 {sAEND}, {sABEG}, 16384", f"s_add_u32 {sA}, {sR2}, {sABEG}"]
            out += [f"buffer_load_dwordx4 {a(XA + 8*(gs%16) + 4*m,4)}, {v(vA2 + 2*(gs&3) + m)}, {srd(R_WS)}, {sA} "
                    f"offen sc1" for m in range(2)]
            return out + (self.adv(sA, 4096, sAEND, sABEG) if gs & 3 == 3 else [])

        def relu_store(r, u, m):
            acc, d = ACC1 + 32 * (r & 1), WK + 4 * (2 * u + m)
            src = [acc + 8 * (2 * u + h) + 4 * m + 2 * k for h in range(2) for k in range(2)]
            out = [[(f"v_cvt_pk_bf16_f32 {v(d+k)}, {v(src[k])}, {v(src[k]+1)}", None)] for k in range(4)]
            out += [[(f"v_pk_max_i16 {v(d+k)}, {v(d+k)}, 0", None)] for k in range(4)]
            out[-1].append((f"buffer_store_dwordx4 {v(d,4)}, {v(vA1+1 if m else vL16B)}, {srd(R_WS)}, {sHS} "
                            f"offen offset:{1024*u} sc1", ("h", r)))
            if u and m:
                out[-1].append((f"s_add_u32 {sHS}, {sHS}, 16384", None))
            return out

        apre = c["ma_pre"]
        items = self.a_items(aload1, apre, 20, lambda g: 0, lambda g: g)
        steps[c["warm_m"]]["vm"].append([(f"buffer_load_dword v255, v247, {srd(R_2A)}, s93 offen", "junk")])
        for k in range(c["warm_m"] + 2, c["warm_m"] + 2 + c["quiet"]):
            steps[k]["quiet"] = True
        tests = (40 + c["test0"], 60 + c["test1"], 60 + c["test2"])
        for r in range(3):
            base = 20 * (r + 1)
            for n in range(4):
                steps[base + 1 + 2 * n]["alu"] += relu_store(r, n >> 1, n & 1)
            fl = steps[base + (c["flag01"] if r < 2 else c["flag2"])]
            assert fl["last"]
            fl["pre"] = lambda r=r: e.wait_tok(("h", r))
            fl["post"] = lambda r=r: self.send_flags(LINES[r], TAGS[r], "0xff00", sJ)
            issue, test = self.check_flags(LINES[r], TAGS[r], 10, 11)
            steps[tests[r] - c["lead"]]["vm"] += self.groups(issue)
            assert "pre" not in steps[tests[r]]
            steps[tests[r]]["pre"] = test
        items += self.a_items(aload2, 0, 48, lambda g: max(tests[g // 16], 41 + g if g < 16 else 45 + g), lambda g: min(60 + g, 105))
        sPM, sPX = "s96", "s97"

        def part_store(T):
            d = WK + 4 * (T & 3)
            out = [[(f"v_cvt_pk_bf16_f32 {v(d+k)}, {v(ACC + 8*T + 2*k)}, {v(ACC + 8*T + 2*k + 1)}", None)] for k in range(4)]
            if T < 4:
                out[-1].append((f"buffer_store_dwordx4 {v(d,4)}, {v(vL16B)}, {srd(R_WS)}, {sPM} offen offset:{1024*T} sc1", None))
            else:
                out[-1].append((f"buffer_store_dwordx4 {v(d,4)}, {v(vL16B)}, {srd(R_WS)}, {sPX} offen sc1", None))
                out[-1].append((f"s_add_u32 {sPX}, {sPX}, 32768", None))
            return out

        def part_setup():
            e(f"s_lshl_b32 {sT0}, {sRB}, 18\ns_lshl_b32 {sT1}, {sW}, 13\ns_add_u32 {sT0}, {sT0}, {sT1}\ns_add_u32 {sT0}, {sT0}, {PART}")
            e(f"s_lshl_b32 {sPM}, {sJ}, 15\ns_add_u32 {sPM}, {sPM}, {sT0}")
            e(f"s_and_b32 {sPX}, {sJ}, 4\ns_lshl_b32 {sPX}, {sPX}, 15\ns_add_u32 {sPX}, {sPX}, {sT0}")
            e(f"s_and_b32 {sT1}, {sJ}, 3\ns_lshl_b32 {sT1}, {sT1}, 10\ns_add_u32 {sPX}, {sPX}, {sT1}")
            e(f"s_add_u32 {sPX}, {sPX}, 4096")
        steps[100]["pre"] = part_setup
        for T, k in ((4, 105), (5, 105), (6, 106), (7, 106), (0, 107), (1, 107), (2, 108)):
            steps[k]["alu"] += part_store(T)
        for gs in range(apre):
            e("\n".join(aload1(gs)))
        self.pipeline(steps, dma, NS, NSTREAM, range(pa + pl + pb, NS), visible, items)
        self.stamp(12)

        self.emit_groups(part_store(3))
        self.stamp(13)
        e(f"s_and_b32 {sT3}, {sJ}, 3\ns_and_b32 {sT2}, {sJ}, 4\ns_lshl_b32 s92, 15, {sT2}\ns_mov_b32 s93, 0")
        e.wait_all()
        self.send_wave(4, TAG_PART, "s[92:93]", sT3, 2)
        self.epoch_bump()
        self.stamp(14)
        self.finish()

    def build(self):
        e = self.e
        self.entry()
        snap = e.begin_region()
        pend, nst = self.pending_stamp, self.nstamp
        self.chain = 0
        self.ssm()
        self.chain = 1
        e.vm, e.lg, e.hist = list(snap["vm"]), list(snap["lg"]), []
        self.pending_stamp, self.nstamp = pend, nst
        e.label("L_mlp")
        self.mlp()
        e.label("L_end")
        e("s_endpgm")
        ref = open(f"cdna_kernels/{NAME}.s.ref").read()
        head = ref.split("; Override launch")[0]
        out = head
        out += "; Persistent kernel: one workgroup per CU, SSM chain and MLP chain on separate workgroup sets.\n"
        out += f"; @launch grid=(256,1,1) block=(256,1,1) lds={LDS_BYTES}\n"
        out += '.amdgcn_target "amdgcn-amd-amdhsa--gfx950"\n.text\n'
        out += f".globl {KERNEL}\n.p2align 8\n.type {KERNEL},@function\n{KERNEL}:\n"
        out += e.text()
        out += f""".section .rodata,"a"
.p2align 6
.amdhsa_kernel {KERNEL}
  .amdhsa_next_free_vgpr 512
  .amdhsa_next_free_sgpr 102
  .amdhsa_accum_offset 256
  .amdhsa_group_segment_fixed_size 0
  .amdhsa_kernarg_size 120
  .amdhsa_user_sgpr_count 2
  .amdhsa_user_sgpr_kernarg_segment_ptr 1
  .amdhsa_system_sgpr_workgroup_id_x 1
  .amdhsa_float_denorm_mode_32 3
.end_amdhsa_kernel
"""
        return out


def parse_cfg(args):
    cfg = {}
    for s in args:
        k, val = s.split("=")
        cfg[k] = type(DEFAULTS[k])(int(val))
    return cfg


if __name__ == "__main__":
    path = sys.argv[1]
    g = Gen(**parse_cfg(sys.argv[2:]))
    open(path, "w").write(g.build())
    print(path, "lines", len(g.e.lines), "nop slots", g.e.nops)
```

```python
import os
import sys

sys.path.insert(0, os.path.dirname(os.path.abspath(__file__)))
from emit import Emitter

NAME = "parallel_sum__ssm_conv_s5__dense_activation_relu__prompt"
KERNEL = NAME + "_kernel"

INBOX = 0x0
CARRY = 0x40000
XNS = 0x300000
HS = 0x800000
HM = 0xD00000
PART = 0x1300000
STAMP = 0x1700000
WS_USED = 0x1800000

LDS_BYTES = 163840
SCR = 143360
SPIN_LIMIT = 1 << 15

TAG_HID2, TAG_XN, TAG_HID, TAG_PART, TAG_CARRY, TAG_HID3 = 16, 32, 48, 64, 80, 96

DEFAULTS = dict(
    pre_a=1, pre_st=1, pre_b=2, mpre_a=1, mpre_st=1, mpre_b=6,
    a_pre=2, a_pre2=4, ma_pre=4, cap=115, lat_a=6, lat_d=8, waits=2, span=75,
    skip_at=14, lazy0=10, lazy_gap=3, defer=1, peek=38, out_pol=1, mix=0, rj1=1, rj2=0,
    warm_m=29, quiet=4, flag01=15, flag2=15, test0=6, test1=8, test2=26, lead=5,
    diag=False, jitter=0, blkstamp=False, blkclk=False, stepstamp=-1, dump=False,
)

P_X, P_LRE, P_LIM, P_BRE, P_BIM, P_CRE, P_CIM, P_LDT = 16, 18, 20, 22, 24, 26, 28, 30
P_DSK, P_BX, P_W1, P_W2, P_OUT, P_DBG, P_WS = 32, 34, 36, 38, 40, 42, 44
R_X, R_WS, R_1A, R_1B, R_2A, R_2B, R_OUT, R_TMP = 48, 52, 56, 60, 64, 68, 72, 76
sRB, sJ, sW, sEC, sE, sCH, sOWN, sSPIN = "s3", "s4", "s5", "s6", "s7", "s8", "s9", "s10"
sT0, sT1, sT2, sT3 = "s11", "s12", "s13", "s14"
sWO1, sWO2 = "s80", "s81"
sA, sABEG, sAEND = "s83", "s84", "s85"
sM0A, sM0B = "s86", "s87"
sHALF = "s[94:95]"
sME = "s47"
sEX = "s[88:89]"
sMSK = [f"s[{90+2*k}:{91+2*k}]" for k in range(4)]
sST = ["s[98:99]", "s[100:101]"]


def v(a, n=1):
    return f"v{a}" if n == 1 else f"v[{a}:{a+n-1}]"


def a(b, n=1):
    return f"a{b}" if n == 1 else f"a[{b}:{b+n-1}]"


def srd(b):
    return f"s[{b}:{b+3}]"


vTID, vLANE, vL16B, vE, vINB, vFLG, vSTAMP = 0, 1, 2, 3, 4, 5, 6


class Gen:
    def __init__(self, **cfg):
        self.c = dict(DEFAULTS)
        self.c.update(cfg)
        self.e = Emitter()
        self.nstamp = 0
        self.chain = -1
        self.pending_stamp = None

    def stamp(self, k):
        if self.c["jitter"] and 0 < k < 15:
            e, lp, out = self.e, self.e.newlabel("jit"), self.e.newlabel("jitend")
            e(f"s_lshl_b32 s98, s2, 2\ns_add_u32 s98, s98, {sW}\ns_add_u32 s98, s98, {977 * k + self.c['jitter']}")
            e("s_mul_i32 s98, s98, 0x9e3779b1\ns_lshr_b32 s99, s98, 15\ns_xor_b32 s98, s98, s99\ns_mul_i32 s98, s98, 0x85ebca6b")
            e(f"s_lshr_b32 s99, s98, 30\ns_cmp_lg_u32 s99, 0\ns_cbranch_scc1 {out}\ns_bfe_u32 s98, s98, 0x60008")
            e.label(lp)
            e(f"s_sleep 8\ns_sub_u32 s98, s98, 1\ns_cbranch_scc0 {lp}")
            e.label(out)
        if not self.c["diag"]:
            return
        e = self.e
        self.flush_stamp()
        reg = sST[self.nstamp & 1]
        self.nstamp += 1
        e(f"s_memtime {reg}" if 16 <= k < 44 and self.c["blkclk"] else f"s_memrealtime {reg}")
        self.pending_stamp = (k, reg)

    def flush_stamp(self):
        if self.pending_stamp:
            k, reg = self.pending_stamp
            lo = reg[2:].split(":")[0]
            self.e(f"v_writelane_b32 {v(vSTAMP)}, s{lo}, {k}")
            self.pending_stamp = None

    def mk_srd(self, r, ptr, nbytes):
        e = self.e
        e(f"s_mov_b32 s{r}, s{ptr}\ns_mov_b32 s{r+1}, s{ptr+1}")
        e(f"s_mov_b32 s{r+2}, {nbytes}\ns_mov_b32 s{r+3}, 0x20000")

    def mk_srd_sel(self, r, p_lo, p_hi, nbytes):
        e = self.e
        e(f"s_cselect_b32 s{r}, s{p_lo}, s{p_hi}\ns_cselect_b32 s{r+1}, s{p_lo+1}, s{p_hi+1}")
        e(f"s_mov_b32 s{r+2}, {nbytes}\ns_mov_b32 s{r+3}, 0x20000")

    def cmul(self, d, x, y):
        e = self.e
        e(f"v_pk_mul_f32 {v(d,2)}, {v(x,2)}, {v(y,2)} op_sel:[0,0] op_sel_hi:[0,1]")
        e(f"v_pk_fma_f32 {v(d,2)}, {v(x,2)}, {v(y,2)}, {v(d,2)} op_sel:[1,1,0] op_sel_hi:[1,0,1] neg_lo:[1,0,0]")

    def round_bf16(self, r):
        e = self.e
        e(f"v_cvt_pk_bf16_f32 {v(r)}, {v(r)}, {v(r)}\nv_lshlrev_b32 {v(r)}, 16, {v(r)}")

    def rot_init(self, dst, nb, stride, by_j):
        e = self.e
        e(f"s_and_b32 {sT0}, {sRB}, 3\ns_mul_i32 {sT0}, {sT0}, {nb}\ns_lshr_b32 {sT0}, {sT0}, 2")
        e(f"s_lshr_b32 {sT1}, {sRB}, 2\ns_add_u32 {sT0}, {sT0}, {sT1}")
        if self.c["rj1" if by_j else "rj2"]:
            jb = 2 if self.c["mix"] else 3
            e(f"s_and_b32 {sT1}, {sJ}, {(1 << jb) - 1}\ns_mul_i32 {sT1}, {sT1}, {nb}\ns_lshr_b32 {sT1}, {sT1}, {jb}")
            e(f"s_add_u32 {sT0}, {sT0}, {sT1}")
        e(f"s_mul_hi_u32 {sT1}, {sT0}, {(2**32 + nb - 1) // nb}\ns_mul_i32 {sT1}, {sT1}, {nb}")
        e(f"s_sub_u32 {sT0}, {sT0}, {sT1}\ns_mul_i32 {dst}, {sT0}, {stride}")

    @staticmethod
    def adv(reg, stride, end, beg):
        return [f"s_add_u32 {reg}, {reg}, {stride}", f"s_cmp_eq_u32 {reg}, {end}",
                f"s_cselect_b32 {reg}, {beg}, {reg}"]

    def send_flags(self, line, tag, lanes, word):
        e = self.e
        skip = e.newlabel("nosend")
        e(f"s_cmp_lg_u32 {sW}, 0\ns_cbranch_scc1 {skip}")
        s0 = e.begin_region()
        e(f"v_add_u32 {v(vFLG)}, {tag}, {v(vE)}")
        e(f"s_lshl_b32 {sT0}, {word}, 2\ns_add_u32 {sT0}, {sT0}, {INBOX + 128*line}")
        e(f"s_mov_b64 exec, {lanes}")
        e(f"buffer_store_dword {v(vFLG)}, {v(vINB)}, {srd(R_WS)}, {sT0} offen sc1")
        e("s_mov_b64 exec, -1")
        e.end_region(s0, skip)

    def send_wave(self, line, tag, lanes, word, shift):
        e = self.e
        e(f"v_add_u32 {v(vFLG)}, {tag}, {v(vE)}\ns_lshl_b32 {sT0}, {sW}, {shift}\ns_add_u32 {sT0}, {sT0}, {word}")
        e(f"s_lshl_b32 {sT0}, {sT0}, 2\ns_add_u32 {sT0}, {sT0}, {INBOX + 128*line}\ns_mov_b64 exec, {lanes}")
        e(f"buffer_store_dword {v(vFLG)}, {v(vINB)}, {srd(R_WS)}, {sT0} offen sc1")
        e("s_mov_b64 exec, -1")

    @staticmethod
    def word_addr(kind, r):
        if kind == "xn":
            return [f"v_and_b32 {v(r)}, 2, {v(vLANE)}", f"v_and_b32 v15, 1, {v(vLANE)}", f"v_lshl_add_u32 {v(r)}, {v(r)}, 2, v15",
                    f"v_lshl_add_u32 {v(r)}, {sW}, 1, {v(r)}", f"v_lshlrev_b32 {v(r)}, 2, {v(r)}"]
        if kind == "part":
            return [f"v_and_b32 {v(r)}, 3, {v(vLANE)}", f"v_lshl_add_u32 {v(r)}, {sW}, 2, {v(r)}", f"v_lshlrev_b32 {v(r)}, 2, {v(r)}"]
        return [f"v_and_b32 {v(r)}, 7, {v(vLANE)}", f"v_lshlrev_b32 {v(r)}, 2, {v(r)}"]

    def poll(self, line, tag, kind, tmp, tmp2, touch=()):
        e = self.e
        lp, out = e.newlabel("poll"), e.newlabel("polled")
        e("\n".join(self.word_addr(kind, tmp2)))
        e(f"s_add_u32 {sT0}, {sOWN}, {INBOX + 128*line}\ns_add_u32 {sT1}, {sE}, {tag}")
        e.label(lp)
        e(f"buffer_load_dword {v(tmp)}, {v(tmp2)}, {srd(R_WS)}, {sT0} offen sc1")
        e("\n".join(touch), tok="junk")
        e(f"s_cmp_eq_u32 {sSPIN}, 0")
        e.wait_all(lg=False)
        e(f"s_cbranch_scc1 {out}\ns_sub_u32 {sSPIN}, {sSPIN}, 1")
        e(f"v_cmp_eq_u32 vcc, {sT1}, {v(tmp)}")
        e(f"s_cmp_eq_u64 vcc, exec\ns_cbranch_scc0 {lp}")
        e.label(out)

    def entry(self):
        e, c = self.e, self.c
        X = 96
        e("s_cmp_ge_u32 s2, 256\ns_cbranch_scc1 L_end")
        e("s_load_dwordx2 s[44:45], s[0:1], 112\ns_load_dwordx16 s[16:31], s[0:1], 0")
        e("s_load_dwordx8 s[32:39], s[0:1], 64\ns_load_dwordx4 s[40:43], s[0:1], 96")
        if c["diag"]:
            e(f"v_mov_b32 {v(vSTAMP)}, 0")
        self.stamp(0)
        mix = c["mix"]
        e(f"s_lshr_b32 {sT0}, s2, 3\ns_bfe_u32 {sCH}, s2, {0x10000 + (0, 3, 7)[mix]}\ns_xor_b32 {sCH}, {sCH}, 1")
        if mix:
            e(f"s_bfe_u32 {sT0}, s2, {0x40000 + (0, 4, 3)[mix]}")
        skip, here = e.newlabel("nopf"), e.newlabel("pc")
        e("s_getpc_b64 s[88:89]")
        e.label(here)
        e(f"s_cmp_eq_u32 {sCH}, 0\ns_cselect_b32 {sT1}, 0, L_mlp-{here}")
        e(f"s_mov_b32 {sT2}, L_end-{here}\ns_cselect_b32 {sT2}, L_mlp-{here}, {sT2}")
        e(f"s_lshl_b32 {sT3}, {sT0}, 7\ns_add_u32 {sT3}, {sT3}, {sT1}")
        e(f"v_lshl_add_u32 v12, v0, {11 if mix else 12}, {sT3}\nv_cmp_gt_u32 vcc, {sT2}, v12")
        e(f"s_and_saveexec_b64 s[90:91], vcc\ns_cbranch_execz {skip}")
        s0 = e.begin_region()
        e("v_mov_b32 v13, s89\nv_add_co_u32 v12, vcc, s88, v12\nv_addc_co_u32 v13, vcc, 0, v13, vcc")
        e("global_load_dword v255, v[12:13], off", tok="junk")
        e.end_region(s0, skip)
        e("s_mov_b64 exec, -1")
        if mix:
            e(f"s_and_b32 {sJ}, {sT0}, 3\ns_and_b32 {sT1}, s2, 1\ns_lshl_b32 {sT1}, {sT1}, 2\ns_add_u32 {sJ}, {sJ}, {sT1}")
            e(f"s_lshr_b32 {sT0}, {sT0}, 2\ns_bfe_u32 {sT1}, s2, 0x20001")
        else:
            e(f"s_and_b32 {sJ}, {sT0}, 7\ns_lshr_b32 {sT0}, {sT0}, 3\ns_bfe_u32 {sT1}, s2, 0x20001")
        e(f"s_lshr_b32 {sT2}, {sT1}, 1\ns_xor_b32 {sT1}, {sT1}, {sT2}")
        e(f"s_lshl_b32 {sT1}, {sT1}, 2\ns_add_u32 {sRB}, {sT1}, {sT0}")
        e("v_lshrrev_b32 v8, 5, v0\nv_and_b32 v9, 31, v0")
        e("v_and_b32 v10, 1, v8\nv_lshlrev_b32 v10, 2, v10\nv_bfe_u32 v11, v8, 1, 1\nv_add_u32 v10, v10, v11")
        e("v_lshrrev_b32 v11, 2, v8\nv_lshl_add_u32 v10, v11, 3, v10")
        e("v_mul_u32_u24 v10, 0x500, v10\nv_lshl_add_u32 v10, v9, 4, v10")
        e(f"s_and_b32 {sT1}, {sJ}, 1\ns_lshl_b32 {sT2}, {sCH}, 3\ns_add_u32 {sT1}, {sT1}, {sT2}\ns_lshl_b32 {sT1}, {sT1}, 1")
        e(f"s_lshr_b32 {sT0}, {sJ}, 1\ns_lshl_b32 {sT0}, {sT0}, 5\ns_add_u32 {sT0}, {sT0}, {sT1}")
        e(f"s_lshl_b32 {sT1}, {sRB}, 7\ns_add_u32 {sT0}, {sT0}, {sT1}\ns_mul_i32 {sT0}, {sT0}, 1280")
        e(f"s_mov_b32 s{R_X+2}, {2048*1280}\ns_mov_b32 s{R_X+3}, 0x20000")
        e("s_mov_b32 s94, 0xffff\ns_mov_b32 s95, 0xffff")
        e(f"s_mov_b32 s{R_X}, s{P_X}\ns_mov_b32 s{R_X+1}, s{P_X+1}")
        for n in range(3):
            if n == 2:
                e(f"s_mov_b64 exec, {sHALF}")
            e(f"buffer_load_dwordx4 {v(X+4*n,4)}, v10, {srd(R_X)}, {sT0} offen offset:{512*n}")
        e("s_mov_b64 exec, -1")
        e(f"v_lshrrev_b32 v7, 6, v0\nv_and_b32 {v(vLANE)}, 63, v0")
        e(f"v_readfirstlane_b32 {sW}, v7")
        e(f"v_lshlrev_b32 {v(vL16B)}, 4, {v(vLANE)}")
        e(f"s_lshl_b32 {sOWN}, {sCH}, 4\ns_add_u32 {sOWN}, {sOWN}, {sRB}")
        e(f"s_lshl_b32 {sOWN}, {sOWN}, 3\ns_add_u32 {sOWN}, {sOWN}, {sJ}\ns_lshl_b32 {sOWN}, {sOWN}, 10")
        e(f"s_mov_b32 {sSPIN}, {SPIN_LIMIT}")
        self.mk_srd(R_WS, P_WS, WS_USED)
        e(f"s_lshl_b32 {sME}, {sCH}, 3\ns_add_u32 {sME}, {sME}, {sJ}\ns_lshl_b32 {sT0}, {sRB}, 13")
        e(f"v_and_b32 v11, 7, {v(vLANE)}\nv_lshl_add_u32 {v(vINB)}, v11, 10, {sT0}")
        e(f"v_bfe_u32 v11, {v(vLANE)}, 3, 1\nv_lshl_add_u32 {v(vINB)}, v11, 17, {v(vINB)}")
        e(f"s_add_u32 {sT1}, {sJ}, 120\ns_lshl_b32 {sT1}, {sT1}, 10\nv_mov_b32 v11, {sT1}")
        e(f"v_cmp_gt_u32 vcc, 16, {v(vLANE)}")
        e(f"v_cndmask_b32 {v(vINB)}, v11, {v(vINB)}, vcc")
        e(f"buffer_load_dword {v(vE)}, {v(vINB)}, {srd(R_WS)}, 0 offen sc1")
        e(f"v_and_b32 v11, 7, {v(vLANE)}\nv_lshlrev_b32 v11, 7, v11")
        e(f"buffer_load_dword v255, v11, {srd(R_WS)}, {sOWN} offen", tok="junk")
        e(f"s_cmp_eq_u32 {sCH}, 0\ns_cbranch_scc0 L_mlp")

    def ln_compute(self, X, U, scr, fill_st, during_ack=None):
        e = self.e

        def parts(body):
            body(range(8))
            e(f"s_mov_b64 exec, {sHALF}")
            body(range(8, 12))
            e("s_mov_b64 exec, -1")

        def rowsum(r):
            e(f"v_add_f32 {v(r)}, {v(r)}, {v(r+1)}")
            for sh in (8, 4, 2, 1):
                e(f"v_add_f32_dpp {v(r)}, {v(r)}, {v(r)} row_ror:{sh} row_mask:0xf bank_mask:0xf")
            e(f"v_mov_b32 {v(r+1)}, {v(r)}\nv_permlane16_swap_b32 {v(r)}, {v(r+1)}\nv_add_f32 {v(r)}, {v(r)}, {v(r+1)}")

        def unpack(ks):
            for k in ks:
                e(f"v_lshlrev_b32 {v(U+2*k)}, 16, {v(X+k)}\nv_and_b32 {v(U+2*k+1)}, 0xffff0000, {v(X+k)}")
                if k == 0:
                    self.stamp(44)
                if k == 1:
                    e(f"v_pk_add_f32 v[12:13], {v(U,2)}, {v(U+2,2)}")
                elif k > 1:
                    e(f"v_pk_add_f32 v[12:13], v[12:13], {v(U+2*k,2)}")

        def centre(ks):
            for k in ks:
                e(f"v_pk_add_f32 {v(U+2*k,2)}, {v(U+2*k,2)}, v[14:15] op_sel_hi:[1,0] neg_lo:[0,1] neg_hi:[0,1]")
            for k in ks:
                if k == 0:
                    e(f"v_pk_mul_f32 v[12:13], {v(U,2)}, {v(U,2)}")
                else:
                    e(f"v_pk_fma_f32 v[12:13], {v(U+2*k,2)}, {v(U+2*k,2)}, v[12:13]")

        def scale(ks):
            for k in ks:
                e(f"v_pk_mul_f32 {v(U+2*k,2)}, {v(U+2*k,2)}, v[12:13] op_sel_hi:[1,0]")
                e(f"v_cvt_pk_bf16_f32 {v(X+k)}, {v(U+2*k)}, {v(U+2*k+1)}")
                if k & 3 == 3:
                    e(f"ds_write_b128 v10, {v(X+k-3,4)} offset:{1024*(k-3)}")

        inv_d = "0x3acccccd"
        e("v_and_b32 v10, 7, v9\nv_xor_b32 v10, v8, v10\nv_lshlrev_b32 v10, 4, v10\nv_lshl_add_u32 v10, v9, 7, v10")
        e(f"v_add_u32 v10, {scr}, v10\nv_lshrrev_b32 v8, 3, v0\nv_and_b32 v9, 7, v0\nv_xor_b32 v11, v8, v9")
        e(f"v_and_b32 v11, 7, v11\nv_lshlrev_b32 v11, 4, v11\nv_lshl_add_u32 v11, v8, 7, v11\nv_add_u32 v11, {scr}, v11")
        e("v_lshlrev_b32 v9, 4, v9\nv_lshl_add_u32 v9, v8, 8, v9")
        e(f"s_mul_i32 {sT2}, {sRB}, 163840\ns_mul_i32 {sT1}, {sJ}, 20480\ns_add_u32 {sT2}, {sT2}, {sT1}")
        e(f"s_lshl_b32 {sT1}, {sCH}, 7\ns_add_u32 {sT2}, {sT2}, {sT1}\ns_add_u32 s92, {sT2}, {XNS}")
        parts(unpack)
        rowsum(12)
        e(f"v_mul_f32 v12, {inv_d}, v12\nv_mov_b32 v14, v12")
        self.round_bf16(14)
        e("v_sub_f32 v15, v12, v14")
        parts(centre)
        rowsum(12)
        e(f"v_mul_f32 v12, {inv_d}, v12\nv_fma_f32 v12, -v15, v15, v12\nv_max_f32 v12, 0, v12")
        self.round_bf16(12)
        e("v_add_f32 v12, 0x3727c5ac, v12")
        self.round_bf16(12)
        e("v_sqrt_f32 v12, v12")
        self.round_bf16(12)
        e("v_rcp_f32 v12, v12")
        parts(scale)
        self.stamp(45)
        e.wait_lg()
        e("s_barrier")
        for k in range(3):
            e(f"ds_read_b128 {v(X+4*k,4)}, v11 offset:{4096*k}")
        e(f"buffer_store_dwordx4 {v(X,4)}, v9, {srd(R_WS)}, s92 offen sc1", tok="xn")
        e(f"s_add_u32 {sT2}, s92, 8192\ns_add_u32 {sT3}, s92, 16384")
        e(f"buffer_store_dwordx4 {v(X+4,4)}, v9, {srd(R_WS)}, {sT2} offen sc1", tok="xn")
        skip = e.newlabel("third")
        e.wait_lg()
        e(f"s_cmp_gt_u32 {sW}, 1\ns_cbranch_scc1 {skip}")
        s0 = e.begin_region()
        e(f"buffer_store_dwordx4 {v(X+8,4)}, v9, {srd(R_WS)}, {sT3} offen sc1", tok="xn")
        e.end_region(s0, skip)
        self.stamp(46)
        e(f"v_readlane_b32 {sE}, {v(vE)}, {sME}\nv_readlane_b32 {sEC}, {v(vE)}, 16")
        for ins, tok in fill_st:
            e(ins, tok=tok)
        if during_ack:
            during_ack()
        e.wait_tok("xn", ("dma", 0))
        e.wait_lg()
        self.stamp(47)
        e("s_barrier")
        self.send_flags(2, TAG_XN, "0xffff", sME)

    @staticmethod
    def groups(instrs, tok=None):
        out, cur = [], []
        for ins in instrs:
            cur.append((ins, tok))
            if ins.startswith("buffer_"):
                out.append(cur)
                cur = []
        if cur:
            out[-1] += cur
        return out

    def pipeline(self, steps, dma, ns, nstream, early, visible, aitems, lazy={}, keep=False):
        e, c = self.e, self.c
        last = {st["blk"]: k for k, st in enumerate(steps) if st["last"]}
        b0 = steps[0]["blk"]
        blocks = [(b, 0) for b in early]
        blocks += [(b - 1 + ns, last[b]) for b in sorted(last) if b > b0 and b - 1 + ns < nstream]
        ditems = [dict(r=max(r, lazy.get(b, 0)), d=last.get(b - 1, len(steps) + b), g=g)
                  for b, r in blocks for g in self.groups(dma(b), ("dma", b))]
        for prev, it in zip(ditems, ditems[1:]):
            if " m0," in it["g"][0][0]:
                prev["g"].append(it["g"].pop(0))
        streams = [(list(aitems), c["lat_a"]), (ditems, c["lat_d"])]
        credit = 0.0
        for k, st in enumerate(steps):
            credit = max(min(credit, 1.0), -1.0) + c["cap"] / 100 * len(st["mf"]) / 4 - len(st["vm"])
            credit -= sum(1 for g in st["alu"] for ins, _ in g if "buffer_" in ins)
            while True:
                heads = [(q[0]["d"] - lat, q) for q, lat in streams if q and q[0]["r"] <= k]
                if not heads:
                    break
                due = [h for h in heads if h[1][0]["d"] <= k + 1]
                if not due and (credit < 1 or st.get("quiet")):
                    break
                dl, q = min(due or heads, key=lambda h: h[0])
                st["vm"].append(q.pop(0)["g"])
                credit -= 1
        assert not streams[0][0] and all(it["r"] < it["d"] for it in aitems)
        if c["dump"]:
            for k, st in enumerate(steps):
                kinds = ["D%d" % g[0][1][1] if g[0][1] and g[0][1][0] == "dma" else "A" for g in st["vm"]]
                print(self.chain, k, st["blk"], " ".join(kinds), "ST" if st["alu"] else "", "pre" if st.get("pre") else "")
        for ins in steps[0]["rd"]:
            e(ins)
        for k, st in enumerate(steps):
            b = st["blk"]
            if c["stepstamp"] >= 0:
                if 0 <= k + 100 * (b0 > 0) - c["stepstamp"] < 28:
                    self.stamp(16 + k + 100 * (b0 > 0) - c["stepstamp"])
            elif c["blkstamp"] and (k == 0 or steps[k - 1]["last"]):
                self.stamp(16 + b)
            nxt = steps[k + 1] if k + 1 < len(steps) else None
            if st["last"]:
                release = b > b0 and b - 1 + ns < nstream
                need_vis = nxt is not None and nxt["blk"] not in visible
                if need_vis:
                    e.wait_tok(("dma", nxt["blk"]))
                    visible.add(nxt["blk"])
                if st.get("pre"):
                    st["pre"]()
                if release or need_vis or st.get("post"):
                    e("s_barrier")
                if st.get("post"):
                    st["post"]()
            elif st.get("pre"):
                st["pre"]()
            rd = nxt["rd"] if nxt is not None else []
            mm, vm = st["mf"], st["vm"]
            slots = [[] for _ in mm]
            nm, nw, span = len(mm), c["waits"], c["span"]
            for n, ins in enumerate(rd):
                slots[n * nm * span // (100 * len(rd))].append((ins, None))
            for n, g in enumerate(st["alu"]):
                slots[n * nm // len(st["alu"])] += g
            for n, g in enumerate(vm):
                slots[(2 * n + 1) * nm // (2 * len(vm))] += g
            cuts = [n * nm // nw for n in range(nw + 1)]
            for n, (ins, fl) in enumerate(zip(mm, slots)):
                if n in cuts:
                    e.wait_for(mm[n:cuts[cuts.index(n) + 1]])
                e(ins)
                for f_, tok in fl:
                    e(f_, tok=tok)
        rest = [it["g"] for it in ditems]
        if keep:
            return rest
        self.emit_groups(rest)

    def record(self, fn):
        real, lines = self.e, []
        self.e = lambda text, tok=None: lines.extend(x for x in text.split("\n") if x)
        fn(self.e)
        self.e = real
        return [[(x, None)] for x in lines]

    def emit_groups(self, gs):
        for g in gs:
            for ins, tok in g:
                self.e(ins, tok=tok)

    def a_items(self, aloads, first, count, rel, use):
        return [dict(r=rel(gs), d=use(gs), g=g) for gs in range(first, count) for g in self.groups(aloads(gs))]

    @staticmethod
    def mk_steps(first_blk, nblk, nst, mfmas, breads):
        return [dict(blk=first_blk + n, last=st == nst - 1, mf=mfmas(n, st), rd=breads(n, st), vm=[], alu=[])
                for n in range(nblk) for st in range(nst)]

    def issue_dma(self, dma, blocks):
        for b in blocks:
            for ins in dma(b):
                self.e(ins, tok=("dma", b))

    def ssm(self):
        e, c = self.e, self.c
        NS, SLOT = 7, 20480
        vDB, vDC = 16, 21
        vRB, vRC = 26, 32
        vA1, vCH8, vTC, vTW, vTRW, vTRR = 44, 45, 46, 47, 7, 8
        vL, vL4, vSC, vWP = 48, 58, 68, 78
        vL8, vL128, vSCL = 88, 90, 92
        ACC, SP, WK = 96, 176, 196
        X, U = 96, 116
        AR, BB, SK = 0, 64, 144

        e(f"s_and_b32 {sT0}, {sW}, 1\nv_lshl_add_u32 {v(vCH8)}, {sT0}, 6, {v(vLANE)}")
        e(f"s_mul_i32 {sT0}, {sJ}, 160\nv_lshl_add_u32 v12, {v(vCH8)}, 1, {sT0}")
        for k, p in enumerate((P_LRE, P_LIM, P_LDT)):
            self.mk_srd(R_TMP, p, 1280)
            e(f"buffer_load_ushort {v(WK+k)}, v12, {srd(R_TMP)}, 0 offen")
        e(f"s_lshl_b32 {sT1}, {sJ}, 4\ns_sub_u32 {sT1}, {sT1}, {sRB}\ns_mul_i32 {sT1}, {sT1}, 1280")
        e(f"s_add_u32 {sT1}, {sT1}, {CARRY + 15*1280}\nv_min_u32 v12, 9, {v(vLANE)}\nv_lshlrev_b32 v12, 7, v12")
        e(f"buffer_load_dword v255, v12, {srd(R_WS)}, {sT1} offen", tok="junk")
        e(f"s_cmp_lt_u32 {sW}, 2")
        self.mk_srd_sel(R_1A, P_BRE, P_BIM, 819200)
        self.mk_srd_sel(R_1B, P_BIM, P_BRE, 819200)
        self.mk_srd_sel(R_2A, P_CRE, P_CIM, 819200)
        self.mk_srd_sel(R_2B, P_CIM, P_CRE, 819200)
        e(f"s_and_b32 {sT0}, {sW}, 1\ns_lshr_b32 {sT1}, {sW}, 1")
        e(f"s_mul_i32 {sM0A}, {sT1}, 10240\ns_mul_i32 {sT2}, {sT0}, 3072\ns_add_u32 {sM0A}, {sM0A}, {sT2}")
        e(f"s_xor_b32 {sT1}, {sT1}, 1\ns_mul_i32 {sM0B}, {sT1}, 10240\ns_lshl_b32 {sT2}, {sT0}, 11")
        e(f"s_add_u32 {sM0B}, {sM0B}, {sT2}\ns_add_u32 {sM0B}, {sM0B}, 6144")
        e(f"v_lshrrev_b32 v12, 3, {v(vLANE)}\nv_and_b32 v13, 7, {v(vLANE)}\nv_lshrrev_b32 v14, 1, v12")
        e("v_xor_b32 v13, v13, v14\nv_lshlrev_b32 v13, 4, v13\nv_mul_u32_u24 v12, 0x500, v12\nv_add_u32 v12, v12, v13")
        for i in range(5):
            imm = 1024 * (i if i < 3 else i - 3)
            if i < 3:
                e(f"s_mul_i32 {sT1}, {sT0}, 3\ns_add_u32 {sT1}, {sT1}, {i}")
            else:
                e(f"s_lshl_b32 {sT1}, {sT0}, 1\ns_add_u32 {sT1}, {sT1}, {3 + i}")
            e(f"s_and_b32 {sT2}, {sT1}, 1\ns_lshl_b32 {sT2}, {sT2}, 6\nv_xor_b32 v13, {sT2}, v12")
            e(f"s_mul_i32 {sT2}, {sJ}, 10\ns_add_u32 {sT2}, {sT2}, {sT1}\ns_mul_i32 {sT2}, {sT2}, 10240")
            e(f"s_sub_u32 {sT2}, {sT2}, {imm}\nv_add_u32 {v(vDB+i)}, {sT2}, v13")
            e(f"s_lshl_b32 {sT2}, {sJ}, 3\ns_add_u32 {sT2}, {sT2}, {sT1}")
            e(f"s_lshl_b32 {sT3}, {sJ}, 1\ns_add_u32 {sT3}, {sT3}, {sT1}\ns_add_u32 {sT3}, {sT3}, 56")
            e(f"s_cmp_lt_u32 {sT1}, 8\ns_cselect_b32 {sT2}, {sT2}, {sT3}\ns_mul_i32 {sT2}, {sT2}, 10240")
            e(f"s_sub_u32 {sT2}, {sT2}, {imm}\nv_add_u32 {v(vDC+i)}, {sT2}, v13")
        self.rot_init(sWO1, 10, 128, True)
        self.rot_init(sWO2, 10, 128, False)

        def dma(b):
            ph2 = b >= 10
            ra, rb_, vb, so = (R_2A, R_2B, vDC, sWO2) if ph2 else (R_1A, R_1B, vDB, sWO1)
            base = (b % NS) * SLOT
            out = [f"s_add_u32 m0, {sM0A}, {base}"]
            out += [f"buffer_load_dwordx4 {v(vb+i)}, {srd(ra)}, {so} offen offset:{1024*i} lds" for i in range(3)]
            out += [f"s_add_u32 m0, {sM0B}, {base}"]
            out += [f"buffer_load_dwordx4 {v(vb+3+i)}, {srd(rb_)}, {so} offen offset:{1024*i} lds" for i in range(2)]
            return out + self.adv(so, 128, 1280, 0)

        pa, pl, pb = c["pre_a"], c["pre_st"], c["pre_b"]
        self.issue_dma(dma, range(pa))
        def consts():
            e(f"v_lshlrev_b32 {v(vCH8)}, 3, {v(vCH8)}\nv_add_u32 {v(vCH8)}, {SCR}, {v(vCH8)}")
            e(f"s_bitcmp0_b32 {sW}, 0\ns_cselect_b32 s88, -1, 0xffff\ns_cselect_b32 s89, -1, 0")
            skip = e.newlabel("noconst")
            e(f"s_cmp_gt_u32 {sW}, 1\ns_cbranch_scc1 {skip}")
            s0 = e.begin_region()
            e(f"s_mov_b64 exec, {sEX}")
            lre, lim, ldt = WK, WK + 1, WK + 2
            t = WK + 4
            for r in (lre, lim, ldt):
                e(f"v_lshlrev_b32 {v(r)}, 16, {v(r)}")
            log2e = "0x3fb8aa3b"
            e(f"v_mul_f32 {v(ldt)}, {log2e}, {v(ldt)}\nv_exp_f32 {v(ldt)}, {v(ldt)}")
            self.round_bf16(ldt)
            e(f"v_mul_f32 {v(t)}, {v(ldt)}, {v(lre)}\nv_mul_f32 {v(t+1)}, {v(ldt)}, {v(lim)}")
            e(f"v_mul_f32 {v(t)}, {log2e}, {v(t)}\nv_exp_f32 {v(t)}, {v(t)}")
            e(f"v_mul_f32 {v(t+1)}, 0.15915494, {v(t+1)}\nv_rndne_f32 {v(t+2)}, {v(t+1)}")
            e(f"v_sub_f32 {v(t+1)}, {v(t+1)}, {v(t+2)}")
            e(f"v_cos_f32 {v(t+2)}, {v(t+1)}\nv_sin_f32 {v(t+3)}, {v(t+1)}")
            L1 = WK + 8
            e(f"v_mul_f32 {v(L1)}, {v(t)}, {v(t+2)}\nv_mul_f32 {v(L1+1)}, {v(t)}, {v(t+3)}")
            e(f"v_mul_f32 {v(t)}, {v(lre)}, {v(lre)}\nv_fma_f32 {v(t)}, {v(lim)}, {v(lim)}, {v(t)}")
            e(f"v_rcp_f32 {v(t)}, {v(t)}\nv_add_f32 {v(t+1)}, -1.0, {v(L1)}\nv_add_f32 {v(t)}, {v(t)}, {v(t)}")
            e(f"v_mul_f32 {v(t+2)}, {v(t+1)}, {v(lre)}\nv_fma_f32 {v(t+2)}, {v(L1+1)}, {v(lim)}, {v(t+2)}")
            e(f"v_mul_f32 {v(t+3)}, {v(L1+1)}, {v(lre)}\nv_fma_f32 {v(t+3)}, -{v(t+1)}, {v(lim)}, {v(t+3)}")
            e(f"v_mul_f32 {v(vSCL)}, {v(t+2)}, {v(t)}\nv_mul_f32 {v(vSCL+1)}, {v(t+3)}, {v(t)}")
            L2, L4 = WK + 10, WK + 12
            self.cmul(L2, L1, L1)
            self.cmul(L4, L2, L2)
            self.cmul(vL8, L4, L4)
            e(f"ds_write_b64 {v(vCH8)}, {v(L1,2)} offset:10240")
            e(f"ds_write_b64 {v(vCH8)}, {v(L4,2)} offset:10880")
            e(f"ds_write_b64 {v(vCH8)}, {v(vSCL,2)} offset:11520")
            e(f"ds_write_b64 {v(vCH8)}, {v(vSCL,2)}")
            prev = vSCL
            for s in range(1, 16):
                d = WK + 14 + 2 * (s & 1)
                self.cmul(d, vL8, prev)
                e(f"ds_write_b64 {v(vCH8)}, {v(d,2)} offset:{640*s}")
                prev = d
            self.cmul(L1, vL8, vL8)
            self.cmul(L2, L1, L1)
            self.cmul(L1, L2, L2)
            self.cmul(vL128, L1, L1)
            e(f"ds_write_b64 {v(vCH8)}, {v(vL128,2)} offset:12160")
            e("s_mov_b64 exec, -1")
            e.wait_lg()
            e.end_region(s0, skip)

        SXN, SXR, SXP, SPF, SPR = SK, SK + 16, SK + 32, SK + 48, SK + 56
        vDS, vXM, vXP = 250, 94, 95
        sK = ["s90", "s91", "s96", "s97"]
        one = lambda *ins: [(i_, None) for i_ in ins]
        skip_ld = [one(f"buffer_load_dwordx4 {a(SXN + 8*f + 4*m,4)}, {v(vA1 if m else vL16B)}, {srd(R_WS)}, {sK[0]} "
                       f"offen offset:{1024*f} sc1") for f in range(2) for m in range(2)]
        skip_ld += [one("s_mov_b32 exec_hi, 0", f"buffer_load_dwordx4 {a(SPF + 4*m,4)}, {v(vA1 if m else vL16B)}, "
                        f"{srd(R_WS)}, {sK[1]} offen sc1", "s_mov_b64 exec, -1") for m in range(2)]
        skip_ld += [one(f"buffer_load_dwordx4 {a(SXR + 8*f + 4*m,4)}, {v(vXM)}, {srd(R_X)}, {sK[2]} "
                        f"offen offset:{2560*m + 64*f}") for m in range(2) for f in range(2)]
        skip_ld += [one("s_mov_b32 exec_lo, 0", f"buffer_load_dwordx4 {a(SPR + 4*m,4)}, {v(vXP)}, {srd(R_X)}, {sK[3]} "
                        f"offen offset:{2560*m}", "s_mov_b64 exec, -1") for m in range(2)]

        e(f"v_and_b32 v12, 15, {v(vLANE)}\nv_lshrrev_b32 v13, 4, {v(vLANE)}\nv_lshrrev_b32 v14, 1, v12")
        e("v_xor_b32 v15, v13, v14\nv_lshlrev_b32 v15, 4, v15\nv_lshl_add_u32 v15, v12, 7, v15")
        for k in range(3):
            e(f"v_add_u32 {v(vRB+2*k)}, {61440*k}, v15\nv_xor_b32 {v(vRB+2*k+1)}, 64, {v(vRB+2*k)}")
        e("v_and_b32 v15, 1, v13\nv_xor_b32 v15, v15, v14\nv_lshlrev_b32 v15, 4, v15\nv_lshl_add_u32 v15, v12, 7, v15")
        e("v_lshrrev_b32 v14, 1, v13\nv_mul_u32_u24 v14, 0x2800, v14\nv_add_u32 v15, v15, v14")
        for k in range(3):
            e(f"v_add_u32 {v(vRC+4*k)}, {61440*k}, v15")
            for st in range(1, 4):
                e(f"v_xor_b32 {v(vRC+4*k+st)}, {32*st}, {v(vRC+4*k)}")
        e(f"v_lshlrev_b32 {v(vTC)}, 3, v12\nv_add_u32 {v(vTC)}, {SCR}, {v(vTC)}")
        e(f"v_lshl_add_u32 v14, {sW}, 2, v13\nv_mul_u32_u24 v14, 0x280, v14\nv_add_u32 {v(vTW)}, v14, {v(vTC)}")
        e(f"v_add_u32 {v(vA1)}, 20480, {v(vL16B)}")
        e(f"s_mul_i32 {sABEG}, {sRB}, 163840\ns_mul_i32 {sT0}, {sW}, 40960\ns_add_u32 {sABEG}, {sABEG}, {sT0}")
        e(f"s_add_u32 {sABEG}, {sABEG}, {XNS}\ns_add_u32 {sAEND}, {sABEG}, 20480")
        self.rot_init(sA, 10, 2048, True)
        e(f"s_add_u32 {sA}, {sA}, {sABEG}")

        def late_setup(e):

            def rowoff(d, i):
                e(f"v_lshrrev_b32 {v(d)}, 2, {v(i)}\nv_lshlrev_b32 {v(d)}, 3, {v(d)}\nv_and_b32 v15, 1, {v(i)}")
                e(f"v_lshl_add_u32 {v(d)}, v15, 2, {v(d)}\nv_bfe_u32 v15, {v(i)}, 1, 1\nv_add_u32 {v(d)}, {v(d)}, v15")
                e(f"v_mul_u32_u24 {v(d)}, 0x500, {v(d)}")
            e(f"s_lshl_b32 {sK[0]}, {sJ}, 11\ns_add_u32 {sK[0]}, {sK[0]}, {sABEG}")
            e(f"s_lshl_b32 {sK[1]}, {sJ}, 9\ns_add_u32 {sK[1]}, {sK[1]}, {sABEG}\ns_add_u32 {sK[1]}, {sK[1]}, 16384")
            e(f"v_lshrrev_b32 v12, 2, {v(vLANE)}")
            rowoff(vXM, 12)
            e(f"v_and_b32 v15, 3, {v(vLANE)}\nv_lshl_add_u32 {v(vXM)}, v15, 4, {v(vXM)}")
            e(f"v_bfe_u32 v12, {v(vLANE)}, 1, 4")
            rowoff(vXP, 12)
            e(f"v_and_b32 v15, 1, {v(vLANE)}\nv_lshl_add_u32 {v(vXP)}, v15, 4, {v(vXP)}")
            e(f"s_lshl_b32 {sT0}, {sRB}, 2\ns_add_u32 {sT0}, {sT0}, {sW}\ns_mul_i32 {sT0}, {sT0}, 40960")
            e(f"s_lshl_b32 {sK[2]}, {sJ}, 7\ns_add_u32 {sK[2]}, {sK[2]}, {sT0}")
            e(f"s_lshl_b32 {sK[3]}, {sJ}, 5\ns_add_u32 {sK[3]}, {sK[3]}, {sT0}\ns_add_u32 {sK[3]}, {sK[3]}, 1024")
            self.mk_srd(R_TMP, P_DSK, 1280)
            e(f"v_and_b32 v12, 15, {v(vLANE)}\nv_lshlrev_b32 v12, 1, v12")
            e(f"s_lshl_b32 {sT1}, {sJ}, 7\ns_lshl_b32 {sT2}, {sJ}, 5\ns_add_u32 {sT2}, {sT2}, 1024")
            for T in range(5):
                so, imm = (sT1, 32 * T) if T < 4 else (sT2, 0)
                e(f"buffer_load_ushort {v(vDS+T)}, v12, {srd(R_TMP)}, {so} offen offset:{imm}")
            e(f"v_and_b32 v12, 15, {v(vLANE)}\nv_lshrrev_b32 v13, 4, {v(vLANE)}")
            e("v_lshrrev_b32 v14, 3, v12\nv_lshlrev_b32 v14, 2, v14\nv_xor_b32 v14, v14, v12\nv_lshlrev_b32 v14, 5, v14")
            e("v_lshrrev_b32 v15, 2, v12\nv_xor_b32 v15, v15, v13\nv_lshl_add_u32 v14, v15, 3, v14")
            e(f"s_lshl_b32 {sT0}, {sW}, 11\ns_add_u32 {sT0}, {sT0}, {SCR + 12288}\nv_add_u32 {v(vTRW)}, {sT0}, v14")
            for j2 in range(2):
                e(f"v_and_b32 v14, 1, v13\nv_xor_b32 v14, {j2}, v14\nv_lshlrev_b32 v14, 2, v14")
                e(f"v_lshl_add_u32 v14, v13, 3, v14\nv_bfe_u32 v15, {v(vLANE)}, 2, 2\nv_add_u32 v14, v14, v15")
                e(f"v_lshlrev_b32 v14, 5, v14\nv_lshlrev_b32 v15, 1, v13\nv_add_u32 v15, {j2}, v15")
                e(f"v_xor_b32 v15, v15, {v(vLANE)}\nv_and_b32 v15, 3, v15\nv_lshl_add_u32 v14, v15, 3, v14")
                e(f"v_add_u32 {v(vTRR+j2)}, {sT0}, v14")

        self.stamp(1)
        toks = lambda r: [(i, ("dma", b)) for b in r for i in dma(b)]
        self.ln_compute(X, U, 6 * SLOT, toks(range(pa, pa + pl)), consts)
        self.stamp(2)
        self.issue_dma(dma, range(pa + pl, pa + pl + pb))

        visible = {0}
        for g in range(5):
            e(f"ds_read_b64 {v(vL+2*g,2)}, {v(vTC)} offset:{10240 + 128*g}")
            e(f"ds_read_b64 {v(vL4+2*g,2)}, {v(vTC)} offset:{10880 + 128*g}")
            e(f"ds_read_b64 {v(vSC+2*g,2)}, {v(vTC)} offset:{11520 + 128*g}")
            e(f"ds_read_b64 {v(vWP+2*g,2)}, {v(vTW)} offset:{128*g}")
        e(f"ds_read_b64 {v(vL128,2)}, {v(vCH8)} offset:12160")
        self.stamp(3)
        self.poll(2, TAG_XN, "xn", 12, 13)
        self.stamp(4)

        acc = lambda g, cp, m: ACC + ((g * 2 + cp) * 2 + m) * 4

        def aload1(gs):
            st = gs & 1
            r = AR + (gs % 8) * 8
            out = [f"buffer_load_dwordx4 {a(r,4)}, {v(vL16B)}, {srd(R_WS)}, {sA} offen offset:{1024*st} sc1",
                   f"buffer_load_dwordx4 {a(r+4,4)}, {v(vA1)}, {srd(R_WS)}, {sA} offen offset:{1024*st} sc1"]
            return out + (self.adv(sA, 2048, sAEND, sABEG) if st else [])

        def bread1(n, st):
            slot = n % NS
            base, off = vRB + 2 * (slot // 3) + st, (slot % 3) * SLOT
            return [f"ds_read_b128 {a(BB + 40*st + 4*(2*g+cp),4)}, {v(base)} offset:{off + cp*10240 + g*2048}"
                    for g in range(5) for cp in range(2)]

        def mfma1(n, st):
            gs = 2 * n + st
            return [f"v_mfma_f32_16x16x32_bf16 {v(acc(g,cp,m),4)}, {a(AR + (gs%8)*8 + 4*m,4)}, "
                    f"{a(BB + 40*st + 4*(2*g+cp),4)}, {v(acc(g,cp,m),4) if gs else 0}"
                    for g in range(5) for cp in range(2) for m in range(2)]

        steps = self.mk_steps(0, 10, 2, mfma1, bread1)
        items = self.a_items(aload1, c["a_pre"], 20, lambda g: g - 7, lambda g: g)
        late = self.record(late_setup)
        for n, g in enumerate(late):
            steps[1 + n * 8 // len(late)]["alu"].append(g)
        for n, g in enumerate(skip_ld):
            steps[c["skip_at"] + n // 2]["vm"].append(g)
        for gs in range(c["a_pre"]):
            e("\n".join(aload1(gs)))
        lazy = {10 + n: c["lazy0"] + c["lazy_gap"] * n for n in range(7)}
        upto = 10 + NS - c["defer"]
        rest = self.pipeline(steps, dma, NS, min(upto, 9 + NS), range(pa + pl + pb, NS), visible, items, lazy, keep=True)
        if not c["defer"]:
            rest += self.groups(dma(9 + NS), ("dma", 9 + NS))
        self.stamp(5)

        pair = lambda g, cp, jj: acc(g, cp, jj >> 1) + 2 * (jj & 1)
        LR = "op_sel:[0,0,0] op_sel_hi:[0,1,1]"
        LI = "op_sel:[1,0,0] op_sel_hi:[1,1,1]"
        NEG = "neg_lo:[1,0,0] neg_hi:[1,0,0]"
        for g in range(5):
            Lg = v(vL + 2 * g, 2)
            sre, sim = pair(g, 0, 0), pair(g, 1, 0)
            for jj in range(1, 4):
                dre, dim = (WK, WK + 2) if jj == 2 else (SP + 4 * g, SP + 4 * g + 2)
                e(f"v_pk_fma_f32 {v(dre,2)}, {Lg}, {v(sre,2)}, {v(pair(g,0,jj),2)} {LR}")
                e(f"v_pk_fma_f32 {v(dim,2)}, {Lg}, {v(sim,2)}, {v(pair(g,1,jj),2)} {LR}")
                e(f"v_pk_fma_f32 {v(dre,2)}, {Lg}, {v(sim,2)}, {v(dre,2)} {LI} {NEG}")
                e(f"v_pk_fma_f32 {v(dim,2)}, {Lg}, {v(sre,2)}, {v(dim,2)} {LI}")
                sre, sim = dre, dim
            l4r, l4i, d = vL4 + 2 * g, vL4 + 2 * g + 1, WK + 4 + 2 * (g & 1)
            e(f"v_fma_f32 {v(d)}, {v(l4r)}, {v(sre)}, {v(sre+1)}")
            e(f"v_fma_f32 {v(d+1)}, {v(l4r)}, {v(sim)}, {v(sim+1)}")
            e(f"v_fma_f32 {v(d)}, -{v(l4i)}, {v(sim)}, {v(d)}")
            e(f"v_fma_f32 {v(d+1)}, {v(l4i)}, {v(sre)}, {v(d+1)}")
            e(f"ds_write_b64 {v(vTW)}, {v(d,2)} offset:{128*g}")
        e.wait_lg()
        e("s_barrier")
        self.stamp(6)

        skip = e.newlabel("nocomb")
        e(f"s_cmp_gt_u32 {sW}, 1\ns_cbranch_scc1 {skip}")
        s0 = e.begin_region()
        e(f"s_mov_b64 exec, {sEX}")
        SL = WK
        for s in range(16):
            e(f"ds_read_b64 {v(SL+2*s,2)}, {v(vCH8)} offset:{640*s}")
        for s in range(1, 16):
            e(f"v_pk_fma_f32 {v(SL+2*s,2)}, {v(vL8,2)}, {v(SL+2*s-2,2)}, {v(SL+2*s,2)} {LR}")
            e(f"v_pk_fma_f32 {v(SL+2*s,2)}, {v(vL8,2)}, {v(SL+2*s-2,2)}, {v(SL+2*s,2)} "
              "op_sel:[1,1,0] op_sel_hi:[1,0,1] neg_lo:[1,0,0]")
        MSG = SL + 30
        e(f"v_subrev_u32 v12, {SCR}, {v(vCH8)}\nv_lshlrev_b32 v12, 1, v12")
        e(f"s_add_u32 {sT0}, {sEC}, {TAG_CARRY}\nv_mov_b32 {v(MSG+2)}, {sT0}\nv_mov_b32 {v(MSG+3)}, {sT0}")
        e(f"s_lshl_b32 {sT1}, {sJ}, 4\ns_sub_u32 {sT1}, {sT1}, {sRB}\ns_mul_i32 {sT1}, {sT1}, 1280")
        e(f"s_add_u32 {sT1}, {sT1}, {CARRY + 15*1280}")
        e(f"buffer_store_dwordx4 {v(MSG,4)}, v12, {srd(R_WS)}, {sT1} offen sc1")
        e(f"v_mov_b32 v14, 0\nv_mov_b32 v15, 0\nds_write_b64 {v(vCH8)}, v[14:15]")
        for s in range(1, 16):
            d = WK + 36 + 2 * (s & 1)
            self.cmul(d, vSCL, SL + 2 * s - 2)
            e(f"ds_write_b64 {v(vCH8)}, {v(d,2)} offset:{640*s}")
        e("s_mov_b64 exec, -1")
        e.end_region(s0, skip)
        self.emit_groups(rest)
        self.stamp(7)

        def scale_pairs(g, re, im):
            Sg = v(vSC + 2 * g, 2)
            e(f"v_pk_mul_f32 v[14:15], {Sg}, {v(im,2)} op_sel:[1,0] op_sel_hi:[1,1] neg_lo:[1,0] neg_hi:[1,0]")
            e(f"v_pk_mul_f32 {v(im,2)}, {Sg}, {v(im,2)} op_sel:[0,0] op_sel_hi:[0,1]")
            e(f"v_pk_fma_f32 {v(im,2)}, {Sg}, {v(re,2)}, {v(im,2)} {LI}")
            e(f"v_pk_fma_f32 {v(re,2)}, {Sg}, {v(re,2)}, v[14:15] {LR}")
        for g in range(5):
            scale_pairs(g, SP + 4 * g, SP + 4 * g + 2)
            for jj in range(4):
                scale_pairs(g, pair(g, 0, jj), pair(g, 1, jj))
        self.stamp(8)

        skip = e.newlabel("nocarry")
        e(f"s_cmp_lt_u32 {sW}, 2\ns_cbranch_scc1 {skip}")
        s0 = e.begin_region()
        e(f"s_lshl_b32 {sT0}, {sJ}, 4\ns_sub_u32 {sT0}, {sT0}, {sRB}\ns_mul_i32 {sT0}, {sT0}, 1280")
        e(f"s_add_u32 {sT0}, {sT0}, {CARRY + 16*1280}")
        e(f"s_add_u32 s{R_TMP}, s{P_WS}, {sT0}\ns_addc_u32 s{R_TMP+1}, s{P_WS+1}, 0")
        e(f"s_mul_i32 s{R_TMP+2}, {sRB}, 1280\ns_mov_b32 s{R_TMP+3}, 0x20000")
        e(f"s_add_u32 {sT1}, {sEC}, {TAG_CARRY}\ns_mul_i32 {sT1}, {sT1}, {sRB}")
        e(f"s_mov_b64 exec, {sEX}")
        MG = 196
        vMA = [10, 11, 12, 13, 14]
        e(f"v_subrev_u32 v10, {SCR}, {v(vCH8)}\nv_lshlrev_b32 v10, 1, v10")
        for k in range(1, 5):
            e(f"v_add_u32 v{10+k}, {3840*k}, v10")
        lp, out = e.newlabel("cpoll"), e.newlabel("cpolled")
        e.label(lp)
        mreg = lambda dl: MG + 4 * dl if dl < 13 else (vDB, vRB)[dl - 13]
        for dl in range(15):
            e(f"buffer_load_dwordx3 {v(mreg(dl),3)}, v{vMA[dl//3]}, {srd(R_TMP)}, 0 offen offset:{1280*(dl%3)} sc1")
        e(f"s_cmp_eq_u32 {sSPIN}, 0")
        e.wait_all(lg=False)
        e(f"s_cbranch_scc1 {out}\ns_sub_u32 {sSPIN}, {sSPIN}, 1")
        e(f"v_add3_u32 v15, {v(mreg(0)+2)}, {v(mreg(1)+2)}, {v(mreg(2)+2)}")
        for k in range(3, 15, 2):
            e(f"v_add3_u32 v15, v15, {v(mreg(k)+2)}, {v(mreg(k+1)+2)}")
        e(f"v_cmp_eq_u32 vcc, {sT1}, v15")
        e(f"s_cmp_eq_u64 vcc, exec\ns_cbranch_scc0 {lp}")
        e.label(out)
        for dl in range(13, -1, -1):
            x, y = mreg(dl), mreg(dl + 1)
            e(f"v_pk_fma_f32 {v(x,2)}, {v(vL128,2)}, {v(y,2)}, {v(x,2)} {LR}")
            e(f"v_pk_fma_f32 {v(x,2)}, {v(vL128,2)}, {v(y,2)}, {v(x,2)} op_sel:[1,1,0] op_sel_hi:[1,0,1] neg_lo:[1,0,0]")
        e(f"ds_write_b64 {v(vCH8)}, {v(mreg(0),2)} offset:10240")
        e("s_mov_b64 exec, -1")
        e.end_region(s0, skip)
        e.wait_all(vm=False)
        e("s_barrier")
        self.stamp(9)

        PG = WK
        for g in range(5):
            e(f"ds_read_b64 {v(PG+4*g,2)}, {v(vTW)} offset:{128*g}")
            e(f"ds_read_b64 {v(PG+4*g+2,2)}, {v(vTC)} offset:{10240 + 128*g}")
        e(f"s_mul_i32 {sABEG}, {sRB}, 327680\ns_mul_i32 {sT0}, {sW}, 81920\ns_add_u32 {sABEG}, {sABEG}, {sT0}")
        e(f"s_add_u32 {sABEG}, {sABEG}, {HS}\ns_add_u32 {sAEND}, {sABEG}, 40960")
        e(f"s_mul_i32 {sT2}, {sJ}, 5120\ns_add_u32 {sT2}, {sT2}, {sABEG}")
        e(f"v_add_u32 {v(vA1)}, 40960, {v(vL16B)}")
        HF = WK + 20
        CV = 12

        def pass2():
            for g in range(5):
                p, gg, w_ = PG + 4 * g, PG + 4 * g + 2, vWP + 2 * g
                hre, him = SP + 4 * g, SP + 4 * g + 2
                l4r, l4i = vL4 + 2 * g, vL4 + 2 * g + 1
                e(f"v_fma_f32 {v(p)}, {v(w_)}, {v(gg)}, {v(p)}\nv_fma_f32 {v(p+1)}, {v(w_)}, {v(gg+1)}, {v(p+1)}")
                e(f"v_fma_f32 {v(p)}, -{v(w_+1)}, {v(gg+1)}, {v(p)}\nv_fma_f32 {v(p+1)}, {v(w_+1)}, {v(gg)}, {v(p+1)}")
                e(f"v_fma_f32 {v(hre+1)}, {v(l4r)}, {v(p)}, {v(hre)}\nv_fma_f32 {v(him+1)}, {v(l4r)}, {v(p+1)}, {v(him)}")
                e(f"v_fma_f32 {v(hre+1)}, -{v(l4i)}, {v(p+1)}, {v(hre+1)}\nv_fma_f32 {v(him+1)}, {v(l4i)}, {v(p)}, {v(him+1)}")
                e(f"v_mov_b32 {v(hre)}, {v(p)}\nv_mov_b32 {v(him)}, {v(p+1)}")
                Lg = v(vL + 2 * g, 2)
                for jj in range(4):
                    ur, ui = pair(g, 0, jj), pair(g, 1, jj)
                    e(f"v_pk_fma_f32 {v(ur,2)}, {Lg}, {v(hre,2)}, {v(ur,2)} {LR}")
                    e(f"v_pk_fma_f32 {v(ui,2)}, {Lg}, {v(him,2)}, {v(ui,2)} {LR}")
                    e(f"v_pk_fma_f32 {v(ur,2)}, {Lg}, {v(him,2)}, {v(ur,2)} {LI} {NEG}")
                    e(f"v_pk_fma_f32 {v(ui,2)}, {Lg}, {v(hre,2)}, {v(ui,2)} {LI}")
                    hre, him = ur, ui
                for m in range(2):
                    for cp in range(2):
                        r, sg, d = acc(g, cp, m), "-" if cp else "", CV + 2 * cp
                        e(f"v_cvt_pk_bf16_f32 {v(d)}, {sg}{v(r)}, {sg}{v(r+1)}")
                        e(f"v_cvt_pk_bf16_f32 {v(d+1)}, {sg}{v(r+2)}, {sg}{v(r+3)}")
                        e(f"ds_write_b64 {v(vTRW)}, {v(d,2)} offset:{1024*m + 512*cp}")
                hf = HF + 8 * (g & 1)
                for m in range(2):
                    for j2 in range(2):
                        e(f"ds_read_b64_tr_b16 {v(hf + 4*m + 2*j2,2)}, {v(vTRR+j2)} offset:{1024*m}")
                if g:
                    store_h(g - 1)
            store_h(4)

        def store_h(g):
            hf = HF + 8 * (g & 1)
            if g == 4:
                e(f"s_add_u32 {sT2}, {sT2}, 4096")
            for m in range(2):
                e(f"buffer_store_dwordx4 {v(hf+4*m,4)}, {v(vA1 if m else vL16B)}, {srd(R_WS)}, {sT2} offen offset:{1024*(g&3)} sc1", tok="h")
        e.wait_lg()
        pass2()
        self.stamp(10)
        e(f"v_and_b32 v12, 15, {v(vLANE)}\nv_lshrrev_b32 v13, 4, {v(vLANE)}")
        e("v_lshl_add_u32 v14, v12, 2, v13\nv_lshlrev_b32 v14, 2, v14")
        e("v_and_b32 v13, 1, v13\nv_lshl_add_u32 v13, v12, 1, v13\nv_lshlrev_b32 v13, 2, v13\nv_add_u32 v13, 0x80, v13")
        for k in range(16):
            e(f"ds_bpermute_b32 {a(SXP+k)}, v14, {a(SXR+k)}")
        e("s_mov_b32 exec_lo, 0")
        for k in range(8):
            e(f"ds_bpermute_b32 {a(SPF+k)}, v13, {a(SPR+k)}")
        e("s_mov_b64 exec, -1")
        e.wait_tok("h", ("dma", 10))
        e.wait_lg()
        e("s_barrier")
        self.send_flags(3, TAG_HID, "0xff", sJ)
        visible.add(10)

        acc2 = lambda T, m: ACC + (T * 2 + m) * 4
        e(f"v_and_b32 v12, 15, {v(vLANE)}\nv_lshrrev_b32 v13, 1, v12\nv_bfe_u32 v14, {v(vLANE)}, 4, 1")
        e("v_lshlrev_b32 v14, 2, v14\nv_sub_u32 v13, v13, v14\nv_and_b32 v12, 1, v12\nv_lshlrev_b32 v12, 4, v12")
        for k in range(4):
            e(f"v_cmp_eq_u32 {sMSK[k]}, {k}, v13")
        e(f"v_cmp_gt_u32 vcc, 32, {v(vLANE)}\nv_mov_b32 v15, 0x3f80")
        SEL = WK
        pick = [(v(vDS+T), "0") if T % 2 == 0 else ("0", v(vDS+T)) for T in range(4)]
        pick += [(v(vDS+4), "v15"), ("v15", "0"), ("0", "v15")]
        for n, (lo, hi) in enumerate(pick):
            e(f"v_cndmask_b32 v14, {hi}, {lo}, vcc\nv_lshlrev_b32 v14, v12, v14")
            for k in range(4):
                e(f"v_cndmask_b32 {v(SEL+4*n+k)}, 0, v14, {sMSK[k]}")
        for T in range(5):
            for m in range(2):
                src = SXN + 8 * (T >> 1) + 4 * m if T < 4 else SPF + 4 * m
                e(f"v_mfma_f32_16x16x32_bf16 {v(acc2(T,m),4)}, {a(src,4)}, {v(SEL+4*T,4)}, 0")
        for T in range(4):
            for m in range(2):
                e(f"v_mfma_f32_16x16x32_bf16 {v(acc2(T,m),4)}, {a(SXP + 8*(T>>1) + 4*m,4)}, {v(SEL+20+4*(T&1),4)}, {v(acc2(T,m),4)}")
        self.rot_init(sA, 10, 4096, False)
        e(f"s_add_u32 {sA}, {sA}, {sABEG}")
        self.poll(3, TAG_HID, "hid", 12, 13)
        self.stamp(11)

        def aload2(gs):
            st = gs & 3
            r = AR + (gs % 8) * 8
            out = [f"buffer_load_dwordx4 {a(r,4)}, {v(vL16B)}, {srd(R_WS)}, {sA} offen offset:{1024*st} sc1",
                   f"buffer_load_dwordx4 {a(r+4,4)}, {v(vA1)}, {srd(R_WS)}, {sA} offen offset:{1024*st} sc1"]
            return out + (self.adv(sA, 4096, sAEND, sABEG) if st == 3 else [])

        def bread2(n, st):
            slot = (10 + n) % NS
            base, off = vRC + 4 * (slot // 3) + st, (slot % 3) * SLOT
            return [f"ds_read_b128 {a(BB + 20*(st&1) + 4*T,4)}, {v(base)} offset:{off + T*2048}" for T in range(5)]

        def mfma2(n, st):
            gs = 4 * n + st
            return [f"v_mfma_f32_16x16x32_bf16 {v(acc2(T,m),4)}, {a(AR + (gs%8)*8 + 4*m,4)}, "
                    f"{a(BB + 20*(st&1) + 4*T,4)}, {v(acc2(T,m),4)}" for T in range(5) for m in range(2)]

        steps = self.mk_steps(10, 10, 4, mfma2, bread2)
        items = self.a_items(aload2, c["a_pre2"], 40, lambda g: g - 7, lambda g: g)
        for gs in range(c["a_pre2"]):
            e("\n".join(aload2(gs)))
        PL, sGOT, sPA, sPB = 176, "s93", "s46", "s1"
        part_ld = [f"buffer_load_dwordx4 {v(PL+4*k,4)}, {v(vL16B)}, {srd(R_WS)}, {sPB if k >= 4 else sPA} "
                   f"offen offset:{1024*(k&3)} sc1" for k in range(8)]

        def out_setup():
            self.mk_srd(R_OUT, P_OUT, 2048 * 2560)
            e(f"v_lshrrev_b32 v8, 4, {v(vLANE)}\nv_mul_u32_u24 v8, 0x5000, v8\nv_and_b32 v9, 15, {v(vLANE)}")
            e(f"v_lshl_add_u32 v8, v9, 2, v8\ns_mul_i32 {sT0}, {sJ}, 192\ns_sub_u32 {sT0}, 2048, {sT0}")
            e(f"v_add_u32 v9, {sT0}, v8")
            e(f"s_lshl_b32 {sPA}, {sOWN}, 5\ns_lshl_b32 {sT0}, {sW}, 13\ns_add_u32 {sPA}, {sPA}, {sT0}")
            e(f"s_add_u32 {sPA}, {sPA}, {PART}\ns_add_u32 {sPB}, {sPA}, 4096")
            e(f"s_lshl_b32 {sT0}, {sRB}, 2\ns_add_u32 {sT0}, {sT0}, {sW}\ns_mul_i32 {sT0}, {sT0}, 81920")
            e(f"s_lshl_b32 {sT1}, {sJ}, 8\ns_add_u32 {sT0}, {sT0}, {sT1}")
            for m in range(2):
                for r in range(4):
                    e(f"s_add_u32 {rows[4*m+r]}, {sT0}, {(4*(r&1) + 2*m + (r>>1)) * 2560}")
            e("\n".join(self.word_addr("part", 11)) + f"\ns_add_u32 {sGOT}, {sOWN}, {INBOX + 512}")

        def early():
            skip = e.newlabel("notyet")
            e(f"s_add_u32 {sT1}, {sE}, {TAG_PART}\nv_cmp_eq_u32 vcc, {sT1}, v10")
            e(f"s_cmp_eq_u64 vcc, exec\ns_cselect_b32 {sGOT}, 1, 0\ns_cbranch_scc0 {skip}")
            s0 = e.begin_region()
            e("\n".join(part_ld), tok="junk")
            e.end_region(s0, skip)
        rows = ["s88", "s89", "s90", "s91", "s94", "s95", "s96", "s97"]
        steps[26]["pre"] = out_setup
        steps[c["peek"] - 4]["vm"].append([(f"buffer_load_dword v10, v11, {srd(R_WS)}, {sGOT} offen sc1", None)])
        steps[c["peek"]]["pre"] = early
        self.pipeline(steps, dma, NS, 20, range(upto, 10 + NS), visible, items)
        self.stamp(12)

        late = e.newlabel("late")
        e(f"s_cmp_eq_u32 {sGOT}, 1\ns_cbranch_scc1 {late}")
        s0 = e.begin_region()
        self.poll(4, TAG_PART, "part", 12, 13, touch=part_ld)
        e("\n".join(part_ld), tok="junk")
        e.end_region(s0, late)
        self.stamp(13)
        e.wait_all(lg=False)
        for k in range(8):
            T = min(k, 4)
            for i in range(4):
                d = acc2(T, i >> 1) + 2 * (i & 1)
                t0 = 12 + 2 * (i & 1)
                e(f"v_lshlrev_b32 {v(t0)}, 16, {v(PL+4*k+i)}\nv_and_b32 {v(t0+1)}, 0xffff0000, {v(PL+4*k+i)}")
                e(f"v_pk_add_f32 {v(d,2)}, {v(d,2)}, {v(t0,2)}")
            if k < 4 or k == 7:
                for m in range(2):
                    for r in range(4):
                        e(f"buffer_store_dword {v(acc2(T,m)+r)}, {'v8' if T < 4 else 'v9'}, {srd(R_OUT)}, "
                          f"{rows[4*m+r]} offen offset:{64*T if T < 4 else 0} {('', 'sc1', 'nt', 'sc0 sc1', 'sc1 nt')[c['out_pol']]}")
        self.epoch_bump()
        self.stamp(14)
        self.finish()

    def epoch_bump(self):
        e = self.e
        skip = e.newlabel("nobump")
        e("s_barrier")
        e(f"s_cmp_lg_u32 {sW}, 0\ns_cbranch_scc1 {skip}")
        s0 = e.begin_region()
        e(f"s_add_u32 {sT0}, {sE}, 0x100\nv_mov_b32 v12, {sT0}\nv_mov_b32 v13, 0\ns_mov_b64 exec, 1")
        e(f"buffer_store_dword v12, v13, {srd(R_WS)}, {sOWN} offen sc1")
        e("s_mov_b64 exec, -1")
        e.end_region(s0, skip)

    def finish(self):
        e = self.e
        if self.c["diag"]:
            e.wait_all()
            self.stamp(15)
            self.flush_stamp()
            e(f"s_lshr_b32 {sT0}, {sOWN}, 10\ns_lshl_b32 {sT0}, {sT0}, 2\ns_add_u32 {sT0}, {sT0}, {sW}")
            e(f"s_lshl_b32 {sT0}, {sT0}, 8\ns_add_u32 {sT0}, {sT0}, {STAMP}")
            e(f"v_lshlrev_b32 v12, 2, {v(vLANE)}")
            e(f"buffer_store_dword {v(vSTAMP)}, v12, {srd(R_WS)}, {sT0} offen")
        e("s_endpgm")

    def check_flags(self, line, tag, tmp, tmp2):
        e = self.e
        issue = self.word_addr("hid", tmp2) + [
                 f"s_add_u32 s46, {sOWN}, {INBOX + 128*line}",
                 f"buffer_load_dword {v(tmp)}, {v(tmp2)}, {srd(R_WS)}, s46 offen sc1"]

        def test():
            ok = e.newlabel("ready")
            e(f"s_add_u32 {sT1}, {sE}, {tag}\nv_cmp_eq_u32 vcc, {sT1}, {v(tmp)}")
            e(f"s_cmp_eq_u64 vcc, exec\ns_cbranch_scc1 {ok}")
            s0 = e.begin_region()
            self.poll(line, tag, "hid", tmp, tmp2)
            e.end_region(s0, ok)
        return issue, test

    def mlp(self):
        e, c = self.e, self.c
        NS, SLOT, NSTREAM = 8, 20480, 27
        vD1, vD2 = 16, 20
        vR1, vR2 = 26, 30
        vA1, vA2 = 34, 36
        ACC1, ACC, WK = 96, 128, 192
        X, U = 96, 116
        XA, BB = 0, 160
        sM0C, sH, sHS, sR2 = "s15", "s89", "s90", "s91"
        LINES, TAGS = (3, 5, 6), (TAG_HID, TAG_HID2, TAG_HID3)

        self.mk_srd(R_1A, P_W1, 640 * 3072)
        self.mk_srd(R_2A, P_W2, 1536 * 1280)
        e(f"s_bfe_u32 s93, {sOWN}, 0x7000a\ns_lshl_b32 s93, s93, 2\ns_add_u32 s93, s93, {sW}")
        e(f"s_mul_i32 s93, s93, 3840\nv_min_u32 v247, 29, {v(vLANE)}\nv_lshlrev_b32 v247, 7, v247")
        e(f"s_lshl_b32 {sM0B}, {sW}, 12\ns_lshl_b32 {sM0C}, {sW}, 10\ns_add_u32 {sM0C}, {sM0C}, 16384")
        e(f"v_lshrrev_b32 v12, 3, {v(vLANE)}\nv_and_b32 v13, 7, {v(vLANE)}\nv_and_b32 v14, 2, v12")
        e("v_xor_b32 v14, v13, v14\nv_lshlrev_b32 v14, 4, v14\nv_mul_u32_u24 v15, 0xc00, v12\nv_add_u32 v14, v14, v15")
        e(f"s_and_b32 {sT0}, {sW}, 1\ns_mul_i32 {sT0}, {sT0}, 98304\ns_mul_i32 {sT1}, {sJ}, 384")
        e(f"s_add_u32 {sT0}, {sT0}, {sT1}")
        for i in range(4):
            e(f"s_add_u32 {sT2}, {sT0}, {23552*i}\nv_add_u32 {v(vD1+i)}, {sT2}, v14")
            if i & 1:
                e(f"v_xor_b32 {v(vD1+i)}, 64, {v(vD1+i)}")
        self.rot_init(sA, 10, 2048, True)
        e(f"s_lshr_b32 {sT2}, {sW}, 1\ns_lshl_b32 {sT2}, {sT2}, 11\ns_add_u32 {sWO1}, {sA}, {sT2}")
        e(f"s_cmp_eq_u32 {sWO1}, 20480\ns_cselect_b32 {sWO1}, 0, {sWO1}\ns_mul_i32 {sWO1}, {sWO1}, 96")

        def wrap(reg, inc):
            return [f"s_add_u32 {reg}, {reg}, {inc}", f"s_sub_u32 {sT3}, {reg}, 1966080", f"s_cselect_b32 {reg}, {reg}, {sT3}"]

        def dma(b):
            base = (b % NS) * SLOT
            ld = lambda r, d, so, imm: f"buffer_load_dwordx4 {v(r)}, {srd(d)}, {so} offen offset:{imm} lds"
            if b < 15:
                return ([f"s_add_u32 m0, {sM0B}, {base}"] + [ld(vD1 + i, R_1A, sWO1, 1024 * i) for i in range(4)]
                        + wrap(sWO1, 393216 + (128 if b % 5 == 4 else 0)))
            return ([f"s_add_u32 m0, {sM0B}, {base}"] + [ld(vD2 + i, R_2A, sWO2, 1024 * i) for i in range(4)]
                    + [f"s_add_u32 m0, {sM0C}, {base}", ld(vD2 + 4, R_2A, sWO2, 0)]
                    + wrap(sWO2, 491520 + (81920 if (b - 15) % 4 == 3 else 0)))

        pa, pl, pb = c["mpre_a"], c["mpre_st"], c["mpre_b"]
        self.issue_dma(dma, range(pa))
        e(f"v_lshrrev_b32 v12, 3, {v(vLANE)}\nv_and_b32 v13, 7, {v(vLANE)}")
        e("v_and_b32 v14, 6, v12\nv_xor_b32 v14, v13, v14\nv_lshlrev_b32 v14, 4, v14")
        e("v_mul_u32_u24 v15, 0x500, v12\nv_add_u32 v14, v14, v15")

        def row0(sub):
            e(f"s_and_b32 {sT3}, {sub}, 1\ns_lshl_b32 {sT3}, {sT3}, 5\ns_bfe_u32 {sub}, {sub}, 0x10001")
            e(f"s_mul_i32 {sub}, {sub}, 192\ns_add_u32 {sub}, {sub}, {sT3}")
        e(f"s_add_u32 {sT0}, {sJ}, {sW}")
        row0(sT0)
        e(f"s_mul_i32 {sT0}, {sT0}, 1280\ns_lshl_b32 {sT1}, {sJ}, 7\ns_add_u32 {sT0}, {sT0}, {sT1}")
        for i in range(4):
            e(f"s_add_u32 {sT1}, {sT0}, {9216*i}\nv_add_u32 {v(vD2+i)}, {sT1}, v14")
        e(f"s_mov_b32 {sT0}, {sJ}")
        row0(sT0)
        e(f"s_lshl_b32 {sT1}, {sW}, 3\ns_add_u32 {sT0}, {sT0}, {sT1}\ns_mul_i32 {sT0}, {sT0}, 1280")
        e(f"s_lshr_b32 {sT1}, {sJ}, 2\ns_lshl_b32 {sT1}, {sT1}, 7\ns_add_u32 {sT0}, {sT0}, {sT1}")
        e(f"s_add_u32 {sT0}, {sT0}, 1024\nv_add_u32 {v(vD2+4)}, {sT0}, v14")
        self.rot_init(sR2, 4, 4096, False)
        e(f"s_mul_i32 {sWO2}, {sR2}, 120")
        e(f"v_bfe_u32 v12, {v(vLANE)}, 2, 2\nv_lshrrev_b32 v13, 4, {v(vLANE)}\nv_and_b32 v14, 3, {v(vLANE)}")
        e("v_lshlrev_b32 v14, 3, v14\nv_and_b32 v10, 1, v13\nv_lshrrev_b32 v11, 1, v12\nv_lshl_add_u32 v10, v10, 1, v11")
        e("v_lshl_add_u32 v14, v10, 5, v14")
        for r, sh in ((vR1, 3), (vR2, 2)):
            e(f"v_lshl_add_u32 v15, v13, {sh}, v12\nv_lshl_add_u32 v15, v15, 7, v14")
            for f in range(4):
                e(f"v_xor_b32 {v(r+f)}, {32*f}, v15")
        for p in range(4):
            e(f"s_add_u32 {sT0}, {sJ}, {p}\ns_and_b32 {sT0}, {sT0}, 3\ns_lshl_b32 {sT0}, {sT0}, 10")
            e(f"v_add_u32 {v(vA2+2*p)}, {sT0}, {v(vL16B)}\nv_add_u32 {v(vA2+2*p+1)}, 49152, {v(vA2+2*p)}")
        e(f"v_add_u32 {v(vA1)}, 20480, {v(vL16B)}\nv_add_u32 {v(vA1+1)}, 49152, {v(vL16B)}")
        e(f"s_mul_i32 {sABEG}, {sRB}, 163840\ns_mul_i32 {sT0}, {sW}, 40960\ns_add_u32 {sABEG}, {sABEG}, {sT0}")
        e(f"s_add_u32 {sABEG}, {sABEG}, {XNS}\ns_add_u32 {sAEND}, {sABEG}, 20480\ns_add_u32 {sA}, {sA}, {sABEG}")
        e(f"s_mul_i32 {sH}, {sRB}, 393216\ns_mul_i32 {sT0}, {sW}, 98304\ns_add_u32 {sH}, {sH}, {sT0}")
        e(f"s_add_u32 {sH}, {sH}, {HM}\ns_lshl_b32 {sHS}, {sJ}, 11\ns_add_u32 {sHS}, {sHS}, {sH}")
        self.stamp(1)
        toks = lambda r: [(i, ("dma", b)) for b in r for i in dma(b)]
        self.ln_compute(X, U, SCR, toks(range(pa, pa + pl)))
        self.stamp(2)
        self.issue_dma(dma, range(pa + pl, pa + pl + pb))
        visible = {0}
        self.stamp(3)
        self.poll(2, TAG_XN, "xn", 12, 13)
        self.stamp(4)

        cur = {vR1: 0, vR2: 0}
        par = [0]

        def step(b, last, reg, offs, mk, tile=None):
            want = (b % NS) // 3
            d, cur[reg] = (want - cur[reg]) * 61440, want
            rd = [f"v_add_u32 {v(reg+f)}, {d & 0xFFFFFFFF}, {v(reg+f)}" for f in range(4)] if d else []
            so = (b % NS) % 3 * SLOT
            par[0] ^= 1
            bb = BB + 32 * par[0]
            rd += [f"ds_read_b64_tr_b16 {a(bb + 4*n + 2*j2,2)}, {v(reg + (n & 3 if tile is None else tile))} offset:{so + o + dj*j2}"
                   for n, (o, dj) in enumerate(offs) for j2 in range(2)]
            mf = [mk(n, m, bb + 4 * n) for n in range(len(offs)) for m in range(2)]
            return dict(blk=b, last=last, mf=mf, rd=rd, vm=[], alu=[])

        mf16 = lambda d, x, y, first: f"v_mfma_f32_16x16x32_bf16 {v(d,4)}, {a(x,4)}, {a(y,4)}, {0 if first else v(d,4)}"
        steps = []
        for r in range(3):
            acc = ACC1 + 32 * (r & 1)
            for gs in range(20):
                steps.append(step(5 * r + gs // 4, gs & 3 == 3, vR1, [((gs & 3) * 4096, 512)] * 4,
                                  lambda n, m, w_: mf16(acc + 8 * n + 4 * m, w_, XA + 8 * gs + 4 * m, gs == 0)))
        for gs in range(44):
            p = gs & 3
            offs = [(p * 4096, 2048)] * 4 + ([(16384, 2048)] * 4 if p == 0 else [])
            steps.append(step(15 + gs // 4, p == 3, vR2, offs,
                              lambda n, m, w_: mf16(ACC + 8 * n + 4 * m, XA + 8 * (gs % 16) + 4 * m, w_, gs == 0)))
        steps.append(step(26, False, vR2, [(16384, 2048)] * 4,
                          lambda n, m, w_: mf16(ACC + 32 + 8 * n + 4 * m, XA + 96 + 4 * m, w_, False)))
        for T in range(4):
            steps.append(step(26, T == 3, vR2, [(p * 4096, 2048) for p in range(4)],
                              lambda n, m, w_: mf16(ACC + 8 * T + 4 * m, XA + 96 + 8 * n + 4 * m, w_, False), tile=T))

        def aload1(gs):
            out = [f"buffer_load_dwordx4 {a(XA + 8*gs + 4*m,4)}, {v(vA1 if m else vL16B)}, {srd(R_WS)}, {sA} "
                   f"offen offset:{1024*(gs&1)} sc1" for m in range(2)]
            return out + (self.adv(sA, 2048, sAEND, sABEG) if gs & 1 else [])

        def aload2(gs):
            out = []
            if gs % 16 == 0:
                out += [f"s_add_u32 {sABEG}, {sH}, {1024*gs}", f"s_add_u32 {sAEND}, {sABEG}, 16384", f"s_add_u32 {sA}, {sR2}, {sABEG}"]
            out += [f"buffer_load_dwordx4 {a(XA + 8*(gs%16) + 4*m,4)}, {v(vA2 + 2*(gs&3) + m)}, {srd(R_WS)}, {sA} "
                    f"offen sc1" for m in range(2)]
            return out + (self.adv(sA, 4096, sAEND, sABEG) if gs & 3 == 3 else [])

        def relu_store(r, u, m):
            acc, d = ACC1 + 32 * (r & 1), WK + 4 * (2 * u + m)
            src = [acc + 8 * (2 * u + h) + 4 * m + 2 * k for h in range(2) for k in range(2)]
            out = [[(f"v_cvt_pk_bf16_f32 {v(d+k)}, {v(src[k])}, {v(src[k]+1)}", None)] for k in range(4)]
            out += [[(f"v_pk_max_i16 {v(d+k)}, {v(d+k)}, 0", None)] for k in range(4)]
            out[-1].append((f"buffer_store_dwordx4 {v(d,4)}, {v(vA1+1 if m else vL16B)}, {srd(R_WS)}, {sHS} "
                            f"offen offset:{1024*u} sc1", ("h", r)))
            if u and m:
                out[-1].append((f"s_add_u32 {sHS}, {sHS}, 16384", None))
            return out

        apre = c["ma_pre"]
        items = self.a_items(aload1, apre, 20, lambda g: 0, lambda g: g)
        steps[c["warm_m"]]["vm"].append([(f"buffer_load_dword v255, v247, {srd(R_2A)}, s93 offen", "junk")])
        for k in range(c["warm_m"] + 2, c["warm_m"] + 2 + c["quiet"]):
            steps[k]["quiet"] = True
        tests = (40 + c["test0"], 60 + c["test1"], 60 + c["test2"])
        for r in range(3):
            base = 20 * (r + 1)
            for n in range(4):
                steps[base + 1 + 2 * n]["alu"] += relu_store(r, n >> 1, n & 1)
            fl = steps[base + (c["flag01"] if r < 2 else c["flag2"])]
            assert fl["last"]
            fl["pre"] = lambda r=r: e.wait_tok(("h", r))
            fl["post"] = lambda r=r: self.send_flags(LINES[r], TAGS[r], "0xff00", sJ)
            issue, test = self.check_flags(LINES[r], TAGS[r], 10, 11)
            steps[tests[r] - c["lead"]]["vm"] += self.groups(issue)
            assert "pre" not in steps[tests[r]]
            steps[tests[r]]["pre"] = test
        items += self.a_items(aload2, 0, 48, lambda g: max(tests[g // 16], 41 + g if g < 16 else 45 + g), lambda g: min(60 + g, 105))
        sPM, sPX = "s96", "s97"

        def part_store(T):
            d = WK + 4 * (T & 3)
            out = [[(f"v_cvt_pk_bf16_f32 {v(d+k)}, {v(ACC + 8*T + 2*k)}, {v(ACC + 8*T + 2*k + 1)}", None)] for k in range(4)]
            if T < 4:
                out[-1].append((f"buffer_store_dwordx4 {v(d,4)}, {v(vL16B)}, {srd(R_WS)}, {sPM} offen offset:{1024*T} sc1", None))
            else:
                out[-1].append((f"buffer_store_dwordx4 {v(d,4)}, {v(vL16B)}, {srd(R_WS)}, {sPX} offen sc1", None))
                out[-1].append((f"s_add_u32 {sPX}, {sPX}, 32768", None))
            return out

        def part_setup():
            e(f"s_lshl_b32 {sT0}, {sRB}, 18\ns_lshl_b32 {sT1}, {sW}, 13\ns_add_u32 {sT0}, {sT0}, {sT1}\ns_add_u32 {sT0}, {sT0}, {PART}")
            e(f"s_lshl_b32 {sPM}, {sJ}, 15\ns_add_u32 {sPM}, {sPM}, {sT0}")
            e(f"s_and_b32 {sPX}, {sJ}, 4\ns_lshl_b32 {sPX}, {sPX}, 15\ns_add_u32 {sPX}, {sPX}, {sT0}")
            e(f"s_and_b32 {sT1}, {sJ}, 3\ns_lshl_b32 {sT1}, {sT1}, 10\ns_add_u32 {sPX}, {sPX}, {sT1}")
            e(f"s_add_u32 {sPX}, {sPX}, 4096")
        steps[100]["pre"] = part_setup
        for T, k in ((4, 105), (5, 105), (6, 106), (7, 106), (0, 107), (1, 107), (2, 108)):
            steps[k]["alu"] += part_store(T)
        for gs in range(apre):
            e("\n".join(aload1(gs)))
        self.pipeline(steps, dma, NS, NSTREAM, range(pa + pl + pb, NS), visible, items)
        self.stamp(12)

        self.emit_groups(part_store(3))
        self.stamp(13)
        e(f"s_and_b32 {sT3}, {sJ}, 3\ns_and_b32 {sT2}, {sJ}, 4\ns_lshl_b32 s92, 15, {sT2}\ns_mov_b32 s93, 0")
        e.wait_all()
        self.send_wave(4, TAG_PART, "s[92:93]", sT3, 2)
        self.epoch_bump()
        self.stamp(14)
        self.finish()

    def build(self):
        e = self.e
        self.entry()
        snap = e.begin_region()
        pend, nst = self.pending_stamp, self.nstamp
        self.chain = 0
        self.ssm()
        self.chain = 1
        e.vm, e.lg, e.hist = list(snap["vm"]), list(snap["lg"]), []
        self.pending_stamp, self.nstamp = pend, nst
        e.label("L_mlp")
        self.mlp()
        e.label("L_end")
        e("s_endpgm")
        ref = open(f"cdna_kernels/{NAME}.s.ref").read()
        head = ref.split("; Override launch")[0]
        out = head
        out += "; Persistent kernel: one workgroup per CU, SSM chain and MLP chain on separate workgroup sets.\n"
        out += f"; @launch grid=(256,1,1) block=(256,1,1) lds={LDS_BYTES}\n"
        out += '.amdgcn_target "amdgcn-amd-amdhsa--gfx950"\n.text\n'
        out += f".globl {KERNEL}\n.p2align 8\n.type {KERNEL},@function\n{KERNEL}:\n"
        out += e.text()
        out += f""".section .rodata,"a"
.p2align 6
.amdhsa_kernel {KERNEL}
  .amdhsa_next_free_vgpr 512
  .amdhsa_next_free_sgpr 102
  .amdhsa_accum_offset 256
  .amdhsa_group_segment_fixed_size 0
  .amdhsa_kernarg_size 120
  .amdhsa_user_sgpr_count 2
  .amdhsa_user_sgpr_kernarg_segment_ptr 1
  .amdhsa_system_sgpr_workgroup_id_x 1
  .amdhsa_float_denorm_mode_32 3
.end_amdhsa_kernel
"""
        return out


def parse_cfg(args):
    cfg = {}
    for s in args:
        k, val = s.split("=")
        cfg[k] = type(DEFAULTS[k])(int(val))
    return cfg


if __name__ == "__main__":
    path = sys.argv[1]
    g = Gen(**parse_cfg(sys.argv[2:]))
    open(path, "w").write(g.build())
    print(path, "lines", len(g.e.lines), "nop slots", g.e.nops)
```

```python
import os
import sys

sys.path.insert(0, os.path.dirname(os.path.abspath(__file__)))
from emit import Emitter

NAME = "parallel_sum__ssm_conv_s5__dense_activation_relu__prompt"
KERNEL = NAME + "_kernel"

INBOX = 0x0
CARRY = 0x40000
XNS = 0x300000
HS = 0x800000
HM = 0xD00000
PART = 0x1300000
STAMP = 0x1700000
WS_USED = 0x1800000

LDS_BYTES = 163840
SCR = 143360
SPIN_LIMIT = 1 << 15

TAG_HID2, TAG_XN, TAG_HID, TAG_PART, TAG_CARRY, TAG_HID3, TAG_PART2 = 16, 32, 48, 64, 80, 96, 112

DEFAULTS = dict(
    pre_a=1, pre_st=1, pre_b=2, mpre_a=1, mpre_st=1, mpre_b=6,
    a_pre=2, a_pre2=4, ma_pre=4, cap=115, lat_a=6, lat_d=8, waits=2, span=75,
    skip_at=14, lazy0=10, lazy_gap=3, defer=1, tail_s=2, tail_m=2, pa_test=0, pb_test=5, p_lead=3, e0=4, e2=3, pa_flag=1, mix=0, rj1=1, rj2=0,
    warm_m=29, quiet=4, flag01=15, flag2=15, test0=6, test1=8, test2=26, lead=5,
    diag=False, jitter=0, blkstamp=False, blkclk=False, stepstamp=-1, dump=False,
)

P_X, P_LRE, P_LIM, P_BRE, P_BIM, P_CRE, P_CIM, P_LDT = 16, 18, 20, 22, 24, 26, 28, 30
P_DSK, P_BX, P_W1, P_W2, P_OUT, P_DBG, P_WS = 32, 34, 36, 38, 40, 42, 44
R_X, R_WS, R_1A, R_1B, R_2A, R_2B, R_OUT, R_TMP = 48, 52, 56, 60, 64, 68, 72, 76
sRB, sJ, sW, sEC, sE, sCH, sOWN, sSPIN = "s3", "s4", "s5", "s6", "s7", "s8", "s9", "s10"
sT0, sT1, sT2, sT3 = "s11", "s12", "s13", "s14"
sWO1, sWO2 = "s80", "s81"
sA, sABEG, sAEND = "s83", "s84", "s85"
sM0A, sM0B = "s86", "s87"
sHALF = "s[94:95]"
sME = "s47"
sEX = "s[88:89]"
sMSK = [f"s[{90+2*k}:{91+2*k}]" for k in range(4)]
sST = ["s[98:99]", "s[100:101]"]


def v(a, n=1):
    return f"v{a}" if n == 1 else f"v[{a}:{a+n-1}]"


def a(b, n=1):
    return f"a{b}" if n == 1 else f"a[{b}:{b+n-1}]"


def srd(b):
    return f"s[{b}:{b+3}]"


vTID, vLANE, vL16B, vE, vINB, vFLG, vSTAMP = 0, 1, 2, 3, 4, 5, 6


class Gen:
    def __init__(self, **cfg):
        self.c = dict(DEFAULTS)
        self.c.update(cfg)
        self.e = Emitter()
        self.nstamp = 0
        self.chain = -1
        self.pending_stamp = None

    def stamp(self, k):
        if self.c["jitter"] and 0 < k < 15:
            e, lp, out = self.e, self.e.newlabel("jit"), self.e.newlabel("jitend")
            e(f"s_lshl_b32 s98, s2, 2\ns_add_u32 s98, s98, {sW}\ns_add_u32 s98, s98, {977 * k + self.c['jitter']}")
            e("s_mul_i32 s98, s98, 0x9e3779b1\ns_lshr_b32 s99, s98, 15\ns_xor_b32 s98, s98, s99\ns_mul_i32 s98, s98, 0x85ebca6b")
            e(f"s_lshr_b32 s99, s98, 30\ns_cmp_lg_u32 s99, 0\ns_cbranch_scc1 {out}\ns_bfe_u32 s98, s98, 0x60008")
            e.label(lp)
            e(f"s_sleep 8\ns_sub_u32 s98, s98, 1\ns_cbranch_scc0 {lp}")
            e.label(out)
        if not self.c["diag"]:
            return
        e = self.e
        self.flush_stamp()
        reg = sST[self.nstamp & 1]
        self.nstamp += 1
        e(f"s_memtime {reg}" if 16 <= k < 44 and self.c["blkclk"] else f"s_memrealtime {reg}")
        self.pending_stamp = (k, reg)

    def flush_stamp(self):
        if self.pending_stamp:
            k, reg = self.pending_stamp
            lo = reg[2:].split(":")[0]
            self.e(f"v_writelane_b32 {v(vSTAMP)}, s{lo}, {k}")
            self.pending_stamp = None

    def mk_srd(self, r, ptr, nbytes):
        e = self.e
        e(f"s_mov_b32 s{r}, s{ptr}\ns_mov_b32 s{r+1}, s{ptr+1}")
        e(f"s_mov_b32 s{r+2}, {nbytes}\ns_mov_b32 s{r+3}, 0x20000")

    def mk_srd_sel(self, r, p_lo, p_hi, nbytes):
        e = self.e
        e(f"s_cselect_b32 s{r}, s{p_lo}, s{p_hi}\ns_cselect_b32 s{r+1}, s{p_lo+1}, s{p_hi+1}")
        e(f"s_mov_b32 s{r+2}, {nbytes}\ns_mov_b32 s{r+3}, 0x20000")

    def cmul(self, d, x, y):
        e = self.e
        e(f"v_pk_mul_f32 {v(d,2)}, {v(x,2)}, {v(y,2)} op_sel:[0,0] op_sel_hi:[0,1]")
        e(f"v_pk_fma_f32 {v(d,2)}, {v(x,2)}, {v(y,2)}, {v(d,2)} op_sel:[1,1,0] op_sel_hi:[1,0,1] neg_lo:[1,0,0]")

    def round_bf16(self, r):
        e = self.e
        e(f"v_cvt_pk_bf16_f32 {v(r)}, {v(r)}, {v(r)}\nv_lshlrev_b32 {v(r)}, 16, {v(r)}")

    def rot_init(self, dst, nb, stride, by_j):
        e = self.e
        e(f"s_and_b32 {sT0}, {sRB}, 3\ns_mul_i32 {sT0}, {sT0}, {nb}\ns_lshr_b32 {sT0}, {sT0}, 2")
        e(f"s_lshr_b32 {sT1}, {sRB}, 2\ns_add_u32 {sT0}, {sT0}, {sT1}")
        if self.c["rj1" if by_j else "rj2"]:
            jb = 2 if self.c["mix"] else 3
            e(f"s_and_b32 {sT1}, {sJ}, {(1 << jb) - 1}\ns_mul_i32 {sT1}, {sT1}, {nb}\ns_lshr_b32 {sT1}, {sT1}, {jb}")
            e(f"s_add_u32 {sT0}, {sT0}, {sT1}")
        e(f"s_mul_hi_u32 {sT1}, {sT0}, {(2**32 + nb - 1) // nb}\ns_mul_i32 {sT1}, {sT1}, {nb}")
        e(f"s_sub_u32 {sT0}, {sT0}, {sT1}\ns_mul_i32 {dst}, {sT0}, {stride}")

    @staticmethod
    def adv(reg, stride, end, beg):
        return [f"s_add_u32 {reg}, {reg}, {stride}", f"s_cmp_eq_u32 {reg}, {end}",
                f"s_cselect_b32 {reg}, {beg}, {reg}"]

    def send_flags(self, line, tag, lanes, word):
        e = self.e
        skip = e.newlabel("nosend")
        e(f"s_cmp_lg_u32 {sW}, 0\ns_cbranch_scc1 {skip}")
        s0 = e.begin_region()
        e(f"v_add_u32 {v(vFLG)}, {tag}, {v(vE)}")
        e(f"s_lshl_b32 {sT0}, {word}, 2\ns_add_u32 {sT0}, {sT0}, {INBOX + 128*line}")
        e(f"s_mov_b64 exec, {lanes}")
        e(f"buffer_store_dword {v(vFLG)}, {v(vINB)}, {srd(R_WS)}, {sT0} offen sc1")
        e("s_mov_b64 exec, -1")
        e.end_region(s0, skip)

    def send_wave(self, line, tag, lanes, word, shift):
        e = self.e
        e(f"v_add_u32 {v(vFLG)}, {tag}, {v(vE)}\ns_lshl_b32 {sT0}, {sW}, {shift}\ns_add_u32 {sT0}, {sT0}, {word}")
        e(f"s_lshl_b32 {sT0}, {sT0}, 2\ns_add_u32 {sT0}, {sT0}, {INBOX + 128*line}\ns_mov_b64 exec, {lanes}")
        e(f"buffer_store_dword {v(vFLG)}, {v(vINB)}, {srd(R_WS)}, {sT0} offen sc1")
        e("s_mov_b64 exec, -1")

    @staticmethod
    def word_addr(kind, r):
        if kind == "xn":
            return [f"v_and_b32 {v(r)}, 2, {v(vLANE)}", f"v_and_b32 v15, 1, {v(vLANE)}", f"v_lshl_add_u32 {v(r)}, {v(r)}, 2, v15",
                    f"v_lshl_add_u32 {v(r)}, {sW}, 1, {v(r)}", f"v_lshlrev_b32 {v(r)}, 2, {v(r)}"]
        if kind == "part":
            return [f"v_and_b32 {v(r)}, 3, {v(vLANE)}", f"v_lshl_add_u32 {v(r)}, {sW}, 2, {v(r)}", f"v_lshlrev_b32 {v(r)}, 2, {v(r)}"]
        if kind == "wave":
            return [f"v_mov_b32 {v(r)}, {sW}", f"v_lshlrev_b32 {v(r)}, 2, {v(r)}"]
        return [f"v_and_b32 {v(r)}, 7, {v(vLANE)}", f"v_lshlrev_b32 {v(r)}, 2, {v(r)}"]

    def poll(self, line, tag, kind, tmp, tmp2, touch=()):
        e = self.e
        lp, out = e.newlabel("poll"), e.newlabel("polled")
        e("\n".join(self.word_addr(kind, tmp2)))
        e(f"s_add_u32 {sT0}, {sOWN}, {INBOX + 128*line}\ns_add_u32 {sT1}, {sE}, {tag}")
        e.label(lp)
        e(f"buffer_load_dword {v(tmp)}, {v(tmp2)}, {srd(R_WS)}, {sT0} offen sc1")
        e("\n".join(touch), tok="junk")
        e(f"s_cmp_eq_u32 {sSPIN}, 0")
        e.wait_all(lg=False)
        e(f"s_cbranch_scc1 {out}\ns_sub_u32 {sSPIN}, {sSPIN}, 1")
        e(f"v_cmp_eq_u32 vcc, {sT1}, {v(tmp)}")
        e(f"s_cmp_eq_u64 vcc, exec\ns_cbranch_scc0 {lp}")
        e.label(out)

    def entry(self):
        e, c = self.e, self.c
        X = 96
        e("s_cmp_ge_u32 s2, 256\ns_cbranch_scc1 L_end")
        e("s_load_dwordx2 s[44:45], s[0:1], 112\ns_load_dwordx16 s[16:31], s[0:1], 0")
        e("s_load_dwordx8 s[32:39], s[0:1], 64\ns_load_dwordx4 s[40:43], s[0:1], 96")
        if c["diag"]:
            e(f"v_mov_b32 {v(vSTAMP)}, 0")
        self.stamp(0)
        mix = c["mix"]
        e(f"s_lshr_b32 {sT0}, s2, 3\ns_bfe_u32 {sCH}, s2, {0x10000 + (0, 3, 7)[mix]}\ns_xor_b32 {sCH}, {sCH}, 1")
        if mix:
            e(f"s_bfe_u32 {sT0}, s2, {0x40000 + (0, 4, 3)[mix]}")
        skip, here = e.newlabel("nopf"), e.newlabel("pc")
        e("s_getpc_b64 s[88:89]")
        e.label(here)
        e(f"s_cmp_eq_u32 {sCH}, 0\ns_cselect_b32 {sT1}, 0, L_mlp-{here}")
        e(f"s_mov_b32 {sT2}, L_end-{here}\ns_cselect_b32 {sT2}, L_mlp-{here}, {sT2}")
        e(f"s_lshl_b32 {sT3}, {sT0}, 7\ns_add_u32 {sT3}, {sT3}, {sT1}")
        e(f"v_lshl_add_u32 v12, v0, {11 if mix else 12}, {sT3}\nv_cmp_gt_u32 vcc, {sT2}, v12")
        e(f"s_and_saveexec_b64 s[90:91], vcc\ns_cbranch_execz {skip}")
        s0 = e.begin_region()
        e("v_mov_b32 v13, s89\nv_add_co_u32 v12, vcc, s88, v12\nv_addc_co_u32 v13, vcc, 0, v13, vcc")
        e("global_load_dword v255, v[12:13], off", tok="junk")
        e.end_region(s0, skip)
        e("s_mov_b64 exec, -1")
        if mix:
            e(f"s_and_b32 {sJ}, {sT0}, 3\ns_and_b32 {sT1}, s2, 1\ns_lshl_b32 {sT1}, {sT1}, 2\ns_add_u32 {sJ}, {sJ}, {sT1}")
            e(f"s_lshr_b32 {sT0}, {sT0}, 2\ns_bfe_u32 {sT1}, s2, 0x20001")
        else:
            e(f"s_and_b32 {sJ}, {sT0}, 7\ns_lshr_b32 {sT0}, {sT0}, 3\ns_bfe_u32 {sT1}, s2, 0x20001")
        e(f"s_lshr_b32 {sT2}, {sT1}, 1\ns_xor_b32 {sT1}, {sT1}, {sT2}")
        e(f"s_lshl_b32 {sT1}, {sT1}, 2\ns_add_u32 {sRB}, {sT1}, {sT0}")
        e("v_lshrrev_b32 v8, 5, v0\nv_and_b32 v9, 31, v0")
        e("v_and_b32 v10, 1, v8\nv_lshlrev_b32 v10, 2, v10\nv_bfe_u32 v11, v8, 1, 1\nv_add_u32 v10, v10, v11")
        e("v_lshrrev_b32 v11, 2, v8\nv_lshl_add_u32 v10, v11, 3, v10")
        e("v_mul_u32_u24 v10, 0x500, v10\nv_lshl_add_u32 v10, v9, 4, v10")
        e(f"s_and_b32 {sT1}, {sJ}, 1\ns_lshl_b32 {sT2}, {sCH}, 3\ns_add_u32 {sT1}, {sT1}, {sT2}\ns_lshl_b32 {sT1}, {sT1}, 1")
        e(f"s_lshr_b32 {sT0}, {sJ}, 1\ns_lshl_b32 {sT0}, {sT0}, 5\ns_add_u32 {sT0}, {sT0}, {sT1}")
        e(f"s_lshl_b32 {sT1}, {sRB}, 7\ns_add_u32 {sT0}, {sT0}, {sT1}\ns_mul_i32 {sT0}, {sT0}, 1280")
        e(f"s_mov_b32 s{R_X+2}, {2048*1280}\ns_mov_b32 s{R_X+3}, 0x20000")
        e("s_mov_b32 s94, 0xffff\ns_mov_b32 s95, 0xffff")
        e(f"s_mov_b32 s{R_X}, s{P_X}\ns_mov_b32 s{R_X+1}, s{P_X+1}")
        for n in range(3):
            if n == 2:
                e(f"s_mov_b64 exec, {sHALF}")
            e(f"buffer_load_dwordx4 {v(X+4*n,4)}, v10, {srd(R_X)}, {sT0} offen offset:{512*n}")
        e("s_mov_b64 exec, -1")
        e(f"v_lshrrev_b32 v7, 6, v0\nv_and_b32 {v(vLANE)}, 63, v0")
        e(f"v_readfirstlane_b32 {sW}, v7")
        e(f"v_lshlrev_b32 {v(vL16B)}, 4, {v(vLANE)}")
        e(f"s_lshl_b32 {sOWN}, {sCH}, 4\ns_add_u32 {sOWN}, {sOWN}, {sRB}")
        e(f"s_lshl_b32 {sOWN}, {sOWN}, 3\ns_add_u32 {sOWN}, {sOWN}, {sJ}\ns_lshl_b32 {sOWN}, {sOWN}, 10")
        e(f"s_mov_b32 {sSPIN}, {SPIN_LIMIT}")
        self.mk_srd(R_WS, P_WS, WS_USED)
        e(f"s_lshl_b32 {sME}, {sCH}, 3\ns_add_u32 {sME}, {sME}, {sJ}\ns_lshl_b32 {sT0}, {sRB}, 13")
        e(f"v_and_b32 v11, 7, {v(vLANE)}\nv_lshl_add_u32 {v(vINB)}, v11, 10, {sT0}")
        e(f"v_bfe_u32 v11, {v(vLANE)}, 3, 1\nv_lshl_add_u32 {v(vINB)}, v11, 17, {v(vINB)}")
        e(f"s_add_u32 {sT1}, {sJ}, 120\ns_lshl_b32 {sT1}, {sT1}, 10\nv_mov_b32 v11, {sT1}")
        e(f"v_cmp_gt_u32 vcc, 16, {v(vLANE)}")
        e(f"v_cndmask_b32 {v(vINB)}, v11, {v(vINB)}, vcc")
        e(f"buffer_load_dword {v(vE)}, {v(vINB)}, {srd(R_WS)}, 0 offen sc1")
        e(f"v_and_b32 v11, 7, {v(vLANE)}\nv_lshlrev_b32 v11, 7, v11")
        e(f"buffer_load_dword v255, v11, {srd(R_WS)}, {sOWN} offen", tok="junk")
        e(f"s_cmp_eq_u32 {sCH}, 0\ns_cbranch_scc0 L_mlp")

    def ln_compute(self, X, U, scr, fill_st, during_ack=None):
        e = self.e

        def parts(body):
            body(range(8))
            e(f"s_mov_b64 exec, {sHALF}")
            body(range(8, 12))
            e("s_mov_b64 exec, -1")

        def rowsum(r):
            e(f"v_add_f32 {v(r)}, {v(r)}, {v(r+1)}")
            for sh in (8, 4, 2, 1):
                e(f"v_add_f32_dpp {v(r)}, {v(r)}, {v(r)} row_ror:{sh} row_mask:0xf bank_mask:0xf")
            e(f"v_mov_b32 {v(r+1)}, {v(r)}\nv_permlane16_swap_b32 {v(r)}, {v(r+1)}\nv_add_f32 {v(r)}, {v(r)}, {v(r+1)}")

        def unpack(ks):
            for k in ks:
                e(f"v_lshlrev_b32 {v(U+2*k)}, 16, {v(X+k)}\nv_and_b32 {v(U+2*k+1)}, 0xffff0000, {v(X+k)}")
                if k == 0:
                    self.stamp(44)
                if k == 1:
                    e(f"v_pk_add_f32 v[12:13], {v(U,2)}, {v(U+2,2)}")
                elif k > 1:
                    e(f"v_pk_add_f32 v[12:13], v[12:13], {v(U+2*k,2)}")

        def centre(ks):
            for k in ks:
                e(f"v_pk_add_f32 {v(U+2*k,2)}, {v(U+2*k,2)}, v[14:15] op_sel_hi:[1,0] neg_lo:[0,1] neg_hi:[0,1]")
            for k in ks:
                if k == 0:
                    e(f"v_pk_mul_f32 v[12:13], {v(U,2)}, {v(U,2)}")
                else:
                    e(f"v_pk_fma_f32 v[12:13], {v(U+2*k,2)}, {v(U+2*k,2)}, v[12:13]")

        def scale(ks):
            for k in ks:
                e(f"v_pk_mul_f32 {v(U+2*k,2)}, {v(U+2*k,2)}, v[12:13] op_sel_hi:[1,0]")
                e(f"v_cvt_pk_bf16_f32 {v(X+k)}, {v(U+2*k)}, {v(U+2*k+1)}")
                if k & 3 == 3:
                    e(f"ds_write_b128 v10, {v(X+k-3,4)} offset:{1024*(k-3)}")

        inv_d = "0x3acccccd"
        e("v_and_b32 v10, 7, v9\nv_xor_b32 v10, v8, v10\nv_lshlrev_b32 v10, 4, v10\nv_lshl_add_u32 v10, v9, 7, v10")
        e(f"v_add_u32 v10, {scr}, v10\nv_lshrrev_b32 v8, 3, v0\nv_and_b32 v9, 7, v0\nv_xor_b32 v11, v8, v9")
        e(f"v_and_b32 v11, 7, v11\nv_lshlrev_b32 v11, 4, v11\nv_lshl_add_u32 v11, v8, 7, v11\nv_add_u32 v11, {scr}, v11")
        e("v_lshlrev_b32 v9, 4, v9\nv_lshl_add_u32 v9, v8, 8, v9")
        e(f"s_mul_i32 {sT2}, {sRB}, 163840\ns_mul_i32 {sT1}, {sJ}, 20480\ns_add_u32 {sT2}, {sT2}, {sT1}")
        e(f"s_lshl_b32 {sT1}, {sCH}, 7\ns_add_u32 {sT2}, {sT2}, {sT1}\ns_add_u32 s92, {sT2}, {XNS}")
        parts(unpack)
        rowsum(12)
        e(f"v_mul_f32 v12, {inv_d}, v12\nv_mov_b32 v14, v12")
        self.round_bf16(14)
        e("v_sub_f32 v15, v12, v14")
        parts(centre)
        rowsum(12)
        e(f"v_mul_f32 v12, {inv_d}, v12\nv_fma_f32 v12, -v15, v15, v12\nv_max_f32 v12, 0, v12")
        self.round_bf16(12)
        e("v_add_f32 v12, 0x3727c5ac, v12")
        self.round_bf16(12)
        e("v_sqrt_f32 v12, v12")
        self.round_bf16(12)
        e("v_rcp_f32 v12, v12")
        parts(scale)
        self.stamp(45)
        e.wait_lg()
        e("s_barrier")
        for k in range(3):
            e(f"ds_read_b128 {v(X+4*k,4)}, v11 offset:{4096*k}")
        e(f"buffer_store_dwordx4 {v(X,4)}, v9, {srd(R_WS)}, s92 offen sc1", tok="xn")
        e(f"s_add_u32 {sT2}, s92, 8192\ns_add_u32 {sT3}, s92, 16384")
        e(f"buffer_store_dwordx4 {v(X+4,4)}, v9, {srd(R_WS)}, {sT2} offen sc1", tok="xn")
        skip = e.newlabel("third")
        e.wait_lg()
        e(f"s_cmp_gt_u32 {sW}, 1\ns_cbranch_scc1 {skip}")
        s0 = e.begin_region()
        e(f"buffer_store_dwordx4 {v(X+8,4)}, v9, {srd(R_WS)}, {sT3} offen sc1", tok="xn")
        e.end_region(s0, skip)
        self.stamp(46)
        e(f"v_readlane_b32 {sE}, {v(vE)}, {sME}\nv_readlane_b32 {sEC}, {v(vE)}, 16")
        for ins, tok in fill_st:
            e(ins, tok=tok)
        if during_ack:
            during_ack()
        e.wait_tok("xn", ("dma", 0))
        e.wait_lg()
        self.stamp(47)
        e("s_barrier")
        self.send_flags(2, TAG_XN, "0xffff", sME)

    @staticmethod
    def groups(instrs, tok=None):
        out, cur = [], []
        for ins in instrs:
            cur.append((ins, tok))
            if ins.startswith("buffer_"):
                out.append(cur)
                cur = []
        if cur:
            out[-1] += cur
        return out

    def pipeline(self, steps, dma, ns, nstream, early, visible, aitems, lazy={}, keep=False, due={}):
        e, c = self.e, self.c
        last = {st["blk"]: k for k, st in enumerate(steps) if st["last"]}
        b0 = steps[0]["blk"]
        blocks = [(b, 0) for b in early]
        blocks += [(b - 1 + ns, last[b]) for b in sorted(last) if b > b0 and b - 1 + ns < nstream]
        ditems = [dict(r=max(r, lazy.get(b, 0)), d=due.get(b, last.get(b - 1, len(steps) + b)), g=g)
                  for b, r in blocks for g in self.groups(dma(b), ("dma", b))]
        for prev, it in zip(ditems, ditems[1:]):
            if " m0," in it["g"][0][0]:
                prev["g"].append(it["g"].pop(0))
        streams = [(list(aitems), c["lat_a"]), (ditems, c["lat_d"])]
        credit = 0.0
        for k, st in enumerate(steps):
            credit = max(min(credit, 1.0), -1.0) + c["cap"] / 100 * len(st["mf"]) / 4 - len(st["vm"])
            credit -= sum(1 for g in st["alu"] for ins, _ in g if "buffer_" in ins)
            while True:
                heads = [(q[0]["d"] - lat, q) for q, lat in streams if q and q[0]["r"] <= k]
                if not heads:
                    break
                due = [h for h in heads if h[1][0]["d"] <= k + 1]
                if not due and (credit < 1 or st.get("quiet")):
                    break
                dl, q = min(due or heads, key=lambda h: h[0])
                st["vm"].append(q.pop(0)["g"])
                credit -= 1
        assert not streams[0][0] and all(it["r"] < it["d"] for it in aitems)
        if c["dump"]:
            for k, st in enumerate(steps):
                kinds = ["D%d" % g[0][1][1] if g[0][1] and g[0][1][0] == "dma" else "A" for g in st["vm"]]
                print(self.chain, k, st["blk"], " ".join(kinds), "ST" if st["alu"] else "", "pre" if st.get("pre") else "")
        for ins in steps[0]["rd"]:
            e(ins)
        for k, st in enumerate(steps):
            b = st["blk"]
            if c["stepstamp"] >= 0:
                if 0 <= k + 100 * (b0 > 0) - c["stepstamp"] < 28:
                    self.stamp(16 + k + 100 * (b0 > 0) - c["stepstamp"])
            elif c["blkstamp"] and (k == 0 or steps[k - 1]["last"]):
                self.stamp(16 + b)
            nxt = steps[k + 1] if k + 1 < len(steps) else None
            if st["last"]:
                release = b > b0 and b - 1 + ns < nstream
                need_vis = nxt is not None and nxt["blk"] not in visible
                if need_vis:
                    e.wait_tok(("dma", nxt["blk"]))
                    visible.add(nxt["blk"])
                if st.get("pre"):
                    st["pre"]()
                if release or need_vis or st.get("post"):
                    e("s_barrier")
                if st.get("post"):
                    st["post"]()
            elif st.get("pre"):
                st["pre"]()
            rd = nxt["rd"] if nxt is not None else []
            mm, vm = st["mf"], st["vm"]
            slots = [[] for _ in mm]
            nm, nw, span = len(mm), c["waits"], c["span"]
            for n, ins in enumerate(rd):
                slots[n * nm * span // (100 * len(rd))].append((ins, None))
            for n, g in enumerate(st["alu"]):
                slots[n * nm // len(st["alu"])] += g
            for n, g in enumerate(vm):
                slots[(2 * n + 1) * nm // (2 * len(vm))] += g
            cuts = [n * nm // nw for n in range(nw + 1)]
            for n, (ins, fl) in enumerate(zip(mm, slots)):
                if n in cuts:
                    e.wait_for(mm[n:cuts[cuts.index(n) + 1]])
                e(ins)
                for f_, tok in fl:
                    e(f_, tok=tok)
        rest = [it["g"] for it in ditems]
        if keep:
            return rest
        self.emit_groups(rest)

    def record(self, fn):
        real, lines = self.e, []
        self.e = lambda text, tok=None: lines.extend(x for x in text.split("\n") if x)
        fn(self.e)
        self.e = real
        return [[(x, None)] for x in lines]

    def emit_groups(self, gs):
        for g in gs:
            for ins, tok in g:
                self.e(ins, tok=tok)

    def a_items(self, aloads, first, count, rel, use):
        return [dict(r=rel(gs), d=use(gs), g=g) for gs in range(first, count) for g in self.groups(aloads(gs))]

    @staticmethod
    def mk_steps(first_blk, nblk, nst, mfmas, breads):
        return [dict(blk=first_blk + n, last=st == nst - 1, mf=mfmas(n, st), rd=breads(n, st), vm=[], alu=[])
                for n in range(nblk) for st in range(nst)]

    def issue_dma(self, dma, blocks):
        for b in blocks:
            for ins in dma(b):
                self.e(ins, tok=("dma", b))

    def ssm(self):
        e, c = self.e, self.c
        NS, SLOT = 7, 20480
        vDB, vDC = 16, 21
        vRB, vRC = 26, 32
        vA1, vCH8, vTC, vTW, vTRW, vTRR = 44, 45, 46, 47, 7, 8
        vL, vL4, vSC, vWP = 48, 58, 68, 78
        vL8, vL128, vSCL = 88, 90, 92
        ACC, SP, WK = 96, 176, 196
        X, U = 96, 116
        AR, BB, SK = 0, 64, 144

        e(f"s_and_b32 {sT0}, {sW}, 1\nv_lshl_add_u32 {v(vCH8)}, {sT0}, 6, {v(vLANE)}")
        e(f"s_mul_i32 {sT0}, {sJ}, 160\nv_lshl_add_u32 v12, {v(vCH8)}, 1, {sT0}")
        for k, p in enumerate((P_LRE, P_LIM, P_LDT)):
            self.mk_srd(R_TMP, p, 1280)
            e(f"buffer_load_ushort {v(WK+k)}, v12, {srd(R_TMP)}, 0 offen")
        e(f"s_lshl_b32 {sT1}, {sJ}, 4\ns_sub_u32 {sT1}, {sT1}, {sRB}\ns_mul_i32 {sT1}, {sT1}, 1280")
        e(f"s_add_u32 {sT1}, {sT1}, {CARRY + 15*1280}\nv_min_u32 v12, 9, {v(vLANE)}\nv_lshlrev_b32 v12, 7, v12")
        e(f"buffer_load_dword v255, v12, {srd(R_WS)}, {sT1} offen", tok="junk")
        e(f"s_cmp_lt_u32 {sW}, 2")
        self.mk_srd_sel(R_1A, P_BRE, P_BIM, 819200)
        self.mk_srd_sel(R_1B, P_BIM, P_BRE, 819200)
        self.mk_srd_sel(R_2A, P_CRE, P_CIM, 819200)
        self.mk_srd_sel(R_2B, P_CIM, P_CRE, 819200)
        e(f"s_and_b32 {sT0}, {sW}, 1\ns_lshr_b32 {sT1}, {sW}, 1")
        e(f"s_mul_i32 {sM0A}, {sT1}, 10240\ns_mul_i32 {sT2}, {sT0}, 3072\ns_add_u32 {sM0A}, {sM0A}, {sT2}")
        e(f"s_xor_b32 {sT1}, {sT1}, 1\ns_mul_i32 {sM0B}, {sT1}, 10240\ns_lshl_b32 {sT2}, {sT0}, 11")
        e(f"s_add_u32 {sM0B}, {sM0B}, {sT2}\ns_add_u32 {sM0B}, {sM0B}, 6144")
        e(f"v_lshrrev_b32 v12, 3, {v(vLANE)}\nv_and_b32 v13, 7, {v(vLANE)}\nv_lshrrev_b32 v14, 1, v12")
        e("v_xor_b32 v13, v13, v14\nv_lshlrev_b32 v13, 4, v13\nv_mul_u32_u24 v12, 0x500, v12\nv_add_u32 v12, v12, v13")
        for i in range(5):
            imm = 1024 * (i if i < 3 else i - 3)
            if i < 3:
                e(f"s_mul_i32 {sT1}, {sT0}, 3\ns_add_u32 {sT1}, {sT1}, {i}")
            else:
                e(f"s_lshl_b32 {sT1}, {sT0}, 1\ns_add_u32 {sT1}, {sT1}, {3 + i}")
            e(f"s_and_b32 {sT2}, {sT1}, 1\ns_lshl_b32 {sT2}, {sT2}, 6\nv_xor_b32 v13, {sT2}, v12")
            e(f"s_mul_i32 {sT2}, {sJ}, 10\ns_add_u32 {sT2}, {sT2}, {sT1}\ns_mul_i32 {sT2}, {sT2}, 10240")
            e(f"s_sub_u32 {sT2}, {sT2}, {imm}\nv_add_u32 {v(vDB+i)}, {sT2}, v13")
            e(f"s_lshl_b32 {sT2}, {sJ}, 3\ns_add_u32 {sT2}, {sT2}, {sT1}")
            e(f"s_lshl_b32 {sT3}, {sJ}, 1\ns_add_u32 {sT3}, {sT3}, {sT1}\ns_add_u32 {sT3}, {sT3}, 56")
            e(f"s_cmp_lt_u32 {sT1}, 8\ns_cselect_b32 {sT2}, {sT2}, {sT3}\ns_mul_i32 {sT2}, {sT2}, 10240")
            e(f"s_sub_u32 {sT2}, {sT2}, {imm}\nv_add_u32 {v(vDC+i)}, {sT2}, v13")
        self.rot_init(sWO1, 10, 128, True)
        self.rot_init(sWO2, 10, 128, False)

        def dma(b):
            ph2 = b >= 10
            ra, rb_, vb, so = (R_2A, R_2B, vDC, sWO2) if ph2 else (R_1A, R_1B, vDB, sWO1)
            base = (b % NS) * SLOT
            out = [f"s_add_u32 m0, {sM0A}, {base}"]
            out += [f"buffer_load_dwordx4 {v(vb+i)}, {srd(ra)}, {so} offen offset:{1024*i} lds" for i in range(3)]
            out += [f"s_add_u32 m0, {sM0B}, {base}"]
            out += [f"buffer_load_dwordx4 {v(vb+3+i)}, {srd(rb_)}, {so} offen offset:{1024*i} lds" for i in range(2)]
            return out + self.adv(so, 128, 1280, 0)

        pa, pl, pb = c["pre_a"], c["pre_st"], c["pre_b"]
        self.issue_dma(dma, range(pa))
        def consts():
            e(f"v_lshlrev_b32 {v(vCH8)}, 3, {v(vCH8)}\nv_add_u32 {v(vCH8)}, {SCR}, {v(vCH8)}")
            e(f"s_bitcmp0_b32 {sW}, 0\ns_cselect_b32 s88, -1, 0xffff\ns_cselect_b32 s89, -1, 0")
            skip = e.newlabel("noconst")
            e(f"s_cmp_gt_u32 {sW}, 1\ns_cbranch_scc1 {skip}")
            s0 = e.begin_region()
            e(f"s_mov_b64 exec, {sEX}")
            lre, lim, ldt = WK, WK + 1, WK + 2
            t = WK + 4
            for r in (lre, lim, ldt):
                e(f"v_lshlrev_b32 {v(r)}, 16, {v(r)}")
            log2e = "0x3fb8aa3b"
            e(f"v_mul_f32 {v(ldt)}, {log2e}, {v(ldt)}\nv_exp_f32 {v(ldt)}, {v(ldt)}")
            self.round_bf16(ldt)
            e(f"v_mul_f32 {v(t)}, {v(ldt)}, {v(lre)}\nv_mul_f32 {v(t+1)}, {v(ldt)}, {v(lim)}")
            e(f"v_mul_f32 {v(t)}, {log2e}, {v(t)}\nv_exp_f32 {v(t)}, {v(t)}")
            e(f"v_mul_f32 {v(t+1)}, 0.15915494, {v(t+1)}\nv_rndne_f32 {v(t+2)}, {v(t+1)}")
            e(f"v_sub_f32 {v(t+1)}, {v(t+1)}, {v(t+2)}")
            e(f"v_cos_f32 {v(t+2)}, {v(t+1)}\nv_sin_f32 {v(t+3)}, {v(t+1)}")
            L1 = WK + 8
            e(f"v_mul_f32 {v(L1)}, {v(t)}, {v(t+2)}\nv_mul_f32 {v(L1+1)}, {v(t)}, {v(t+3)}")
            e(f"v_mul_f32 {v(t)}, {v(lre)}, {v(lre)}\nv_fma_f32 {v(t)}, {v(lim)}, {v(lim)}, {v(t)}")
            e(f"v_rcp_f32 {v(t)}, {v(t)}\nv_add_f32 {v(t+1)}, -1.0, {v(L1)}\nv_add_f32 {v(t)}, {v(t)}, {v(t)}")
            e(f"v_mul_f32 {v(t+2)}, {v(t+1)}, {v(lre)}\nv_fma_f32 {v(t+2)}, {v(L1+1)}, {v(lim)}, {v(t+2)}")
            e(f"v_mul_f32 {v(t+3)}, {v(L1+1)}, {v(lre)}\nv_fma_f32 {v(t+3)}, -{v(t+1)}, {v(lim)}, {v(t+3)}")
            e(f"v_mul_f32 {v(vSCL)}, {v(t+2)}, {v(t)}\nv_mul_f32 {v(vSCL+1)}, {v(t+3)}, {v(t)}")
            L2, L4 = WK + 10, WK + 12
            self.cmul(L2, L1, L1)
            self.cmul(L4, L2, L2)
            self.cmul(vL8, L4, L4)
            e(f"ds_write_b64 {v(vCH8)}, {v(L1,2)} offset:10240")
            e(f"ds_write_b64 {v(vCH8)}, {v(L4,2)} offset:10880")
            e(f"ds_write_b64 {v(vCH8)}, {v(vSCL,2)} offset:11520")
            e(f"ds_write_b64 {v(vCH8)}, {v(vSCL,2)}")
            prev = vSCL
            for s in range(1, 16):
                d = WK + 14 + 2 * (s & 1)
                self.cmul(d, vL8, prev)
                e(f"ds_write_b64 {v(vCH8)}, {v(d,2)} offset:{640*s}")
                prev = d
            self.cmul(L1, vL8, vL8)
            self.cmul(L2, L1, L1)
            self.cmul(L1, L2, L2)
            self.cmul(vL128, L1, L1)
            e(f"ds_write_b64 {v(vCH8)}, {v(vL128,2)} offset:12160")
            e("s_mov_b64 exec, -1")
            e.wait_lg()
            e.end_region(s0, skip)

        SXN, SXR, SXP, SPF, SPR = SK, SK + 16, SK + 32, SK + 48, SK + 56
        vDS, vXM, vXP = 250, 94, 95
        sK = ["s90", "s91", "s96", "s97"]
        one = lambda *ins: [(i_, None) for i_ in ins]
        skip_ld = [one(f"buffer_load_dwordx4 {a(SXN + 8*f + 4*m,4)}, {v(vA1 if m else vL16B)}, {srd(R_WS)}, {sK[0]} "
                       f"offen offset:{1024*f} sc1") for f in range(2) for m in range(2)]
        skip_ld += [one("s_mov_b32 exec_hi, 0", f"buffer_load_dwordx4 {a(SPF + 4*m,4)}, {v(vA1 if m else vL16B)}, "
                        f"{srd(R_WS)}, {sK[1]} offen sc1", "s_mov_b64 exec, -1") for m in range(2)]
        skip_ld += [one(f"buffer_load_dwordx4 {a(SXR + 8*f + 4*m,4)}, {v(vXM)}, {srd(R_X)}, {sK[2]} "
                        f"offen offset:{2560*m + 64*f}") for m in range(2) for f in range(2)]
        skip_ld += [one("s_mov_b32 exec_lo, 0", f"buffer_load_dwordx4 {a(SPR + 4*m,4)}, {v(vXP)}, {srd(R_X)}, {sK[3]} "
                        f"offen offset:{2560*m}", "s_mov_b64 exec, -1") for m in range(2)]

        e(f"v_and_b32 v12, 15, {v(vLANE)}\nv_lshrrev_b32 v13, 4, {v(vLANE)}\nv_lshrrev_b32 v14, 1, v12")
        e("v_xor_b32 v15, v13, v14\nv_lshlrev_b32 v15, 4, v15\nv_lshl_add_u32 v15, v12, 7, v15")
        for k in range(3):
            e(f"v_add_u32 {v(vRB+2*k)}, {61440*k}, v15\nv_xor_b32 {v(vRB+2*k+1)}, 64, {v(vRB+2*k)}")
        e("v_and_b32 v15, 1, v13\nv_xor_b32 v15, v15, v14\nv_lshlrev_b32 v15, 4, v15\nv_lshl_add_u32 v15, v12, 7, v15")
        e("v_lshrrev_b32 v14, 1, v13\nv_mul_u32_u24 v14, 0x2800, v14\nv_add_u32 v15, v15, v14")
        for k in range(3):
            e(f"v_add_u32 {v(vRC+4*k)}, {61440*k}, v15")
            for st in range(1, 4):
                e(f"v_xor_b32 {v(vRC+4*k+st)}, {32*st}, {v(vRC+4*k)}")
        e(f"v_lshlrev_b32 {v(vTC)}, 3, v12\nv_add_u32 {v(vTC)}, {SCR}, {v(vTC)}")
        e(f"v_lshl_add_u32 v14, {sW}, 2, v13\nv_mul_u32_u24 v14, 0x280, v14\nv_add_u32 {v(vTW)}, v14, {v(vTC)}")
        e(f"v_add_u32 {v(vA1)}, 20480, {v(vL16B)}")
        e(f"s_mul_i32 {sABEG}, {sRB}, 163840\ns_mul_i32 {sT0}, {sW}, 40960\ns_add_u32 {sABEG}, {sABEG}, {sT0}")
        e(f"s_add_u32 {sABEG}, {sABEG}, {XNS}\ns_add_u32 {sAEND}, {sABEG}, 20480")
        self.rot_init(sA, 10, 2048, True)
        e(f"s_add_u32 {sA}, {sA}, {sABEG}")

        def late_setup(e):

            def rowoff(d, i):
                e(f"v_lshrrev_b32 {v(d)}, 2, {v(i)}\nv_lshlrev_b32 {v(d)}, 3, {v(d)}\nv_and_b32 v15, 1, {v(i)}")
                e(f"v_lshl_add_u32 {v(d)}, v15, 2, {v(d)}\nv_bfe_u32 v15, {v(i)}, 1, 1\nv_add_u32 {v(d)}, {v(d)}, v15")
                e(f"v_mul_u32_u24 {v(d)}, 0x500, {v(d)}")
            e(f"s_lshl_b32 {sK[0]}, {sJ}, 11\ns_add_u32 {sK[0]}, {sK[0]}, {sABEG}")
            e(f"s_lshl_b32 {sK[1]}, {sJ}, 9\ns_add_u32 {sK[1]}, {sK[1]}, {sABEG}\ns_add_u32 {sK[1]}, {sK[1]}, 16384")
            e(f"v_lshrrev_b32 v12, 2, {v(vLANE)}")
            rowoff(vXM, 12)
            e(f"v_and_b32 v15, 3, {v(vLANE)}\nv_lshl_add_u32 {v(vXM)}, v15, 4, {v(vXM)}")
            e(f"v_bfe_u32 v12, {v(vLANE)}, 1, 4")
            rowoff(vXP, 12)
            e(f"v_and_b32 v15, 1, {v(vLANE)}\nv_lshl_add_u32 {v(vXP)}, v15, 4, {v(vXP)}")
            e(f"s_lshl_b32 {sT0}, {sRB}, 2\ns_add_u32 {sT0}, {sT0}, {sW}\ns_mul_i32 {sT0}, {sT0}, 40960")
            e(f"s_lshl_b32 {sK[2]}, {sJ}, 7\ns_add_u32 {sK[2]}, {sK[2]}, {sT0}")
            e(f"s_lshl_b32 {sK[3]}, {sJ}, 5\ns_add_u32 {sK[3]}, {sK[3]}, {sT0}\ns_add_u32 {sK[3]}, {sK[3]}, 1024")
            self.mk_srd(R_TMP, P_DSK, 1280)
            e(f"v_and_b32 v12, 15, {v(vLANE)}\nv_lshlrev_b32 v12, 1, v12")
            e(f"s_lshl_b32 {sT1}, {sJ}, 7\ns_lshl_b32 {sT2}, {sJ}, 5\ns_add_u32 {sT2}, {sT2}, 1024")
            for T in range(5):
                so, imm = (sT1, 32 * T) if T < 4 else (sT2, 0)
                e(f"buffer_load_ushort {v(vDS+T)}, v12, {srd(R_TMP)}, {so} offen offset:{imm}")
            e(f"v_and_b32 v12, 15, {v(vLANE)}\nv_lshrrev_b32 v13, 4, {v(vLANE)}")
            e("v_lshrrev_b32 v14, 3, v12\nv_lshlrev_b32 v14, 2, v14\nv_xor_b32 v14, v14, v12\nv_lshlrev_b32 v14, 5, v14")
            e("v_lshrrev_b32 v15, 2, v12\nv_xor_b32 v15, v15, v13\nv_lshl_add_u32 v14, v15, 3, v14")
            e(f"s_lshl_b32 {sT0}, {sW}, 11\ns_add_u32 {sT0}, {sT0}, {SCR + 12288}\nv_add_u32 {v(vTRW)}, {sT0}, v14")
            for j2 in range(2):
                e(f"v_and_b32 v14, 1, v13\nv_xor_b32 v14, {j2}, v14\nv_lshlrev_b32 v14, 2, v14")
                e(f"v_lshl_add_u32 v14, v13, 3, v14\nv_bfe_u32 v15, {v(vLANE)}, 2, 2\nv_add_u32 v14, v14, v15")
                e(f"v_lshlrev_b32 v14, 5, v14\nv_lshlrev_b32 v15, 1, v13\nv_add_u32 v15, {j2}, v15")
                e(f"v_xor_b32 v15, v15, {v(vLANE)}\nv_and_b32 v15, 3, v15\nv_lshl_add_u32 v14, v15, 3, v14")
                e(f"v_add_u32 {v(vTRR+j2)}, {sT0}, v14")

        self.stamp(1)
        toks = lambda r: [(i, ("dma", b)) for b in r for i in dma(b)]
        self.ln_compute(X, U, 6 * SLOT, toks(range(pa, pa + pl)), consts)
        self.stamp(2)
        self.issue_dma(dma, range(pa + pl, pa + pl + pb))

        visible = {0}
        for g in range(5):
            e(f"ds_read_b64 {v(vL+2*g,2)}, {v(vTC)} offset:{10240 + 128*g}")
            e(f"ds_read_b64 {v(vL4+2*g,2)}, {v(vTC)} offset:{10880 + 128*g}")
            e(f"ds_read_b64 {v(vSC+2*g,2)}, {v(vTC)} offset:{11520 + 128*g}")
            e(f"ds_read_b64 {v(vWP+2*g,2)}, {v(vTW)} offset:{128*g}")
        e(f"ds_read_b64 {v(vL128,2)}, {v(vCH8)} offset:12160")
        self.stamp(3)
        self.poll(2, TAG_XN, "xn", 12, 13)
        self.stamp(4)

        acc = lambda g, cp, m: ACC + ((g * 2 + cp) * 2 + m) * 4

        def aload1(gs):
            st = gs & 1
            r = AR + (gs % 8) * 8
            out = [f"buffer_load_dwordx4 {a(r,4)}, {v(vL16B)}, {srd(R_WS)}, {sA} offen offset:{1024*st} sc1",
                   f"buffer_load_dwordx4 {a(r+4,4)}, {v(vA1)}, {srd(R_WS)}, {sA} offen offset:{1024*st} sc1"]
            return out + (self.adv(sA, 2048, sAEND, sABEG) if st else [])

        def bread1(n, st):
            slot = n % NS
            base, off = vRB + 2 * (slot // 3) + st, (slot % 3) * SLOT
            return [f"ds_read_b128 {a(BB + 40*st + 4*(2*g+cp),4)}, {v(base)} offset:{off + cp*10240 + g*2048}"
                    for g in range(5) for cp in range(2)]

        def mfma1(n, st):
            gs = 2 * n + st
            return [f"v_mfma_f32_16x16x32_bf16 {v(acc(g,cp,m),4)}, {a(AR + (gs%8)*8 + 4*m,4)}, "
                    f"{a(BB + 40*st + 4*(2*g+cp),4)}, {v(acc(g,cp,m),4) if gs else 0}"
                    for g in range(5) for cp in range(2) for m in range(2)]

        steps = self.mk_steps(0, 10, 2, mfma1, bread1)
        items = self.a_items(aload1, c["a_pre"], 20, lambda g: g - 7, lambda g: g)
        late = self.record(late_setup)
        for n, g in enumerate(late):
            steps[1 + n * 8 // len(late)]["alu"].append(g)
        for n, g in enumerate(skip_ld):
            steps[c["skip_at"] + n // 2]["vm"].append(g)
        for gs in range(c["a_pre"]):
            e("\n".join(aload1(gs)))
        lazy = {10 + n: c["lazy0"] + c["lazy_gap"] * n for n in range(7)}
        upto = 10 + NS - c["defer"]
        rest = self.pipeline(steps, dma, NS, min(upto, 9 + NS), range(pa + pl + pb, NS), visible, items, lazy, keep=True)
        if not c["defer"]:
            rest += self.groups(dma(9 + NS), ("dma", 9 + NS))
        self.stamp(5)

        pair = lambda g, cp, jj: acc(g, cp, jj >> 1) + 2 * (jj & 1)
        LR = "op_sel:[0,0,0] op_sel_hi:[0,1,1]"
        LI = "op_sel:[1,0,0] op_sel_hi:[1,1,1]"
        NEG = "neg_lo:[1,0,0] neg_hi:[1,0,0]"
        for g in range(5):
            Lg = v(vL + 2 * g, 2)
            sre, sim = pair(g, 0, 0), pair(g, 1, 0)
            for jj in range(1, 4):
                dre, dim = (WK, WK + 2) if jj == 2 else (SP + 4 * g, SP + 4 * g + 2)
                e(f"v_pk_fma_f32 {v(dre,2)}, {Lg}, {v(sre,2)}, {v(pair(g,0,jj),2)} {LR}")
                e(f"v_pk_fma_f32 {v(dim,2)}, {Lg}, {v(sim,2)}, {v(pair(g,1,jj),2)} {LR}")
                e(f"v_pk_fma_f32 {v(dre,2)}, {Lg}, {v(sim,2)}, {v(dre,2)} {LI} {NEG}")
                e(f"v_pk_fma_f32 {v(dim,2)}, {Lg}, {v(sre,2)}, {v(dim,2)} {LI}")
                sre, sim = dre, dim
            l4r, l4i, d = vL4 + 2 * g, vL4 + 2 * g + 1, WK + 4 + 2 * (g & 1)
            e(f"v_fma_f32 {v(d)}, {v(l4r)}, {v(sre)}, {v(sre+1)}")
            e(f"v_fma_f32 {v(d+1)}, {v(l4r)}, {v(sim)}, {v(sim+1)}")
            e(f"v_fma_f32 {v(d)}, -{v(l4i)}, {v(sim)}, {v(d)}")
            e(f"v_fma_f32 {v(d+1)}, {v(l4i)}, {v(sre)}, {v(d+1)}")
            e(f"ds_write_b64 {v(vTW)}, {v(d,2)} offset:{128*g}")
        e.wait_lg()
        e("s_barrier")
        self.stamp(6)

        skip = e.newlabel("nocomb")
        e(f"s_cmp_gt_u32 {sW}, 1\ns_cbranch_scc1 {skip}")
        s0 = e.begin_region()
        e(f"s_mov_b64 exec, {sEX}")
        SL = WK
        for s in range(16):
            e(f"ds_read_b64 {v(SL+2*s,2)}, {v(vCH8)} offset:{640*s}")
        for s in range(1, 16):
            e(f"v_pk_fma_f32 {v(SL+2*s,2)}, {v(vL8,2)}, {v(SL+2*s-2,2)}, {v(SL+2*s,2)} {LR}")
            e(f"v_pk_fma_f32 {v(SL+2*s,2)}, {v(vL8,2)}, {v(SL+2*s-2,2)}, {v(SL+2*s,2)} "
              "op_sel:[1,1,0] op_sel_hi:[1,0,1] neg_lo:[1,0,0]")
        MSG = SL + 30
        e(f"v_subrev_u32 v12, {SCR}, {v(vCH8)}\nv_lshlrev_b32 v12, 1, v12")
        e(f"s_add_u32 {sT0}, {sEC}, {TAG_CARRY}\nv_mov_b32 {v(MSG+2)}, {sT0}\nv_mov_b32 {v(MSG+3)}, {sT0}")
        e(f"s_lshl_b32 {sT1}, {sJ}, 4\ns_sub_u32 {sT1}, {sT1}, {sRB}\ns_mul_i32 {sT1}, {sT1}, 1280")
        e(f"s_add_u32 {sT1}, {sT1}, {CARRY + 15*1280}")
        e(f"buffer_store_dwordx4 {v(MSG,4)}, v12, {srd(R_WS)}, {sT1} offen sc1")
        e(f"v_mov_b32 v14, 0\nv_mov_b32 v15, 0\nds_write_b64 {v(vCH8)}, v[14:15]")
        for s in range(1, 16):
            d = WK + 36 + 2 * (s & 1)
            self.cmul(d, vSCL, SL + 2 * s - 2)
            e(f"ds_write_b64 {v(vCH8)}, {v(d,2)} offset:{640*s}")
        e("s_mov_b64 exec, -1")
        e.end_region(s0, skip)
        self.emit_groups(rest)
        self.stamp(7)

        def scale_pairs(g, re, im):
            Sg = v(vSC + 2 * g, 2)
            e(f"v_pk_mul_f32 v[14:15], {Sg}, {v(im,2)} op_sel:[1,0] op_sel_hi:[1,1] neg_lo:[1,0] neg_hi:[1,0]")
            e(f"v_pk_mul_f32 {v(im,2)}, {Sg}, {v(im,2)} op_sel:[0,0] op_sel_hi:[0,1]")
            e(f"v_pk_fma_f32 {v(im,2)}, {Sg}, {v(re,2)}, {v(im,2)} {LI}")
            e(f"v_pk_fma_f32 {v(re,2)}, {Sg}, {v(re,2)}, v[14:15] {LR}")
        for g in range(5):
            scale_pairs(g, SP + 4 * g, SP + 4 * g + 2)
            for jj in range(4):
                scale_pairs(g, pair(g, 0, jj), pair(g, 1, jj))
        self.stamp(8)

        skip = e.newlabel("nocarry")
        e(f"s_cmp_lt_u32 {sW}, 2\ns_cbranch_scc1 {skip}")
        s0 = e.begin_region()
        e(f"s_lshl_b32 {sT0}, {sJ}, 4\ns_sub_u32 {sT0}, {sT0}, {sRB}\ns_mul_i32 {sT0}, {sT0}, 1280")
        e(f"s_add_u32 {sT0}, {sT0}, {CARRY + 16*1280}")
        e(f"s_add_u32 s{R_TMP}, s{P_WS}, {sT0}\ns_addc_u32 s{R_TMP+1}, s{P_WS+1}, 0")
        e(f"s_mul_i32 s{R_TMP+2}, {sRB}, 1280\ns_mov_b32 s{R_TMP+3}, 0x20000")
        e(f"s_add_u32 {sT1}, {sEC}, {TAG_CARRY}\ns_mul_i32 {sT1}, {sT1}, {sRB}")
        e(f"s_mov_b64 exec, {sEX}")
        MG = 196
        vMA = [10, 11, 12, 13, 14]
        e(f"v_subrev_u32 v10, {SCR}, {v(vCH8)}\nv_lshlrev_b32 v10, 1, v10")
        for k in range(1, 5):
            e(f"v_add_u32 v{10+k}, {3840*k}, v10")
        lp, out = e.newlabel("cpoll"), e.newlabel("cpolled")
        e.label(lp)
        mreg = lambda dl: MG + 4 * dl if dl < 13 else (vDB, vRB)[dl - 13]
        for dl in range(15):
            e(f"buffer_load_dwordx3 {v(mreg(dl),3)}, v{vMA[dl//3]}, {srd(R_TMP)}, 0 offen offset:{1280*(dl%3)} sc1")
        e(f"s_cmp_eq_u32 {sSPIN}, 0")
        e.wait_all(lg=False)
        e(f"s_cbranch_scc1 {out}\ns_sub_u32 {sSPIN}, {sSPIN}, 1")
        e(f"v_add3_u32 v15, {v(mreg(0)+2)}, {v(mreg(1)+2)}, {v(mreg(2)+2)}")
        for k in range(3, 15, 2):
            e(f"v_add3_u32 v15, v15, {v(mreg(k)+2)}, {v(mreg(k+1)+2)}")
        e(f"v_cmp_eq_u32 vcc, {sT1}, v15")
        e(f"s_cmp_eq_u64 vcc, exec\ns_cbranch_scc0 {lp}")
        e.label(out)
        for dl in range(13, -1, -1):
            x, y = mreg(dl), mreg(dl + 1)
            e(f"v_pk_fma_f32 {v(x,2)}, {v(vL128,2)}, {v(y,2)}, {v(x,2)} {LR}")
            e(f"v_pk_fma_f32 {v(x,2)}, {v(vL128,2)}, {v(y,2)}, {v(x,2)} op_sel:[1,1,0] op_sel_hi:[1,0,1] neg_lo:[1,0,0]")
        e(f"ds_write_b64 {v(vCH8)}, {v(mreg(0),2)} offset:10240")
        e("s_mov_b64 exec, -1")
        e.end_region(s0, skip)
        e.wait_all(vm=False)
        e("s_barrier")
        self.stamp(9)

        PG = WK
        for g in range(5):
            e(f"ds_read_b64 {v(PG+4*g,2)}, {v(vTW)} offset:{128*g}")
            e(f"ds_read_b64 {v(PG+4*g+2,2)}, {v(vTC)} offset:{10240 + 128*g}")
        e(f"s_mul_i32 {sABEG}, {sRB}, 327680\ns_mul_i32 {sT0}, {sW}, 81920\ns_add_u32 {sABEG}, {sABEG}, {sT0}")
        e(f"s_add_u32 {sABEG}, {sABEG}, {HS}\ns_add_u32 {sAEND}, {sABEG}, 40960")
        e(f"s_mul_i32 {sT2}, {sJ}, 5120\ns_add_u32 {sT2}, {sT2}, {sABEG}")
        e(f"v_add_u32 {v(vA1)}, 40960, {v(vL16B)}")
        HF = WK + 20
        CV = 12

        def pass2():
            for g in range(5):
                p, gg, w_ = PG + 4 * g, PG + 4 * g + 2, vWP + 2 * g
                hre, him = SP + 4 * g, SP + 4 * g + 2
                l4r, l4i = vL4 + 2 * g, vL4 + 2 * g + 1
                e(f"v_fma_f32 {v(p)}, {v(w_)}, {v(gg)}, {v(p)}\nv_fma_f32 {v(p+1)}, {v(w_)}, {v(gg+1)}, {v(p+1)}")
                e(f"v_fma_f32 {v(p)}, -{v(w_+1)}, {v(gg+1)}, {v(p)}\nv_fma_f32 {v(p+1)}, {v(w_+1)}, {v(gg)}, {v(p+1)}")
                e(f"v_fma_f32 {v(hre+1)}, {v(l4r)}, {v(p)}, {v(hre)}\nv_fma_f32 {v(him+1)}, {v(l4r)}, {v(p+1)}, {v(him)}")
                e(f"v_fma_f32 {v(hre+1)}, -{v(l4i)}, {v(p+1)}, {v(hre+1)}\nv_fma_f32 {v(him+1)}, {v(l4i)}, {v(p)}, {v(him+1)}")
                e(f"v_mov_b32 {v(hre)}, {v(p)}\nv_mov_b32 {v(him)}, {v(p+1)}")
                Lg = v(vL + 2 * g, 2)
                for jj in range(4):
                    ur, ui = pair(g, 0, jj), pair(g, 1, jj)
                    e(f"v_pk_fma_f32 {v(ur,2)}, {Lg}, {v(hre,2)}, {v(ur,2)} {LR}")
                    e(f"v_pk_fma_f32 {v(ui,2)}, {Lg}, {v(him,2)}, {v(ui,2)} {LR}")
                    e(f"v_pk_fma_f32 {v(ur,2)}, {Lg}, {v(him,2)}, {v(ur,2)} {LI} {NEG}")
                    e(f"v_pk_fma_f32 {v(ui,2)}, {Lg}, {v(hre,2)}, {v(ui,2)} {LI}")
                    hre, him = ur, ui
                for m in range(2):
                    for cp in range(2):
                        r, sg, d = acc(g, cp, m), "-" if cp else "", CV + 2 * cp
                        e(f"v_cvt_pk_bf16_f32 {v(d)}, {sg}{v(r)}, {sg}{v(r+1)}")
                        e(f"v_cvt_pk_bf16_f32 {v(d+1)}, {sg}{v(r+2)}, {sg}{v(r+3)}")
                        e(f"ds_write_b64 {v(vTRW)}, {v(d,2)} offset:{1024*m + 512*cp}")
                hf = HF + 8 * (g & 1)
                for m in range(2):
                    for j2 in range(2):
                        e(f"ds_read_b64_tr_b16 {v(hf + 4*m + 2*j2,2)}, {v(vTRR+j2)} offset:{1024*m}")
                if g:
                    store_h(g - 1)
            store_h(4)

        def store_h(g):
            hf = HF + 8 * (g & 1)
            if g == 4:
                e(f"s_add_u32 {sT2}, {sT2}, 4096")
            for m in range(2):
                e(f"buffer_store_dwordx4 {v(hf+4*m,4)}, {v(vA1 if m else vL16B)}, {srd(R_WS)}, {sT2} offen offset:{1024*(g&3)} sc1", tok="h")
        e.wait_lg()
        pass2()
        self.stamp(10)
        e(f"v_and_b32 v12, 15, {v(vLANE)}\nv_lshrrev_b32 v13, 4, {v(vLANE)}")
        e("v_lshl_add_u32 v14, v12, 2, v13\nv_lshlrev_b32 v14, 2, v14")
        e("v_and_b32 v13, 1, v13\nv_lshl_add_u32 v13, v12, 1, v13\nv_lshlrev_b32 v13, 2, v13\nv_add_u32 v13, 0x80, v13")
        for k in range(16):
            e(f"ds_bpermute_b32 {a(SXP+k)}, v14, {a(SXR+k)}")
        e("s_mov_b32 exec_lo, 0")
        for k in range(8):
            e(f"ds_bpermute_b32 {a(SPF+k)}, v13, {a(SPR+k)}")
        e("s_mov_b64 exec, -1")
        e.wait_tok("h", ("dma", 10))
        e.wait_lg()
        e("s_barrier")
        self.send_flags(3, TAG_HID, "0xff", sJ)
        visible.add(10)

        acc2 = lambda T, m: ACC + (T * 2 + m) * 4
        e(f"v_and_b32 v12, 15, {v(vLANE)}\nv_lshrrev_b32 v13, 1, v12\nv_bfe_u32 v14, {v(vLANE)}, 4, 1")
        e("v_lshlrev_b32 v14, 2, v14\nv_sub_u32 v13, v13, v14\nv_and_b32 v12, 1, v12\nv_lshlrev_b32 v12, 4, v12")
        for k in range(4):
            e(f"v_cmp_eq_u32 {sMSK[k]}, {k}, v13")
        e(f"v_cmp_gt_u32 vcc, 32, {v(vLANE)}\nv_mov_b32 v15, 0x3f80")
        SEL = WK
        pick = [(v(vDS+T), "0") if T % 2 == 0 else ("0", v(vDS+T)) for T in range(4)]
        pick += [(v(vDS+4), "v15"), ("v15", "0"), ("0", "v15")]
        for n, (lo, hi) in enumerate(pick):
            e(f"v_cndmask_b32 v14, {hi}, {lo}, vcc\nv_lshlrev_b32 v14, v12, v14")
            for k in range(4):
                e(f"v_cndmask_b32 {v(SEL+4*n+k)}, 0, v14, {sMSK[k]}")
        for T in range(5):
            for m in range(2):
                src = SXN + 8 * (T >> 1) + 4 * m if T < 4 else SPF + 4 * m
                e(f"v_mfma_f32_16x16x32_bf16 {v(acc2(T,m),4)}, {a(src,4)}, {v(SEL+4*T,4)}, 0")
        for T in range(4):
            for m in range(2):
                e(f"v_mfma_f32_16x16x32_bf16 {v(acc2(T,m),4)}, {a(SXP + 8*(T>>1) + 4*m,4)}, {v(SEL+20+4*(T&1),4)}, {v(acc2(T,m),4)}")
        self.rot_init(sA, 10, 4096, False)
        e(f"s_add_u32 {sA}, {sA}, {sABEG}")
        self.poll(3, TAG_HID, "hid", 12, 13)
        self.stamp(11)

        areg = lambda gs: (SK if gs & 8 else AR) + (gs % 8) * 8

        def aload2(gs):
            st, r = gs & 3, areg(gs)
            out = [f"buffer_load_dwordx4 {a(r,4)}, {v(vL16B)}, {srd(R_WS)}, {sA} offen offset:{1024*st} sc1",
                   f"buffer_load_dwordx4 {a(r+4,4)}, {v(vA1)}, {srd(R_WS)}, {sA} offen offset:{1024*st} sc1"]
            return out + (self.adv(sA, 4096, sAEND, sABEG) if st == 3 else [])

        def step2(k, blk, last, work):
            rd, mf = [], []
            for n, (T, gs) in enumerate(work):
                slot, f = (10 + gs // 4) % NS, BB + 20 * (k & 1) + 4 * n
                rd.append(f"ds_read_b128 {a(f,4)}, {v(vRC + 4*(slot//3) + (gs&3))} offset:{(slot%3)*SLOT + T*2048}")
                mf += [f"v_mfma_f32_16x16x32_bf16 {v(acc2(T,m),4)}, {a(areg(gs) + 4*m,4)}, {a(f,4)}, {v(acc2(T,m),4)}"
                       for m in range(2)]
            return dict(blk=blk, last=last, mf=mf, rd=rd, vm=[], alu=[])

        nb = c["tail_s"]
        u0 = 40 - 4 * nb
        steps = [step2(gs, 10 + gs // 4, gs & 3 == 3, [(T, gs) for T in range(5)]) for gs in range(u0)]
        for T in range(5):
            for b in range(nb):
                steps.append(step2(len(steps), 19, False, [(T, u0 + 4 * b + st) for st in range(4)]))
        items = self.a_items(aload2, c["a_pre2"], 40, lambda g: g - 15, lambda g: min(g, u0 + (g - u0) // 4))
        for gs in range(c["a_pre2"]):
            e("\n".join(aload2(gs)))
        PL, sPA, sPB = 176, "s93", "s1"
        part_ld = [f"buffer_load_dwordx4 {v(PL+4*k,4)}, {v(vL16B)}, {srd(R_WS)}, {sPB if k >= 4 else sPA} "
                   f"offen offset:{1024*(k&3)} sc1" for k in range(8)]

        def out_setup():
            self.mk_srd(R_OUT, P_OUT, 2048 * 2560)
            e(f"v_lshrrev_b32 v8, 4, {v(vLANE)}\nv_mul_u32_u24 v8, 0x5000, v8\nv_and_b32 v9, 15, {v(vLANE)}")
            e(f"v_lshl_add_u32 v8, v9, 2, v8\ns_mul_i32 {sT0}, {sJ}, 192\ns_sub_u32 {sT0}, 2048, {sT0}")
            e(f"v_add_u32 v9, {sT0}, v8")
            e(f"s_lshl_b32 {sPA}, {sOWN}, 5\ns_lshl_b32 {sT0}, {sW}, 13\ns_add_u32 {sPA}, {sPA}, {sT0}")
            e(f"s_add_u32 {sPA}, {sPA}, {PART}\ns_add_u32 {sPB}, {sPA}, 4096")
            e(f"s_lshl_b32 {sT0}, {sRB}, 2\ns_add_u32 {sT0}, {sT0}, {sW}\ns_mul_i32 {sT0}, {sT0}, 81920")
            e(f"s_lshl_b32 {sT1}, {sJ}, 8\ns_add_u32 {sT0}, {sT0}, {sT1}")
            for m in range(2):
                for r in range(4):
                    e(f"s_add_u32 {rows[4*m+r]}, {sT0}, {(4*(r&1) + 2*m + (r>>1)) * 2560}")


        def finish_tile(T):
            out = []
            for k in ([T] if T < 4 else range(4, 8)):
                for i in range(4):
                    d, t0 = acc2(T, i >> 1) + 2 * (i & 1), 12 + 2 * (i & 1)
                    out += [f"v_lshlrev_b32 {v(t0)}, 16, {v(PL+4*k+i)}", f"v_and_b32 {v(t0+1)}, 0xffff0000, {v(PL+4*k+i)}",
                            f"v_add_f32 {v(d)}, {v(d)}, {v(t0)}", f"v_add_f32 {v(d+1)}, {v(d+1)}, {v(t0+1)}"]
                    if k in (T, 7) and (T < 4 or k == 7):
                        out += [f"buffer_store_dword {v(d+r)}, {'v8' if T < 4 else 'v9'}, {srd(R_OUT)}, {rows[2*i+r]} "
                                f"offen offset:{64*T if T < 4 else 0} sc1" for r in range(2)]
            return [[(x, None)] for x in out]

        def spread(groups, first, n):
            for k, g in enumerate(groups):
                steps[first + k * n // len(groups)]["alu"].append(g)
        rows = ["s88", "s89", "s90", "s91", "s94", "s95", "s96", "s97"]
        steps[18]["pre"] = out_setup
        ta, tb = u0 + c["pa_test"], u0 + c["pb_test"]
        for line, tag, kind, at, ks in ((7, TAG_PART2, "wave", ta, (0, 1)), (4, TAG_PART, "part", tb, range(2, 8))):
            issue, test = self.check_flags(line, tag, 10, 11, kind)
            steps[at - c["p_lead"]]["vm"] += self.groups(issue)
            hook = lambda test=test, ks=ks: (test(), e("\n".join(part_ld[k] for k in ks)))
            if at < len(steps):
                steps[at]["pre"], hook = hook, None
        done = []
        first = u0 + c["e0"]
        for k, (T, n) in enumerate(((0, 2), (1, 2), (2, 2), (3, 2))):
            first = max(first, u0 + nb * (k + 1), (ta + 1, ta + 1, tb + c["e2"], tb + 1)[k])
            if first + n > len(steps):
                break
            spread(finish_tile(T), first, n)
            done.append(T)
            first += n
        self.pipeline(steps, dma, NS, 20, range(upto, 10 + NS), visible, items, due={b: u0 - 1 for b in range(21 - nb, 20)})
        self.stamp(12)
        if hook:
            hook()
        for T in range(5):
            if T not in done:
                self.emit_groups(finish_tile(T))
        self.stamp(13)
        self.epoch_bump()
        self.stamp(14)
        self.finish()

    def epoch_bump(self):
        e = self.e
        skip = e.newlabel("nobump")
        e("s_barrier")
        e(f"s_cmp_lg_u32 {sW}, 0\ns_cbranch_scc1 {skip}")
        s0 = e.begin_region()
        e(f"s_add_u32 {sT0}, {sE}, 0x100\nv_mov_b32 v12, {sT0}\nv_mov_b32 v13, 0\ns_mov_b64 exec, 1")
        e(f"buffer_store_dword v12, v13, {srd(R_WS)}, {sOWN} offen sc1")
        e("s_mov_b64 exec, -1")
        e.end_region(s0, skip)

    def finish(self):
        e = self.e
        if self.c["diag"]:
            e.wait_all()
            self.stamp(15)
            self.flush_stamp()
            e(f"s_lshr_b32 {sT0}, {sOWN}, 10\ns_lshl_b32 {sT0}, {sT0}, 2\ns_add_u32 {sT0}, {sT0}, {sW}")
            e(f"s_lshl_b32 {sT0}, {sT0}, 8\ns_add_u32 {sT0}, {sT0}, {STAMP}")
            e(f"v_lshlrev_b32 v12, 2, {v(vLANE)}")
            e(f"buffer_store_dword {v(vSTAMP)}, v12, {srd(R_WS)}, {sT0} offen")
        e("s_endpgm")

    def check_flags(self, line, tag, tmp, tmp2, kind="hid"):
        e = self.e
        issue = self.word_addr(kind, tmp2) + [
                 f"s_add_u32 s46, {sOWN}, {INBOX + 128*line}",
                 f"buffer_load_dword {v(tmp)}, {v(tmp2)}, {srd(R_WS)}, s46 offen sc1"]

        def test():
            ok = e.newlabel("ready")
            e(f"s_add_u32 {sT1}, {sE}, {tag}\nv_cmp_eq_u32 vcc, {sT1}, {v(tmp)}")
            e(f"s_cmp_eq_u64 vcc, exec\ns_cbranch_scc1 {ok}")
            s0 = e.begin_region()
            self.poll(line, tag, kind, tmp, tmp2)
            e.end_region(s0, ok)
        return issue, test

    def mlp(self):
        e, c = self.e, self.c
        NS, SLOT, NSTREAM = 8, 20480, 27
        vD1, vD2 = 16, 20
        vR1, vR2 = 26, 30
        vA1, vA2 = 34, 36
        ACC1, ACC, WK = 96, 128, 192
        X, U = 96, 116
        XA, BB = 0, 160
        sM0C, sH, sHS, sR2 = "s15", "s89", "s90", "s91"
        LINES, TAGS = (3, 5, 6), (TAG_HID, TAG_HID2, TAG_HID3)

        self.mk_srd(R_1A, P_W1, 640 * 3072)
        self.mk_srd(R_2A, P_W2, 1536 * 1280)
        e(f"s_bfe_u32 s93, {sOWN}, 0x7000a\ns_lshl_b32 s93, s93, 2\ns_add_u32 s93, s93, {sW}")
        e(f"s_mul_i32 s93, s93, 3840\nv_min_u32 v247, 29, {v(vLANE)}\nv_lshlrev_b32 v247, 7, v247")
        e(f"s_lshl_b32 {sM0B}, {sW}, 12\ns_lshl_b32 {sM0C}, {sW}, 10\ns_add_u32 {sM0C}, {sM0C}, 16384")
        e(f"v_lshrrev_b32 v12, 3, {v(vLANE)}\nv_and_b32 v13, 7, {v(vLANE)}\nv_and_b32 v14, 2, v12")
        e("v_xor_b32 v14, v13, v14\nv_lshlrev_b32 v14, 4, v14\nv_mul_u32_u24 v15, 0xc00, v12\nv_add_u32 v14, v14, v15")
        e(f"s_and_b32 {sT0}, {sW}, 1\ns_mul_i32 {sT0}, {sT0}, 98304\ns_mul_i32 {sT1}, {sJ}, 384")
        e(f"s_add_u32 {sT0}, {sT0}, {sT1}")
        for i in range(4):
            e(f"s_add_u32 {sT2}, {sT0}, {23552*i}\nv_add_u32 {v(vD1+i)}, {sT2}, v14")
            if i & 1:
                e(f"v_xor_b32 {v(vD1+i)}, 64, {v(vD1+i)}")
        self.rot_init(sA, 10, 2048, True)
        e(f"s_lshr_b32 {sT2}, {sW}, 1\ns_lshl_b32 {sT2}, {sT2}, 11\ns_add_u32 {sWO1}, {sA}, {sT2}")
        e(f"s_cmp_eq_u32 {sWO1}, 20480\ns_cselect_b32 {sWO1}, 0, {sWO1}\ns_mul_i32 {sWO1}, {sWO1}, 96")

        def wrap(reg, inc):
            return [f"s_add_u32 {reg}, {reg}, {inc}", f"s_sub_u32 {sT3}, {reg}, 1966080", f"s_cselect_b32 {reg}, {reg}, {sT3}"]

        def dma(b):
            base = (b % NS) * SLOT
            ld = lambda r, d, so, imm: f"buffer_load_dwordx4 {v(r)}, {srd(d)}, {so} offen offset:{imm} lds"
            if b < 15:
                return ([f"s_add_u32 m0, {sM0B}, {base}"] + [ld(vD1 + i, R_1A, sWO1, 1024 * i) for i in range(4)]
                        + wrap(sWO1, 393216 + (128 if b % 5 == 4 else 0)))
            return ([f"s_add_u32 m0, {sM0B}, {base}"] + [ld(vD2 + i, R_2A, sWO2, 1024 * i) for i in range(4)]
                    + [f"s_add_u32 m0, {sM0C}, {base}", ld(vD2 + 4, R_2A, sWO2, 0)]
                    + wrap(sWO2, 491520 + (81920 if (b - 15) % 4 == 3 else 0)))

        pa, pl, pb = c["mpre_a"], c["mpre_st"], c["mpre_b"]
        self.issue_dma(dma, range(pa))
        e(f"v_lshrrev_b32 v12, 3, {v(vLANE)}\nv_and_b32 v13, 7, {v(vLANE)}")
        e("v_and_b32 v14, 6, v12\nv_xor_b32 v14, v13, v14\nv_lshlrev_b32 v14, 4, v14")
        e("v_mul_u32_u24 v15, 0x500, v12\nv_add_u32 v14, v14, v15")

        def row0(sub):
            e(f"s_and_b32 {sT3}, {sub}, 1\ns_lshl_b32 {sT3}, {sT3}, 5\ns_bfe_u32 {sub}, {sub}, 0x10001")
            e(f"s_mul_i32 {sub}, {sub}, 192\ns_add_u32 {sub}, {sub}, {sT3}")
        e(f"s_add_u32 {sT0}, {sJ}, {sW}")
        row0(sT0)
        e(f"s_mul_i32 {sT0}, {sT0}, 1280\ns_lshl_b32 {sT1}, {sJ}, 7\ns_add_u32 {sT0}, {sT0}, {sT1}")
        for i in range(4):
            e(f"s_add_u32 {sT1}, {sT0}, {9216*i}\nv_add_u32 {v(vD2+i)}, {sT1}, v14")
        e(f"s_mov_b32 {sT0}, {sJ}")
        row0(sT0)
        e(f"s_lshl_b32 {sT1}, {sW}, 3\ns_add_u32 {sT0}, {sT0}, {sT1}\ns_mul_i32 {sT0}, {sT0}, 1280")
        e(f"s_lshr_b32 {sT1}, {sJ}, 2\ns_lshl_b32 {sT1}, {sT1}, 7\ns_add_u32 {sT0}, {sT0}, {sT1}")
        e(f"s_add_u32 {sT0}, {sT0}, 1024\nv_add_u32 {v(vD2+4)}, {sT0}, v14")
        self.rot_init(sR2, 4, 4096, False)
        e(f"s_mul_i32 {sWO2}, {sR2}, 120")
        e(f"v_bfe_u32 v12, {v(vLANE)}, 2, 2\nv_lshrrev_b32 v13, 4, {v(vLANE)}\nv_and_b32 v14, 3, {v(vLANE)}")
        e("v_lshlrev_b32 v14, 3, v14\nv_and_b32 v10, 1, v13\nv_lshrrev_b32 v11, 1, v12\nv_lshl_add_u32 v10, v10, 1, v11")
        e("v_lshl_add_u32 v14, v10, 5, v14")
        for r, sh in ((vR1, 3), (vR2, 2)):
            e(f"v_lshl_add_u32 v15, v13, {sh}, v12\nv_lshl_add_u32 v15, v15, 7, v14")
            for f in range(4):
                e(f"v_xor_b32 {v(r+f)}, {32*f}, v15")
        for p in range(4):
            e(f"s_add_u32 {sT0}, {sJ}, {p}\ns_and_b32 {sT0}, {sT0}, 3\ns_lshl_b32 {sT0}, {sT0}, 10")
            e(f"v_add_u32 {v(vA2+2*p)}, {sT0}, {v(vL16B)}\nv_add_u32 {v(vA2+2*p+1)}, 49152, {v(vA2+2*p)}")
        e(f"v_add_u32 {v(vA1)}, 20480, {v(vL16B)}\nv_add_u32 {v(vA1+1)}, 49152, {v(vL16B)}")
        e(f"s_mul_i32 {sABEG}, {sRB}, 163840\ns_mul_i32 {sT0}, {sW}, 40960\ns_add_u32 {sABEG}, {sABEG}, {sT0}")
        e(f"s_add_u32 {sABEG}, {sABEG}, {XNS}\ns_add_u32 {sAEND}, {sABEG}, 20480\ns_add_u32 {sA}, {sA}, {sABEG}")
        e(f"s_mul_i32 {sH}, {sRB}, 393216\ns_mul_i32 {sT0}, {sW}, 98304\ns_add_u32 {sH}, {sH}, {sT0}")
        e(f"s_add_u32 {sH}, {sH}, {HM}\ns_lshl_b32 {sHS}, {sJ}, 11\ns_add_u32 {sHS}, {sHS}, {sH}")
        self.stamp(1)
        toks = lambda r: [(i, ("dma", b)) for b in r for i in dma(b)]
        self.ln_compute(X, U, SCR, toks(range(pa, pa + pl)))
        self.stamp(2)
        self.issue_dma(dma, range(pa + pl, pa + pl + pb))
        visible = {0}
        self.stamp(3)
        self.poll(2, TAG_XN, "xn", 12, 13)
        self.stamp(4)

        cur = {vR1: 0, vR2: 0}
        par = [0]

        def step(b, last, reg, offs, mk, tile=None):
            want = (b % NS) // 3
            d, cur[reg] = (want - cur[reg]) * 61440, want
            rd = [f"v_add_u32 {v(reg+f)}, {d & 0xFFFFFFFF}, {v(reg+f)}" for f in range(4)] if d else []
            so = (b % NS) % 3 * SLOT
            par[0] ^= 1
            bb = BB + 32 * par[0]
            rd += [f"ds_read_b64_tr_b16 {a(bb + 4*n + 2*j2,2)}, {v(reg + (n & 3 if tile is None else tile))} offset:{so + o + dj*j2}"
                   for n, (o, dj) in enumerate(offs) for j2 in range(2)]
            mf = [mk(n, m, bb + 4 * n) for n in range(len(offs)) for m in range(2)]
            return dict(blk=b, last=last, mf=mf, rd=rd, vm=[], alu=[])

        mf16 = lambda d, x, y, first: f"v_mfma_f32_16x16x32_bf16 {v(d,4)}, {a(x,4)}, {a(y,4)}, {0 if first else v(d,4)}"
        steps = []
        for r in range(3):
            acc = ACC1 + 32 * (r & 1)
            for gs in range(20):
                steps.append(step(5 * r + gs // 4, gs & 3 == 3, vR1, [((gs & 3) * 4096, 512)] * 4,
                                  lambda n, m, w_: mf16(acc + 8 * n + 4 * m, w_, XA + 8 * gs + 4 * m, gs == 0)))
        nb = c["tail_m"]
        u0 = 108 - 4 * nb
        for gs in range(u0 - 60):
            p = gs & 3
            offs = [(p * 4096, 2048)] * 4 + ([(16384, 2048)] * 4 if p == 0 else [])
            steps.append(step(15 + gs // 4, p == 3, vR2, offs,
                              lambda n, m, w_: mf16(ACC + 8 * n + 4 * m, XA + 8 * (gs % 16) + 4 * m, w_, gs == 0)))
        for T in (0, 1, 4, 2, 3):
            for b in range(27 - nb, 27):
                xa = XA + 8 * (4 * (b - 15) % 16)
                if T == 4:
                    steps.append(step(b, False, vR2, [(16384, 2048)] * 4,
                                      lambda n, m, w_: mf16(ACC + 32 + 8 * n + 4 * m, xa + 4 * m, w_, False)))
                else:
                    steps.append(step(b, False, vR2, [(p * 4096, 2048) for p in range(4)],
                                      lambda n, m, w_: mf16(ACC + 8 * T + 4 * m, xa + 8 * n + 4 * m, w_, False), tile=T))
        for st in steps[u0:]:
            st["blk"] = 26

        def aload1(gs):
            out = [f"buffer_load_dwordx4 {a(XA + 8*gs + 4*m,4)}, {v(vA1 if m else vL16B)}, {srd(R_WS)}, {sA} "
                   f"offen offset:{1024*(gs&1)} sc1" for m in range(2)]
            return out + (self.adv(sA, 2048, sAEND, sABEG) if gs & 1 else [])

        def aload2(gs):
            out = []
            if gs % 16 == 0:
                out += [f"s_add_u32 {sABEG}, {sH}, {1024*gs}", f"s_add_u32 {sAEND}, {sABEG}, 16384", f"s_add_u32 {sA}, {sR2}, {sABEG}"]
            out += [f"buffer_load_dwordx4 {a(XA + 8*(gs%16) + 4*m,4)}, {v(vA2 + 2*(gs&3) + m)}, {srd(R_WS)}, {sA} "
                    f"offen sc1" for m in range(2)]
            return out + (self.adv(sA, 4096, sAEND, sABEG) if gs & 3 == 3 else [])

        def relu_store(r, u, m):
            acc, d = ACC1 + 32 * (r & 1), WK + 4 * (2 * u + m)
            src = [acc + 8 * (2 * u + h) + 4 * m + 2 * k for h in range(2) for k in range(2)]
            out = [[(f"v_cvt_pk_bf16_f32 {v(d+k)}, {v(src[k])}, {v(src[k]+1)}", None)] for k in range(4)]
            out += [[(f"v_pk_max_i16 {v(d+k)}, {v(d+k)}, 0", None)] for k in range(4)]
            out[-1].append((f"buffer_store_dwordx4 {v(d,4)}, {v(vA1+1 if m else vL16B)}, {srd(R_WS)}, {sHS} "
                            f"offen offset:{1024*u} sc1", ("h", r)))
            if u and m:
                out[-1].append((f"s_add_u32 {sHS}, {sHS}, 16384", None))
            return out

        apre = c["ma_pre"]
        items = self.a_items(aload1, apre, 20, lambda g: 0, lambda g: g)
        steps[c["warm_m"]]["vm"].append([(f"buffer_load_dword v255, v247, {srd(R_2A)}, s93 offen", "junk")])
        for k in range(c["warm_m"] + 2, c["warm_m"] + 2 + c["quiet"]):
            steps[k]["quiet"] = True
        tests = (40 + c["test0"], 60 + c["test1"], 60 + c["test2"])
        for r in range(3):
            base = 20 * (r + 1)
            for n in range(4):
                steps[base + 1 + 2 * n]["alu"] += relu_store(r, n >> 1, n & 1)
            fl = steps[base + (c["flag01"] if r < 2 else c["flag2"])]
            assert fl["last"]
            fl["pre"] = lambda r=r: e.wait_tok(("h", r))
            fl["post"] = lambda r=r: self.send_flags(LINES[r], TAGS[r], "0xff00", sJ)
            issue, test = self.check_flags(LINES[r], TAGS[r], 10, 11)
            steps[tests[r] - c["lead"]]["vm"] += self.groups(issue)
            assert "pre" not in steps[tests[r]]
            steps[tests[r]]["pre"] = test
        items += self.a_items(aload2, 0, 48, lambda g: max(tests[g // 16], 41 + g if g < 16 else 45 + g), lambda g: min(60 + g, u0 + (g + 60 - u0) // 4))
        sPM, sPX, sPW = "s96", "s97", "s88"

        def part_store(T):
            d = WK + 4 * (T & 3)
            out = [[(f"v_cvt_pk_bf16_f32 {v(d+k)}, {v(ACC + 8*T + 2*k)}, {v(ACC + 8*T + 2*k + 1)}", None)] for k in range(4)]
            if T < 4:
                out[-1].append((f"buffer_store_dwordx4 {v(d,4)}, {v(vL16B)}, {srd(R_WS)}, {sPM} offen offset:{1024*T} sc1", "pa" if T < 2 else None))
            else:
                out[-1].append((f"buffer_store_dwordx4 {v(d,4)}, {v(vL16B)}, {srd(R_WS)}, {sPX} offen sc1", None))
                out[-1].append((f"s_add_u32 {sPX}, {sPX}, 32768", None))
            return out

        def part_setup():
            e(f"s_lshl_b32 {sT0}, {sRB}, 18\ns_lshl_b32 {sT1}, {sW}, 13\ns_add_u32 {sT0}, {sT0}, {sT1}\ns_add_u32 {sT0}, {sT0}, {PART}")
            e(f"s_lshl_b32 {sPM}, {sJ}, 15\ns_add_u32 {sPM}, {sPM}, {sT0}")
            e(f"s_and_b32 {sPX}, {sJ}, 4\ns_lshl_b32 {sPX}, {sPX}, 15\ns_add_u32 {sPX}, {sPX}, {sT0}")
            e(f"s_and_b32 {sT1}, {sJ}, 3\ns_lshl_b32 {sT1}, {sT1}, 10\ns_add_u32 {sPX}, {sPX}, {sT1}")
            e(f"s_add_u32 {sPX}, {sPX}, 4096\ns_and_b32 {sPW}, {sJ}, 3\ns_and_b32 {sT1}, {sJ}, 4")
            e(f"s_lshl_b32 s92, 1, {sJ}\ns_mov_b32 s93, 0")
        steps[90]["pre"] = part_setup
        for T, k in ((0, nb), (1, 2 * nb), (4, 3 * nb), (5, 3 * nb), (6, 4 * nb - 1), (7, 4 * nb - 1), (2, 4 * nb)):
            steps[u0 + k]["alu"] += part_store(T)
        flag_a = lambda: (e.wait_tok("pa"), self.send_wave(7, TAG_PART2, "s[92:93]", 0, 0))
        if c["pa_flag"]:
            steps[len(steps) - c["pa_flag"]]["pre"] = flag_a
        for gs in range(apre):
            e("\n".join(aload1(gs)))
        self.pipeline(steps, dma, NS, NSTREAM, range(pa + pl + pb, NS), visible, items, due={b: u0 - 1 for b in range(28 - nb, 27)})
        self.stamp(12)

        self.emit_groups(part_store(3))
        self.stamp(13)
        if not c["pa_flag"]:
            flag_a()
        e(f"s_and_b32 {sT1}, {sJ}, 4\ns_lshl_b32 s92, 15, {sT1}")
        e.wait_all()
        self.send_wave(4, TAG_PART, "s[92:93]", sPW, 2)
        self.epoch_bump()
        self.stamp(14)
        self.finish()

    def build(self):
        e = self.e
        self.entry()
        snap = e.begin_region()
        pend, nst = self.pending_stamp, self.nstamp
        self.chain = 0
        self.ssm()
        self.chain = 1
        e.vm, e.lg, e.hist = list(snap["vm"]), list(snap["lg"]), []
        self.pending_stamp, self.nstamp = pend, nst
        e.label("L_mlp")
        self.mlp()
        e.label("L_end")
        e("s_endpgm")
        ref = open(f"cdna_kernels/{NAME}.s.ref").read()
        head = ref.split("; Override launch")[0]
        out = head
        out += "; Persistent kernel: one workgroup per CU, SSM chain and MLP chain on separate workgroup sets.\n"
        out += f"; @launch grid=(256,1,1) block=(256,1,1) lds={LDS_BYTES}\n"
        out += '.amdgcn_target "amdgcn-amd-amdhsa--gfx950"\n.text\n'
        out += f".globl {KERNEL}\n.p2align 8\n.type {KERNEL},@function\n{KERNEL}:\n"
        out += e.text()
        out += f""".section .rodata,"a"
.p2align 6
.amdhsa_kernel {KERNEL}
  .amdhsa_next_free_vgpr 512
  .amdhsa_next_free_sgpr 102
  .amdhsa_accum_offset 256
  .amdhsa_group_segment_fixed_size 0
  .amdhsa_kernarg_size 120
  .amdhsa_user_sgpr_count 2
  .amdhsa_user_sgpr_kernarg_segment_ptr 1
  .amdhsa_system_sgpr_workgroup_id_x 1
  .amdhsa_float_denorm_mode_32 3
.end_amdhsa_kernel
"""
        return out


def parse_cfg(args):
    cfg = {}
    for s in args:
        k, val = s.split("=")
        cfg[k] = type(DEFAULTS[k])(int(val))
    return cfg


if __name__ == "__main__":
    path = sys.argv[1]
    g = Gen(**parse_cfg(sys.argv[2:]))
    open(path, "w").write(g.build())
    print(path, "lines", len(g.e.lines), "nop slots", g.e.nops)
```

```python
import os
import sys

sys.path.insert(0, os.path.dirname(os.path.abspath(__file__)))
from emit import Emitter

NAME = "parallel_sum__ssm_conv_s5__dense_activation_relu__prompt"
KERNEL = NAME + "_kernel"

INBOX = 0x0
CARRY = 0x40000
XNS = 0x300000
HS = 0x800000
HM = 0xD00000
PART = 0x1300000
STAMP = 0x1700000
WS_USED = 0x1800000

LDS_BYTES = 163840
SCR = 143360
SPIN_LIMIT = 1 << 15

TAG_HID2, TAG_XN, TAG_HID, TAG_PART, TAG_CARRY, TAG_HID3, TAG_PART2 = 16, 32, 48, 64, 80, 96, 112

DEFAULTS = dict(
    pre_a=1, pre_st=1, pre_b=2, mpre_a=1, mpre_st=1, mpre_b=6,
    a_pre=2, a_pre2=4, ma_pre=4, cap=115, lat_a=6, lat_d=8, waits=2, span=75,
    skip_at=14, lazy0=10, lazy_gap=3, defer=1, tail_s=2, tail_m=2, pa_test=0, pb_test=3, p_lead=3, e0=4, e2=5, pa_flag=1, mix=0, rj1=1, rj2=0,
    warm_m=29, quiet=4, flag01=15, flag2=15, test0=6, test1=8, test2=26, lead=5,
    diag=False, jitter=0, blkstamp=False, blkclk=False, stepstamp=-1, dump=False,
)

P_X, P_LRE, P_LIM, P_BRE, P_BIM, P_CRE, P_CIM, P_LDT = 16, 18, 20, 22, 24, 26, 28, 30
P_DSK, P_BX, P_W1, P_W2, P_OUT, P_DBG, P_WS = 32, 34, 36, 38, 40, 42, 44
R_X, R_WS, R_1A, R_1B, R_2A, R_2B, R_OUT, R_TMP = 48, 52, 56, 60, 64, 68, 72, 76
sRB, sJ, sW, sEC, sE, sCH, sOWN, sSPIN = "s3", "s4", "s5", "s6", "s7", "s8", "s9", "s10"
sT0, sT1, sT2, sT3 = "s11", "s12", "s13", "s14"
sWO1, sWO2 = "s80", "s81"
sA, sABEG, sAEND = "s83", "s84", "s85"
sM0A, sM0B = "s86", "s87"
sHALF = "s[94:95]"
sME = "s47"
sEX = "s[88:89]"
sMSK = [f"s[{90+2*k}:{91+2*k}]" for k in range(4)]
sST = ["s[98:99]", "s[100:101]"]


def v(a, n=1):
    return f"v{a}" if n == 1 else f"v[{a}:{a+n-1}]"


def a(b, n=1):
    return f"a{b}" if n == 1 else f"a[{b}:{b+n-1}]"


def srd(b):
    return f"s[{b}:{b+3}]"


vTID, vLANE, vL16B, vE, vINB, vFLG, vSTAMP = 0, 1, 2, 3, 4, 5, 6


class Gen:
    def __init__(self, **cfg):
        self.c = dict(DEFAULTS)
        self.c.update(cfg)
        self.e = Emitter()
        self.nstamp = 0
        self.chain = -1
        self.pending_stamp = None

    def stamp(self, k):
        if self.c["jitter"] and 0 < k < 15:
            e, lp, out = self.e, self.e.newlabel("jit"), self.e.newlabel("jitend")
            e(f"s_lshl_b32 s98, s2, 2\ns_add_u32 s98, s98, {sW}\ns_add_u32 s98, s98, {977 * k + self.c['jitter']}")
            e("s_mul_i32 s98, s98, 0x9e3779b1\ns_lshr_b32 s99, s98, 15\ns_xor_b32 s98, s98, s99\ns_mul_i32 s98, s98, 0x85ebca6b")
            e(f"s_lshr_b32 s99, s98, 30\ns_cmp_lg_u32 s99, 0\ns_cbranch_scc1 {out}\ns_bfe_u32 s98, s98, 0x60008")
            e.label(lp)
            e(f"s_sleep 8\ns_sub_u32 s98, s98, 1\ns_cbranch_scc0 {lp}")
            e.label(out)
        if not self.c["diag"]:
            return
        e = self.e
        self.flush_stamp()
        reg = sST[self.nstamp & 1]
        self.nstamp += 1
        e(f"s_memtime {reg}" if 16 <= k < 44 and self.c["blkclk"] else f"s_memrealtime {reg}")
        self.pending_stamp = (k, reg)

    def flush_stamp(self):
        if self.pending_stamp:
            k, reg = self.pending_stamp
            lo = reg[2:].split(":")[0]
            self.e(f"v_writelane_b32 {v(vSTAMP)}, s{lo}, {k}")
            self.pending_stamp = None

    def mk_srd(self, r, ptr, nbytes):
        e = self.e
        e(f"s_mov_b32 s{r}, s{ptr}\ns_mov_b32 s{r+1}, s{ptr+1}")
        e(f"s_mov_b32 s{r+2}, {nbytes}\ns_mov_b32 s{r+3}, 0x20000")

    def mk_srd_sel(self, r, p_lo, p_hi, nbytes):
        e = self.e
        e(f"s_cselect_b32 s{r}, s{p_lo}, s{p_hi}\ns_cselect_b32 s{r+1}, s{p_lo+1}, s{p_hi+1}")
        e(f"s_mov_b32 s{r+2}, {nbytes}\ns_mov_b32 s{r+3}, 0x20000")

    def cmul(self, d, x, y):
        e = self.e
        e(f"v_pk_mul_f32 {v(d,2)}, {v(x,2)}, {v(y,2)} op_sel:[0,0] op_sel_hi:[0,1]")
        e(f"v_pk_fma_f32 {v(d,2)}, {v(x,2)}, {v(y,2)}, {v(d,2)} op_sel:[1,1,0] op_sel_hi:[1,0,1] neg_lo:[1,0,0]")

    def round_bf16(self, r):
        e = self.e
        e(f"v_cvt_pk_bf16_f32 {v(r)}, {v(r)}, {v(r)}\nv_lshlrev_b32 {v(r)}, 16, {v(r)}")

    def rot_init(self, dst, nb, stride, by_j):
        e = self.e
        e(f"s_and_b32 {sT0}, {sRB}, 3\ns_mul_i32 {sT0}, {sT0}, {nb}\ns_lshr_b32 {sT0}, {sT0}, 2")
        e(f"s_lshr_b32 {sT1}, {sRB}, 2\ns_add_u32 {sT0}, {sT0}, {sT1}")
        if self.c["rj1" if by_j else "rj2"]:
            jb = 2 if self.c["mix"] else 3
            e(f"s_and_b32 {sT1}, {sJ}, {(1 << jb) - 1}\ns_mul_i32 {sT1}, {sT1}, {nb}\ns_lshr_b32 {sT1}, {sT1}, {jb}")
            e(f"s_add_u32 {sT0}, {sT0}, {sT1}")
        e(f"s_mul_hi_u32 {sT1}, {sT0}, {(2**32 + nb - 1) // nb}\ns_mul_i32 {sT1}, {sT1}, {nb}")
        e(f"s_sub_u32 {sT0}, {sT0}, {sT1}\ns_mul_i32 {dst}, {sT0}, {stride}")

    @staticmethod
    def adv(reg, stride, end, beg):
        return [f"s_add_u32 {reg}, {reg}, {stride}", f"s_cmp_eq_u32 {reg}, {end}",
                f"s_cselect_b32 {reg}, {beg}, {reg}"]

    def send_flags(self, line, tag, lanes, word):
        e = self.e
        skip = e.newlabel("nosend")
        e(f"s_cmp_lg_u32 {sW}, 0\ns_cbranch_scc1 {skip}")
        s0 = e.begin_region()
        e(f"v_add_u32 {v(vFLG)}, {tag}, {v(vE)}")
        e(f"s_lshl_b32 {sT0}, {word}, 2\ns_add_u32 {sT0}, {sT0}, {INBOX + 128*line}")
        e(f"s_mov_b64 exec, {lanes}")
        e(f"buffer_store_dword {v(vFLG)}, {v(vINB)}, {srd(R_WS)}, {sT0} offen sc1")
        e("s_mov_b64 exec, -1")
        e.end_region(s0, skip)

    def send_wave(self, line, tag, lanes, word, shift):
        e = self.e
        e(f"v_add_u32 {v(vFLG)}, {tag}, {v(vE)}\ns_lshl_b32 {sT0}, {sW}, {shift}\ns_add_u32 {sT0}, {sT0}, {word}")
        e(f"s_lshl_b32 {sT0}, {sT0}, 2\ns_add_u32 {sT0}, {sT0}, {INBOX + 128*line}\ns_mov_b64 exec, {lanes}")
        e(f"buffer_store_dword {v(vFLG)}, {v(vINB)}, {srd(R_WS)}, {sT0} offen sc1")
        e("s_mov_b64 exec, -1")

    @staticmethod
    def word_addr(kind, r):
        if kind == "xn":
            return [f"v_and_b32 {v(r)}, 2, {v(vLANE)}", f"v_and_b32 v15, 1, {v(vLANE)}", f"v_lshl_add_u32 {v(r)}, {v(r)}, 2, v15",
                    f"v_lshl_add_u32 {v(r)}, {sW}, 1, {v(r)}", f"v_lshlrev_b32 {v(r)}, 2, {v(r)}"]
        if kind == "part":
            return [f"v_and_b32 {v(r)}, 3, {v(vLANE)}", f"v_lshl_add_u32 {v(r)}, {sW}, 2, {v(r)}", f"v_lshlrev_b32 {v(r)}, 2, {v(r)}"]
        if kind == "wave":
            return [f"v_mov_b32 {v(r)}, {sW}", f"v_lshlrev_b32 {v(r)}, 2, {v(r)}"]
        return [f"v_and_b32 {v(r)}, 7, {v(vLANE)}", f"v_lshlrev_b32 {v(r)}, 2, {v(r)}"]

    def poll(self, line, tag, kind, tmp, tmp2, touch=()):
        e = self.e
        lp, out = e.newlabel("poll"), e.newlabel("polled")
        e("\n".join(self.word_addr(kind, tmp2)))
        e(f"s_add_u32 {sT0}, {sOWN}, {INBOX + 128*line}\ns_add_u32 {sT1}, {sE}, {tag}")
        e.label(lp)
        e(f"buffer_load_dword {v(tmp)}, {v(tmp2)}, {srd(R_WS)}, {sT0} offen sc1")
        e("\n".join(touch), tok="junk")
        e(f"s_cmp_eq_u32 {sSPIN}, 0")
        e.wait_all(lg=False)
        e(f"s_cbranch_scc1 {out}\ns_sub_u32 {sSPIN}, {sSPIN}, 1")
        e(f"v_cmp_eq_u32 vcc, {sT1}, {v(tmp)}")
        e(f"s_cmp_eq_u64 vcc, exec\ns_cbranch_scc0 {lp}")
        e.label(out)

    def entry(self):
        e, c = self.e, self.c
        X = 96
        e("s_cmp_ge_u32 s2, 256\ns_cbranch_scc1 L_end")
        e("s_load_dwordx2 s[44:45], s[0:1], 112\ns_load_dwordx16 s[16:31], s[0:1], 0")
        e("s_load_dwordx8 s[32:39], s[0:1], 64\ns_load_dwordx4 s[40:43], s[0:1], 96")
        if c["diag"]:
            e(f"v_mov_b32 {v(vSTAMP)}, 0")
        self.stamp(0)
        mix = c["mix"]
        e(f"s_lshr_b32 {sT0}, s2, 3\ns_bfe_u32 {sCH}, s2, {0x10000 + (0, 3, 7)[mix]}\ns_xor_b32 {sCH}, {sCH}, 1")
        if mix:
            e(f"s_bfe_u32 {sT0}, s2, {0x40000 + (0, 4, 3)[mix]}")
        skip, here = e.newlabel("nopf"), e.newlabel("pc")
        e("s_getpc_b64 s[88:89]")
        e.label(here)
        e(f"s_cmp_eq_u32 {sCH}, 0\ns_cselect_b32 {sT1}, 0, L_mlp-{here}")
        e(f"s_mov_b32 {sT2}, L_end-{here}\ns_cselect_b32 {sT2}, L_mlp-{here}, {sT2}")
        e(f"s_lshl_b32 {sT3}, {sT0}, 7\ns_add_u32 {sT3}, {sT3}, {sT1}")
        e(f"v_lshl_add_u32 v12, v0, {11 if mix else 12}, {sT3}\nv_cmp_gt_u32 vcc, {sT2}, v12")
        e(f"s_and_saveexec_b64 s[90:91], vcc\ns_cbranch_execz {skip}")
        s0 = e.begin_region()
        e("v_mov_b32 v13, s89\nv_add_co_u32 v12, vcc, s88, v12\nv_addc_co_u32 v13, vcc, 0, v13, vcc")
        e("global_load_dword v255, v[12:13], off", tok="junk")
        e.end_region(s0, skip)
        e("s_mov_b64 exec, -1")
        if mix:
            e(f"s_and_b32 {sJ}, {sT0}, 3\ns_and_b32 {sT1}, s2, 1\ns_lshl_b32 {sT1}, {sT1}, 2\ns_add_u32 {sJ}, {sJ}, {sT1}")
            e(f"s_lshr_b32 {sT0}, {sT0}, 2\ns_bfe_u32 {sT1}, s2, 0x20001")
        else:
            e(f"s_and_b32 {sJ}, {sT0}, 7\ns_lshr_b32 {sT0}, {sT0}, 3\ns_bfe_u32 {sT1}, s2, 0x20001")
        e(f"s_lshr_b32 {sT2}, {sT1}, 1\ns_xor_b32 {sT1}, {sT1}, {sT2}")
        e(f"s_lshl_b32 {sT1}, {sT1}, 2\ns_add_u32 {sRB}, {sT1}, {sT0}")
        e("v_lshrrev_b32 v8, 5, v0\nv_and_b32 v9, 31, v0")
        e("v_and_b32 v10, 1, v8\nv_lshlrev_b32 v10, 2, v10\nv_bfe_u32 v11, v8, 1, 1\nv_add_u32 v10, v10, v11")
        e("v_lshrrev_b32 v11, 2, v8\nv_lshl_add_u32 v10, v11, 3, v10")
        e("v_mul_u32_u24 v10, 0x500, v10\nv_lshl_add_u32 v10, v9, 4, v10")
        e(f"s_and_b32 {sT1}, {sJ}, 1\ns_lshl_b32 {sT2}, {sCH}, 3\ns_add_u32 {sT1}, {sT1}, {sT2}\ns_lshl_b32 {sT1}, {sT1}, 1")
        e(f"s_lshr_b32 {sT0}, {sJ}, 1\ns_lshl_b32 {sT0}, {sT0}, 5\ns_add_u32 {sT0}, {sT0}, {sT1}")
        e(f"s_lshl_b32 {sT1}, {sRB}, 7\ns_add_u32 {sT0}, {sT0}, {sT1}\ns_mul_i32 {sT0}, {sT0}, 1280")
        e(f"s_mov_b32 s{R_X+2}, {2048*1280}\ns_mov_b32 s{R_X+3}, 0x20000")
        e("s_mov_b32 s94, 0xffff\ns_mov_b32 s95, 0xffff")
        e(f"s_mov_b32 s{R_X}, s{P_X}\ns_mov_b32 s{R_X+1}, s{P_X+1}")
        for n in range(3):
            if n == 2:
                e(f"s_mov_b64 exec, {sHALF}")
            e(f"buffer_load_dwordx4 {v(X+4*n,4)}, v10, {srd(R_X)}, {sT0} offen offset:{512*n}")
        e("s_mov_b64 exec, -1")
        e(f"v_lshrrev_b32 v7, 6, v0\nv_and_b32 {v(vLANE)}, 63, v0")
        e(f"v_readfirstlane_b32 {sW}, v7")
        e(f"v_lshlrev_b32 {v(vL16B)}, 4, {v(vLANE)}")
        e(f"s_lshl_b32 {sOWN}, {sCH}, 4\ns_add_u32 {sOWN}, {sOWN}, {sRB}")
        e(f"s_lshl_b32 {sOWN}, {sOWN}, 3\ns_add_u32 {sOWN}, {sOWN}, {sJ}\ns_lshl_b32 {sOWN}, {sOWN}, 10")
        e(f"s_mov_b32 {sSPIN}, {SPIN_LIMIT}")
        self.mk_srd(R_WS, P_WS, WS_USED)
        e(f"s_lshl_b32 {sME}, {sCH}, 3\ns_add_u32 {sME}, {sME}, {sJ}\ns_lshl_b32 {sT0}, {sRB}, 13")
        e(f"v_and_b32 v11, 7, {v(vLANE)}\nv_lshl_add_u32 {v(vINB)}, v11, 10, {sT0}")
        e(f"v_bfe_u32 v11, {v(vLANE)}, 3, 1\nv_lshl_add_u32 {v(vINB)}, v11, 17, {v(vINB)}")
        e(f"s_add_u32 {sT1}, {sJ}, 120\ns_lshl_b32 {sT1}, {sT1}, 10\nv_mov_b32 v11, {sT1}")
        e(f"v_cmp_gt_u32 vcc, 16, {v(vLANE)}")
        e(f"v_cndmask_b32 {v(vINB)}, v11, {v(vINB)}, vcc")
        e(f"buffer_load_dword {v(vE)}, {v(vINB)}, {srd(R_WS)}, 0 offen sc1")
        e(f"v_and_b32 v11, 7, {v(vLANE)}\nv_lshlrev_b32 v11, 7, v11")
        e(f"buffer_load_dword v255, v11, {srd(R_WS)}, {sOWN} offen", tok="junk")
        e(f"s_cmp_eq_u32 {sCH}, 0\ns_cbranch_scc0 L_mlp")

    def ln_compute(self, X, U, scr, fill_st, during_ack=None):
        e = self.e

        def parts(body):
            body(range(8))
            e(f"s_mov_b64 exec, {sHALF}")
            body(range(8, 12))
            e("s_mov_b64 exec, -1")

        def rowsum(r):
            e(f"v_add_f32 {v(r)}, {v(r)}, {v(r+1)}")
            for sh in (8, 4, 2, 1):
                e(f"v_add_f32_dpp {v(r)}, {v(r)}, {v(r)} row_ror:{sh} row_mask:0xf bank_mask:0xf")
            e(f"v_mov_b32 {v(r+1)}, {v(r)}\nv_permlane16_swap_b32 {v(r)}, {v(r+1)}\nv_add_f32 {v(r)}, {v(r)}, {v(r+1)}")

        def unpack(ks):
            for k in ks:
                e(f"v_lshlrev_b32 {v(U+2*k)}, 16, {v(X+k)}\nv_and_b32 {v(U+2*k+1)}, 0xffff0000, {v(X+k)}")
                if k == 0:
                    self.stamp(44)
                if k == 1:
                    e(f"v_pk_add_f32 v[12:13], {v(U,2)}, {v(U+2,2)}")
                elif k > 1:
                    e(f"v_pk_add_f32 v[12:13], v[12:13], {v(U+2*k,2)}")

        def centre(ks):
            for k in ks:
                e(f"v_pk_add_f32 {v(U+2*k,2)}, {v(U+2*k,2)}, v[14:15] op_sel_hi:[1,0] neg_lo:[0,1] neg_hi:[0,1]")
            for k in ks:
                if k == 0:
                    e(f"v_pk_mul_f32 v[12:13], {v(U,2)}, {v(U,2)}")
                else:
                    e(f"v_pk_fma_f32 v[12:13], {v(U+2*k,2)}, {v(U+2*k,2)}, v[12:13]")

        def scale(ks):
            for k in ks:
                e(f"v_pk_mul_f32 {v(U+2*k,2)}, {v(U+2*k,2)}, v[12:13] op_sel_hi:[1,0]")
                e(f"v_cvt_pk_bf16_f32 {v(X+k)}, {v(U+2*k)}, {v(U+2*k+1)}")
                if k & 3 == 3:
                    e(f"ds_write_b128 v10, {v(X+k-3,4)} offset:{1024*(k-3)}")

        inv_d = "0x3acccccd"
        e("v_and_b32 v10, 7, v9\nv_xor_b32 v10, v8, v10\nv_lshlrev_b32 v10, 4, v10\nv_lshl_add_u32 v10, v9, 7, v10")
        e(f"v_add_u32 v10, {scr}, v10\nv_lshrrev_b32 v8, 3, v0\nv_and_b32 v9, 7, v0\nv_xor_b32 v11, v8, v9")
        e(f"v_and_b32 v11, 7, v11\nv_lshlrev_b32 v11, 4, v11\nv_lshl_add_u32 v11, v8, 7, v11\nv_add_u32 v11, {scr}, v11")
        e("v_lshlrev_b32 v9, 4, v9\nv_lshl_add_u32 v9, v8, 8, v9")
        e(f"s_mul_i32 {sT2}, {sRB}, 163840\ns_mul_i32 {sT1}, {sJ}, 20480\ns_add_u32 {sT2}, {sT2}, {sT1}")
        e(f"s_lshl_b32 {sT1}, {sCH}, 7\ns_add_u32 {sT2}, {sT2}, {sT1}\ns_add_u32 s92, {sT2}, {XNS}")
        parts(unpack)
        rowsum(12)
        e(f"v_mul_f32 v12, {inv_d}, v12\nv_mov_b32 v14, v12")
        self.round_bf16(14)
        e("v_sub_f32 v15, v12, v14")
        parts(centre)
        rowsum(12)
        e(f"v_mul_f32 v12, {inv_d}, v12\nv_fma_f32 v12, -v15, v15, v12\nv_max_f32 v12, 0, v12")
        self.round_bf16(12)
        e("v_add_f32 v12, 0x3727c5ac, v12")
        self.round_bf16(12)
        e("v_sqrt_f32 v12, v12")
        self.round_bf16(12)
        e("v_rcp_f32 v12, v12")
        parts(scale)
        self.stamp(45)
        e.wait_lg()
        e("s_barrier")
        for k in range(3):
            e(f"ds_read_b128 {v(X+4*k,4)}, v11 offset:{4096*k}")
        e(f"buffer_store_dwordx4 {v(X,4)}, v9, {srd(R_WS)}, s92 offen sc1", tok="xn")
        e(f"s_add_u32 {sT2}, s92, 8192\ns_add_u32 {sT3}, s92, 16384")
        e(f"buffer_store_dwordx4 {v(X+4,4)}, v9, {srd(R_WS)}, {sT2} offen sc1", tok="xn")
        skip = e.newlabel("third")
        e.wait_lg()
        e(f"s_cmp_gt_u32 {sW}, 1\ns_cbranch_scc1 {skip}")
        s0 = e.begin_region()
        e(f"buffer_store_dwordx4 {v(X+8,4)}, v9, {srd(R_WS)}, {sT3} offen sc1", tok="xn")
        e.end_region(s0, skip)
        self.stamp(46)
        e(f"v_readlane_b32 {sE}, {v(vE)}, {sME}\nv_readlane_b32 {sEC}, {v(vE)}, 16")
        for ins, tok in fill_st:
            e(ins, tok=tok)
        if during_ack:
            during_ack()
        e.wait_tok("xn", ("dma", 0))
        e.wait_lg()
        self.stamp(47)
        e("s_barrier")
        self.send_flags(2, TAG_XN, "0xffff", sME)

    @staticmethod
    def groups(instrs, tok=None):
        out, cur = [], []
        for ins in instrs:
            cur.append((ins, tok))
            if ins.startswith("buffer_"):
                out.append(cur)
                cur = []
        if cur:
            out[-1] += cur
        return out

    def pipeline(self, steps, dma, ns, nstream, early, visible, aitems, lazy={}, keep=False, due={}):
        e, c = self.e, self.c
        last = {st["blk"]: k for k, st in enumerate(steps) if st["last"]}
        b0 = steps[0]["blk"]
        blocks = [(b, 0) for b in early]
        blocks += [(b - 1 + ns, last[b]) for b in sorted(last) if b > b0 and b - 1 + ns < nstream]
        ditems = [dict(r=max(r, lazy.get(b, 0)), d=due.get(b, last.get(b - 1, len(steps) + b)), g=g)
                  for b, r in blocks for g in self.groups(dma(b), ("dma", b))]
        for prev, it in zip(ditems, ditems[1:]):
            if " m0," in it["g"][0][0]:
                prev["g"].append(it["g"].pop(0))
        streams = [(list(aitems), c["lat_a"]), (ditems, c["lat_d"])]
        credit = 0.0
        for k, st in enumerate(steps):
            credit = max(min(credit, 1.0), -1.0) + c["cap"] / 100 * len(st["mf"]) / 4 - len(st["vm"])
            credit -= sum(1 for g in st["alu"] for ins, _ in g if "buffer_" in ins)
            while True:
                heads = [(q[0]["d"] - lat, q) for q, lat in streams if q and q[0]["r"] <= k]
                if not heads:
                    break
                due = [h for h in heads if h[1][0]["d"] <= k + 1]
                if not due and (credit < 1 or st.get("quiet")):
                    break
                dl, q = min(due or heads, key=lambda h: h[0])
                st["vm"].append(q.pop(0)["g"])
                credit -= 1
        assert not streams[0][0] and all(it["r"] < it["d"] for it in aitems)
        if c["dump"]:
            for k, st in enumerate(steps):
                kinds = ["D%d" % g[0][1][1] if g[0][1] and g[0][1][0] == "dma" else "A" for g in st["vm"]]
                print(self.chain, k, st["blk"], " ".join(kinds), "ST" if st["alu"] else "", "pre" if st.get("pre") else "")
        for ins in steps[0]["rd"]:
            e(ins)
        for k, st in enumerate(steps):
            b = st["blk"]
            if c["stepstamp"] >= 0:
                if 0 <= k + 100 * (b0 > 0) - c["stepstamp"] < 28:
                    self.stamp(16 + k + 100 * (b0 > 0) - c["stepstamp"])
            elif c["blkstamp"] and (k == 0 or steps[k - 1]["last"]):
                self.stamp(16 + b)
            nxt = steps[k + 1] if k + 1 < len(steps) else None
            if st["last"]:
                release = b > b0 and b - 1 + ns < nstream
                need_vis = nxt is not None and nxt["blk"] not in visible
                if need_vis:
                    e.wait_tok(("dma", nxt["blk"]))
                    visible.add(nxt["blk"])
                if st.get("pre"):
                    st["pre"]()
                if release or need_vis or st.get("post"):
                    e("s_barrier")
                if st.get("post"):
                    st["post"]()
            elif st.get("pre"):
                st["pre"]()
            rd = nxt["rd"] if nxt is not None else []
            mm, vm = st["mf"], st["vm"]
            slots = [[] for _ in mm]
            nm, nw, span = len(mm), c["waits"], c["span"]
            for n, ins in enumerate(rd):
                slots[n * nm * span // (100 * len(rd))].append((ins, None))
            for n, g in enumerate(st["alu"]):
                slots[n * nm // len(st["alu"])] += g
            for n, g in enumerate(vm):
                slots[(2 * n + 1) * nm // (2 * len(vm))] += g
            cuts = [n * nm // nw for n in range(nw + 1)]
            for n, (ins, fl) in enumerate(zip(mm, slots)):
                if n in cuts:
                    e.wait_for(mm[n:cuts[cuts.index(n) + 1]])
                e(ins)
                for f_, tok in fl:
                    e(f_, tok=tok)
        rest = [it["g"] for it in ditems]
        if keep:
            return rest
        self.emit_groups(rest)

    def record(self, fn):
        real, lines = self.e, []
        self.e = lambda text, tok=None: lines.extend(x for x in text.split("\n") if x)
        fn(self.e)
        self.e = real
        return [[(x, None)] for x in lines]

    def emit_groups(self, gs):
        for g in gs:
            for ins, tok in g:
                self.e(ins, tok=tok)

    def a_items(self, aloads, first, count, rel, use):
        return [dict(r=rel(gs), d=use(gs), g=g) for gs in range(first, count) for g in self.groups(aloads(gs))]

    @staticmethod
    def mk_steps(first_blk, nblk, nst, mfmas, breads):
        return [dict(blk=first_blk + n, last=st == nst - 1, mf=mfmas(n, st), rd=breads(n, st), vm=[], alu=[])
                for n in range(nblk) for st in range(nst)]

    def issue_dma(self, dma, blocks):
        for b in blocks:
            for ins in dma(b):
                self.e(ins, tok=("dma", b))

    def ssm(self):
        e, c = self.e, self.c
        NS, SLOT = 7, 20480
        vDB, vDC = 16, 21
        vRB, vRC = 26, 32
        vA1, vCH8, vTC, vTW, vTRW, vTRR = 44, 45, 46, 47, 7, 8
        vL, vL4, vSC, vWP = 48, 58, 68, 78
        vL8, vL128, vSCL = 88, 90, 92
        ACC, SP, WK = 96, 176, 196
        X, U = 96, 116
        AR, BB, SK = 0, 64, 144

        e(f"s_and_b32 {sT0}, {sW}, 1\nv_lshl_add_u32 {v(vCH8)}, {sT0}, 6, {v(vLANE)}")
        e(f"s_mul_i32 {sT0}, {sJ}, 160\nv_lshl_add_u32 v12, {v(vCH8)}, 1, {sT0}")
        for k, p in enumerate((P_LRE, P_LIM, P_LDT)):
            self.mk_srd(R_TMP, p, 1280)
            e(f"buffer_load_ushort {v(WK+k)}, v12, {srd(R_TMP)}, 0 offen")
        e(f"s_lshl_b32 {sT1}, {sJ}, 4\ns_sub_u32 {sT1}, {sT1}, {sRB}\ns_mul_i32 {sT1}, {sT1}, 1280")
        e(f"s_add_u32 {sT1}, {sT1}, {CARRY + 15*1280}\nv_min_u32 v12, 9, {v(vLANE)}\nv_lshlrev_b32 v12, 7, v12")
        e(f"buffer_load_dword v255, v12, {srd(R_WS)}, {sT1} offen", tok="junk")
        e(f"s_cmp_lt_u32 {sW}, 2")
        self.mk_srd_sel(R_1A, P_BRE, P_BIM, 819200)
        self.mk_srd_sel(R_1B, P_BIM, P_BRE, 819200)
        self.mk_srd_sel(R_2A, P_CRE, P_CIM, 819200)
        self.mk_srd_sel(R_2B, P_CIM, P_CRE, 819200)
        e(f"s_and_b32 {sT0}, {sW}, 1\ns_lshr_b32 {sT1}, {sW}, 1")
        e(f"s_mul_i32 {sM0A}, {sT1}, 10240\ns_mul_i32 {sT2}, {sT0}, 3072\ns_add_u32 {sM0A}, {sM0A}, {sT2}")
        e(f"s_xor_b32 {sT1}, {sT1}, 1\ns_mul_i32 {sM0B}, {sT1}, 10240\ns_lshl_b32 {sT2}, {sT0}, 11")
        e(f"s_add_u32 {sM0B}, {sM0B}, {sT2}\ns_add_u32 {sM0B}, {sM0B}, 6144")
        e(f"v_lshrrev_b32 v12, 3, {v(vLANE)}\nv_and_b32 v13, 7, {v(vLANE)}\nv_lshrrev_b32 v14, 1, v12")
        e("v_xor_b32 v13, v13, v14\nv_lshlrev_b32 v13, 4, v13\nv_mul_u32_u24 v12, 0x500, v12\nv_add_u32 v12, v12, v13")
        for i in range(5):
            imm = 1024 * (i if i < 3 else i - 3)
            if i < 3:
                e(f"s_mul_i32 {sT1}, {sT0}, 3\ns_add_u32 {sT1}, {sT1}, {i}")
            else:
                e(f"s_lshl_b32 {sT1}, {sT0}, 1\ns_add_u32 {sT1}, {sT1}, {3 + i}")
            e(f"s_and_b32 {sT2}, {sT1}, 1\ns_lshl_b32 {sT2}, {sT2}, 6\nv_xor_b32 v13, {sT2}, v12")
            e(f"s_mul_i32 {sT2}, {sJ}, 10\ns_add_u32 {sT2}, {sT2}, {sT1}\ns_mul_i32 {sT2}, {sT2}, 10240")
            e(f"s_sub_u32 {sT2}, {sT2}, {imm}\nv_add_u32 {v(vDB+i)}, {sT2}, v13")
            e(f"s_lshl_b32 {sT2}, {sJ}, 3\ns_add_u32 {sT2}, {sT2}, {sT1}")
            e(f"s_lshl_b32 {sT3}, {sJ}, 1\ns_add_u32 {sT3}, {sT3}, {sT1}\ns_add_u32 {sT3}, {sT3}, 56")
            e(f"s_cmp_lt_u32 {sT1}, 8\ns_cselect_b32 {sT2}, {sT2}, {sT3}\ns_mul_i32 {sT2}, {sT2}, 10240")
            e(f"s_sub_u32 {sT2}, {sT2}, {imm}\nv_add_u32 {v(vDC+i)}, {sT2}, v13")
        self.rot_init(sWO1, 10, 128, True)
        self.rot_init(sWO2, 10, 128, False)

        def dma(b):
            ph2 = b >= 10
            ra, rb_, vb, so = (R_2A, R_2B, vDC, sWO2) if ph2 else (R_1A, R_1B, vDB, sWO1)
            base = (b % NS) * SLOT
            out = [f"s_add_u32 m0, {sM0A}, {base}"]
            out += [f"buffer_load_dwordx4 {v(vb+i)}, {srd(ra)}, {so} offen offset:{1024*i} lds" for i in range(3)]
            out += [f"s_add_u32 m0, {sM0B}, {base}"]
            out += [f"buffer_load_dwordx4 {v(vb+3+i)}, {srd(rb_)}, {so} offen offset:{1024*i} lds" for i in range(2)]
            return out + self.adv(so, 128, 1280, 0)

        pa, pl, pb = c["pre_a"], c["pre_st"], c["pre_b"]
        self.issue_dma(dma, range(pa))
        def consts():
            e(f"v_lshlrev_b32 {v(vCH8)}, 3, {v(vCH8)}\nv_add_u32 {v(vCH8)}, {SCR}, {v(vCH8)}")
            e(f"s_bitcmp0_b32 {sW}, 0\ns_cselect_b32 s88, -1, 0xffff\ns_cselect_b32 s89, -1, 0")
            skip = e.newlabel("noconst")
            e(f"s_cmp_gt_u32 {sW}, 1\ns_cbranch_scc1 {skip}")
            s0 = e.begin_region()
            e(f"s_mov_b64 exec, {sEX}")
            lre, lim, ldt = WK, WK + 1, WK + 2
            t = WK + 4
            for r in (lre, lim, ldt):
                e(f"v_lshlrev_b32 {v(r)}, 16, {v(r)}")
            log2e = "0x3fb8aa3b"
            e(f"v_mul_f32 {v(ldt)}, {log2e}, {v(ldt)}\nv_exp_f32 {v(ldt)}, {v(ldt)}")
            self.round_bf16(ldt)
            e(f"v_mul_f32 {v(t)}, {v(ldt)}, {v(lre)}\nv_mul_f32 {v(t+1)}, {v(ldt)}, {v(lim)}")
            e(f"v_mul_f32 {v(t)}, {log2e}, {v(t)}\nv_exp_f32 {v(t)}, {v(t)}")
            e(f"v_mul_f32 {v(t+1)}, 0.15915494, {v(t+1)}\nv_rndne_f32 {v(t+2)}, {v(t+1)}")
            e(f"v_sub_f32 {v(t+1)}, {v(t+1)}, {v(t+2)}")
            e(f"v_cos_f32 {v(t+2)}, {v(t+1)}\nv_sin_f32 {v(t+3)}, {v(t+1)}")
            L1 = WK + 8
            e(f"v_mul_f32 {v(L1)}, {v(t)}, {v(t+2)}\nv_mul_f32 {v(L1+1)}, {v(t)}, {v(t+3)}")
            e(f"v_mul_f32 {v(t)}, {v(lre)}, {v(lre)}\nv_fma_f32 {v(t)}, {v(lim)}, {v(lim)}, {v(t)}")
            e(f"v_rcp_f32 {v(t)}, {v(t)}\nv_add_f32 {v(t+1)}, -1.0, {v(L1)}\nv_add_f32 {v(t)}, {v(t)}, {v(t)}")
            e(f"v_mul_f32 {v(t+2)}, {v(t+1)}, {v(lre)}\nv_fma_f32 {v(t+2)}, {v(L1+1)}, {v(lim)}, {v(t+2)}")
            e(f"v_mul_f32 {v(t+3)}, {v(L1+1)}, {v(lre)}\nv_fma_f32 {v(t+3)}, -{v(t+1)}, {v(lim)}, {v(t+3)}")
            e(f"v_mul_f32 {v(vSCL)}, {v(t+2)}, {v(t)}\nv_mul_f32 {v(vSCL+1)}, {v(t+3)}, {v(t)}")
            L2, L4 = WK + 10, WK + 12
            self.cmul(L2, L1, L1)
            self.cmul(L4, L2, L2)
            self.cmul(vL8, L4, L4)
            e(f"ds_write_b64 {v(vCH8)}, {v(L1,2)} offset:10240")
            e(f"ds_write_b64 {v(vCH8)}, {v(L4,2)} offset:10880")
            e(f"ds_write_b64 {v(vCH8)}, {v(vSCL,2)} offset:11520")
            e(f"ds_write_b64 {v(vCH8)}, {v(vSCL,2)}")
            prev = vSCL
            for s in range(1, 16):
                d = WK + 14 + 2 * (s & 1)
                self.cmul(d, vL8, prev)
                e(f"ds_write_b64 {v(vCH8)}, {v(d,2)} offset:{640*s}")
                prev = d
            self.cmul(L1, vL8, vL8)
            self.cmul(L2, L1, L1)
            self.cmul(L1, L2, L2)
            self.cmul(vL128, L1, L1)
            e(f"ds_write_b64 {v(vCH8)}, {v(vL128,2)} offset:12160")
            e("s_mov_b64 exec, -1")
            e.wait_lg()
            e.end_region(s0, skip)

        SXN, SXR, SXP, SPF, SPR = SK, SK + 16, SK + 32, SK + 48, SK + 56
        vDS, vXM, vXP = 250, 94, 95
        sK = ["s90", "s91", "s96", "s97"]
        one = lambda *ins: [(i_, None) for i_ in ins]
        skip_ld = [one(f"buffer_load_dwordx4 {a(SXN + 8*f + 4*m,4)}, {v(vA1 if m else vL16B)}, {srd(R_WS)}, {sK[0]} "
                       f"offen offset:{1024*f} sc1") for f in range(2) for m in range(2)]
        skip_ld += [one("s_mov_b32 exec_hi, 0", f"buffer_load_dwordx4 {a(SPF + 4*m,4)}, {v(vA1 if m else vL16B)}, "
                        f"{srd(R_WS)}, {sK[1]} offen sc1", "s_mov_b64 exec, -1") for m in range(2)]
        skip_ld += [one(f"buffer_load_dwordx4 {a(SXR + 8*f + 4*m,4)}, {v(vXM)}, {srd(R_X)}, {sK[2]} "
                        f"offen offset:{2560*m + 64*f}") for m in range(2) for f in range(2)]
        skip_ld += [one("s_mov_b32 exec_lo, 0", f"buffer_load_dwordx4 {a(SPR + 4*m,4)}, {v(vXP)}, {srd(R_X)}, {sK[3]} "
                        f"offen offset:{2560*m}", "s_mov_b64 exec, -1") for m in range(2)]

        e(f"v_and_b32 v12, 15, {v(vLANE)}\nv_lshrrev_b32 v13, 4, {v(vLANE)}\nv_lshrrev_b32 v14, 1, v12")
        e("v_xor_b32 v15, v13, v14\nv_lshlrev_b32 v15, 4, v15\nv_lshl_add_u32 v15, v12, 7, v15")
        for k in range(3):
            e(f"v_add_u32 {v(vRB+2*k)}, {61440*k}, v15\nv_xor_b32 {v(vRB+2*k+1)}, 64, {v(vRB+2*k)}")
        e("v_and_b32 v15, 1, v13\nv_xor_b32 v15, v15, v14\nv_lshlrev_b32 v15, 4, v15\nv_lshl_add_u32 v15, v12, 7, v15")
        e("v_lshrrev_b32 v14, 1, v13\nv_mul_u32_u24 v14, 0x2800, v14\nv_add_u32 v15, v15, v14")
        for k in range(3):
            e(f"v_add_u32 {v(vRC+4*k)}, {61440*k}, v15")
            for st in range(1, 4):
                e(f"v_xor_b32 {v(vRC+4*k+st)}, {32*st}, {v(vRC+4*k)}")
        e(f"v_lshlrev_b32 {v(vTC)}, 3, v12\nv_add_u32 {v(vTC)}, {SCR}, {v(vTC)}")
        e(f"v_lshl_add_u32 v14, {sW}, 2, v13\nv_mul_u32_u24 v14, 0x280, v14\nv_add_u32 {v(vTW)}, v14, {v(vTC)}")
        e(f"v_add_u32 {v(vA1)}, 20480, {v(vL16B)}")
        e(f"s_mul_i32 {sABEG}, {sRB}, 163840\ns_mul_i32 {sT0}, {sW}, 40960\ns_add_u32 {sABEG}, {sABEG}, {sT0}")
        e(f"s_add_u32 {sABEG}, {sABEG}, {XNS}\ns_add_u32 {sAEND}, {sABEG}, 20480")
        self.rot_init(sA, 10, 2048, True)
        e(f"s_add_u32 {sA}, {sA}, {sABEG}")

        def late_setup(e):

            def rowoff(d, i):
                e(f"v_lshrrev_b32 {v(d)}, 2, {v(i)}\nv_lshlrev_b32 {v(d)}, 3, {v(d)}\nv_and_b32 v15, 1, {v(i)}")
                e(f"v_lshl_add_u32 {v(d)}, v15, 2, {v(d)}\nv_bfe_u32 v15, {v(i)}, 1, 1\nv_add_u32 {v(d)}, {v(d)}, v15")
                e(f"v_mul_u32_u24 {v(d)}, 0x500, {v(d)}")
            e(f"s_lshl_b32 {sK[0]}, {sJ}, 11\ns_add_u32 {sK[0]}, {sK[0]}, {sABEG}")
            e(f"s_lshl_b32 {sK[1]}, {sJ}, 9\ns_add_u32 {sK[1]}, {sK[1]}, {sABEG}\ns_add_u32 {sK[1]}, {sK[1]}, 16384")
            e(f"v_lshrrev_b32 v12, 2, {v(vLANE)}")
            rowoff(vXM, 12)
            e(f"v_and_b32 v15, 3, {v(vLANE)}\nv_lshl_add_u32 {v(vXM)}, v15, 4, {v(vXM)}")
            e(f"v_bfe_u32 v12, {v(vLANE)}, 1, 4")
            rowoff(vXP, 12)
            e(f"v_and_b32 v15, 1, {v(vLANE)}\nv_lshl_add_u32 {v(vXP)}, v15, 4, {v(vXP)}")
            e(f"s_lshl_b32 {sT0}, {sRB}, 2\ns_add_u32 {sT0}, {sT0}, {sW}\ns_mul_i32 {sT0}, {sT0}, 40960")
            e(f"s_lshl_b32 {sK[2]}, {sJ}, 7\ns_add_u32 {sK[2]}, {sK[2]}, {sT0}")
            e(f"s_lshl_b32 {sK[3]}, {sJ}, 5\ns_add_u32 {sK[3]}, {sK[3]}, {sT0}\ns_add_u32 {sK[3]}, {sK[3]}, 1024")
            self.mk_srd(R_TMP, P_DSK, 1280)
            e(f"v_and_b32 v12, 15, {v(vLANE)}\nv_lshlrev_b32 v12, 1, v12")
            e(f"s_lshl_b32 {sT1}, {sJ}, 7\ns_lshl_b32 {sT2}, {sJ}, 5\ns_add_u32 {sT2}, {sT2}, 1024")
            for T in range(5):
                so, imm = (sT1, 32 * T) if T < 4 else (sT2, 0)
                e(f"buffer_load_ushort {v(vDS+T)}, v12, {srd(R_TMP)}, {so} offen offset:{imm}")
            e(f"v_and_b32 v12, 15, {v(vLANE)}\nv_lshrrev_b32 v13, 4, {v(vLANE)}")
            e("v_lshrrev_b32 v14, 3, v12\nv_lshlrev_b32 v14, 2, v14\nv_xor_b32 v14, v14, v12\nv_lshlrev_b32 v14, 5, v14")
            e("v_lshrrev_b32 v15, 2, v12\nv_xor_b32 v15, v15, v13\nv_lshl_add_u32 v14, v15, 3, v14")
            e(f"s_lshl_b32 {sT0}, {sW}, 11\ns_add_u32 {sT0}, {sT0}, {SCR + 12288}\nv_add_u32 {v(vTRW)}, {sT0}, v14")
            for j2 in range(2):
                e(f"v_and_b32 v14, 1, v13\nv_xor_b32 v14, {j2}, v14\nv_lshlrev_b32 v14, 2, v14")
                e(f"v_lshl_add_u32 v14, v13, 3, v14\nv_bfe_u32 v15, {v(vLANE)}, 2, 2\nv_add_u32 v14, v14, v15")
                e(f"v_lshlrev_b32 v14, 5, v14\nv_lshlrev_b32 v15, 1, v13\nv_add_u32 v15, {j2}, v15")
                e(f"v_xor_b32 v15, v15, {v(vLANE)}\nv_and_b32 v15, 3, v15\nv_lshl_add_u32 v14, v15, 3, v14")
                e(f"v_add_u32 {v(vTRR+j2)}, {sT0}, v14")

        self.stamp(1)
        toks = lambda r: [(i, ("dma", b)) for b in r for i in dma(b)]
        self.ln_compute(X, U, 6 * SLOT, toks(range(pa, pa + pl)), consts)
        self.stamp(2)
        self.issue_dma(dma, range(pa + pl, pa + pl + pb))

        visible = {0}
        for g in range(5):
            e(f"ds_read_b64 {v(vL+2*g,2)}, {v(vTC)} offset:{10240 + 128*g}")
            e(f"ds_read_b64 {v(vL4+2*g,2)}, {v(vTC)} offset:{10880 + 128*g}")
            e(f"ds_read_b64 {v(vSC+2*g,2)}, {v(vTC)} offset:{11520 + 128*g}")
            e(f"ds_read_b64 {v(vWP+2*g,2)}, {v(vTW)} offset:{128*g}")
        e(f"ds_read_b64 {v(vL128,2)}, {v(vCH8)} offset:12160")
        self.stamp(3)
        self.poll(2, TAG_XN, "xn", 12, 13)
        self.stamp(4)

        acc = lambda g, cp, m: ACC + ((g * 2 + cp) * 2 + m) * 4

        def aload1(gs):
            st = gs & 1
            r = AR + (gs % 8) * 8
            out = [f"buffer_load_dwordx4 {a(r,4)}, {v(vL16B)}, {srd(R_WS)}, {sA} offen offset:{1024*st} sc1",
                   f"buffer_load_dwordx4 {a(r+4,4)}, {v(vA1)}, {srd(R_WS)}, {sA} offen offset:{1024*st} sc1"]
            return out + (self.adv(sA, 2048, sAEND, sABEG) if st else [])

        def bread1(n, st):
            slot = n % NS
            base, off = vRB + 2 * (slot // 3) + st, (slot % 3) * SLOT
            return [f"ds_read_b128 {a(BB + 40*st + 4*(2*g+cp),4)}, {v(base)} offset:{off + cp*10240 + g*2048}"
                    for g in range(5) for cp in range(2)]

        def mfma1(n, st):
            gs = 2 * n + st
            return [f"v_mfma_f32_16x16x32_bf16 {v(acc(g,cp,m),4)}, {a(AR + (gs%8)*8 + 4*m,4)}, "
                    f"{a(BB + 40*st + 4*(2*g+cp),4)}, {v(acc(g,cp,m),4) if gs else 0}"
                    for g in range(5) for cp in range(2) for m in range(2)]

        steps = self.mk_steps(0, 10, 2, mfma1, bread1)
        items = self.a_items(aload1, c["a_pre"], 20, lambda g: g - 7, lambda g: g)
        late = self.record(late_setup)
        for n, g in enumerate(late):
            steps[1 + n * 8 // len(late)]["alu"].append(g)
        for n, g in enumerate(skip_ld):
            steps[c["skip_at"] + n // 2]["vm"].append(g)
        for gs in range(c["a_pre"]):
            e("\n".join(aload1(gs)))
        lazy = {10 + n: c["lazy0"] + c["lazy_gap"] * n for n in range(7)}
        upto = 10 + NS - c["defer"]
        rest = self.pipeline(steps, dma, NS, min(upto, 9 + NS), range(pa + pl + pb, NS), visible, items, lazy, keep=True)
        if not c["defer"]:
            rest += self.groups(dma(9 + NS), ("dma", 9 + NS))
        self.stamp(5)

        pair = lambda g, cp, jj: acc(g, cp, jj >> 1) + 2 * (jj & 1)
        LR = "op_sel:[0,0,0] op_sel_hi:[0,1,1]"
        LI = "op_sel:[1,0,0] op_sel_hi:[1,1,1]"
        NEG = "neg_lo:[1,0,0] neg_hi:[1,0,0]"
        for g in range(5):
            Lg = v(vL + 2 * g, 2)
            sre, sim = pair(g, 0, 0), pair(g, 1, 0)
            for jj in range(1, 4):
                dre, dim = (WK, WK + 2) if jj == 2 else (SP + 4 * g, SP + 4 * g + 2)
                e(f"v_pk_fma_f32 {v(dre,2)}, {Lg}, {v(sre,2)}, {v(pair(g,0,jj),2)} {LR}")
                e(f"v_pk_fma_f32 {v(dim,2)}, {Lg}, {v(sim,2)}, {v(pair(g,1,jj),2)} {LR}")
                e(f"v_pk_fma_f32 {v(dre,2)}, {Lg}, {v(sim,2)}, {v(dre,2)} {LI} {NEG}")
                e(f"v_pk_fma_f32 {v(dim,2)}, {Lg}, {v(sre,2)}, {v(dim,2)} {LI}")
                sre, sim = dre, dim
            l4r, l4i, d = vL4 + 2 * g, vL4 + 2 * g + 1, WK + 4 + 2 * (g & 1)
            e(f"v_fma_f32 {v(d)}, {v(l4r)}, {v(sre)}, {v(sre+1)}")
            e(f"v_fma_f32 {v(d+1)}, {v(l4r)}, {v(sim)}, {v(sim+1)}")
            e(f"v_fma_f32 {v(d)}, -{v(l4i)}, {v(sim)}, {v(d)}")
            e(f"v_fma_f32 {v(d+1)}, {v(l4i)}, {v(sre)}, {v(d+1)}")
            e(f"ds_write_b64 {v(vTW)}, {v(d,2)} offset:{128*g}")
        e.wait_lg()
        e("s_barrier")
        self.stamp(6)

        skip = e.newlabel("nocomb")
        e(f"s_cmp_gt_u32 {sW}, 1\ns_cbranch_scc1 {skip}")
        s0 = e.begin_region()
        e(f"s_mov_b64 exec, {sEX}")
        SL = WK
        for s in range(16):
            e(f"ds_read_b64 {v(SL+2*s,2)}, {v(vCH8)} offset:{640*s}")
        for s in range(1, 16):
            e(f"v_pk_fma_f32 {v(SL+2*s,2)}, {v(vL8,2)}, {v(SL+2*s-2,2)}, {v(SL+2*s,2)} {LR}")
            e(f"v_pk_fma_f32 {v(SL+2*s,2)}, {v(vL8,2)}, {v(SL+2*s-2,2)}, {v(SL+2*s,2)} "
              "op_sel:[1,1,0] op_sel_hi:[1,0,1] neg_lo:[1,0,0]")
        MSG = SL + 30
        e(f"v_subrev_u32 v12, {SCR}, {v(vCH8)}\nv_lshlrev_b32 v12, 1, v12")
        e(f"s_add_u32 {sT0}, {sEC}, {TAG_CARRY}\nv_mov_b32 {v(MSG+2)}, {sT0}\nv_mov_b32 {v(MSG+3)}, {sT0}")
        e(f"s_lshl_b32 {sT1}, {sJ}, 4\ns_sub_u32 {sT1}, {sT1}, {sRB}\ns_mul_i32 {sT1}, {sT1}, 1280")
        e(f"s_add_u32 {sT1}, {sT1}, {CARRY + 15*1280}")
        e(f"buffer_store_dwordx4 {v(MSG,4)}, v12, {srd(R_WS)}, {sT1} offen sc1")
        e(f"v_mov_b32 v14, 0\nv_mov_b32 v15, 0\nds_write_b64 {v(vCH8)}, v[14:15]")
        for s in range(1, 16):
            d = WK + 36 + 2 * (s & 1)
            self.cmul(d, vSCL, SL + 2 * s - 2)
            e(f"ds_write_b64 {v(vCH8)}, {v(d,2)} offset:{640*s}")
        e("s_mov_b64 exec, -1")
        e.end_region(s0, skip)
        self.emit_groups(rest)
        self.stamp(7)

        def scale_pairs(g, re, im):
            Sg = v(vSC + 2 * g, 2)
            e(f"v_pk_mul_f32 v[14:15], {Sg}, {v(im,2)} op_sel:[1,0] op_sel_hi:[1,1] neg_lo:[1,0] neg_hi:[1,0]")
            e(f"v_pk_mul_f32 {v(im,2)}, {Sg}, {v(im,2)} op_sel:[0,0] op_sel_hi:[0,1]")
            e(f"v_pk_fma_f32 {v(im,2)}, {Sg}, {v(re,2)}, {v(im,2)} {LI}")
            e(f"v_pk_fma_f32 {v(re,2)}, {Sg}, {v(re,2)}, v[14:15] {LR}")
        for g in range(5):
            scale_pairs(g, SP + 4 * g, SP + 4 * g + 2)
            for jj in range(4):
                scale_pairs(g, pair(g, 0, jj), pair(g, 1, jj))
        self.stamp(8)

        skip = e.newlabel("nocarry")
        e(f"s_cmp_lt_u32 {sW}, 2\ns_cbranch_scc1 {skip}")
        s0 = e.begin_region()
        e(f"s_lshl_b32 {sT0}, {sJ}, 4\ns_sub_u32 {sT0}, {sT0}, {sRB}\ns_mul_i32 {sT0}, {sT0}, 1280")
        e(f"s_add_u32 {sT0}, {sT0}, {CARRY + 16*1280}")
        e(f"s_add_u32 s{R_TMP}, s{P_WS}, {sT0}\ns_addc_u32 s{R_TMP+1}, s{P_WS+1}, 0")
        e(f"s_mul_i32 s{R_TMP+2}, {sRB}, 1280\ns_mov_b32 s{R_TMP+3}, 0x20000")
        e(f"s_add_u32 {sT1}, {sEC}, {TAG_CARRY}\ns_mul_i32 {sT1}, {sT1}, {sRB}")
        e(f"s_mov_b64 exec, {sEX}")
        MG = 196
        vMA = [10, 11, 12, 13, 14]
        e(f"v_subrev_u32 v10, {SCR}, {v(vCH8)}\nv_lshlrev_b32 v10, 1, v10")
        for k in range(1, 5):
            e(f"v_add_u32 v{10+k}, {3840*k}, v10")
        lp, out = e.newlabel("cpoll"), e.newlabel("cpolled")
        e.label(lp)
        mreg = lambda dl: MG + 4 * dl if dl < 13 else (vDB, vRB)[dl - 13]
        for dl in range(15):
            e(f"buffer_load_dwordx3 {v(mreg(dl),3)}, v{vMA[dl//3]}, {srd(R_TMP)}, 0 offen offset:{1280*(dl%3)} sc1")
        e(f"s_cmp_eq_u32 {sSPIN}, 0")
        e.wait_all(lg=False)
        e(f"s_cbranch_scc1 {out}\ns_sub_u32 {sSPIN}, {sSPIN}, 1")
        e(f"v_add3_u32 v15, {v(mreg(0)+2)}, {v(mreg(1)+2)}, {v(mreg(2)+2)}")
        for k in range(3, 15, 2):
            e(f"v_add3_u32 v15, v15, {v(mreg(k)+2)}, {v(mreg(k+1)+2)}")
        e(f"v_cmp_eq_u32 vcc, {sT1}, v15")
        e(f"s_cmp_eq_u64 vcc, exec\ns_cbranch_scc0 {lp}")
        e.label(out)
        for dl in range(13, -1, -1):
            x, y = mreg(dl), mreg(dl + 1)
            e(f"v_pk_fma_f32 {v(x,2)}, {v(vL128,2)}, {v(y,2)}, {v(x,2)} {LR}")
            e(f"v_pk_fma_f32 {v(x,2)}, {v(vL128,2)}, {v(y,2)}, {v(x,2)} op_sel:[1,1,0] op_sel_hi:[1,0,1] neg_lo:[1,0,0]")
        e(f"ds_write_b64 {v(vCH8)}, {v(mreg(0),2)} offset:10240")
        e("s_mov_b64 exec, -1")
        e.end_region(s0, skip)
        e.wait_all(vm=False)
        e("s_barrier")
        self.stamp(9)

        PG = WK
        for g in range(5):
            e(f"ds_read_b64 {v(PG+4*g,2)}, {v(vTW)} offset:{128*g}")
            e(f"ds_read_b64 {v(PG+4*g+2,2)}, {v(vTC)} offset:{10240 + 128*g}")
        e(f"s_mul_i32 {sABEG}, {sRB}, 327680\ns_mul_i32 {sT0}, {sW}, 81920\ns_add_u32 {sABEG}, {sABEG}, {sT0}")
        e(f"s_add_u32 {sABEG}, {sABEG}, {HS}\ns_add_u32 {sAEND}, {sABEG}, 40960")
        e(f"s_mul_i32 {sT2}, {sJ}, 5120\ns_add_u32 {sT2}, {sT2}, {sABEG}")
        e(f"v_add_u32 {v(vA1)}, 40960, {v(vL16B)}")
        HF = WK + 20
        CV = 12

        def pass2():
            for g in range(5):
                p, gg, w_ = PG + 4 * g, PG + 4 * g + 2, vWP + 2 * g
                hre, him = SP + 4 * g, SP + 4 * g + 2
                l4r, l4i = vL4 + 2 * g, vL4 + 2 * g + 1
                e(f"v_fma_f32 {v(p)}, {v(w_)}, {v(gg)}, {v(p)}\nv_fma_f32 {v(p+1)}, {v(w_)}, {v(gg+1)}, {v(p+1)}")
                e(f"v_fma_f32 {v(p)}, -{v(w_+1)}, {v(gg+1)}, {v(p)}\nv_fma_f32 {v(p+1)}, {v(w_+1)}, {v(gg)}, {v(p+1)}")
                e(f"v_fma_f32 {v(hre+1)}, {v(l4r)}, {v(p)}, {v(hre)}\nv_fma_f32 {v(him+1)}, {v(l4r)}, {v(p+1)}, {v(him)}")
                e(f"v_fma_f32 {v(hre+1)}, -{v(l4i)}, {v(p+1)}, {v(hre+1)}\nv_fma_f32 {v(him+1)}, {v(l4i)}, {v(p)}, {v(him+1)}")
                e(f"v_mov_b32 {v(hre)}, {v(p)}\nv_mov_b32 {v(him)}, {v(p+1)}")
                Lg = v(vL + 2 * g, 2)
                for jj in range(4):
                    ur, ui = pair(g, 0, jj), pair(g, 1, jj)
                    e(f"v_pk_fma_f32 {v(ur,2)}, {Lg}, {v(hre,2)}, {v(ur,2)} {LR}")
                    e(f"v_pk_fma_f32 {v(ui,2)}, {Lg}, {v(him,2)}, {v(ui,2)} {LR}")
                    e(f"v_pk_fma_f32 {v(ur,2)}, {Lg}, {v(him,2)}, {v(ur,2)} {LI} {NEG}")
                    e(f"v_pk_fma_f32 {v(ui,2)}, {Lg}, {v(hre,2)}, {v(ui,2)} {LI}")
                    hre, him = ur, ui
                for m in range(2):
                    for cp in range(2):
                        r, sg, d = acc(g, cp, m), "-" if cp else "", CV + 2 * cp
                        e(f"v_cvt_pk_bf16_f32 {v(d)}, {sg}{v(r)}, {sg}{v(r+1)}")
                        e(f"v_cvt_pk_bf16_f32 {v(d+1)}, {sg}{v(r+2)}, {sg}{v(r+3)}")
                        e(f"ds_write_b64 {v(vTRW)}, {v(d,2)} offset:{1024*m + 512*cp}")
                hf = HF + 8 * (g & 1)
                for m in range(2):
                    for j2 in range(2):
                        e(f"ds_read_b64_tr_b16 {v(hf + 4*m + 2*j2,2)}, {v(vTRR+j2)} offset:{1024*m}")
                if g:
                    store_h(g - 1)
            store_h(4)

        def store_h(g):
            hf = HF + 8 * (g & 1)
            if g == 4:
                e(f"s_add_u32 {sT2}, {sT2}, 4096")
            for m in range(2):
                e(f"buffer_store_dwordx4 {v(hf+4*m,4)}, {v(vA1 if m else vL16B)}, {srd(R_WS)}, {sT2} offen offset:{1024*(g&3)} sc1", tok="h")
        e.wait_lg()
        pass2()
        self.stamp(10)
        e(f"v_and_b32 v12, 15, {v(vLANE)}\nv_lshrrev_b32 v13, 4, {v(vLANE)}")
        e("v_lshl_add_u32 v14, v12, 2, v13\nv_lshlrev_b32 v14, 2, v14")
        e("v_and_b32 v13, 1, v13\nv_lshl_add_u32 v13, v12, 1, v13\nv_lshlrev_b32 v13, 2, v13\nv_add_u32 v13, 0x80, v13")
        for k in range(16):
            e(f"ds_bpermute_b32 {a(SXP+k)}, v14, {a(SXR+k)}")
        e("s_mov_b32 exec_lo, 0")
        for k in range(8):
            e(f"ds_bpermute_b32 {a(SPF+k)}, v13, {a(SPR+k)}")
        e("s_mov_b64 exec, -1")
        e.wait_tok("h", ("dma", 10))
        e.wait_lg()
        e("s_barrier")
        self.send_flags(3, TAG_HID, "0xff", sJ)
        visible.add(10)

        acc2 = lambda T, m: ACC + (T * 2 + m) * 4
        e(f"v_and_b32 v12, 15, {v(vLANE)}\nv_lshrrev_b32 v13, 1, v12\nv_bfe_u32 v14, {v(vLANE)}, 4, 1")
        e("v_lshlrev_b32 v14, 2, v14\nv_sub_u32 v13, v13, v14\nv_and_b32 v12, 1, v12\nv_lshlrev_b32 v12, 4, v12")
        for k in range(4):
            e(f"v_cmp_eq_u32 {sMSK[k]}, {k}, v13")
        e(f"v_cmp_gt_u32 vcc, 32, {v(vLANE)}\nv_mov_b32 v15, 0x3f80")
        SEL = WK
        pick = [(v(vDS+T), "0") if T % 2 == 0 else ("0", v(vDS+T)) for T in range(4)]
        pick += [(v(vDS+4), "v15"), ("v15", "0"), ("0", "v15")]
        for n, (lo, hi) in enumerate(pick):
            e(f"v_cndmask_b32 v14, {hi}, {lo}, vcc\nv_lshlrev_b32 v14, v12, v14")
            for k in range(4):
                e(f"v_cndmask_b32 {v(SEL+4*n+k)}, 0, v14, {sMSK[k]}")
        for T in range(5):
            for m in range(2):
                src = SXN + 8 * (T >> 1) + 4 * m if T < 4 else SPF + 4 * m
                e(f"v_mfma_f32_16x16x32_bf16 {v(acc2(T,m),4)}, {a(src,4)}, {v(SEL+4*T,4)}, 0")
        for T in range(4):
            for m in range(2):
                e(f"v_mfma_f32_16x16x32_bf16 {v(acc2(T,m),4)}, {a(SXP + 8*(T>>1) + 4*m,4)}, {v(SEL+20+4*(T&1),4)}, {v(acc2(T,m),4)}")
        self.rot_init(sA, 10, 4096, False)
        e(f"s_add_u32 {sA}, {sA}, {sABEG}")
        self.poll(3, TAG_HID, "hid", 12, 13)
        self.stamp(11)

        areg = lambda gs: (SK if gs & 8 else AR) + (gs % 8) * 8

        def aload2(gs):
            st, r = gs & 3, areg(gs)
            out = [f"buffer_load_dwordx4 {a(r,4)}, {v(vL16B)}, {srd(R_WS)}, {sA} offen offset:{1024*st} sc1",
                   f"buffer_load_dwordx4 {a(r+4,4)}, {v(vA1)}, {srd(R_WS)}, {sA} offen offset:{1024*st} sc1"]
            return out + (self.adv(sA, 4096, sAEND, sABEG) if st == 3 else [])

        def step2(k, blk, last, work):
            rd, mf = [], []
            for n, (T, gs) in enumerate(work):
                slot, f = (10 + gs // 4) % NS, BB + 20 * (k & 1) + 4 * n
                rd.append(f"ds_read_b128 {a(f,4)}, {v(vRC + 4*(slot//3) + (gs&3))} offset:{(slot%3)*SLOT + T*2048}")
                mf += [f"v_mfma_f32_16x16x32_bf16 {v(acc2(T,m),4)}, {a(areg(gs) + 4*m,4)}, {a(f,4)}, {v(acc2(T,m),4)}"
                       for m in range(2)]
            return dict(blk=blk, last=last, mf=mf, rd=rd, vm=[], alu=[])

        nb = c["tail_s"]
        u0 = 40 - 4 * nb
        steps = [step2(gs, 10 + gs // 4, gs & 3 == 3, [(T, gs) for T in range(5)]) for gs in range(u0)]
        for T in range(5):
            for b in range(nb):
                steps.append(step2(len(steps), 19, False, [(T, u0 + 4 * b + st) for st in range(4)]))
        items = self.a_items(aload2, c["a_pre2"], 40, lambda g: g - 15, lambda g: min(g, u0 + (g - u0) // 4))
        for gs in range(c["a_pre2"]):
            e("\n".join(aload2(gs)))
        PL, sPA, sPB = 176, "s93", "s1"
        part_ld = [f"buffer_load_dwordx4 {v(PL+4*k,4)}, {v(vL16B)}, {srd(R_WS)}, {sPB if k >= 4 else sPA} "
                   f"offen offset:{1024*(k&3)} sc1" for k in range(8)]

        def out_setup():
            self.mk_srd(R_OUT, P_OUT, 2048 * 2560)
            e(f"v_lshrrev_b32 v8, 4, {v(vLANE)}\nv_mul_u32_u24 v8, 0x5000, v8\nv_and_b32 v9, 15, {v(vLANE)}")
            e(f"v_lshl_add_u32 v8, v9, 2, v8\ns_mul_i32 {sT0}, {sJ}, 192\ns_sub_u32 {sT0}, 2048, {sT0}")
            e(f"v_add_u32 v9, {sT0}, v8")
            e(f"s_lshl_b32 {sPA}, {sOWN}, 5\ns_lshl_b32 {sT0}, {sW}, 13\ns_add_u32 {sPA}, {sPA}, {sT0}")
            e(f"s_add_u32 {sPA}, {sPA}, {PART}\ns_add_u32 {sPB}, {sPA}, 4096")
            e(f"s_lshl_b32 {sT0}, {sRB}, 2\ns_add_u32 {sT0}, {sT0}, {sW}\ns_mul_i32 {sT0}, {sT0}, 81920")
            e(f"s_lshl_b32 {sT1}, {sJ}, 8\ns_add_u32 {sT0}, {sT0}, {sT1}")
            for m in range(2):
                for r in range(4):
                    e(f"s_add_u32 {rows[4*m+r]}, {sT0}, {(4*(r&1) + 2*m + (r>>1)) * 2560}")


        def finish_tile(T):
            out = []
            for k in ([T] if T < 4 else range(4, 8)):
                for i in range(4):
                    d, t0 = acc2(T, i >> 1) + 2 * (i & 1), 12 + 2 * (i & 1)
                    out += [f"v_lshlrev_b32 {v(t0)}, 16, {v(PL+4*k+i)}", f"v_and_b32 {v(t0+1)}, 0xffff0000, {v(PL+4*k+i)}",
                            f"v_add_f32 {v(d)}, {v(d)}, {v(t0)}", f"v_add_f32 {v(d+1)}, {v(d+1)}, {v(t0+1)}"]
                    if k in (T, 7) and (T < 4 or k == 7):
                        out += [f"buffer_store_dword {v(d+r)}, {'v8' if T < 4 else 'v9'}, {srd(R_OUT)}, {rows[2*i+r]} "
                                f"offen offset:{64*T if T < 4 else 0} sc1" for r in range(2)]
            return [[(x, None)] for x in out]

        def spread(groups, first, n):
            for k, g in enumerate(groups):
                steps[first + k * n // len(groups)]["alu"].append(g)
        rows = ["s88", "s89", "s90", "s91", "s94", "s95", "s96", "s97"]
        steps[18]["pre"] = out_setup
        ta, tb = u0 + c["pa_test"], u0 + c["pb_test"]
        for line, tag, kind, at, ks in ((7, TAG_PART2, "wave", ta, (0, 1)), (4, TAG_PART, "part", tb, range(2, 8))):
            issue, test = self.check_flags(line, tag, 10, 11, kind)
            steps[at - c["p_lead"]]["vm"] += self.groups(issue)
            hook = lambda test=test, ks=ks: (test(), e("\n".join(part_ld[k] for k in ks)))
            if at < len(steps):
                steps[at]["pre"], hook = hook, None
        done = []
        first = u0 + c["e0"]
        for k, (T, n) in enumerate(((0, 2), (1, 2), (2, 2), (3, 2))):
            first = max(first, u0 + nb * (k + 1), (ta + 1, ta + 1, tb + c["e2"], tb + 1)[k])
            if first + n > len(steps):
                break
            spread(finish_tile(T), first, n)
            done.append(T)
            first += n
        self.pipeline(steps, dma, NS, 20, range(upto, 10 + NS), visible, items, due={b: u0 - 1 for b in range(21 - nb, 20)})
        self.stamp(12)
        if hook:
            hook()
        for T in range(5):
            if T not in done:
                self.emit_groups(finish_tile(T))
        self.stamp(13)
        self.epoch_bump()
        self.stamp(14)
        self.finish()

    def epoch_bump(self):
        e = self.e
        skip = e.newlabel("nobump")
        e("s_barrier")
        e(f"s_cmp_lg_u32 {sW}, 0\ns_cbranch_scc1 {skip}")
        s0 = e.begin_region()
        e(f"s_add_u32 {sT0}, {sE}, 0x100\nv_mov_b32 v12, {sT0}\nv_mov_b32 v13, 0\ns_mov_b64 exec, 1")
        e(f"buffer_store_dword v12, v13, {srd(R_WS)}, {sOWN} offen sc1")
        e("s_mov_b64 exec, -1")
        e.end_region(s0, skip)

    def finish(self):
        e = self.e
        if self.c["diag"]:
            e.wait_all()
            self.stamp(15)
            self.flush_stamp()
            e(f"s_lshr_b32 {sT0}, {sOWN}, 10\ns_lshl_b32 {sT0}, {sT0}, 2\ns_add_u32 {sT0}, {sT0}, {sW}")
            e(f"s_lshl_b32 {sT0}, {sT0}, 8\ns_add_u32 {sT0}, {sT0}, {STAMP}")
            e(f"v_lshlrev_b32 v12, 2, {v(vLANE)}")
            e(f"buffer_store_dword {v(vSTAMP)}, v12, {srd(R_WS)}, {sT0} offen")
        e("s_endpgm")

    def check_flags(self, line, tag, tmp, tmp2, kind="hid"):
        e = self.e
        issue = self.word_addr(kind, tmp2) + [
                 f"s_add_u32 s46, {sOWN}, {INBOX + 128*line}",
                 f"buffer_load_dword {v(tmp)}, {v(tmp2)}, {srd(R_WS)}, s46 offen sc1"]

        def test():
            ok = e.newlabel("ready")
            e(f"s_add_u32 {sT1}, {sE}, {tag}\nv_cmp_eq_u32 vcc, {sT1}, {v(tmp)}")
            e(f"s_cmp_eq_u64 vcc, exec\ns_cbranch_scc1 {ok}")
            s0 = e.begin_region()
            self.poll(line, tag, kind, tmp, tmp2)
            e.end_region(s0, ok)
        return issue, test

    def mlp(self):
        e, c = self.e, self.c
        NS, SLOT, NSTREAM = 8, 20480, 27
        vD1, vD2 = 16, 20
        vR1, vR2 = 26, 30
        vA1, vA2 = 34, 36
        ACC1, ACC, WK = 96, 128, 192
        X, U = 96, 116
        XA, BB = 0, 160
        sM0C, sH, sHS, sR2 = "s15", "s89", "s90", "s91"
        LINES, TAGS = (3, 5, 6), (TAG_HID, TAG_HID2, TAG_HID3)

        self.mk_srd(R_1A, P_W1, 640 * 3072)
        self.mk_srd(R_2A, P_W2, 1536 * 1280)
        e(f"s_bfe_u32 s93, {sOWN}, 0x7000a\ns_lshl_b32 s93, s93, 2\ns_add_u32 s93, s93, {sW}")
        e(f"s_mul_i32 s93, s93, 3840\nv_min_u32 v247, 29, {v(vLANE)}\nv_lshlrev_b32 v247, 7, v247")
        e(f"s_lshl_b32 {sM0B}, {sW}, 12\ns_lshl_b32 {sM0C}, {sW}, 10\ns_add_u32 {sM0C}, {sM0C}, 16384")
        e(f"v_lshrrev_b32 v12, 3, {v(vLANE)}\nv_and_b32 v13, 7, {v(vLANE)}\nv_and_b32 v14, 2, v12")
        e("v_xor_b32 v14, v13, v14\nv_lshlrev_b32 v14, 4, v14\nv_mul_u32_u24 v15, 0xc00, v12\nv_add_u32 v14, v14, v15")
        e(f"s_and_b32 {sT0}, {sW}, 1\ns_mul_i32 {sT0}, {sT0}, 98304\ns_mul_i32 {sT1}, {sJ}, 384")
        e(f"s_add_u32 {sT0}, {sT0}, {sT1}")
        for i in range(4):
            e(f"s_add_u32 {sT2}, {sT0}, {23552*i}\nv_add_u32 {v(vD1+i)}, {sT2}, v14")
            if i & 1:
                e(f"v_xor_b32 {v(vD1+i)}, 64, {v(vD1+i)}")
        self.rot_init(sA, 10, 2048, True)
        e(f"s_lshr_b32 {sT2}, {sW}, 1\ns_lshl_b32 {sT2}, {sT2}, 11\ns_add_u32 {sWO1}, {sA}, {sT2}")
        e(f"s_cmp_eq_u32 {sWO1}, 20480\ns_cselect_b32 {sWO1}, 0, {sWO1}\ns_mul_i32 {sWO1}, {sWO1}, 96")

        def wrap(reg, inc):
            return [f"s_add_u32 {reg}, {reg}, {inc}", f"s_sub_u32 {sT3}, {reg}, 1966080", f"s_cselect_b32 {reg}, {reg}, {sT3}"]

        def dma(b):
            base = (b % NS) * SLOT
            ld = lambda r, d, so, imm: f"buffer_load_dwordx4 {v(r)}, {srd(d)}, {so} offen offset:{imm} lds"
            if b < 15:
                return ([f"s_add_u32 m0, {sM0B}, {base}"] + [ld(vD1 + i, R_1A, sWO1, 1024 * i) for i in range(4)]
                        + wrap(sWO1, 393216 + (128 if b % 5 == 4 else 0)))
            return ([f"s_add_u32 m0, {sM0B}, {base}"] + [ld(vD2 + i, R_2A, sWO2, 1024 * i) for i in range(4)]
                    + [f"s_add_u32 m0, {sM0C}, {base}", ld(vD2 + 4, R_2A, sWO2, 0)]
                    + wrap(sWO2, 491520 + (81920 if (b - 15) % 4 == 3 else 0)))

        pa, pl, pb = c["mpre_a"], c["mpre_st"], c["mpre_b"]
        self.issue_dma(dma, range(pa))
        e(f"v_lshrrev_b32 v12, 3, {v(vLANE)}\nv_and_b32 v13, 7, {v(vLANE)}")
        e("v_and_b32 v14, 6, v12\nv_xor_b32 v14, v13, v14\nv_lshlrev_b32 v14, 4, v14")
        e("v_mul_u32_u24 v15, 0x500, v12\nv_add_u32 v14, v14, v15")

        def row0(sub):
            e(f"s_and_b32 {sT3}, {sub}, 1\ns_lshl_b32 {sT3}, {sT3}, 5\ns_bfe_u32 {sub}, {sub}, 0x10001")
            e(f"s_mul_i32 {sub}, {sub}, 192\ns_add_u32 {sub}, {sub}, {sT3}")
        e(f"s_add_u32 {sT0}, {sJ}, {sW}")
        row0(sT0)
        e(f"s_mul_i32 {sT0}, {sT0}, 1280\ns_lshl_b32 {sT1}, {sJ}, 7\ns_add_u32 {sT0}, {sT0}, {sT1}")
        for i in range(4):
            e(f"s_add_u32 {sT1}, {sT0}, {9216*i}\nv_add_u32 {v(vD2+i)}, {sT1}, v14")
        e(f"s_mov_b32 {sT0}, {sJ}")
        row0(sT0)
        e(f"s_lshl_b32 {sT1}, {sW}, 3\ns_add_u32 {sT0}, {sT0}, {sT1}\ns_mul_i32 {sT0}, {sT0}, 1280")
        e(f"s_lshr_b32 {sT1}, {sJ}, 2\ns_lshl_b32 {sT1}, {sT1}, 7\ns_add_u32 {sT0}, {sT0}, {sT1}")
        e(f"s_add_u32 {sT0}, {sT0}, 1024\nv_add_u32 {v(vD2+4)}, {sT0}, v14")
        self.rot_init(sR2, 4, 4096, False)
        e(f"s_mul_i32 {sWO2}, {sR2}, 120")
        e(f"v_bfe_u32 v12, {v(vLANE)}, 2, 2\nv_lshrrev_b32 v13, 4, {v(vLANE)}\nv_and_b32 v14, 3, {v(vLANE)}")
        e("v_lshlrev_b32 v14, 3, v14\nv_and_b32 v10, 1, v13\nv_lshrrev_b32 v11, 1, v12\nv_lshl_add_u32 v10, v10, 1, v11")
        e("v_lshl_add_u32 v14, v10, 5, v14")
        for r, sh in ((vR1, 3), (vR2, 2)):
            e(f"v_lshl_add_u32 v15, v13, {sh}, v12\nv_lshl_add_u32 v15, v15, 7, v14")
            for f in range(4):
                e(f"v_xor_b32 {v(r+f)}, {32*f}, v15")
        for p in range(4):
            e(f"s_add_u32 {sT0}, {sJ}, {p}\ns_and_b32 {sT0}, {sT0}, 3\ns_lshl_b32 {sT0}, {sT0}, 10")
            e(f"v_add_u32 {v(vA2+2*p)}, {sT0}, {v(vL16B)}\nv_add_u32 {v(vA2+2*p+1)}, 49152, {v(vA2+2*p)}")
        e(f"v_add_u32 {v(vA1)}, 20480, {v(vL16B)}\nv_add_u32 {v(vA1+1)}, 49152, {v(vL16B)}")
        e(f"s_mul_i32 {sABEG}, {sRB}, 163840\ns_mul_i32 {sT0}, {sW}, 40960\ns_add_u32 {sABEG}, {sABEG}, {sT0}")
        e(f"s_add_u32 {sABEG}, {sABEG}, {XNS}\ns_add_u32 {sAEND}, {sABEG}, 20480\ns_add_u32 {sA}, {sA}, {sABEG}")
        e(f"s_mul_i32 {sH}, {sRB}, 393216\ns_mul_i32 {sT0}, {sW}, 98304\ns_add_u32 {sH}, {sH}, {sT0}")
        e(f"s_add_u32 {sH}, {sH}, {HM}\ns_lshl_b32 {sHS}, {sJ}, 11\ns_add_u32 {sHS}, {sHS}, {sH}")
        self.stamp(1)
        toks = lambda r: [(i, ("dma", b)) for b in r for i in dma(b)]
        self.ln_compute(X, U, SCR, toks(range(pa, pa + pl)))
        self.stamp(2)
        self.issue_dma(dma, range(pa + pl, pa + pl + pb))
        visible = {0}
        self.stamp(3)
        self.poll(2, TAG_XN, "xn", 12, 13)
        self.stamp(4)

        cur = {vR1: 0, vR2: 0}
        par = [0]

        def step(b, last, reg, offs, mk, tile=None):
            want = (b % NS) // 3
            d, cur[reg] = (want - cur[reg]) * 61440, want
            rd = [f"v_add_u32 {v(reg+f)}, {d & 0xFFFFFFFF}, {v(reg+f)}" for f in range(4)] if d else []
            so = (b % NS) % 3 * SLOT
            par[0] ^= 1
            bb = BB + 32 * par[0]
            rd += [f"ds_read_b64_tr_b16 {a(bb + 4*n + 2*j2,2)}, {v(reg + (n & 3 if tile is None else tile))} offset:{so + o + dj*j2}"
                   for n, (o, dj) in enumerate(offs) for j2 in range(2)]
            mf = [mk(n, m, bb + 4 * n) for n in range(len(offs)) for m in range(2)]
            return dict(blk=b, last=last, mf=mf, rd=rd, vm=[], alu=[])

        mf16 = lambda d, x, y, first: f"v_mfma_f32_16x16x32_bf16 {v(d,4)}, {a(x,4)}, {a(y,4)}, {0 if first else v(d,4)}"
        steps = []
        for r in range(3):
            acc = ACC1 + 32 * (r & 1)
            for gs in range(20):
                steps.append(step(5 * r + gs // 4, gs & 3 == 3, vR1, [((gs & 3) * 4096, 512)] * 4,
                                  lambda n, m, w_: mf16(acc + 8 * n + 4 * m, w_, XA + 8 * gs + 4 * m, gs == 0)))
        nb = c["tail_m"]
        u0 = 108 - 4 * nb
        for gs in range(u0 - 60):
            p = gs & 3
            offs = [(p * 4096, 2048)] * 4 + ([(16384, 2048)] * 4 if p == 0 else [])
            steps.append(step(15 + gs // 4, p == 3, vR2, offs,
                              lambda n, m, w_: mf16(ACC + 8 * n + 4 * m, XA + 8 * (gs % 16) + 4 * m, w_, gs == 0)))
        for T in (0, 1, 4, 2, 3):
            for b in range(27 - nb, 27):
                xa = XA + 8 * (4 * (b - 15) % 16)
                if T == 4:
                    steps.append(step(b, False, vR2, [(16384, 2048)] * 4,
                                      lambda n, m, w_: mf16(ACC + 32 + 8 * n + 4 * m, xa + 4 * m, w_, False)))
                else:
                    steps.append(step(b, False, vR2, [(p * 4096, 2048) for p in range(4)],
                                      lambda n, m, w_: mf16(ACC + 8 * T + 4 * m, xa + 8 * n + 4 * m, w_, False), tile=T))
        for st in steps[u0:]:
            st["blk"] = 26

        def aload1(gs):
            out = [f"buffer_load_dwordx4 {a(XA + 8*gs + 4*m,4)}, {v(vA1 if m else vL16B)}, {srd(R_WS)}, {sA} "
                   f"offen offset:{1024*(gs&1)} sc1" for m in range(2)]
            return out + (self.adv(sA, 2048, sAEND, sABEG) if gs & 1 else [])

        def aload2(gs):
            out = []
            if gs % 16 == 0:
                out += [f"s_add_u32 {sABEG}, {sH}, {1024*gs}", f"s_add_u32 {sAEND}, {sABEG}, 16384", f"s_add_u32 {sA}, {sR2}, {sABEG}"]
            out += [f"buffer_load_dwordx4 {a(XA + 8*(gs%16) + 4*m,4)}, {v(vA2 + 2*(gs&3) + m)}, {srd(R_WS)}, {sA} "
                    f"offen sc1" for m in range(2)]
            return out + (self.adv(sA, 4096, sAEND, sABEG) if gs & 3 == 3 else [])

        def relu_store(r, u, m):
            acc, d = ACC1 + 32 * (r & 1), WK + 4 * (2 * u + m)
            src = [acc + 8 * (2 * u + h) + 4 * m + 2 * k for h in range(2) for k in range(2)]
            out = [[(f"v_cvt_pk_bf16_f32 {v(d+k)}, {v(src[k])}, {v(src[k]+1)}", None)] for k in range(4)]
            out += [[(f"v_pk_max_i16 {v(d+k)}, {v(d+k)}, 0", None)] for k in range(4)]
            out[-1].append((f"buffer_store_dwordx4 {v(d,4)}, {v(vA1+1 if m else vL16B)}, {srd(R_WS)}, {sHS} "
                            f"offen offset:{1024*u} sc1", ("h", r)))
            if u and m:
                out[-1].append((f"s_add_u32 {sHS}, {sHS}, 16384", None))
            return out

        apre = c["ma_pre"]
        items = self.a_items(aload1, apre, 20, lambda g: 0, lambda g: g)
        steps[c["warm_m"]]["vm"].append([(f"buffer_load_dword v255, v247, {srd(R_2A)}, s93 offen", "junk")])
        for k in range(c["warm_m"] + 2, c["warm_m"] + 2 + c["quiet"]):
            steps[k]["quiet"] = True
        tests = (40 + c["test0"], 60 + c["test1"], 60 + c["test2"])
        for r in range(3):
            base = 20 * (r + 1)
            for n in range(4):
                steps[base + 1 + 2 * n]["alu"] += relu_store(r, n >> 1, n & 1)
            fl = steps[base + (c["flag01"] if r < 2 else c["flag2"])]
            assert fl["last"]
            fl["pre"] = lambda r=r: e.wait_tok(("h", r))
            fl["post"] = lambda r=r: self.send_flags(LINES[r], TAGS[r], "0xff00", sJ)
            issue, test = self.check_flags(LINES[r], TAGS[r], 10, 11)
            steps[tests[r] - c["lead"]]["vm"] += self.groups(issue)
            assert "pre" not in steps[tests[r]]
            steps[tests[r]]["pre"] = test
        items += self.a_items(aload2, 0, 48, lambda g: max(tests[g // 16], 41 + g if g < 16 else 45 + g), lambda g: min(60 + g, u0 + (g + 60 - u0) // 4))
        sPM, sPX, sPW = "s96", "s97", "s88"

        def part_store(T):
            d = WK + 4 * (T & 3)
            out = [[(f"v_cvt_pk_bf16_f32 {v(d+k)}, {v(ACC + 8*T + 2*k)}, {v(ACC + 8*T + 2*k + 1)}", None)] for k in range(4)]
            if T < 4:
                out[-1].append((f"buffer_store_dwordx4 {v(d,4)}, {v(vL16B)}, {srd(R_WS)}, {sPM} offen offset:{1024*T} sc1", "pa" if T < 2 else None))
            else:
                out[-1].append((f"buffer_store_dwordx4 {v(d,4)}, {v(vL16B)}, {srd(R_WS)}, {sPX} offen sc1", None))
                out[-1].append((f"s_add_u32 {sPX}, {sPX}, 32768", None))
            return out

        def part_setup():
            e(f"s_lshl_b32 {sT0}, {sRB}, 18\ns_lshl_b32 {sT1}, {sW}, 13\ns_add_u32 {sT0}, {sT0}, {sT1}\ns_add_u32 {sT0}, {sT0}, {PART}")
            e(f"s_lshl_b32 {sPM}, {sJ}, 15\ns_add_u32 {sPM}, {sPM}, {sT0}")
            e(f"s_and_b32 {sPX}, {sJ}, 4\ns_lshl_b32 {sPX}, {sPX}, 15\ns_add_u32 {sPX}, {sPX}, {sT0}")
            e(f"s_and_b32 {sT1}, {sJ}, 3\ns_lshl_b32 {sT1}, {sT1}, 10\ns_add_u32 {sPX}, {sPX}, {sT1}")
            e(f"s_add_u32 {sPX}, {sPX}, 4096\ns_and_b32 {sPW}, {sJ}, 3\ns_and_b32 {sT1}, {sJ}, 4")
            e(f"s_lshl_b32 s92, 1, {sJ}\ns_mov_b32 s93, 0")
        steps[90]["pre"] = part_setup
        for T, k in ((0, nb), (1, 2 * nb), (4, 3 * nb), (5, 3 * nb), (6, 4 * nb - 1), (7, 4 * nb - 1), (2, 4 * nb)):
            steps[u0 + k]["alu"] += part_store(T)
        flag_a = lambda: (e.wait_tok("pa"), self.send_wave(7, TAG_PART2, "s[92:93]", 0, 0))
        if c["pa_flag"]:
            steps[len(steps) - c["pa_flag"]]["pre"] = flag_a
        for gs in range(apre):
            e("\n".join(aload1(gs)))
        self.pipeline(steps, dma, NS, NSTREAM, range(pa + pl + pb, NS), visible, items, due={b: u0 - 1 for b in range(28 - nb, 27)})
        self.stamp(12)

        self.emit_groups(part_store(3))
        self.stamp(13)
        if not c["pa_flag"]:
            flag_a()
        e(f"s_and_b32 {sT1}, {sJ}, 4\ns_lshl_b32 s92, 15, {sT1}")
        e.wait_all()
        self.send_wave(4, TAG_PART, "s[92:93]", sPW, 2)
        self.epoch_bump()
        self.stamp(14)
        self.finish()

    def build(self):
        e = self.e
        self.entry()
        snap = e.begin_region()
        pend, nst = self.pending_stamp, self.nstamp
        self.chain = 0
        self.ssm()
        self.chain = 1
        e.vm, e.lg, e.hist = list(snap["vm"]), list(snap["lg"]), []
        self.pending_stamp, self.nstamp = pend, nst
        e.label("L_mlp")
        self.mlp()
        e.label("L_end")
        e("s_endpgm")
        ref = open(f"cdna_kernels/{NAME}.s.ref").read()
        head = ref.split("; Override launch")[0]
        out = head
        out += "; Persistent kernel: one workgroup per CU, SSM chain and MLP chain on separate workgroup sets.\n"
        out += f"; @launch grid=(256,1,1) block=(256,1,1) lds={LDS_BYTES}\n"
        out += '.amdgcn_target "amdgcn-amd-amdhsa--gfx950"\n.text\n'
        out += f".globl {KERNEL}\n.p2align 8\n.type {KERNEL},@function\n{KERNEL}:\n"
        out += e.text()
        out += f""".section .rodata,"a"
.p2align 6
.amdhsa_kernel {KERNEL}
  .amdhsa_next_free_vgpr 512
  .amdhsa_next_free_sgpr 102
  .amdhsa_accum_offset 256
  .amdhsa_group_segment_fixed_size 0
  .amdhsa_kernarg_size 120
  .amdhsa_user_sgpr_count 2
  .amdhsa_user_sgpr_kernarg_segment_ptr 1
  .amdhsa_system_sgpr_workgroup_id_x 1
  .amdhsa_float_denorm_mode_32 3
.end_amdhsa_kernel
"""
        return out


def parse_cfg(args):
    cfg = {}
    for s in args:
        k, val = s.split("=")
        cfg[k] = type(DEFAULTS[k])(int(val))
    return cfg


if __name__ == "__main__":
    path = sys.argv[1]
    g = Gen(**parse_cfg(sys.argv[2:]))
    open(path, "w").write(g.build())
    print(path, "lines", len(g.e.lines), "nop slots", g.e.nops)
```

```python
import os
import sys

sys.path.insert(0, os.path.dirname(os.path.abspath(__file__)))
from emit import Emitter

NAME = "parallel_sum__ssm_conv_s5__dense_activation_relu__prompt"
KERNEL = NAME + "_kernel"

INBOX = 0x0
CARRY = 0x40000
XNS = 0x300000
HS = 0x800000
HM = 0xD00000
PART = 0x1300000
STAMP = 0x1700000
WS_USED = 0x1800000

LDS_BYTES = 163840
SCR = 143360
SPIN_LIMIT = 1 << 15

TAG_HID2, TAG_XN, TAG_HID, TAG_PART, TAG_CARRY, TAG_HID3 = 16, 32, 48, 64, 80, 96

HEADER = """; Persistent kernel, one workgroup per CU (generated by gen/gen.py). Workgroup (chain, rb, j) owns 128 rows (rb):
;   SSM chain:   xn x B for 80 channels (j); exact scan (8-step segments, prefixes over the block, totals of all
;                earlier row blocks); h x C for 80 output columns; adds x, xn * D and the MLP sums; stores out.
;   MLP chain:   relu(xn x w1) for 192 hidden units in three passes; H x w2; sends its sums to the SSM workgroup.
"""

DEFAULTS = dict(
    pre_a=1, pre_st=1, pre_b=2, mpre_a=1, mpre_st=1, mpre_b=6,
    a_pre=2, a_pre2=4, ma_pre=4, cap=115, lat_a=6, lat_d=8, waits=2, span=75,
    skip_at=14, lazy0=10, lazy_gap=3, defer=1,
    tail_s=2, tail_m=2, p_test=1, p_lead=3, e0=5,
    warm_m=29, quiet=4, flag01=15, flag2=15, test0=6, test1=8, test2=26, lead=5,
    diag=False, jitter=0, blkstamp=False, blkclk=False, stepstamp=-1, dump=False,
)

P_X, P_LRE, P_LIM, P_BRE, P_BIM, P_CRE, P_CIM, P_LDT = 16, 18, 20, 22, 24, 26, 28, 30
P_DSK, P_BX, P_W1, P_W2, P_OUT, P_DBG, P_WS = 32, 34, 36, 38, 40, 42, 44
R_X, R_WS, R_1A, R_1B, R_2A, R_2B, R_OUT, R_TMP = 48, 52, 56, 60, 64, 68, 72, 76
sRB, sJ, sW, sEC, sE, sCH, sOWN, sSPIN = "s3", "s4", "s5", "s6", "s7", "s8", "s9", "s10"
sT0, sT1, sT2, sT3 = "s11", "s12", "s13", "s14"
sWO1, sWO2 = "s80", "s81"
sA, sABEG, sAEND = "s83", "s84", "s85"
sM0A, sM0B = "s86", "s87"
sHALF = "s[94:95]"
sME = "s47"
sEX = "s[88:89]"
sMSK = [f"s[{90+2*k}:{91+2*k}]" for k in range(4)]
sST = ["s[98:99]", "s[100:101]"]


def v(a, n=1):
    return f"v{a}" if n == 1 else f"v[{a}:{a+n-1}]"


def a(b, n=1):
    return f"a{b}" if n == 1 else f"a[{b}:{b+n-1}]"


def srd(b):
    return f"s[{b}:{b+3}]"


vTID, vLANE, vL16B, vE, vINB, vFLG, vSTAMP = 0, 1, 2, 3, 4, 5, 6


class Gen:
    def __init__(self, **cfg):
        self.c = dict(DEFAULTS)
        self.c.update(cfg)
        self.e = Emitter()
        self.nstamp = 0
        self.chain = -1
        self.pending_stamp = None

    def stamp(self, k):
        if self.c["jitter"] and 0 < k < 15:
            e, lp, out = self.e, self.e.newlabel("jit"), self.e.newlabel("jitend")
            e(f"s_lshl_b32 s98, s2, 2\ns_add_u32 s98, s98, {sW}\ns_add_u32 s98, s98, {977 * k + self.c['jitter']}")
            e("s_mul_i32 s98, s98, 0x9e3779b1\ns_lshr_b32 s99, s98, 15\ns_xor_b32 s98, s98, s99\ns_mul_i32 s98, s98, 0x85ebca6b")
            e(f"s_lshr_b32 s99, s98, 30\ns_cmp_lg_u32 s99, 0\ns_cbranch_scc1 {out}\ns_bfe_u32 s98, s98, 0x60008")
            e.label(lp)
            e(f"s_sleep 8\ns_sub_u32 s98, s98, 1\ns_cbranch_scc0 {lp}")
            e.label(out)
        if not self.c["diag"]:
            return
        e = self.e
        self.flush_stamp()
        reg = sST[self.nstamp & 1]
        self.nstamp += 1
        e(f"s_memtime {reg}" if 16 <= k < 44 and self.c["blkclk"] else f"s_memrealtime {reg}")
        self.pending_stamp = (k, reg)

    def flush_stamp(self):
        if self.pending_stamp:
            k, reg = self.pending_stamp
            lo = reg[2:].split(":")[0]
            self.e(f"v_writelane_b32 {v(vSTAMP)}, s{lo}, {k}")
            self.pending_stamp = None

    def mk_srd(self, r, ptr, nbytes):
        e = self.e
        e(f"s_mov_b32 s{r}, s{ptr}\ns_mov_b32 s{r+1}, s{ptr+1}")
        e(f"s_mov_b32 s{r+2}, {nbytes}\ns_mov_b32 s{r+3}, 0x20000")

    def mk_srd_sel(self, r, p_lo, p_hi, nbytes):
        e = self.e
        e(f"s_cselect_b32 s{r}, s{p_lo}, s{p_hi}\ns_cselect_b32 s{r+1}, s{p_lo+1}, s{p_hi+1}")
        e(f"s_mov_b32 s{r+2}, {nbytes}\ns_mov_b32 s{r+3}, 0x20000")

    def cmul(self, d, x, y):
        e = self.e
        e(f"v_pk_mul_f32 {v(d,2)}, {v(x,2)}, {v(y,2)} op_sel:[0,0] op_sel_hi:[0,1]")
        e(f"v_pk_fma_f32 {v(d,2)}, {v(x,2)}, {v(y,2)}, {v(d,2)} op_sel:[1,1,0] op_sel_hi:[1,0,1] neg_lo:[1,0,0]")

    def round_bf16(self, r):
        e = self.e
        e(f"v_cvt_pk_bf16_f32 {v(r)}, {v(r)}, {v(r)}\nv_lshlrev_b32 {v(r)}, 16, {v(r)}")

    def rot_init(self, dst, nb, stride, by_j):
        e = self.e
        e(f"s_and_b32 {sT0}, {sRB}, 3\ns_mul_i32 {sT0}, {sT0}, {nb}\ns_lshr_b32 {sT0}, {sT0}, 2")
        e(f"s_lshr_b32 {sT1}, {sRB}, 2\ns_add_u32 {sT0}, {sT0}, {sT1}")
        if by_j:
            e(f"s_mul_i32 {sT1}, {sJ}, {nb}\ns_lshr_b32 {sT1}, {sT1}, 3\ns_add_u32 {sT0}, {sT0}, {sT1}")
        e(f"s_mul_hi_u32 {sT1}, {sT0}, {(2**32 + nb - 1) // nb}\ns_mul_i32 {sT1}, {sT1}, {nb}")
        e(f"s_sub_u32 {sT0}, {sT0}, {sT1}\ns_mul_i32 {dst}, {sT0}, {stride}")

    @staticmethod
    def adv(reg, stride, end, beg):
        return [f"s_add_u32 {reg}, {reg}, {stride}", f"s_cmp_eq_u32 {reg}, {end}",
                f"s_cselect_b32 {reg}, {beg}, {reg}"]

    def send_flags(self, line, tag, lanes, word):
        e = self.e
        skip = e.newlabel("nosend")
        e(f"s_cmp_lg_u32 {sW}, 0\ns_cbranch_scc1 {skip}")
        s0 = e.begin_region()
        e(f"v_add_u32 {v(vFLG)}, {tag}, {v(vE)}")
        e(f"s_lshl_b32 {sT0}, {word}, 2\ns_add_u32 {sT0}, {sT0}, {INBOX + 128*line}")
        e(f"s_mov_b64 exec, {lanes}")
        e(f"buffer_store_dword {v(vFLG)}, {v(vINB)}, {srd(R_WS)}, {sT0} offen sc1")
        e("s_mov_b64 exec, -1")
        e.end_region(s0, skip)

    def send_wave(self, line, tag, lanes, word, shift):
        e = self.e
        e(f"v_add_u32 {v(vFLG)}, {tag}, {v(vE)}\ns_lshl_b32 {sT0}, {sW}, {shift}\ns_add_u32 {sT0}, {sT0}, {word}")
        e(f"s_lshl_b32 {sT0}, {sT0}, 2\ns_add_u32 {sT0}, {sT0}, {INBOX + 128*line}\ns_mov_b64 exec, {lanes}")
        e(f"buffer_store_dword {v(vFLG)}, {v(vINB)}, {srd(R_WS)}, {sT0} offen sc1")
        e("s_mov_b64 exec, -1")

    @staticmethod
    def word_addr(kind, r):
        if kind == "xn":
            return [f"v_and_b32 {v(r)}, 2, {v(vLANE)}", f"v_and_b32 v15, 1, {v(vLANE)}", f"v_lshl_add_u32 {v(r)}, {v(r)}, 2, v15",
                    f"v_lshl_add_u32 {v(r)}, {sW}, 1, {v(r)}", f"v_lshlrev_b32 {v(r)}, 2, {v(r)}"]
        if kind == "part":
            return [f"v_and_b32 {v(r)}, 3, {v(vLANE)}", f"v_lshl_add_u32 {v(r)}, {sW}, 2, {v(r)}", f"v_lshlrev_b32 {v(r)}, 2, {v(r)}"]
        return [f"v_and_b32 {v(r)}, 7, {v(vLANE)}", f"v_lshlrev_b32 {v(r)}, 2, {v(r)}"]

    def poll(self, line, tag, kind, tmp, tmp2):
        e = self.e
        lp, out = e.newlabel("poll"), e.newlabel("polled")
        e("\n".join(self.word_addr(kind, tmp2)))
        e(f"s_add_u32 {sT0}, {sOWN}, {INBOX + 128*line}\ns_add_u32 {sT1}, {sE}, {tag}")
        e.label(lp)
        e(f"buffer_load_dword {v(tmp)}, {v(tmp2)}, {srd(R_WS)}, {sT0} offen sc1")
        e(f"s_cmp_eq_u32 {sSPIN}, 0")
        e.wait_all(lg=False)
        e(f"s_cbranch_scc1 {out}\ns_sub_u32 {sSPIN}, {sSPIN}, 1")
        e(f"v_cmp_eq_u32 vcc, {sT1}, {v(tmp)}")
        e(f"s_cmp_eq_u64 vcc, exec\ns_cbranch_scc0 {lp}")
        e.label(out)

    def entry(self):
        e, c = self.e, self.c
        X = 96
        e("s_cmp_ge_u32 s2, 256\ns_cbranch_scc1 L_end")
        e("s_load_dwordx2 s[44:45], s[0:1], 112\ns_load_dwordx16 s[16:31], s[0:1], 0")
        e("s_load_dwordx8 s[32:39], s[0:1], 64\ns_load_dwordx4 s[40:43], s[0:1], 96")
        if c["diag"]:
            e(f"v_mov_b32 {v(vSTAMP)}, 0")
        self.stamp(0)
        e(f"s_lshr_b32 {sT0}, s2, 3\ns_and_b32 {sCH}, s2, 1\ns_xor_b32 {sCH}, {sCH}, 1")
        skip, here = e.newlabel("nopf"), e.newlabel("pc")
        e("s_getpc_b64 s[88:89]")
        e.label(here)
        e(f"s_cmp_eq_u32 {sCH}, 0\ns_cselect_b32 {sT1}, 0, L_mlp-{here}")
        e(f"s_mov_b32 {sT2}, L_end-{here}\ns_cselect_b32 {sT2}, L_mlp-{here}, {sT2}")
        e(f"s_lshl_b32 {sT3}, {sT0}, 7\ns_add_u32 {sT3}, {sT3}, {sT1}")
        e(f"v_lshl_add_u32 v12, v0, 12, {sT3}\nv_cmp_gt_u32 vcc, {sT2}, v12")
        e(f"s_and_saveexec_b64 s[90:91], vcc\ns_cbranch_execz {skip}")
        s0 = e.begin_region()
        e("v_mov_b32 v13, s89\nv_add_co_u32 v12, vcc, s88, v12\nv_addc_co_u32 v13, vcc, 0, v13, vcc")
        e("global_load_dword v255, v[12:13], off", tok="junk")
        e.end_region(s0, skip)
        e("s_mov_b64 exec, -1")
        e(f"s_and_b32 {sJ}, {sT0}, 7\ns_lshr_b32 {sT0}, {sT0}, 3\ns_bfe_u32 {sT1}, s2, 0x20001")
        e(f"s_lshr_b32 {sT2}, {sT1}, 1\ns_xor_b32 {sT1}, {sT1}, {sT2}")
        e(f"s_lshl_b32 {sT1}, {sT1}, 2\ns_add_u32 {sRB}, {sT1}, {sT0}")
        e("v_lshrrev_b32 v8, 5, v0\nv_and_b32 v9, 31, v0")
        e("v_and_b32 v10, 1, v8\nv_lshlrev_b32 v10, 2, v10\nv_bfe_u32 v11, v8, 1, 1\nv_add_u32 v10, v10, v11")
        e("v_lshrrev_b32 v11, 2, v8\nv_lshl_add_u32 v10, v11, 3, v10")
        e("v_mul_u32_u24 v10, 0x500, v10\nv_lshl_add_u32 v10, v9, 4, v10")
        e(f"s_and_b32 {sT1}, {sJ}, 1\ns_lshl_b32 {sT2}, {sCH}, 3\ns_add_u32 {sT1}, {sT1}, {sT2}\ns_lshl_b32 {sT1}, {sT1}, 1")
        e(f"s_lshr_b32 {sT0}, {sJ}, 1\ns_lshl_b32 {sT0}, {sT0}, 5\ns_add_u32 {sT0}, {sT0}, {sT1}")
        e(f"s_lshl_b32 {sT1}, {sRB}, 7\ns_add_u32 {sT0}, {sT0}, {sT1}\ns_mul_i32 {sT0}, {sT0}, 1280")
        e(f"s_mov_b32 s{R_X+2}, {2048*1280}\ns_mov_b32 s{R_X+3}, 0x20000")
        e("s_mov_b32 s94, 0xffff\ns_mov_b32 s95, 0xffff")
        e(f"s_mov_b32 s{R_X}, s{P_X}\ns_mov_b32 s{R_X+1}, s{P_X+1}")
        for n in range(3):
            if n == 2:
                e(f"s_mov_b64 exec, {sHALF}")
            e(f"buffer_load_dwordx4 {v(X+4*n,4)}, v10, {srd(R_X)}, {sT0} offen offset:{512*n}")
        e("s_mov_b64 exec, -1")
        e(f"v_lshrrev_b32 v7, 6, v0\nv_and_b32 {v(vLANE)}, 63, v0")
        e(f"v_readfirstlane_b32 {sW}, v7")
        e(f"v_lshlrev_b32 {v(vL16B)}, 4, {v(vLANE)}")
        e(f"s_lshl_b32 {sOWN}, {sCH}, 4\ns_add_u32 {sOWN}, {sOWN}, {sRB}")
        e(f"s_lshl_b32 {sOWN}, {sOWN}, 3\ns_add_u32 {sOWN}, {sOWN}, {sJ}\ns_lshl_b32 {sOWN}, {sOWN}, 10")
        e(f"s_mov_b32 {sSPIN}, {SPIN_LIMIT}")
        self.mk_srd(R_WS, P_WS, WS_USED)
        e(f"s_lshl_b32 {sME}, {sCH}, 3\ns_add_u32 {sME}, {sME}, {sJ}\ns_lshl_b32 {sT0}, {sRB}, 13")
        e(f"v_and_b32 v11, 7, {v(vLANE)}\nv_lshl_add_u32 {v(vINB)}, v11, 10, {sT0}")
        e(f"v_bfe_u32 v11, {v(vLANE)}, 3, 1\nv_lshl_add_u32 {v(vINB)}, v11, 17, {v(vINB)}")
        e(f"s_add_u32 {sT1}, {sJ}, 120\ns_lshl_b32 {sT1}, {sT1}, 10\nv_mov_b32 v11, {sT1}")
        e(f"v_cmp_gt_u32 vcc, 16, {v(vLANE)}")
        e(f"v_cndmask_b32 {v(vINB)}, v11, {v(vINB)}, vcc")
        e(f"buffer_load_dword {v(vE)}, {v(vINB)}, {srd(R_WS)}, 0 offen sc1")
        e(f"v_and_b32 v11, 7, {v(vLANE)}\nv_lshlrev_b32 v11, 7, v11")
        e(f"buffer_load_dword v255, v11, {srd(R_WS)}, {sOWN} offen", tok="junk")
        e(f"s_cmp_eq_u32 {sCH}, 0\ns_cbranch_scc0 L_mlp")

    def ln_compute(self, X, U, scr, fill_st, during_ack=None):
        e = self.e

        def parts(body):
            body(range(8))
            e(f"s_mov_b64 exec, {sHALF}")
            body(range(8, 12))
            e("s_mov_b64 exec, -1")

        def rowsum(r):
            e(f"v_add_f32 {v(r)}, {v(r)}, {v(r+1)}")
            for sh in (8, 4, 2, 1):
                e(f"v_add_f32_dpp {v(r)}, {v(r)}, {v(r)} row_ror:{sh} row_mask:0xf bank_mask:0xf")
            e(f"v_mov_b32 {v(r+1)}, {v(r)}\nv_permlane16_swap_b32 {v(r)}, {v(r+1)}\nv_add_f32 {v(r)}, {v(r)}, {v(r+1)}")

        def unpack(ks):
            for k in ks:
                e(f"v_lshlrev_b32 {v(U+2*k)}, 16, {v(X+k)}\nv_and_b32 {v(U+2*k+1)}, 0xffff0000, {v(X+k)}")
                if k == 0:
                    self.stamp(44)
                if k == 1:
                    e(f"v_pk_add_f32 v[12:13], {v(U,2)}, {v(U+2,2)}")
                elif k > 1:
                    e(f"v_pk_add_f32 v[12:13], v[12:13], {v(U+2*k,2)}")

        def centre(ks):
            for k in ks:
                e(f"v_pk_add_f32 {v(U+2*k,2)}, {v(U+2*k,2)}, v[14:15] op_sel_hi:[1,0] neg_lo:[0,1] neg_hi:[0,1]")
            for k in ks:
                if k == 0:
                    e(f"v_pk_mul_f32 v[12:13], {v(U,2)}, {v(U,2)}")
                else:
                    e(f"v_pk_fma_f32 v[12:13], {v(U+2*k,2)}, {v(U+2*k,2)}, v[12:13]")

        def scale(ks):
            for k in ks:
                e(f"v_pk_mul_f32 {v(U+2*k,2)}, {v(U+2*k,2)}, v[12:13] op_sel_hi:[1,0]")
                e(f"v_cvt_pk_bf16_f32 {v(X+k)}, {v(U+2*k)}, {v(U+2*k+1)}")
                if k & 3 == 3:
                    e(f"ds_write_b128 v10, {v(X+k-3,4)} offset:{1024*(k-3)}")

        inv_d = "0x3acccccd"
        e("v_and_b32 v10, 7, v9\nv_xor_b32 v10, v8, v10\nv_lshlrev_b32 v10, 4, v10\nv_lshl_add_u32 v10, v9, 7, v10")
        e(f"v_add_u32 v10, {scr}, v10\nv_lshrrev_b32 v8, 3, v0\nv_and_b32 v9, 7, v0\nv_xor_b32 v11, v8, v9")
        e(f"v_and_b32 v11, 7, v11\nv_lshlrev_b32 v11, 4, v11\nv_lshl_add_u32 v11, v8, 7, v11\nv_add_u32 v11, {scr}, v11")
        e("v_lshlrev_b32 v9, 4, v9\nv_lshl_add_u32 v9, v8, 8, v9")
        e(f"s_mul_i32 {sT2}, {sRB}, 163840\ns_mul_i32 {sT1}, {sJ}, 20480\ns_add_u32 {sT2}, {sT2}, {sT1}")
        e(f"s_lshl_b32 {sT1}, {sCH}, 7\ns_add_u32 {sT2}, {sT2}, {sT1}\ns_add_u32 s92, {sT2}, {XNS}")
        parts(unpack)
        rowsum(12)
        e(f"v_mul_f32 v12, {inv_d}, v12\nv_mov_b32 v14, v12")
        self.round_bf16(14)
        e("v_sub_f32 v15, v12, v14")
        parts(centre)
        rowsum(12)
        e(f"v_mul_f32 v12, {inv_d}, v12\nv_fma_f32 v12, -v15, v15, v12\nv_max_f32 v12, 0, v12")
        self.round_bf16(12)
        e("v_add_f32 v12, 0x3727c5ac, v12")
        self.round_bf16(12)
        e("v_sqrt_f32 v12, v12")
        self.round_bf16(12)
        e("v_rcp_f32 v12, v12")
        parts(scale)
        self.stamp(45)
        e.wait_lg()
        e("s_barrier")
        for k in range(3):
            e(f"ds_read_b128 {v(X+4*k,4)}, v11 offset:{4096*k}")
        e(f"buffer_store_dwordx4 {v(X,4)}, v9, {srd(R_WS)}, s92 offen sc1", tok="xn")
        e(f"s_add_u32 {sT2}, s92, 8192\ns_add_u32 {sT3}, s92, 16384")
        e(f"buffer_store_dwordx4 {v(X+4,4)}, v9, {srd(R_WS)}, {sT2} offen sc1", tok="xn")
        skip = e.newlabel("third")
        e.wait_lg()
        e(f"s_cmp_gt_u32 {sW}, 1\ns_cbranch_scc1 {skip}")
        s0 = e.begin_region()
        e(f"buffer_store_dwordx4 {v(X+8,4)}, v9, {srd(R_WS)}, {sT3} offen sc1", tok="xn")
        e.end_region(s0, skip)
        self.stamp(46)
        e(f"v_readlane_b32 {sE}, {v(vE)}, {sME}\nv_readlane_b32 {sEC}, {v(vE)}, 16")
        for ins, tok in fill_st:
            e(ins, tok=tok)
        if during_ack:
            during_ack()
        e.wait_tok("xn", ("dma", 0))
        e.wait_lg()
        self.stamp(47)
        e("s_barrier")
        self.send_flags(2, TAG_XN, "0xffff", sME)

    @staticmethod
    def groups(instrs, tok=None):
        out, cur = [], []
        for ins in instrs:
            cur.append((ins, tok))
            if ins.startswith("buffer_"):
                out.append(cur)
                cur = []
        if cur:
            out[-1] += cur
        return out

    def pipeline(self, steps, dma, ns, nstream, early, visible, aitems, lazy={}, keep=False, due={}):
        e, c = self.e, self.c
        last = {st["blk"]: k for k, st in enumerate(steps) if st["last"]}
        b0 = steps[0]["blk"]
        blocks = [(b, 0) for b in early]
        blocks += [(b - 1 + ns, last[b]) for b in sorted(last) if b > b0 and b - 1 + ns < nstream]
        ditems = [dict(r=max(r, lazy.get(b, 0)), d=due.get(b, last.get(b - 1, len(steps) + b)), g=g)
                  for b, r in blocks for g in self.groups(dma(b), ("dma", b))]
        for prev, it in zip(ditems, ditems[1:]):
            if " m0," in it["g"][0][0]:
                prev["g"].append(it["g"].pop(0))
        streams = [(list(aitems), c["lat_a"]), (ditems, c["lat_d"])]
        credit = 0.0
        for k, st in enumerate(steps):
            credit = max(min(credit, 1.0), -1.0) + c["cap"] / 100 * len(st["mf"]) / 4 - len(st["vm"])
            credit -= sum(1 for g in st["alu"] for ins, _ in g if "buffer_" in ins)
            while True:
                heads = [(q[0]["d"] - lat, q) for q, lat in streams if q and q[0]["r"] <= k]
                if not heads:
                    break
                due = [h for h in heads if h[1][0]["d"] <= k + 1]
                if not due and (credit < 1 or st.get("quiet")):
                    break
                dl, q = min(due or heads, key=lambda h: h[0])
                st["vm"].append(q.pop(0)["g"])
                credit -= 1
        assert not streams[0][0] and all(it["r"] < it["d"] for it in aitems)
        if c["dump"]:
            for k, st in enumerate(steps):
                kinds = ["D%d" % g[0][1][1] if g[0][1] and g[0][1][0] == "dma" else "A" for g in st["vm"]]
                print(self.chain, k, st["blk"], " ".join(kinds), "ST" if st["alu"] else "", "pre" if st.get("pre") else "")
        for ins in steps[0]["rd"]:
            e(ins)
        for k, st in enumerate(steps):
            b = st["blk"]
            if k == 0 or steps[k - 1]["last"]:
                e.comment(f"weight block {b}")
            if c["stepstamp"] >= 0:
                if 0 <= k + 100 * (b0 > 0) - c["stepstamp"] < 28:
                    self.stamp(16 + k + 100 * (b0 > 0) - c["stepstamp"])
            elif c["blkstamp"] and (k == 0 or steps[k - 1]["last"]):
                self.stamp(16 + b)
            nxt = steps[k + 1] if k + 1 < len(steps) else None
            if st["last"]:
                release = b > b0 and b - 1 + ns < nstream
                need_vis = nxt is not None and nxt["blk"] not in visible
                if need_vis:
                    e.wait_tok(("dma", nxt["blk"]))
                    visible.add(nxt["blk"])
                if st.get("pre"):
                    st["pre"]()
                if release or need_vis or st.get("post"):
                    e("s_barrier")
                if st.get("post"):
                    st["post"]()
            elif st.get("pre"):
                st["pre"]()
            rd = nxt["rd"] if nxt is not None else []
            mm, vm = st["mf"], st["vm"]
            slots = [[] for _ in mm]
            nm, nw, span = len(mm), c["waits"], c["span"]
            for n, ins in enumerate(rd):
                slots[n * nm * span // (100 * len(rd))].append((ins, None))
            for n, g in enumerate(st["alu"]):
                slots[n * nm // len(st["alu"])] += g
            for n, g in enumerate(vm):
                slots[(2 * n + 1) * nm // (2 * len(vm))] += g
            cuts = [n * nm // nw for n in range(nw + 1)]
            for n, (ins, fl) in enumerate(zip(mm, slots)):
                if n in cuts:
                    e.wait_for(mm[n:cuts[cuts.index(n) + 1]])
                e(ins)
                for f_, tok in fl:
                    e(f_, tok=tok)
        rest = [it["g"] for it in ditems]
        if keep:
            return rest
        self.emit_groups(rest)

    def record(self, fn):
        real, lines = self.e, []
        self.e = lambda text, tok=None: lines.extend(x for x in text.split("\n") if x)
        fn(self.e)
        self.e = real
        return [[(x, None)] for x in lines]

    def emit_groups(self, gs):
        for g in gs:
            for ins, tok in g:
                self.e(ins, tok=tok)

    def a_items(self, aloads, first, count, rel, use):
        return [dict(r=rel(gs), d=use(gs), g=g) for gs in range(first, count) for g in self.groups(aloads(gs))]

    @staticmethod
    def mk_steps(first_blk, nblk, nst, mfmas, breads):
        return [dict(blk=first_blk + n, last=st == nst - 1, mf=mfmas(n, st), rd=breads(n, st), vm=[], alu=[])
                for n in range(nblk) for st in range(nst)]

    def issue_dma(self, dma, blocks):
        for b in blocks:
            for ins in dma(b):
                self.e(ins, tok=("dma", b))

    def ssm(self):
        e, c = self.e, self.c
        NS, SLOT = 7, 20480
        vDB, vDC = 16, 21
        vRB, vRC = 26, 32
        vA1, vCH8, vTC, vTW, vTRW, vTRR = 44, 45, 46, 47, 7, 8
        vL, vL4, vSC, vWP = 48, 58, 68, 78
        vL8, vL128, vSCL = 88, 90, 92
        ACC, SP, WK = 96, 176, 196
        X, U = 96, 116
        AR, BB, SK = 0, 64, 144

        e(f"s_and_b32 {sT0}, {sW}, 1\nv_lshl_add_u32 {v(vCH8)}, {sT0}, 6, {v(vLANE)}")
        e(f"s_mul_i32 {sT0}, {sJ}, 160\nv_lshl_add_u32 v12, {v(vCH8)}, 1, {sT0}")
        for k, p in enumerate((P_LRE, P_LIM, P_LDT)):
            self.mk_srd(R_TMP, p, 1280)
            e(f"buffer_load_ushort {v(WK+k)}, v12, {srd(R_TMP)}, 0 offen")
        e(f"s_lshl_b32 {sT1}, {sJ}, 4\ns_sub_u32 {sT1}, {sT1}, {sRB}\ns_mul_i32 {sT1}, {sT1}, 1280")
        e(f"s_add_u32 {sT1}, {sT1}, {CARRY + 15*1280}\nv_min_u32 v12, 9, {v(vLANE)}\nv_lshlrev_b32 v12, 7, v12")
        e(f"buffer_load_dword v255, v12, {srd(R_WS)}, {sT1} offen", tok="junk")
        e(f"s_cmp_lt_u32 {sW}, 2")
        self.mk_srd_sel(R_1A, P_BRE, P_BIM, 819200)
        self.mk_srd_sel(R_1B, P_BIM, P_BRE, 819200)
        self.mk_srd_sel(R_2A, P_CRE, P_CIM, 819200)
        self.mk_srd_sel(R_2B, P_CIM, P_CRE, 819200)
        e(f"s_and_b32 {sT0}, {sW}, 1\ns_lshr_b32 {sT1}, {sW}, 1")
        e(f"s_mul_i32 {sM0A}, {sT1}, 10240\ns_mul_i32 {sT2}, {sT0}, 3072\ns_add_u32 {sM0A}, {sM0A}, {sT2}")
        e(f"s_xor_b32 {sT1}, {sT1}, 1\ns_mul_i32 {sM0B}, {sT1}, 10240\ns_lshl_b32 {sT2}, {sT0}, 11")
        e(f"s_add_u32 {sM0B}, {sM0B}, {sT2}\ns_add_u32 {sM0B}, {sM0B}, 6144")
        e(f"v_lshrrev_b32 v12, 3, {v(vLANE)}\nv_and_b32 v13, 7, {v(vLANE)}\nv_lshrrev_b32 v14, 1, v12")
        e("v_xor_b32 v13, v13, v14\nv_lshlrev_b32 v13, 4, v13\nv_mul_u32_u24 v12, 0x500, v12\nv_add_u32 v12, v12, v13")
        for i in range(5):
            imm = 1024 * (i if i < 3 else i - 3)
            if i < 3:
                e(f"s_mul_i32 {sT1}, {sT0}, 3\ns_add_u32 {sT1}, {sT1}, {i}")
            else:
                e(f"s_lshl_b32 {sT1}, {sT0}, 1\ns_add_u32 {sT1}, {sT1}, {3 + i}")
            e(f"s_and_b32 {sT2}, {sT1}, 1\ns_lshl_b32 {sT2}, {sT2}, 6\nv_xor_b32 v13, {sT2}, v12")
            e(f"s_mul_i32 {sT2}, {sJ}, 10\ns_add_u32 {sT2}, {sT2}, {sT1}\ns_mul_i32 {sT2}, {sT2}, 10240")
            e(f"s_sub_u32 {sT2}, {sT2}, {imm}\nv_add_u32 {v(vDB+i)}, {sT2}, v13")
            e(f"s_lshl_b32 {sT2}, {sJ}, 3\ns_add_u32 {sT2}, {sT2}, {sT1}")
            e(f"s_lshl_b32 {sT3}, {sJ}, 1\ns_add_u32 {sT3}, {sT3}, {sT1}\ns_add_u32 {sT3}, {sT3}, 56")
            e(f"s_cmp_lt_u32 {sT1}, 8\ns_cselect_b32 {sT2}, {sT2}, {sT3}\ns_mul_i32 {sT2}, {sT2}, 10240")
            e(f"s_sub_u32 {sT2}, {sT2}, {imm}\nv_add_u32 {v(vDC+i)}, {sT2}, v13")
        self.rot_init(sWO1, 10, 128, True)
        self.rot_init(sWO2, 10, 128, False)

        def dma(b):
            ph2 = b >= 10
            ra, rb_, vb, so = (R_2A, R_2B, vDC, sWO2) if ph2 else (R_1A, R_1B, vDB, sWO1)
            base = (b % NS) * SLOT
            out = [f"s_add_u32 m0, {sM0A}, {base}"]
            out += [f"buffer_load_dwordx4 {v(vb+i)}, {srd(ra)}, {so} offen offset:{1024*i} lds" for i in range(3)]
            out += [f"s_add_u32 m0, {sM0B}, {base}"]
            out += [f"buffer_load_dwordx4 {v(vb+3+i)}, {srd(rb_)}, {so} offen offset:{1024*i} lds" for i in range(2)]
            return out + self.adv(so, 128, 1280, 0)

        pa, pl, pb = c["pre_a"], c["pre_st"], c["pre_b"]
        self.issue_dma(dma, range(pa))
        def consts():
            e(f"v_lshlrev_b32 {v(vCH8)}, 3, {v(vCH8)}\nv_add_u32 {v(vCH8)}, {SCR}, {v(vCH8)}")
            e(f"s_bitcmp0_b32 {sW}, 0\ns_cselect_b32 s88, -1, 0xffff\ns_cselect_b32 s89, -1, 0")
            skip = e.newlabel("noconst")
            e(f"s_cmp_gt_u32 {sW}, 1\ns_cbranch_scc1 {skip}")
            s0 = e.begin_region()
            e(f"s_mov_b64 exec, {sEX}")
            lre, lim, ldt = WK, WK + 1, WK + 2
            t = WK + 4
            for r in (lre, lim, ldt):
                e(f"v_lshlrev_b32 {v(r)}, 16, {v(r)}")
            log2e = "0x3fb8aa3b"
            e(f"v_mul_f32 {v(ldt)}, {log2e}, {v(ldt)}\nv_exp_f32 {v(ldt)}, {v(ldt)}")
            self.round_bf16(ldt)
            e(f"v_mul_f32 {v(t)}, {v(ldt)}, {v(lre)}\nv_mul_f32 {v(t+1)}, {v(ldt)}, {v(lim)}")
            e(f"v_mul_f32 {v(t)}, {log2e}, {v(t)}\nv_exp_f32 {v(t)}, {v(t)}")
            e(f"v_mul_f32 {v(t+1)}, 0.15915494, {v(t+1)}\nv_rndne_f32 {v(t+2)}, {v(t+1)}")
            e(f"v_sub_f32 {v(t+1)}, {v(t+1)}, {v(t+2)}")
            e(f"v_cos_f32 {v(t+2)}, {v(t+1)}\nv_sin_f32 {v(t+3)}, {v(t+1)}")
            L1 = WK + 8
            e(f"v_mul_f32 {v(L1)}, {v(t)}, {v(t+2)}\nv_mul_f32 {v(L1+1)}, {v(t)}, {v(t+3)}")
            e(f"v_mul_f32 {v(t)}, {v(lre)}, {v(lre)}\nv_fma_f32 {v(t)}, {v(lim)}, {v(lim)}, {v(t)}")
            e(f"v_rcp_f32 {v(t)}, {v(t)}\nv_add_f32 {v(t+1)}, -1.0, {v(L1)}\nv_add_f32 {v(t)}, {v(t)}, {v(t)}")
            e(f"v_mul_f32 {v(t+2)}, {v(t+1)}, {v(lre)}\nv_fma_f32 {v(t+2)}, {v(L1+1)}, {v(lim)}, {v(t+2)}")
            e(f"v_mul_f32 {v(t+3)}, {v(L1+1)}, {v(lre)}\nv_fma_f32 {v(t+3)}, -{v(t+1)}, {v(lim)}, {v(t+3)}")
            e(f"v_mul_f32 {v(vSCL)}, {v(t+2)}, {v(t)}\nv_mul_f32 {v(vSCL+1)}, {v(t+3)}, {v(t)}")
            L2, L4 = WK + 10, WK + 12
            self.cmul(L2, L1, L1)
            self.cmul(L4, L2, L2)
            self.cmul(vL8, L4, L4)
            e(f"ds_write_b64 {v(vCH8)}, {v(L1,2)} offset:10240")
            e(f"ds_write_b64 {v(vCH8)}, {v(L4,2)} offset:10880")
            e(f"ds_write_b64 {v(vCH8)}, {v(vSCL,2)} offset:11520")
            e(f"ds_write_b64 {v(vCH8)}, {v(vSCL,2)}")
            prev = vSCL
            for s in range(1, 16):
                d = WK + 14 + 2 * (s & 1)
                self.cmul(d, vL8, prev)
                e(f"ds_write_b64 {v(vCH8)}, {v(d,2)} offset:{640*s}")
                prev = d
            self.cmul(L1, vL8, vL8)
            self.cmul(L2, L1, L1)
            self.cmul(L1, L2, L2)
            self.cmul(vL128, L1, L1)
            e(f"ds_write_b64 {v(vCH8)}, {v(vL128,2)} offset:12160")
            e("s_mov_b64 exec, -1")
            e.wait_lg()
            e.end_region(s0, skip)

        SXN, SXR, SXP, SPF, SPR = SK, SK + 16, SK + 32, SK + 48, SK + 56
        vDS, vXM, vXP = 250, 94, 95
        sK = ["s90", "s91", "s96", "s97"]
        one = lambda *ins: [(i_, None) for i_ in ins]
        skip_ld = [one(f"buffer_load_dwordx4 {a(SXN + 8*f + 4*m,4)}, {v(vA1 if m else vL16B)}, {srd(R_WS)}, {sK[0]} "
                       f"offen offset:{1024*f} sc1") for f in range(2) for m in range(2)]
        skip_ld += [one("s_mov_b32 exec_hi, 0", f"buffer_load_dwordx4 {a(SPF + 4*m,4)}, {v(vA1 if m else vL16B)}, "
                        f"{srd(R_WS)}, {sK[1]} offen sc1", "s_mov_b64 exec, -1") for m in range(2)]
        skip_ld += [one(f"buffer_load_dwordx4 {a(SXR + 8*f + 4*m,4)}, {v(vXM)}, {srd(R_X)}, {sK[2]} "
                        f"offen offset:{2560*m + 64*f}") for m in range(2) for f in range(2)]
        skip_ld += [one("s_mov_b32 exec_lo, 0", f"buffer_load_dwordx4 {a(SPR + 4*m,4)}, {v(vXP)}, {srd(R_X)}, {sK[3]} "
                        f"offen offset:{2560*m}", "s_mov_b64 exec, -1") for m in range(2)]

        e(f"v_and_b32 v12, 15, {v(vLANE)}\nv_lshrrev_b32 v13, 4, {v(vLANE)}\nv_lshrrev_b32 v14, 1, v12")
        e("v_xor_b32 v15, v13, v14\nv_lshlrev_b32 v15, 4, v15\nv_lshl_add_u32 v15, v12, 7, v15")
        for k in range(3):
            e(f"v_add_u32 {v(vRB+2*k)}, {61440*k}, v15\nv_xor_b32 {v(vRB+2*k+1)}, 64, {v(vRB+2*k)}")
        e("v_and_b32 v15, 1, v13\nv_xor_b32 v15, v15, v14\nv_lshlrev_b32 v15, 4, v15\nv_lshl_add_u32 v15, v12, 7, v15")
        e("v_lshrrev_b32 v14, 1, v13\nv_mul_u32_u24 v14, 0x2800, v14\nv_add_u32 v15, v15, v14")
        for k in range(3):
            e(f"v_add_u32 {v(vRC+4*k)}, {61440*k}, v15")
            for st in range(1, 4):
                e(f"v_xor_b32 {v(vRC+4*k+st)}, {32*st}, {v(vRC+4*k)}")
        e(f"v_lshlrev_b32 {v(vTC)}, 3, v12\nv_add_u32 {v(vTC)}, {SCR}, {v(vTC)}")
        e(f"v_lshl_add_u32 v14, {sW}, 2, v13\nv_mul_u32_u24 v14, 0x280, v14\nv_add_u32 {v(vTW)}, v14, {v(vTC)}")
        e(f"v_add_u32 {v(vA1)}, 20480, {v(vL16B)}")
        e(f"s_mul_i32 {sABEG}, {sRB}, 163840\ns_mul_i32 {sT0}, {sW}, 40960\ns_add_u32 {sABEG}, {sABEG}, {sT0}")
        e(f"s_add_u32 {sABEG}, {sABEG}, {XNS}\ns_add_u32 {sAEND}, {sABEG}, 20480")
        self.rot_init(sA, 10, 2048, True)
        e(f"s_add_u32 {sA}, {sA}, {sABEG}")

        def late_setup(e):

            def rowoff(d, i):
                e(f"v_lshrrev_b32 {v(d)}, 2, {v(i)}\nv_lshlrev_b32 {v(d)}, 3, {v(d)}\nv_and_b32 v15, 1, {v(i)}")
                e(f"v_lshl_add_u32 {v(d)}, v15, 2, {v(d)}\nv_bfe_u32 v15, {v(i)}, 1, 1\nv_add_u32 {v(d)}, {v(d)}, v15")
                e(f"v_mul_u32_u24 {v(d)}, 0x500, {v(d)}")
            e(f"s_lshl_b32 {sK[0]}, {sJ}, 11\ns_add_u32 {sK[0]}, {sK[0]}, {sABEG}")
            e(f"s_lshl_b32 {sK[1]}, {sJ}, 9\ns_add_u32 {sK[1]}, {sK[1]}, {sABEG}\ns_add_u32 {sK[1]}, {sK[1]}, 16384")
            e(f"v_lshrrev_b32 v12, 2, {v(vLANE)}")
            rowoff(vXM, 12)
            e(f"v_and_b32 v15, 3, {v(vLANE)}\nv_lshl_add_u32 {v(vXM)}, v15, 4, {v(vXM)}")
            e(f"v_bfe_u32 v12, {v(vLANE)}, 1, 4")
            rowoff(vXP, 12)
            e(f"v_and_b32 v15, 1, {v(vLANE)}\nv_lshl_add_u32 {v(vXP)}, v15, 4, {v(vXP)}")
            e(f"s_lshl_b32 {sT0}, {sRB}, 2\ns_add_u32 {sT0}, {sT0}, {sW}\ns_mul_i32 {sT0}, {sT0}, 40960")
            e(f"s_lshl_b32 {sK[2]}, {sJ}, 7\ns_add_u32 {sK[2]}, {sK[2]}, {sT0}")
            e(f"s_lshl_b32 {sK[3]}, {sJ}, 5\ns_add_u32 {sK[3]}, {sK[3]}, {sT0}\ns_add_u32 {sK[3]}, {sK[3]}, 1024")
            self.mk_srd(R_TMP, P_DSK, 1280)
            e(f"v_and_b32 v12, 15, {v(vLANE)}\nv_lshlrev_b32 v12, 1, v12")
            e(f"s_lshl_b32 {sT1}, {sJ}, 7\ns_lshl_b32 {sT2}, {sJ}, 5\ns_add_u32 {sT2}, {sT2}, 1024")
            for T in range(5):
                so, imm = (sT1, 32 * T) if T < 4 else (sT2, 0)
                e(f"buffer_load_ushort {v(vDS+T)}, v12, {srd(R_TMP)}, {so} offen offset:{imm}")
            e(f"v_and_b32 v12, 15, {v(vLANE)}\nv_lshrrev_b32 v13, 4, {v(vLANE)}")
            e("v_lshrrev_b32 v14, 3, v12\nv_lshlrev_b32 v14, 2, v14\nv_xor_b32 v14, v14, v12\nv_lshlrev_b32 v14, 5, v14")
            e("v_lshrrev_b32 v15, 2, v12\nv_xor_b32 v15, v15, v13\nv_lshl_add_u32 v14, v15, 3, v14")
            e(f"s_lshl_b32 {sT0}, {sW}, 11\ns_add_u32 {sT0}, {sT0}, {SCR + 12288}\nv_add_u32 {v(vTRW)}, {sT0}, v14")
            for j2 in range(2):
                e(f"v_and_b32 v14, 1, v13\nv_xor_b32 v14, {j2}, v14\nv_lshlrev_b32 v14, 2, v14")
                e(f"v_lshl_add_u32 v14, v13, 3, v14\nv_bfe_u32 v15, {v(vLANE)}, 2, 2\nv_add_u32 v14, v14, v15")
                e(f"v_lshlrev_b32 v14, 5, v14\nv_lshlrev_b32 v15, 1, v13\nv_add_u32 v15, {j2}, v15")
                e(f"v_xor_b32 v15, v15, {v(vLANE)}\nv_and_b32 v15, 3, v15\nv_lshl_add_u32 v14, v15, 3, v14")
                e(f"v_add_u32 {v(vTRR+j2)}, {sT0}, v14")

        self.stamp(1)
        toks = lambda r: [(i, ("dma", b)) for b in r for i in dma(b)]
        self.ln_compute(X, U, 6 * SLOT, toks(range(pa, pa + pl)), consts)
        self.stamp(2)
        self.issue_dma(dma, range(pa + pl, pa + pl + pb))

        visible = {0}
        for g in range(5):
            e(f"ds_read_b64 {v(vL+2*g,2)}, {v(vTC)} offset:{10240 + 128*g}")
            e(f"ds_read_b64 {v(vL4+2*g,2)}, {v(vTC)} offset:{10880 + 128*g}")
            e(f"ds_read_b64 {v(vSC+2*g,2)}, {v(vTC)} offset:{11520 + 128*g}")
            e(f"ds_read_b64 {v(vWP+2*g,2)}, {v(vTW)} offset:{128*g}")
        e(f"ds_read_b64 {v(vL128,2)}, {v(vCH8)} offset:12160")
        self.stamp(3)
        self.poll(2, TAG_XN, "xn", 12, 13)
        self.stamp(4)

        acc = lambda g, cp, m: ACC + ((g * 2 + cp) * 2 + m) * 4

        def aload1(gs):
            st = gs & 1
            r = AR + (gs % 8) * 8
            out = [f"buffer_load_dwordx4 {a(r,4)}, {v(vL16B)}, {srd(R_WS)}, {sA} offen offset:{1024*st} sc1",
                   f"buffer_load_dwordx4 {a(r+4,4)}, {v(vA1)}, {srd(R_WS)}, {sA} offen offset:{1024*st} sc1"]
            return out + (self.adv(sA, 2048, sAEND, sABEG) if st else [])

        def bread1(n, st):
            slot = n % NS
            base, off = vRB + 2 * (slot // 3) + st, (slot % 3) * SLOT
            return [f"ds_read_b128 {a(BB + 40*st + 4*(2*g+cp),4)}, {v(base)} offset:{off + cp*10240 + g*2048}"
                    for g in range(5) for cp in range(2)]

        def mfma1(n, st):
            gs = 2 * n + st
            return [f"v_mfma_f32_16x16x32_bf16 {v(acc(g,cp,m),4)}, {a(AR + (gs%8)*8 + 4*m,4)}, "
                    f"{a(BB + 40*st + 4*(2*g+cp),4)}, {v(acc(g,cp,m),4) if gs else 0}"
                    for g in range(5) for cp in range(2) for m in range(2)]

        steps = self.mk_steps(0, 10, 2, mfma1, bread1)
        items = self.a_items(aload1, c["a_pre"], 20, lambda g: g - 7, lambda g: g)
        late = self.record(late_setup)
        for n, g in enumerate(late):
            steps[1 + n * 8 // len(late)]["alu"].append(g)
        for n, g in enumerate(skip_ld):
            steps[c["skip_at"] + n // 2]["vm"].append(g)
        for gs in range(c["a_pre"]):
            e("\n".join(aload1(gs)))
        lazy = {10 + n: c["lazy0"] + c["lazy_gap"] * n for n in range(7)}
        upto = 10 + NS - c["defer"]
        rest = self.pipeline(steps, dma, NS, min(upto, 9 + NS), range(pa + pl + pb, NS), visible, items, lazy, keep=True)
        if not c["defer"]:
            rest += self.groups(dma(9 + NS), ("dma", 9 + NS))
        self.stamp(5)

        pair = lambda g, cp, jj: acc(g, cp, jj >> 1) + 2 * (jj & 1)
        LR = "op_sel:[0,0,0] op_sel_hi:[0,1,1]"
        LI = "op_sel:[1,0,0] op_sel_hi:[1,1,1]"
        NEG = "neg_lo:[1,0,0] neg_hi:[1,0,0]"
        for g in range(5):
            Lg = v(vL + 2 * g, 2)
            sre, sim = pair(g, 0, 0), pair(g, 1, 0)
            for jj in range(1, 4):
                dre, dim = (WK, WK + 2) if jj == 2 else (SP + 4 * g, SP + 4 * g + 2)
                e(f"v_pk_fma_f32 {v(dre,2)}, {Lg}, {v(sre,2)}, {v(pair(g,0,jj),2)} {LR}")
                e(f"v_pk_fma_f32 {v(dim,2)}, {Lg}, {v(sim,2)}, {v(pair(g,1,jj),2)} {LR}")
                e(f"v_pk_fma_f32 {v(dre,2)}, {Lg}, {v(sim,2)}, {v(dre,2)} {LI} {NEG}")
                e(f"v_pk_fma_f32 {v(dim,2)}, {Lg}, {v(sre,2)}, {v(dim,2)} {LI}")
                sre, sim = dre, dim
            l4r, l4i, d = vL4 + 2 * g, vL4 + 2 * g + 1, WK + 4 + 2 * (g & 1)
            e(f"v_fma_f32 {v(d)}, {v(l4r)}, {v(sre)}, {v(sre+1)}")
            e(f"v_fma_f32 {v(d+1)}, {v(l4r)}, {v(sim)}, {v(sim+1)}")
            e(f"v_fma_f32 {v(d)}, -{v(l4i)}, {v(sim)}, {v(d)}")
            e(f"v_fma_f32 {v(d+1)}, {v(l4i)}, {v(sre)}, {v(d+1)}")
            e(f"ds_write_b64 {v(vTW)}, {v(d,2)} offset:{128*g}")
        e.wait_lg()
        e("s_barrier")
        self.stamp(6)

        skip = e.newlabel("nocomb")
        e(f"s_cmp_gt_u32 {sW}, 1\ns_cbranch_scc1 {skip}")
        s0 = e.begin_region()
        e(f"s_mov_b64 exec, {sEX}")
        SL = WK
        for s in range(16):
            e(f"ds_read_b64 {v(SL+2*s,2)}, {v(vCH8)} offset:{640*s}")
        for s in range(1, 16):
            e(f"v_pk_fma_f32 {v(SL+2*s,2)}, {v(vL8,2)}, {v(SL+2*s-2,2)}, {v(SL+2*s,2)} {LR}")
            e(f"v_pk_fma_f32 {v(SL+2*s,2)}, {v(vL8,2)}, {v(SL+2*s-2,2)}, {v(SL+2*s,2)} "
              "op_sel:[1,1,0] op_sel_hi:[1,0,1] neg_lo:[1,0,0]")
        MSG = SL + 30
        e(f"v_subrev_u32 v12, {SCR}, {v(vCH8)}\nv_lshlrev_b32 v12, 1, v12")
        e(f"s_add_u32 {sT0}, {sEC}, {TAG_CARRY}\nv_mov_b32 {v(MSG+2)}, {sT0}\nv_mov_b32 {v(MSG+3)}, {sT0}")
        e(f"s_lshl_b32 {sT1}, {sJ}, 4\ns_sub_u32 {sT1}, {sT1}, {sRB}\ns_mul_i32 {sT1}, {sT1}, 1280")
        e(f"s_add_u32 {sT1}, {sT1}, {CARRY + 15*1280}")
        e(f"buffer_store_dwordx4 {v(MSG,4)}, v12, {srd(R_WS)}, {sT1} offen sc1")
        e(f"v_mov_b32 v14, 0\nv_mov_b32 v15, 0\nds_write_b64 {v(vCH8)}, v[14:15]")
        for s in range(1, 16):
            d = WK + 36 + 2 * (s & 1)
            self.cmul(d, vSCL, SL + 2 * s - 2)
            e(f"ds_write_b64 {v(vCH8)}, {v(d,2)} offset:{640*s}")
        e("s_mov_b64 exec, -1")
        e.end_region(s0, skip)
        self.emit_groups(rest)
        self.stamp(7)

        def scale_pairs(g, re, im):
            Sg = v(vSC + 2 * g, 2)
            e(f"v_pk_mul_f32 v[14:15], {Sg}, {v(im,2)} op_sel:[1,0] op_sel_hi:[1,1] neg_lo:[1,0] neg_hi:[1,0]")
            e(f"v_pk_mul_f32 {v(im,2)}, {Sg}, {v(im,2)} op_sel:[0,0] op_sel_hi:[0,1]")
            e(f"v_pk_fma_f32 {v(im,2)}, {Sg}, {v(re,2)}, {v(im,2)} {LI}")
            e(f"v_pk_fma_f32 {v(re,2)}, {Sg}, {v(re,2)}, v[14:15] {LR}")
        for g in range(5):
            scale_pairs(g, SP + 4 * g, SP + 4 * g + 2)
            for jj in range(4):
                scale_pairs(g, pair(g, 0, jj), pair(g, 1, jj))
        self.stamp(8)

        skip = e.newlabel("nocarry")
        e(f"s_cmp_lt_u32 {sW}, 2\ns_cbranch_scc1 {skip}")
        s0 = e.begin_region()
        e(f"s_lshl_b32 {sT0}, {sJ}, 4\ns_sub_u32 {sT0}, {sT0}, {sRB}\ns_mul_i32 {sT0}, {sT0}, 1280")
        e(f"s_add_u32 {sT0}, {sT0}, {CARRY + 16*1280}")
        e(f"s_add_u32 s{R_TMP}, s{P_WS}, {sT0}\ns_addc_u32 s{R_TMP+1}, s{P_WS+1}, 0")
        e(f"s_mul_i32 s{R_TMP+2}, {sRB}, 1280\ns_mov_b32 s{R_TMP+3}, 0x20000")
        e(f"s_add_u32 {sT1}, {sEC}, {TAG_CARRY}\ns_mul_i32 {sT1}, {sT1}, {sRB}")
        e(f"s_mov_b64 exec, {sEX}")
        MG = 196
        vMA = [10, 11, 12, 13, 14]
        e(f"v_subrev_u32 v10, {SCR}, {v(vCH8)}\nv_lshlrev_b32 v10, 1, v10")
        for k in range(1, 5):
            e(f"v_add_u32 v{10+k}, {3840*k}, v10")
        lp, out = e.newlabel("cpoll"), e.newlabel("cpolled")
        e.label(lp)
        mreg = lambda dl: MG + 4 * dl if dl < 13 else (vDB, vRB)[dl - 13]
        for dl in range(15):
            e(f"buffer_load_dwordx3 {v(mreg(dl),3)}, v{vMA[dl//3]}, {srd(R_TMP)}, 0 offen offset:{1280*(dl%3)} sc1")
        e(f"s_cmp_eq_u32 {sSPIN}, 0")
        e.wait_all(lg=False)
        e(f"s_cbranch_scc1 {out}\ns_sub_u32 {sSPIN}, {sSPIN}, 1")
        e(f"v_add3_u32 v15, {v(mreg(0)+2)}, {v(mreg(1)+2)}, {v(mreg(2)+2)}")
        for k in range(3, 15, 2):
            e(f"v_add3_u32 v15, v15, {v(mreg(k)+2)}, {v(mreg(k+1)+2)}")
        e(f"v_cmp_eq_u32 vcc, {sT1}, v15")
        e(f"s_cmp_eq_u64 vcc, exec\ns_cbranch_scc0 {lp}")
        e.label(out)
        for dl in range(13, -1, -1):
            x, y = mreg(dl), mreg(dl + 1)
            e(f"v_pk_fma_f32 {v(x,2)}, {v(vL128,2)}, {v(y,2)}, {v(x,2)} {LR}")
            e(f"v_pk_fma_f32 {v(x,2)}, {v(vL128,2)}, {v(y,2)}, {v(x,2)} op_sel:[1,1,0] op_sel_hi:[1,0,1] neg_lo:[1,0,0]")
        e(f"ds_write_b64 {v(vCH8)}, {v(mreg(0),2)} offset:10240")
        e("s_mov_b64 exec, -1")
        e.end_region(s0, skip)
        e.wait_all(vm=False)
        e("s_barrier")
        self.stamp(9)

        PG = WK
        for g in range(5):
            e(f"ds_read_b64 {v(PG+4*g,2)}, {v(vTW)} offset:{128*g}")
            e(f"ds_read_b64 {v(PG+4*g+2,2)}, {v(vTC)} offset:{10240 + 128*g}")
        e(f"s_mul_i32 {sABEG}, {sRB}, 327680\ns_mul_i32 {sT0}, {sW}, 81920\ns_add_u32 {sABEG}, {sABEG}, {sT0}")
        e(f"s_add_u32 {sABEG}, {sABEG}, {HS}\ns_add_u32 {sAEND}, {sABEG}, 40960")
        e(f"s_mul_i32 {sT2}, {sJ}, 5120\ns_add_u32 {sT2}, {sT2}, {sABEG}")
        e(f"v_add_u32 {v(vA1)}, 40960, {v(vL16B)}")
        HF = WK + 20
        CV = 12

        def pass2():
            for g in range(5):
                p, gg, w_ = PG + 4 * g, PG + 4 * g + 2, vWP + 2 * g
                hre, him = SP + 4 * g, SP + 4 * g + 2
                l4r, l4i = vL4 + 2 * g, vL4 + 2 * g + 1
                e(f"v_fma_f32 {v(p)}, {v(w_)}, {v(gg)}, {v(p)}\nv_fma_f32 {v(p+1)}, {v(w_)}, {v(gg+1)}, {v(p+1)}")
                e(f"v_fma_f32 {v(p)}, -{v(w_+1)}, {v(gg+1)}, {v(p)}\nv_fma_f32 {v(p+1)}, {v(w_+1)}, {v(gg)}, {v(p+1)}")
                e(f"v_fma_f32 {v(hre+1)}, {v(l4r)}, {v(p)}, {v(hre)}\nv_fma_f32 {v(him+1)}, {v(l4r)}, {v(p+1)}, {v(him)}")
                e(f"v_fma_f32 {v(hre+1)}, -{v(l4i)}, {v(p+1)}, {v(hre+1)}\nv_fma_f32 {v(him+1)}, {v(l4i)}, {v(p)}, {v(him+1)}")
                e(f"v_mov_b32 {v(hre)}, {v(p)}\nv_mov_b32 {v(him)}, {v(p+1)}")
                Lg = v(vL + 2 * g, 2)
                for jj in range(4):
                    ur, ui = pair(g, 0, jj), pair(g, 1, jj)
                    e(f"v_pk_fma_f32 {v(ur,2)}, {Lg}, {v(hre,2)}, {v(ur,2)} {LR}")
                    e(f"v_pk_fma_f32 {v(ui,2)}, {Lg}, {v(him,2)}, {v(ui,2)} {LR}")
                    e(f"v_pk_fma_f32 {v(ur,2)}, {Lg}, {v(him,2)}, {v(ur,2)} {LI} {NEG}")
                    e(f"v_pk_fma_f32 {v(ui,2)}, {Lg}, {v(hre,2)}, {v(ui,2)} {LI}")
                    hre, him = ur, ui
                for m in range(2):
                    for cp in range(2):
                        r, sg, d = acc(g, cp, m), "-" if cp else "", CV + 2 * cp
                        e(f"v_cvt_pk_bf16_f32 {v(d)}, {sg}{v(r)}, {sg}{v(r+1)}")
                        e(f"v_cvt_pk_bf16_f32 {v(d+1)}, {sg}{v(r+2)}, {sg}{v(r+3)}")
                        e(f"ds_write_b64 {v(vTRW)}, {v(d,2)} offset:{1024*m + 512*cp}")
                hf = HF + 8 * (g & 1)
                for m in range(2):
                    for j2 in range(2):
                        e(f"ds_read_b64_tr_b16 {v(hf + 4*m + 2*j2,2)}, {v(vTRR+j2)} offset:{1024*m}")
                if g:
                    store_h(g - 1)
            store_h(4)

        def store_h(g):
            hf = HF + 8 * (g & 1)
            if g == 4:
                e(f"s_add_u32 {sT2}, {sT2}, 4096")
            for m in range(2):
                e(f"buffer_store_dwordx4 {v(hf+4*m,4)}, {v(vA1 if m else vL16B)}, {srd(R_WS)}, {sT2} offen offset:{1024*(g&3)} sc1", tok="h")
        e.wait_lg()
        pass2()
        self.stamp(10)
        e(f"v_and_b32 v12, 15, {v(vLANE)}\nv_lshrrev_b32 v13, 4, {v(vLANE)}")
        e("v_lshl_add_u32 v14, v12, 2, v13\nv_lshlrev_b32 v14, 2, v14")
        e("v_and_b32 v13, 1, v13\nv_lshl_add_u32 v13, v12, 1, v13\nv_lshlrev_b32 v13, 2, v13\nv_add_u32 v13, 0x80, v13")
        for k in range(16):
            e(f"ds_bpermute_b32 {a(SXP+k)}, v14, {a(SXR+k)}")
        e("s_mov_b32 exec_lo, 0")
        for k in range(8):
            e(f"ds_bpermute_b32 {a(SPF+k)}, v13, {a(SPR+k)}")
        e("s_mov_b64 exec, -1")
        e.wait_tok("h", ("dma", 10))
        e.wait_lg()
        e("s_barrier")
        self.send_flags(3, TAG_HID, "0xff", sJ)
        visible.add(10)

        acc2 = lambda T, m: ACC + (T * 2 + m) * 4
        e(f"v_and_b32 v12, 15, {v(vLANE)}\nv_lshrrev_b32 v13, 1, v12\nv_bfe_u32 v14, {v(vLANE)}, 4, 1")
        e("v_lshlrev_b32 v14, 2, v14\nv_sub_u32 v13, v13, v14\nv_and_b32 v12, 1, v12\nv_lshlrev_b32 v12, 4, v12")
        for k in range(4):
            e(f"v_cmp_eq_u32 {sMSK[k]}, {k}, v13")
        e(f"v_cmp_gt_u32 vcc, 32, {v(vLANE)}\nv_mov_b32 v15, 0x3f80")
        SEL = WK
        pick = [(v(vDS+T), "0") if T % 2 == 0 else ("0", v(vDS+T)) for T in range(4)]
        pick += [(v(vDS+4), "v15"), ("v15", "0"), ("0", "v15")]
        for n, (lo, hi) in enumerate(pick):
            e(f"v_cndmask_b32 v14, {hi}, {lo}, vcc\nv_lshlrev_b32 v14, v12, v14")
            for k in range(4):
                e(f"v_cndmask_b32 {v(SEL+4*n+k)}, 0, v14, {sMSK[k]}")
        for T in range(5):
            for m in range(2):
                src = SXN + 8 * (T >> 1) + 4 * m if T < 4 else SPF + 4 * m
                e(f"v_mfma_f32_16x16x32_bf16 {v(acc2(T,m),4)}, {a(src,4)}, {v(SEL+4*T,4)}, 0")
        for T in range(4):
            for m in range(2):
                e(f"v_mfma_f32_16x16x32_bf16 {v(acc2(T,m),4)}, {a(SXP + 8*(T>>1) + 4*m,4)}, {v(SEL+20+4*(T&1),4)}, {v(acc2(T,m),4)}")
        self.rot_init(sA, 10, 4096, False)
        e(f"s_add_u32 {sA}, {sA}, {sABEG}")
        self.poll(3, TAG_HID, "hid", 12, 13)
        self.stamp(11)

        areg = lambda gs: (SK if gs & 8 else AR) + (gs % 8) * 8

        def aload2(gs):
            st, r = gs & 3, areg(gs)
            out = [f"buffer_load_dwordx4 {a(r,4)}, {v(vL16B)}, {srd(R_WS)}, {sA} offen offset:{1024*st} sc1",
                   f"buffer_load_dwordx4 {a(r+4,4)}, {v(vA1)}, {srd(R_WS)}, {sA} offen offset:{1024*st} sc1"]
            return out + (self.adv(sA, 4096, sAEND, sABEG) if st == 3 else [])

        def step2(k, blk, last, work):
            rd, mf = [], []
            for n, (T, gs) in enumerate(work):
                slot, f = (10 + gs // 4) % NS, BB + 20 * (k & 1) + 4 * n
                rd.append(f"ds_read_b128 {a(f,4)}, {v(vRC + 4*(slot//3) + (gs&3))} offset:{(slot%3)*SLOT + T*2048}")
                mf += [f"v_mfma_f32_16x16x32_bf16 {v(acc2(T,m),4)}, {a(areg(gs) + 4*m,4)}, {a(f,4)}, {v(acc2(T,m),4)}"
                       for m in range(2)]
            return dict(blk=blk, last=last, mf=mf, rd=rd, vm=[], alu=[])

        nb = c["tail_s"]
        u0 = 40 - 4 * nb
        steps = [step2(gs, 10 + gs // 4, gs & 3 == 3, [(T, gs) for T in range(5)]) for gs in range(u0)]
        for T in range(5):
            for b in range(nb):
                steps.append(step2(len(steps), 19, False, [(T, u0 + 4 * b + st) for st in range(4)]))
        items = self.a_items(aload2, c["a_pre2"], 40, lambda g: g - 15, lambda g: min(g, u0 + (g - u0) // 4))
        for gs in range(c["a_pre2"]):
            e("\n".join(aload2(gs)))
        PL, sPA, sPB = 176, "s93", "s1"
        part_ld = [f"buffer_load_dwordx4 {v(PL+4*k,4)}, {v(vL16B)}, {srd(R_WS)}, {sPB if k >= 4 else sPA} "
                   f"offen offset:{1024*(k&3)} sc1" for k in range(8)]

        def out_setup():
            self.out_setup(rows)
            e(f"s_lshl_b32 {sPA}, {sOWN}, 5\ns_lshl_b32 {sT0}, {sW}, 13\ns_add_u32 {sPA}, {sPA}, {sT0}")
            e(f"s_add_u32 {sPA}, {sPA}, {PART}\ns_add_u32 {sPB}, {sPA}, 4096")

        finish_tile = lambda T: self.finish_tile(T, acc2(T, 0), [PL + 4 * k for k in ([T] if T < 4 else range(4, 8))], rows)

        def spread(groups, first, n):
            for k, g in enumerate(groups):
                steps[first + k * n // len(groups)]["alu"].append(g)
        rows = ["s88", "s89", "s90", "s91", "s94", "s95", "s96", "s97"]
        steps[u0 - 2]["pre"] = out_setup
        tb = u0 + c["p_test"]
        issue, test = self.check_flags(4, TAG_PART, 10, 11, "part")
        steps[tb - c["p_lead"]]["vm"] += self.groups(issue)
        steps[tb]["pre"] = lambda: (test(), e("\n".join(part_ld)))
        done, first = [], u0 + c["e0"]
        for T in range(4):
            first = max(first, u0 + nb * (T + 1), tb + 1)
            if first + 2 > len(steps):
                break
            spread(finish_tile(T), first, 2)
            done.append(T)
            first += 2
        self.pipeline(steps, dma, NS, 20, range(upto, 10 + NS), visible, items, due={b: u0 - 1 for b in range(21 - nb, 20)})
        self.stamp(12)
        for T in range(5):
            if T not in done:
                self.emit_groups(finish_tile(T))
        self.stamp(13)
        self.epoch_bump()
        self.stamp(14)
        self.finish()

    def out_setup(self, rows):
        e = self.e
        self.mk_srd(R_OUT, P_OUT, 2048 * 2560)
        e(f"v_lshrrev_b32 v8, 4, {v(vLANE)}\nv_mul_u32_u24 v8, 0x5000, v8\nv_and_b32 v9, 15, {v(vLANE)}")
        e(f"v_lshl_add_u32 v8, v9, 2, v8\ns_mul_i32 {sT0}, {sJ}, 192\ns_sub_u32 {sT0}, 2048, {sT0}")
        e(f"v_add_u32 v9, {sT0}, v8")
        e(f"s_lshl_b32 {sT0}, {sRB}, 2\ns_add_u32 {sT0}, {sT0}, {sW}\ns_mul_i32 {sT0}, {sT0}, 81920")
        e(f"s_lshl_b32 {sT1}, {sJ}, 8\ns_add_u32 {sT0}, {sT0}, {sT1}")
        for m in range(2):
            for r in range(4):
                e(f"s_add_u32 {rows[4*m+r]}, {sT0}, {(4*(r&1) + 2*m + (r>>1)) * 2560}")

    @staticmethod
    def finish_tile(T, acc, parts, rows):
        out = []
        for p in parts:
            for i in range(4):
                d, t0 = acc + 2 * i, 12 + 2 * (i & 1)
                out += [f"v_lshlrev_b32 {v(t0)}, 16, {v(p+i)}", f"v_and_b32 {v(t0+1)}, 0xffff0000, {v(p+i)}",
                        f"v_add_f32 {v(d)}, {v(d)}, {v(t0)}", f"v_add_f32 {v(d+1)}, {v(d+1)}, {v(t0+1)}"]
                if p == parts[-1]:
                    out += [f"buffer_store_dword {v(d+r)}, {'v8' if T < 4 else 'v9'}, {srd(R_OUT)}, {rows[2*i+r]} "
                            f"offen offset:{64*T if T < 4 else 0} sc1" for r in range(2)]
        return [[(x, None)] for x in out]

    def epoch_bump(self):
        e = self.e
        skip = e.newlabel("nobump")
        e("s_barrier")
        e(f"s_cmp_lg_u32 {sW}, 0\ns_cbranch_scc1 {skip}")
        s0 = e.begin_region()
        e(f"s_add_u32 {sT0}, {sE}, 0x100\nv_mov_b32 v12, {sT0}\nv_mov_b32 v13, 0\ns_mov_b64 exec, 1")
        e(f"buffer_store_dword v12, v13, {srd(R_WS)}, {sOWN} offen sc1")
        e("s_mov_b64 exec, -1")
        e.end_region(s0, skip)

    def finish(self):
        e = self.e
        if self.c["diag"]:
            e.wait_all()
            self.stamp(15)
            self.flush_stamp()
            e(f"s_lshr_b32 {sT0}, {sOWN}, 10\ns_lshl_b32 {sT0}, {sT0}, 2\ns_add_u32 {sT0}, {sT0}, {sW}")
            e(f"s_lshl_b32 {sT0}, {sT0}, 8\ns_add_u32 {sT0}, {sT0}, {STAMP}")
            e(f"v_lshlrev_b32 v12, 2, {v(vLANE)}")
            e(f"buffer_store_dword {v(vSTAMP)}, v12, {srd(R_WS)}, {sT0} offen")
        e("s_endpgm")

    def check_flags(self, line, tag, tmp, tmp2, kind="hid"):
        e = self.e
        issue = self.word_addr(kind, tmp2) + [
                 f"s_add_u32 s46, {sOWN}, {INBOX + 128*line}",
                 f"buffer_load_dword {v(tmp)}, {v(tmp2)}, {srd(R_WS)}, s46 offen sc1"]

        def test():
            ok = e.newlabel("ready")
            e(f"s_add_u32 {sT1}, {sE}, {tag}\nv_cmp_eq_u32 vcc, {sT1}, {v(tmp)}")
            e(f"s_cmp_eq_u64 vcc, exec\ns_cbranch_scc1 {ok}")
            s0 = e.begin_region()
            self.poll(line, tag, kind, tmp, tmp2)
            e.end_region(s0, ok)
        return issue, test

    def mlp(self):
        e, c = self.e, self.c
        NS, SLOT, NSTREAM = 8, 20480, 27
        vD1, vD2 = 16, 20
        vR1, vR2 = 26, 30
        vA1, vA2 = 34, 36
        ACC1, ACC, WK = 96, 128, 192
        X, U = 96, 116
        XA, BB = 0, 160
        sM0C, sH, sHS, sR2 = "s15", "s89", "s90", "s91"
        LINES, TAGS = (3, 5, 6), (TAG_HID, TAG_HID2, TAG_HID3)

        self.mk_srd(R_1A, P_W1, 640 * 3072)
        self.mk_srd(R_2A, P_W2, 1536 * 1280)
        e(f"s_bfe_u32 s93, {sOWN}, 0x7000a\ns_lshl_b32 s93, s93, 2\ns_add_u32 s93, s93, {sW}")
        e(f"s_mul_i32 s93, s93, 3840\nv_min_u32 v247, 29, {v(vLANE)}\nv_lshlrev_b32 v247, 7, v247")
        e(f"s_lshl_b32 {sM0B}, {sW}, 12\ns_lshl_b32 {sM0C}, {sW}, 10\ns_add_u32 {sM0C}, {sM0C}, 16384")
        e(f"v_lshrrev_b32 v12, 3, {v(vLANE)}\nv_and_b32 v13, 7, {v(vLANE)}\nv_and_b32 v14, 2, v12")
        e("v_xor_b32 v14, v13, v14\nv_lshlrev_b32 v14, 4, v14\nv_mul_u32_u24 v15, 0xc00, v12\nv_add_u32 v14, v14, v15")
        e(f"s_and_b32 {sT0}, {sW}, 1\ns_mul_i32 {sT0}, {sT0}, 98304\ns_mul_i32 {sT1}, {sJ}, 384")
        e(f"s_add_u32 {sT0}, {sT0}, {sT1}")
        for i in range(4):
            e(f"s_add_u32 {sT2}, {sT0}, {23552*i}\nv_add_u32 {v(vD1+i)}, {sT2}, v14")
            if i & 1:
                e(f"v_xor_b32 {v(vD1+i)}, 64, {v(vD1+i)}")
        self.rot_init(sA, 10, 2048, True)
        e(f"s_lshr_b32 {sT2}, {sW}, 1\ns_lshl_b32 {sT2}, {sT2}, 11\ns_add_u32 {sWO1}, {sA}, {sT2}")
        e(f"s_cmp_eq_u32 {sWO1}, 20480\ns_cselect_b32 {sWO1}, 0, {sWO1}\ns_mul_i32 {sWO1}, {sWO1}, 96")

        def wrap(reg, inc):
            return [f"s_add_u32 {reg}, {reg}, {inc}", f"s_sub_u32 {sT3}, {reg}, 1966080", f"s_cselect_b32 {reg}, {reg}, {sT3}"]

        def dma(b):
            base = (b % NS) * SLOT
            ld = lambda r, d, so, imm: f"buffer_load_dwordx4 {v(r)}, {srd(d)}, {so} offen offset:{imm} lds"
            if b < 15:
                return ([f"s_add_u32 m0, {sM0B}, {base}"] + [ld(vD1 + i, R_1A, sWO1, 1024 * i) for i in range(4)]
                        + wrap(sWO1, 393216 + (128 if b % 5 == 4 else 0)))
            return ([f"s_add_u32 m0, {sM0B}, {base}"] + [ld(vD2 + i, R_2A, sWO2, 1024 * i) for i in range(4)]
                    + [f"s_add_u32 m0, {sM0C}, {base}", ld(vD2 + 4, R_2A, sWO2, 0)]
                    + wrap(sWO2, 491520 + (81920 if (b - 15) % 4 == 3 else 0)))

        pa, pl, pb = c["mpre_a"], c["mpre_st"], c["mpre_b"]
        self.issue_dma(dma, range(pa))
        e(f"v_lshrrev_b32 v12, 3, {v(vLANE)}\nv_and_b32 v13, 7, {v(vLANE)}")
        e("v_and_b32 v14, 6, v12\nv_xor_b32 v14, v13, v14\nv_lshlrev_b32 v14, 4, v14")
        e("v_mul_u32_u24 v15, 0x500, v12\nv_add_u32 v14, v14, v15")

        def row0(sub):
            e(f"s_and_b32 {sT3}, {sub}, 1\ns_lshl_b32 {sT3}, {sT3}, 5\ns_bfe_u32 {sub}, {sub}, 0x10001")
            e(f"s_mul_i32 {sub}, {sub}, 192\ns_add_u32 {sub}, {sub}, {sT3}")
        e(f"s_add_u32 {sT0}, {sJ}, {sW}")
        row0(sT0)
        e(f"s_mul_i32 {sT0}, {sT0}, 1280\ns_lshl_b32 {sT1}, {sJ}, 7\ns_add_u32 {sT0}, {sT0}, {sT1}")
        for i in range(4):
            e(f"s_add_u32 {sT1}, {sT0}, {9216*i}\nv_add_u32 {v(vD2+i)}, {sT1}, v14")
        e(f"s_mov_b32 {sT0}, {sJ}")
        row0(sT0)
        e(f"s_lshl_b32 {sT1}, {sW}, 3\ns_add_u32 {sT0}, {sT0}, {sT1}\ns_mul_i32 {sT0}, {sT0}, 1280")
        e(f"s_lshr_b32 {sT1}, {sJ}, 2\ns_lshl_b32 {sT1}, {sT1}, 7\ns_add_u32 {sT0}, {sT0}, {sT1}")
        e(f"s_add_u32 {sT0}, {sT0}, 1024\nv_add_u32 {v(vD2+4)}, {sT0}, v14")
        self.rot_init(sR2, 4, 4096, False)
        e(f"s_mul_i32 {sWO2}, {sR2}, 120")
        e(f"v_bfe_u32 v12, {v(vLANE)}, 2, 2\nv_lshrrev_b32 v13, 4, {v(vLANE)}\nv_and_b32 v14, 3, {v(vLANE)}")
        e("v_lshlrev_b32 v14, 3, v14\nv_and_b32 v10, 1, v13\nv_lshrrev_b32 v11, 1, v12\nv_lshl_add_u32 v10, v10, 1, v11")
        e("v_lshl_add_u32 v14, v10, 5, v14")
        for r, sh in ((vR1, 3), (vR2, 2)):
            e(f"v_lshl_add_u32 v15, v13, {sh}, v12\nv_lshl_add_u32 v15, v15, 7, v14")
            for f in range(4):
                e(f"v_xor_b32 {v(r+f)}, {32*f}, v15")
        for p in range(4):
            e(f"s_add_u32 {sT0}, {sJ}, {p}\ns_and_b32 {sT0}, {sT0}, 3\ns_lshl_b32 {sT0}, {sT0}, 10")
            e(f"v_add_u32 {v(vA2+2*p)}, {sT0}, {v(vL16B)}\nv_add_u32 {v(vA2+2*p+1)}, 49152, {v(vA2+2*p)}")
        e(f"v_add_u32 {v(vA1)}, 20480, {v(vL16B)}\nv_add_u32 {v(vA1+1)}, 49152, {v(vL16B)}")
        e(f"s_mul_i32 {sABEG}, {sRB}, 163840\ns_mul_i32 {sT0}, {sW}, 40960\ns_add_u32 {sABEG}, {sABEG}, {sT0}")
        e(f"s_add_u32 {sABEG}, {sABEG}, {XNS}\ns_add_u32 {sAEND}, {sABEG}, 20480\ns_add_u32 {sA}, {sA}, {sABEG}")
        e(f"s_mul_i32 {sH}, {sRB}, 393216\ns_mul_i32 {sT0}, {sW}, 98304\ns_add_u32 {sH}, {sH}, {sT0}")
        e(f"s_add_u32 {sH}, {sH}, {HM}\ns_lshl_b32 {sHS}, {sJ}, 11\ns_add_u32 {sHS}, {sHS}, {sH}")
        self.stamp(1)
        toks = lambda r: [(i, ("dma", b)) for b in r for i in dma(b)]
        self.ln_compute(X, U, SCR, toks(range(pa, pa + pl)))
        self.stamp(2)
        self.issue_dma(dma, range(pa + pl, pa + pl + pb))
        visible = {0}
        self.stamp(3)
        self.poll(2, TAG_XN, "xn", 12, 13)
        self.stamp(4)

        cur = {vR1: 0, vR2: 0}
        par = [0]

        def step(b, last, reg, offs, mk, tile=None):
            want = (b % NS) // 3
            d, cur[reg] = (want - cur[reg]) * 61440, want
            rd = [f"v_add_u32 {v(reg+f)}, {d & 0xFFFFFFFF}, {v(reg+f)}" for f in range(4)] if d else []
            so = (b % NS) % 3 * SLOT
            par[0] ^= 1
            bb = BB + 32 * par[0]
            rd += [f"ds_read_b64_tr_b16 {a(bb + 4*n + 2*j2,2)}, {v(reg + (n & 3 if tile is None else tile))} offset:{so + o + dj*j2}"
                   for n, (o, dj) in enumerate(offs) for j2 in range(2)]
            mf = [mk(n, m, bb + 4 * n) for n in range(len(offs)) for m in range(2)]
            return dict(blk=b, last=last, mf=mf, rd=rd, vm=[], alu=[])

        mf16 = lambda d, x, y, first: f"v_mfma_f32_16x16x32_bf16 {v(d,4)}, {a(x,4)}, {a(y,4)}, {0 if first else v(d,4)}"
        steps = []
        for r in range(3):
            acc = ACC1 + 32 * (r & 1)
            for gs in range(20):
                steps.append(step(5 * r + gs // 4, gs & 3 == 3, vR1, [((gs & 3) * 4096, 512)] * 4,
                                  lambda n, m, w_: mf16(acc + 8 * n + 4 * m, w_, XA + 8 * gs + 4 * m, gs == 0)))
        nb = c["tail_m"]
        u0 = 108 - 4 * nb
        for gs in range(u0 - 60):
            p = gs & 3
            offs = [(p * 4096, 2048)] * 4 + ([(16384, 2048)] * 4 if p == 0 else [])
            steps.append(step(15 + gs // 4, p == 3, vR2, offs,
                              lambda n, m, w_: mf16(ACC + 8 * n + 4 * m, XA + 8 * (gs % 16) + 4 * m, w_, gs == 0)))
        for T in (4, 0, 1, 2, 3):
            for b in range(27 - nb, 27):
                xa = XA + 8 * (4 * (b - 15) % 16)
                if T == 4:
                    steps.append(step(b, False, vR2, [(16384, 2048)] * 4,
                                      lambda n, m, w_: mf16(ACC + 32 + 8 * n + 4 * m, xa + 4 * m, w_, False)))
                else:
                    steps.append(step(b, False, vR2, [(p * 4096, 2048) for p in range(4)],
                                      lambda n, m, w_: mf16(ACC + 8 * T + 4 * m, xa + 8 * n + 4 * m, w_, False), tile=T))
        for st in steps[u0:]:
            st["blk"] = 26

        def aload1(gs):
            out = [f"buffer_load_dwordx4 {a(XA + 8*gs + 4*m,4)}, {v(vA1 if m else vL16B)}, {srd(R_WS)}, {sA} "
                   f"offen offset:{1024*(gs&1)} sc1" for m in range(2)]
            return out + (self.adv(sA, 2048, sAEND, sABEG) if gs & 1 else [])

        def aload2(gs):
            out = []
            if gs % 16 == 0:
                out += [f"s_add_u32 {sABEG}, {sH}, {1024*gs}", f"s_add_u32 {sAEND}, {sABEG}, 16384", f"s_add_u32 {sA}, {sR2}, {sABEG}"]
            out += [f"buffer_load_dwordx4 {a(XA + 8*(gs%16) + 4*m,4)}, {v(vA2 + 2*(gs&3) + m)}, {srd(R_WS)}, {sA} "
                    f"offen sc1" for m in range(2)]
            return out + (self.adv(sA, 4096, sAEND, sABEG) if gs & 3 == 3 else [])

        def relu_store(r, u, m):
            acc, d = ACC1 + 32 * (r & 1), WK + 4 * (2 * u + m)
            src = [acc + 8 * (2 * u + h) + 4 * m + 2 * k for h in range(2) for k in range(2)]
            out = [[(f"v_cvt_pk_bf16_f32 {v(d+k)}, {v(src[k])}, {v(src[k]+1)}", None)] for k in range(4)]
            out += [[(f"v_pk_max_i16 {v(d+k)}, {v(d+k)}, 0", None)] for k in range(4)]
            out[-1].append((f"buffer_store_dwordx4 {v(d,4)}, {v(vA1+1 if m else vL16B)}, {srd(R_WS)}, {sHS} "
                            f"offen offset:{1024*u} sc1", ("h", r)))
            if u and m:
                out[-1].append((f"s_add_u32 {sHS}, {sHS}, 16384", None))
            return out

        apre = c["ma_pre"]
        items = self.a_items(aload1, apre, 20, lambda g: 0, lambda g: g)
        steps[c["warm_m"]]["vm"].append([(f"buffer_load_dword v255, v247, {srd(R_2A)}, s93 offen", "junk")])
        for k in range(c["warm_m"] + 2, c["warm_m"] + 2 + c["quiet"]):
            steps[k]["quiet"] = True
        tests = (40 + c["test0"], 60 + c["test1"], 60 + c["test2"])
        for r in range(3):
            base = 20 * (r + 1)
            for n in range(4):
                steps[base + 1 + 2 * n]["alu"] += relu_store(r, n >> 1, n & 1)
            fl = steps[base + (c["flag01"] if r < 2 else c["flag2"])]
            assert fl["last"]
            fl["pre"] = lambda r=r: e.wait_tok(("h", r))
            fl["post"] = lambda r=r: self.send_flags(LINES[r], TAGS[r], "0xff00", sJ)
            issue, test = self.check_flags(LINES[r], TAGS[r], 10, 11)
            steps[tests[r] - c["lead"]]["vm"] += self.groups(issue)
            assert "pre" not in steps[tests[r]]
            steps[tests[r]]["pre"] = test
        items += self.a_items(aload2, 0, 48, lambda g: max(tests[g // 16], 41 + g if g < 16 else 45 + g), lambda g: min(60 + g, u0 + (g + 60 - u0) // 4))
        sPM, sPX, sPW = "s96", "s97", "s88"

        def part_store(T):
            d = WK + 4 * (T & 3)
            out = [[(f"v_cvt_pk_bf16_f32 {v(d+k)}, {v(ACC + 8*T + 2*k)}, {v(ACC + 8*T + 2*k + 1)}", None)] for k in range(4)]
            if T < 4:
                out[-1].append((f"buffer_store_dwordx4 {v(d,4)}, {v(vL16B)}, {srd(R_WS)}, {sPM} offen offset:{1024*T} sc1", None))
            else:
                out[-1].append((f"buffer_store_dwordx4 {v(d,4)}, {v(vL16B)}, {srd(R_WS)}, {sPX} offen sc1", None))
                out[-1].append((f"s_add_u32 {sPX}, {sPX}, 32768", None))
            return out

        def part_setup():
            e(f"s_lshl_b32 {sT0}, {sRB}, 18\ns_lshl_b32 {sT1}, {sW}, 13\ns_add_u32 {sT0}, {sT0}, {sT1}\ns_add_u32 {sT0}, {sT0}, {PART}")
            e(f"s_lshl_b32 {sPM}, {sJ}, 15\ns_add_u32 {sPM}, {sPM}, {sT0}")
            e(f"s_and_b32 {sPX}, {sJ}, 4\ns_lshl_b32 {sPX}, {sPX}, 15\ns_add_u32 {sPX}, {sPX}, {sT0}")
            e(f"s_and_b32 {sT1}, {sJ}, 3\ns_lshl_b32 {sT1}, {sT1}, 10\ns_add_u32 {sPX}, {sPX}, {sT1}")
            e(f"s_add_u32 {sPX}, {sPX}, 4096\ns_and_b32 {sPW}, {sJ}, 3\ns_and_b32 {sT1}, {sJ}, 4")
            e(f"s_lshl_b32 s92, 15, {sT1}\ns_mov_b32 s93, 0")
        steps[90]["pre"] = part_setup
        for n in range(4):
            steps[u0 + nb + n // 2 * (nb > 1)]["alu"] += part_store(4 + n)
        for T in range(3):
            steps[u0 + nb * (T + 2)]["alu"] += part_store(T)
        for gs in range(apre):
            e("\n".join(aload1(gs)))
        self.pipeline(steps, dma, NS, NSTREAM, range(pa + pl + pb, NS), visible, items, due={b: u0 - 1 for b in range(28 - nb, 27)})
        self.stamp(12)

        self.emit_groups(part_store(3))
        self.stamp(13)
        e.wait_all()
        self.send_wave(4, TAG_PART, "s[92:93]", sPW, 2)
        self.stamp(14)
        self.epoch_bump()
        self.finish()

    def build(self):
        e = self.e
        self.entry()
        snap = e.begin_region()
        pend, nst = self.pending_stamp, self.nstamp
        self.chain = 0
        self.ssm()
        self.chain = 1
        e.vm, e.lg, e.hist = list(snap["vm"]), list(snap["lg"]), []
        self.pending_stamp, self.nstamp = pend, nst
        e.label("L_mlp")
        self.mlp()
        e.label("L_end")
        e("s_endpgm")
        ref = open(f"cdna_kernels/{NAME}.s.ref").read()
        head = ref.split("; Override launch")[0]
        out = head
        out += HEADER
        out += f"; @launch grid=(256,1,1) block=(256,1,1) lds={LDS_BYTES}\n"
        out += '.amdgcn_target "amdgcn-amd-amdhsa--gfx950"\n.text\n'
        out += f".globl {KERNEL}\n.p2align 8\n.type {KERNEL},@function\n{KERNEL}:\n"
        out += e.text()
        out += f""".section .rodata,"a"
.p2align 6
.amdhsa_kernel {KERNEL}
  .amdhsa_next_free_vgpr 512
  .amdhsa_next_free_sgpr 102
  .amdhsa_accum_offset 256
  .amdhsa_group_segment_fixed_size 0
  .amdhsa_kernarg_size 120
  .amdhsa_user_sgpr_count 2
  .amdhsa_user_sgpr_kernarg_segment_ptr 1
  .amdhsa_system_sgpr_workgroup_id_x 1
  .amdhsa_float_denorm_mode_32 3
.end_amdhsa_kernel
"""
        return out


def parse_cfg(args):
    cfg = {}
    for s in args:
        k, val = s.split("=")
        cfg[k] = type(DEFAULTS[k])(int(val))
    return cfg


if __name__ == "__main__":
    path = sys.argv[1]
    g = Gen(**parse_cfg(sys.argv[2:]))
    open(path, "w").write(g.build())
    print(path, "lines", len(g.e.lines), "nop slots", g.e.nops)
```

```python
import os
import sys

sys.path.insert(0, os.path.dirname(os.path.abspath(__file__)))
from emit import Emitter

NAME = "parallel_sum__ssm_conv_s5__dense_activation_relu__prompt"
KERNEL = NAME + "_kernel"

INBOX = 0x0
CARRY = 0x40000
XNS = 0x300000
HS = 0x800000
HM = 0xD00000
PART = 0x1300000
STAMP = 0x1700000
WS_USED = 0x1800000

LDS_BYTES = 163840
SCR = 143360
SPIN_LIMIT = 1 << 15

TAG_HID2, TAG_XN, TAG_HID, TAG_PART, TAG_CARRY, TAG_HID3 = 16, 32, 48, 64, 80, 96

HEADER = """; Persistent kernel, one workgroup per CU (generated by gen/gen.py). Workgroup (chain, rb, j) owns 128 rows (rb):
;   SSM chain:   xn x B for 80 channels (j); exact scan (8-step segments, prefixes over the block, totals of all
;                earlier row blocks); h x C for 80 output columns; adds x, xn * D and the MLP sums; stores out.
;   MLP chain:   relu(xn x w1) for 192 hidden units in three passes; H x w2; sends its sums to the SSM workgroup.
"""

DEFAULTS = dict(
    pre_a=1, pre_st=1, pre_b=2, mpre_a=1, mpre_st=1, mpre_b=6,
    a_pre=2, a_pre2=4, ma_pre=4, cap=115, lat_a=6, lat_d=8, waits=2, span=75,
    skip_at=14, lazy0=12, lazy_gap=4,  defer=1,
    tail_s=2, tail_m=2, p_test=1, p_lead=3, e0=5,
    warm_m=29, quiet=4, flag01=15, flag2=15, test0=6, test1=8, test2=26, lead=5,
    diag=False, jitter=0, blkstamp=False, blkclk=False, stepstamp=-1, dump=False,
)

P_X, P_LRE, P_LIM, P_BRE, P_BIM, P_CRE, P_CIM, P_LDT = 16, 18, 20, 22, 24, 26, 28, 30
P_DSK, P_BX, P_W1, P_W2, P_OUT, P_DBG, P_WS = 32, 34, 36, 38, 40, 42, 44
R_X, R_WS, R_1A, R_1B, R_2A, R_2B, R_OUT, R_TMP = 48, 52, 56, 60, 64, 68, 72, 76
sRB, sJ, sW, sEC, sE, sCH, sOWN, sSPIN = "s3", "s4", "s5", "s6", "s7", "s8", "s9", "s10"
sT0, sT1, sT2, sT3 = "s11", "s12", "s13", "s14"
sWO1, sWO2 = "s80", "s81"
sA, sABEG, sAEND = "s83", "s84", "s85"
sM0A, sM0B = "s86", "s87"
sHALF = "s[94:95]"
sME = "s47"
sEX = "s[88:89]"
sMSK = [f"s[{90+2*k}:{91+2*k}]" for k in range(4)]
sST = ["s[98:99]", "s[100:101]"]


def v(a, n=1):
    return f"v{a}" if n == 1 else f"v[{a}:{a+n-1}]"


def a(b, n=1):
    return f"a{b}" if n == 1 else f"a[{b}:{b+n-1}]"


def srd(b):
    return f"s[{b}:{b+3}]"


vTID, vLANE, vL16B, vE, vINB, vFLG, vSTAMP = 0, 1, 2, 3, 4, 5, 6


class Gen:
    def __init__(self, **cfg):
        self.c = dict(DEFAULTS)
        self.c.update(cfg)
        self.e = Emitter()
        self.nstamp = 0
        self.chain = -1
        self.pending_stamp = None

    def stamp(self, k):
        if self.c["jitter"] and 0 < k < 15:
            e, lp, out = self.e, self.e.newlabel("jit"), self.e.newlabel("jitend")
            e(f"s_lshl_b32 s98, s2, 2\ns_add_u32 s98, s98, {sW}\ns_add_u32 s98, s98, {977 * k + self.c['jitter']}")
            e("s_mul_i32 s98, s98, 0x9e3779b1\ns_lshr_b32 s99, s98, 15\ns_xor_b32 s98, s98, s99\ns_mul_i32 s98, s98, 0x85ebca6b")
            e(f"s_lshr_b32 s99, s98, 30\ns_cmp_lg_u32 s99, 0\ns_cbranch_scc1 {out}\ns_bfe_u32 s98, s98, 0x60008")
            e.label(lp)
            e(f"s_sleep 8\ns_sub_u32 s98, s98, 1\ns_cbranch_scc0 {lp}")
            e.label(out)
        if not self.c["diag"]:
            return
        e = self.e
        self.flush_stamp()
        reg = sST[self.nstamp & 1]
        self.nstamp += 1
        e(f"s_memtime {reg}" if 16 <= k < 44 and self.c["blkclk"] else f"s_memrealtime {reg}")
        self.pending_stamp = (k, reg)

    def flush_stamp(self):
        if self.pending_stamp:
            k, reg = self.pending_stamp
            lo = reg[2:].split(":")[0]
            self.e(f"v_writelane_b32 {v(vSTAMP)}, s{lo}, {k}")
            self.pending_stamp = None

    def mk_srd(self, r, ptr, nbytes):
        e = self.e
        e(f"s_mov_b32 s{r}, s{ptr}\ns_mov_b32 s{r+1}, s{ptr+1}")
        e(f"s_mov_b32 s{r+2}, {nbytes}\ns_mov_b32 s{r+3}, 0x20000")

    def mk_srd_sel(self, r, p_lo, p_hi, nbytes):
        e = self.e
        e(f"s_cselect_b32 s{r}, s{p_lo}, s{p_hi}\ns_cselect_b32 s{r+1}, s{p_lo+1}, s{p_hi+1}")
        e(f"s_mov_b32 s{r+2}, {nbytes}\ns_mov_b32 s{r+3}, 0x20000")

    def cmul(self, d, x, y):
        e = self.e
        e(f"v_pk_mul_f32 {v(d,2)}, {v(x,2)}, {v(y,2)} op_sel:[0,0] op_sel_hi:[0,1]")
        e(f"v_pk_fma_f32 {v(d,2)}, {v(x,2)}, {v(y,2)}, {v(d,2)} op_sel:[1,1,0] op_sel_hi:[1,0,1] neg_lo:[1,0,0]")

    def round_bf16(self, r):
        e = self.e
        e(f"v_cvt_pk_bf16_f32 {v(r)}, {v(r)}, {v(r)}\nv_lshlrev_b32 {v(r)}, 16, {v(r)}")

    def rot_init(self, dst, nb, stride, by_j):
        e = self.e
        e(f"s_and_b32 {sT0}, {sRB}, 3\ns_mul_i32 {sT0}, {sT0}, {nb}\ns_lshr_b32 {sT0}, {sT0}, 2")
        e(f"s_lshr_b32 {sT1}, {sRB}, 2\ns_add_u32 {sT0}, {sT0}, {sT1}")
        if by_j:
            e(f"s_mul_i32 {sT1}, {sJ}, {nb}\ns_lshr_b32 {sT1}, {sT1}, 3\ns_add_u32 {sT0}, {sT0}, {sT1}")
        e(f"s_mul_hi_u32 {sT1}, {sT0}, {(2**32 + nb - 1) // nb}\ns_mul_i32 {sT1}, {sT1}, {nb}")
        e(f"s_sub_u32 {sT0}, {sT0}, {sT1}\ns_mul_i32 {dst}, {sT0}, {stride}")

    @staticmethod
    def adv(reg, stride, end, beg):
        return [f"s_add_u32 {reg}, {reg}, {stride}", f"s_cmp_eq_u32 {reg}, {end}",
                f"s_cselect_b32 {reg}, {beg}, {reg}"]

    def send_flags(self, line, tag, lanes, word):
        e = self.e
        skip = e.newlabel("nosend")
        e(f"s_cmp_lg_u32 {sW}, 0\ns_cbranch_scc1 {skip}")
        s0 = e.begin_region()
        e(f"v_add_u32 {v(vFLG)}, {tag}, {v(vE)}")
        e(f"s_lshl_b32 {sT0}, {word}, 2\ns_add_u32 {sT0}, {sT0}, {INBOX + 128*line}")
        e(f"s_mov_b64 exec, {lanes}")
        e(f"buffer_store_dword {v(vFLG)}, {v(vINB)}, {srd(R_WS)}, {sT0} offen sc1")
        e("s_mov_b64 exec, -1")
        e.end_region(s0, skip)

    def send_wave(self, line, tag, lanes, word, shift):
        e = self.e
        e(f"v_add_u32 {v(vFLG)}, {tag}, {v(vE)}\ns_lshl_b32 {sT0}, {sW}, {shift}\ns_add_u32 {sT0}, {sT0}, {word}")
        e(f"s_lshl_b32 {sT0}, {sT0}, 2\ns_add_u32 {sT0}, {sT0}, {INBOX + 128*line}\ns_mov_b64 exec, {lanes}")
        e(f"buffer_store_dword {v(vFLG)}, {v(vINB)}, {srd(R_WS)}, {sT0} offen sc1")
        e("s_mov_b64 exec, -1")

    @staticmethod
    def word_addr(kind, r):
        if kind == "xn":
            return [f"v_and_b32 {v(r)}, 2, {v(vLANE)}", f"v_and_b32 v15, 1, {v(vLANE)}", f"v_lshl_add_u32 {v(r)}, {v(r)}, 2, v15",
                    f"v_lshl_add_u32 {v(r)}, {sW}, 1, {v(r)}", f"v_lshlrev_b32 {v(r)}, 2, {v(r)}"]
        if kind == "part":
            return [f"v_and_b32 {v(r)}, 3, {v(vLANE)}", f"v_lshl_add_u32 {v(r)}, {sW}, 2, {v(r)}", f"v_lshlrev_b32 {v(r)}, 2, {v(r)}"]
        return [f"v_and_b32 {v(r)}, 7, {v(vLANE)}", f"v_lshlrev_b32 {v(r)}, 2, {v(r)}"]

    def poll(self, line, tag, kind, tmp, tmp2):
        e = self.e
        lp, out = e.newlabel("poll"), e.newlabel("polled")
        e("\n".join(self.word_addr(kind, tmp2)))
        e(f"s_add_u32 {sT0}, {sOWN}, {INBOX + 128*line}\ns_add_u32 {sT1}, {sE}, {tag}")
        e.label(lp)
        e(f"buffer_load_dword {v(tmp)}, {v(tmp2)}, {srd(R_WS)}, {sT0} offen sc1")
        e(f"s_cmp_eq_u32 {sSPIN}, 0")
        e.wait_all(lg=False)
        e(f"s_cbranch_scc1 {out}\ns_sub_u32 {sSPIN}, {sSPIN}, 1")
        e(f"v_cmp_eq_u32 vcc, {sT1}, {v(tmp)}")
        e(f"s_cmp_eq_u64 vcc, exec\ns_cbranch_scc0 {lp}")
        e.label(out)

    def entry(self):
        e, c = self.e, self.c
        X = 96
        e("s_cmp_ge_u32 s2, 256\ns_cbranch_scc1 L_end")
        e("s_load_dwordx2 s[44:45], s[0:1], 112\ns_load_dwordx16 s[16:31], s[0:1], 0")
        e("s_load_dwordx8 s[32:39], s[0:1], 64\ns_load_dwordx4 s[40:43], s[0:1], 96")
        if c["diag"]:
            e(f"v_mov_b32 {v(vSTAMP)}, 0")
        self.stamp(0)
        e(f"s_lshr_b32 {sT0}, s2, 3\ns_and_b32 {sCH}, s2, 1\ns_xor_b32 {sCH}, {sCH}, 1")
        skip, here = e.newlabel("nopf"), e.newlabel("pc")
        e("s_getpc_b64 s[88:89]")
        e.label(here)
        e(f"s_cmp_eq_u32 {sCH}, 0\ns_cselect_b32 {sT1}, 0, L_mlp-{here}")
        e(f"s_mov_b32 {sT2}, L_end-{here}\ns_cselect_b32 {sT2}, L_mlp-{here}, {sT2}")
        e(f"s_lshl_b32 {sT3}, {sT0}, 7\ns_add_u32 {sT3}, {sT3}, {sT1}")
        e(f"v_lshl_add_u32 v12, v0, 12, {sT3}\nv_cmp_gt_u32 vcc, {sT2}, v12")
        e(f"s_and_saveexec_b64 s[90:91], vcc\ns_cbranch_execz {skip}")
        s0 = e.begin_region()
        e("v_mov_b32 v13, s89\nv_add_co_u32 v12, vcc, s88, v12\nv_addc_co_u32 v13, vcc, 0, v13, vcc")
        e("global_load_dword v255, v[12:13], off", tok="junk")
        e.end_region(s0, skip)
        e("s_mov_b64 exec, -1")
        e(f"s_and_b32 {sJ}, {sT0}, 7\ns_lshr_b32 {sT0}, {sT0}, 3\ns_bfe_u32 {sT1}, s2, 0x20001")
        e(f"s_lshr_b32 {sT2}, {sT1}, 1\ns_xor_b32 {sT1}, {sT1}, {sT2}")
        e(f"s_lshl_b32 {sT1}, {sT1}, 2\ns_add_u32 {sRB}, {sT1}, {sT0}")
        e("v_lshrrev_b32 v8, 5, v0\nv_and_b32 v9, 31, v0")
        e("v_and_b32 v10, 1, v8\nv_lshlrev_b32 v10, 2, v10\nv_bfe_u32 v11, v8, 1, 1\nv_add_u32 v10, v10, v11")
        e("v_lshrrev_b32 v11, 2, v8\nv_lshl_add_u32 v10, v11, 3, v10")
        e("v_mul_u32_u24 v10, 0x500, v10\nv_lshl_add_u32 v10, v9, 4, v10")
        e(f"s_and_b32 {sT1}, {sJ}, 1\ns_lshl_b32 {sT2}, {sCH}, 3\ns_add_u32 {sT1}, {sT1}, {sT2}\ns_lshl_b32 {sT1}, {sT1}, 1")
        e(f"s_lshr_b32 {sT0}, {sJ}, 1\ns_lshl_b32 {sT0}, {sT0}, 5\ns_add_u32 {sT0}, {sT0}, {sT1}")
        e(f"s_lshl_b32 {sT1}, {sRB}, 7\ns_add_u32 {sT0}, {sT0}, {sT1}\ns_mul_i32 {sT0}, {sT0}, 1280")
        e(f"s_mov_b32 s{R_X+2}, {2048*1280}\ns_mov_b32 s{R_X+3}, 0x20000")
        e("s_mov_b32 s94, 0xffff\ns_mov_b32 s95, 0xffff")
        e(f"s_mov_b32 s{R_X}, s{P_X}\ns_mov_b32 s{R_X+1}, s{P_X+1}")
        for n in range(3):
            if n == 2:
                e(f"s_mov_b64 exec, {sHALF}")
            e(f"buffer_load_dwordx4 {v(X+4*n,4)}, v10, {srd(R_X)}, {sT0} offen offset:{512*n}")
        e("s_mov_b64 exec, -1")
        e(f"v_lshrrev_b32 v7, 6, v0\nv_and_b32 {v(vLANE)}, 63, v0")
        e(f"v_readfirstlane_b32 {sW}, v7")
        e(f"v_lshlrev_b32 {v(vL16B)}, 4, {v(vLANE)}")
        e(f"s_lshl_b32 {sOWN}, {sCH}, 4\ns_add_u32 {sOWN}, {sOWN}, {sRB}")
        e(f"s_lshl_b32 {sOWN}, {sOWN}, 3\ns_add_u32 {sOWN}, {sOWN}, {sJ}\ns_lshl_b32 {sOWN}, {sOWN}, 10")
        e(f"s_mov_b32 {sSPIN}, {SPIN_LIMIT}")
        self.mk_srd(R_WS, P_WS, WS_USED)
        e(f"s_lshl_b32 {sME}, {sCH}, 3\ns_add_u32 {sME}, {sME}, {sJ}\ns_lshl_b32 {sT0}, {sRB}, 13")
        e(f"v_and_b32 v11, 7, {v(vLANE)}\nv_lshl_add_u32 {v(vINB)}, v11, 10, {sT0}")
        e(f"v_bfe_u32 v11, {v(vLANE)}, 3, 1\nv_lshl_add_u32 {v(vINB)}, v11, 17, {v(vINB)}")
        e(f"s_add_u32 {sT1}, {sJ}, 120\ns_lshl_b32 {sT1}, {sT1}, 10\nv_mov_b32 v11, {sT1}")
        e(f"v_cmp_gt_u32 vcc, 16, {v(vLANE)}")
        e(f"v_cndmask_b32 {v(vINB)}, v11, {v(vINB)}, vcc")
        e(f"buffer_load_dword {v(vE)}, {v(vINB)}, {srd(R_WS)}, 0 offen sc1")
        e(f"v_and_b32 v11, 7, {v(vLANE)}\nv_lshlrev_b32 v11, 7, v11")
        e(f"buffer_load_dword v255, v11, {srd(R_WS)}, {sOWN} offen", tok="junk")
        e(f"s_cmp_eq_u32 {sCH}, 0\ns_cbranch_scc0 L_mlp")

    def ln_compute(self, X, U, scr, fill_st, during_ack=None):
        e = self.e

        def parts(body):
            body(range(8))
            e(f"s_mov_b64 exec, {sHALF}")
            body(range(8, 12))
            e("s_mov_b64 exec, -1")

        def rowsum(r):
            e(f"v_add_f32 {v(r)}, {v(r)}, {v(r+1)}")
            for sh in (8, 4, 2, 1):
                e(f"v_add_f32_dpp {v(r)}, {v(r)}, {v(r)} row_ror:{sh} row_mask:0xf bank_mask:0xf")
            e(f"v_mov_b32 {v(r+1)}, {v(r)}\nv_permlane16_swap_b32 {v(r)}, {v(r+1)}\nv_add_f32 {v(r)}, {v(r)}, {v(r+1)}")

        def unpack(ks):
            for k in ks:
                e(f"v_lshlrev_b32 {v(U+2*k)}, 16, {v(X+k)}\nv_and_b32 {v(U+2*k+1)}, 0xffff0000, {v(X+k)}")
                if k == 0:
                    self.stamp(44)
                if k == 1:
                    e(f"v_pk_add_f32 v[12:13], {v(U,2)}, {v(U+2,2)}")
                elif k > 1:
                    e(f"v_pk_add_f32 v[12:13], v[12:13], {v(U+2*k,2)}")

        def centre(ks):
            for k in ks:
                e(f"v_pk_add_f32 {v(U+2*k,2)}, {v(U+2*k,2)}, v[14:15] op_sel_hi:[1,0] neg_lo:[0,1] neg_hi:[0,1]")
            for k in ks:
                if k == 0:
                    e(f"v_pk_mul_f32 v[12:13], {v(U,2)}, {v(U,2)}")
                else:
                    e(f"v_pk_fma_f32 v[12:13], {v(U+2*k,2)}, {v(U+2*k,2)}, v[12:13]")

        def scale(ks):
            for k in ks:
                e(f"v_pk_mul_f32 {v(U+2*k,2)}, {v(U+2*k,2)}, v[12:13] op_sel_hi:[1,0]")
                e(f"v_cvt_pk_bf16_f32 {v(X+k)}, {v(U+2*k)}, {v(U+2*k+1)}")
                if k & 3 == 3:
                    e(f"ds_write_b128 v10, {v(X+k-3,4)} offset:{1024*(k-3)}")

        inv_d = "0x3acccccd"
        e("v_and_b32 v10, 7, v9\nv_xor_b32 v10, v8, v10\nv_lshlrev_b32 v10, 4, v10\nv_lshl_add_u32 v10, v9, 7, v10")
        e(f"v_add_u32 v10, {scr}, v10\nv_lshrrev_b32 v8, 3, v0\nv_and_b32 v9, 7, v0\nv_xor_b32 v11, v8, v9")
        e(f"v_and_b32 v11, 7, v11\nv_lshlrev_b32 v11, 4, v11\nv_lshl_add_u32 v11, v8, 7, v11\nv_add_u32 v11, {scr}, v11")
        e("v_lshlrev_b32 v9, 4, v9\nv_lshl_add_u32 v9, v8, 8, v9")
        e(f"s_mul_i32 {sT2}, {sRB}, 163840\ns_mul_i32 {sT1}, {sJ}, 20480\ns_add_u32 {sT2}, {sT2}, {sT1}")
        e(f"s_lshl_b32 {sT1}, {sCH}, 7\ns_add_u32 {sT2}, {sT2}, {sT1}\ns_add_u32 s92, {sT2}, {XNS}")
        parts(unpack)
        rowsum(12)
        e(f"v_mul_f32 v12, {inv_d}, v12\nv_mov_b32 v14, v12")
        self.round_bf16(14)
        e("v_sub_f32 v15, v12, v14")
        parts(centre)
        rowsum(12)
        e(f"v_mul_f32 v12, {inv_d}, v12\nv_fma_f32 v12, -v15, v15, v12\nv_max_f32 v12, 0, v12")
        self.round_bf16(12)
        e("v_add_f32 v12, 0x3727c5ac, v12")
        self.round_bf16(12)
        e("v_sqrt_f32 v12, v12")
        self.round_bf16(12)
        e("v_rcp_f32 v12, v12")
        parts(scale)
        self.stamp(45)
        e.wait_lg()
        e("s_barrier")
        for k in range(3):
            e(f"ds_read_b128 {v(X+4*k,4)}, v11 offset:{4096*k}")
        e(f"buffer_store_dwordx4 {v(X,4)}, v9, {srd(R_WS)}, s92 offen sc1", tok="xn")
        e(f"s_add_u32 {sT2}, s92, 8192\ns_add_u32 {sT3}, s92, 16384")
        e(f"buffer_store_dwordx4 {v(X+4,4)}, v9, {srd(R_WS)}, {sT2} offen sc1", tok="xn")
        skip = e.newlabel("third")
        e.wait_lg()
        e(f"s_cmp_gt_u32 {sW}, 1\ns_cbranch_scc1 {skip}")
        s0 = e.begin_region()
        e(f"buffer_store_dwordx4 {v(X+8,4)}, v9, {srd(R_WS)}, {sT3} offen sc1", tok="xn")
        e.end_region(s0, skip)
        self.stamp(46)
        e(f"v_readlane_b32 {sE}, {v(vE)}, {sME}\nv_readlane_b32 {sEC}, {v(vE)}, 16")
        for ins, tok in fill_st:
            e(ins, tok=tok)
        if during_ack:
            during_ack()
        e.wait_tok("xn", ("dma", 0))
        e.wait_lg()
        self.stamp(47)
        e("s_barrier")
        self.send_flags(2, TAG_XN, "0xffff", sME)

    @staticmethod
    def groups(instrs, tok=None):
        out, cur = [], []
        for ins in instrs:
            cur.append((ins, tok))
            if ins.startswith("buffer_"):
                out.append(cur)
                cur = []
        if cur:
            out[-1] += cur
        return out

    def pipeline(self, steps, dma, ns, nstream, early, visible, aitems, lazy={}, keep=False, due={}):
        e, c = self.e, self.c
        last = {st["blk"]: k for k, st in enumerate(steps) if st["last"]}
        b0 = steps[0]["blk"]
        blocks = [(b, 0) for b in early]
        blocks += [(b - 1 + ns, last[b]) for b in sorted(last) if b > b0 and b - 1 + ns < nstream]
        ditems = [dict(r=max(r, lazy.get(b, 0)), d=due.get(b, last.get(b - 1, len(steps) + b)), g=g)
                  for b, r in blocks for g in self.groups(dma(b), ("dma", b))]
        for prev, it in zip(ditems, ditems[1:]):
            if " m0," in it["g"][0][0]:
                prev["g"].append(it["g"].pop(0))
        streams = [(list(aitems), c["lat_a"]), (ditems, c["lat_d"])]
        credit = 0.0
        for k, st in enumerate(steps):
            credit = max(min(credit, 1.0), -1.0) + c["cap"] / 100 * len(st["mf"]) / 4 - len(st["vm"])
            credit -= sum(1 for g in st["alu"] for ins, _ in g if "buffer_" in ins)
            while True:
                heads = [(q[0]["d"] - lat, q) for q, lat in streams if q and q[0]["r"] <= k]
                if not heads:
                    break
                due = [h for h in heads if h[1][0]["d"] <= k + 1]
                if not due and (credit < 1 or st.get("quiet")):
                    break
                dl, q = min(due or heads, key=lambda h: h[0])
                st["vm"].append(q.pop(0)["g"])
                credit -= 1
        assert not streams[0][0] and all(it["r"] < it["d"] for it in aitems)
        if c["dump"]:
            for k, st in enumerate(steps):
                kinds = ["D%d" % g[0][1][1] if g[0][1] and g[0][1][0] == "dma" else "A" for g in st["vm"]]
                print(self.chain, k, st["blk"], " ".join(kinds), "ST" if st["alu"] else "", "pre" if st.get("pre") else "")
        for ins in steps[0]["rd"]:
            e(ins)
        for k, st in enumerate(steps):
            b = st["blk"]
            if k == 0 or steps[k - 1]["last"]:
                e.comment(f"weight block {b}")
            if c["stepstamp"] >= 0:
                if 0 <= k + 100 * (b0 > 0) - c["stepstamp"] < 28:
                    self.stamp(16 + k + 100 * (b0 > 0) - c["stepstamp"])
            elif c["blkstamp"] and (k == 0 or steps[k - 1]["last"]):
                self.stamp(16 + b)
            nxt = steps[k + 1] if k + 1 < len(steps) else None
            if st["last"]:
                release = b > b0 and b - 1 + ns < nstream
                need_vis = nxt is not None and nxt["blk"] not in visible
                if need_vis:
                    e.wait_tok(("dma", nxt["blk"]))
                    visible.add(nxt["blk"])
                if st.get("pre"):
                    st["pre"]()
                if release or need_vis or st.get("post"):
                    e("s_barrier")
                if st.get("post"):
                    st["post"]()
            elif st.get("pre"):
                st["pre"]()
            rd = nxt["rd"] if nxt is not None else []
            mm, vm = st["mf"], st["vm"]
            slots = [[] for _ in mm]
            nm, nw, span = len(mm), c["waits"], c["span"]
            for n, ins in enumerate(rd):
                slots[n * nm * span // (100 * len(rd))].append((ins, None))
            for n, g in enumerate(st["alu"]):
                slots[n * nm // len(st["alu"])] += g
            for n, g in enumerate(vm):
                slots[(2 * n + 1) * nm // (2 * len(vm))] += g
            cuts = [n * nm // nw for n in range(nw + 1)]
            for n, (ins, fl) in enumerate(zip(mm, slots)):
                if n in cuts:
                    e.wait_for(mm[n:cuts[cuts.index(n) + 1]])
                e(ins)
                for f_, tok in fl:
                    e(f_, tok=tok)
        rest = [it["g"] for it in ditems]
        if keep:
            return rest
        self.emit_groups(rest)

    def record(self, fn):
        real, lines = self.e, []
        self.e = lambda text, tok=None: lines.extend(x for x in text.split("\n") if x)
        fn(self.e)
        self.e = real
        return [[(x, None)] for x in lines]

    def emit_groups(self, gs):
        for g in gs:
            for ins, tok in g:
                self.e(ins, tok=tok)

    def a_items(self, aloads, first, count, rel, use):
        return [dict(r=rel(gs), d=use(gs), g=g) for gs in range(first, count) for g in self.groups(aloads(gs))]

    @staticmethod
    def mk_steps(first_blk, nblk, nst, mfmas, breads):
        return [dict(blk=first_blk + n, last=st == nst - 1, mf=mfmas(n, st), rd=breads(n, st), vm=[], alu=[])
                for n in range(nblk) for st in range(nst)]

    def issue_dma(self, dma, blocks):
        for b in blocks:
            for ins in dma(b):
                self.e(ins, tok=("dma", b))

    def ssm(self):
        e, c = self.e, self.c
        NS, SLOT = 7, 20480
        vDB, vDC = 16, 21
        vRB, vRC = 26, 32
        vA1, vCH8, vTC, vTW, vTRW, vTRR = 44, 45, 46, 47, 7, 8
        vL, vL4, vSC, vWP = 48, 58, 68, 78
        vL8, vL128, vSCL = 88, 90, 92
        ACC, SP, WK = 96, 176, 196
        X, U = 96, 116
        AR, BB, SK = 0, 64, 144

        e(f"s_and_b32 {sT0}, {sW}, 1\nv_lshl_add_u32 {v(vCH8)}, {sT0}, 6, {v(vLANE)}")
        e(f"s_mul_i32 {sT0}, {sJ}, 160\nv_lshl_add_u32 v12, {v(vCH8)}, 1, {sT0}")
        for k, p in enumerate((P_LRE, P_LIM, P_LDT)):
            self.mk_srd(R_TMP, p, 1280)
            e(f"buffer_load_ushort {v(WK+k)}, v12, {srd(R_TMP)}, 0 offen")
        e(f"s_lshl_b32 {sT1}, {sJ}, 4\ns_sub_u32 {sT1}, {sT1}, {sRB}\ns_mul_i32 {sT1}, {sT1}, 1280")
        e(f"s_add_u32 {sT1}, {sT1}, {CARRY + 15*1280}\nv_min_u32 v12, 9, {v(vLANE)}\nv_lshlrev_b32 v12, 7, v12")
        e(f"buffer_load_dword v255, v12, {srd(R_WS)}, {sT1} offen", tok="junk")
        e(f"s_cmp_lt_u32 {sW}, 2")
        self.mk_srd_sel(R_1A, P_BRE, P_BIM, 819200)
        self.mk_srd_sel(R_1B, P_BIM, P_BRE, 819200)
        self.mk_srd_sel(R_2A, P_CRE, P_CIM, 819200)
        self.mk_srd_sel(R_2B, P_CIM, P_CRE, 819200)
        e(f"s_and_b32 {sT0}, {sW}, 1\ns_lshr_b32 {sT1}, {sW}, 1")
        e(f"s_mul_i32 {sM0A}, {sT1}, 10240\ns_mul_i32 {sT2}, {sT0}, 3072\ns_add_u32 {sM0A}, {sM0A}, {sT2}")
        e(f"s_xor_b32 {sT1}, {sT1}, 1\ns_mul_i32 {sM0B}, {sT1}, 10240\ns_lshl_b32 {sT2}, {sT0}, 11")
        e(f"s_add_u32 {sM0B}, {sM0B}, {sT2}\ns_add_u32 {sM0B}, {sM0B}, 6144")
        e(f"v_lshrrev_b32 v12, 3, {v(vLANE)}\nv_and_b32 v13, 7, {v(vLANE)}\nv_lshrrev_b32 v14, 1, v12")
        e("v_xor_b32 v13, v13, v14\nv_lshlrev_b32 v13, 4, v13\nv_mul_u32_u24 v12, 0x500, v12\nv_add_u32 v12, v12, v13")
        for i in range(5):
            imm = 1024 * (i if i < 3 else i - 3)
            if i < 3:
                e(f"s_mul_i32 {sT1}, {sT0}, 3\ns_add_u32 {sT1}, {sT1}, {i}")
            else:
                e(f"s_lshl_b32 {sT1}, {sT0}, 1\ns_add_u32 {sT1}, {sT1}, {3 + i}")
            e(f"s_and_b32 {sT2}, {sT1}, 1\ns_lshl_b32 {sT2}, {sT2}, 6\nv_xor_b32 v13, {sT2}, v12")
            e(f"s_mul_i32 {sT2}, {sJ}, 10\ns_add_u32 {sT2}, {sT2}, {sT1}\ns_mul_i32 {sT2}, {sT2}, 10240")
            e(f"s_sub_u32 {sT2}, {sT2}, {imm}\nv_add_u32 {v(vDB+i)}, {sT2}, v13")
            e(f"s_lshl_b32 {sT2}, {sJ}, 3\ns_add_u32 {sT2}, {sT2}, {sT1}")
            e(f"s_lshl_b32 {sT3}, {sJ}, 1\ns_add_u32 {sT3}, {sT3}, {sT1}\ns_add_u32 {sT3}, {sT3}, 56")
            e(f"s_cmp_lt_u32 {sT1}, 8\ns_cselect_b32 {sT2}, {sT2}, {sT3}\ns_mul_i32 {sT2}, {sT2}, 10240")
            e(f"s_sub_u32 {sT2}, {sT2}, {imm}\nv_add_u32 {v(vDC+i)}, {sT2}, v13")
        self.rot_init(sWO1, 10, 128, True)
        self.rot_init(sWO2, 10, 128, False)

        def dma(b):
            ph2 = b >= 10
            ra, rb_, vb, so = (R_2A, R_2B, vDC, sWO2) if ph2 else (R_1A, R_1B, vDB, sWO1)
            base = (b % NS) * SLOT
            out = [f"s_add_u32 m0, {sM0A}, {base}"]
            out += [f"buffer_load_dwordx4 {v(vb+i)}, {srd(ra)}, {so} offen offset:{1024*i} lds" for i in range(3)]
            out += [f"s_add_u32 m0, {sM0B}, {base}"]
            out += [f"buffer_load_dwordx4 {v(vb+3+i)}, {srd(rb_)}, {so} offen offset:{1024*i} lds" for i in range(2)]
            return out + self.adv(so, 128, 1280, 0)

        pa, pl, pb = c["pre_a"], c["pre_st"], c["pre_b"]
        self.issue_dma(dma, range(pa))
        def consts():
            e(f"v_lshlrev_b32 {v(vCH8)}, 3, {v(vCH8)}\nv_add_u32 {v(vCH8)}, {SCR}, {v(vCH8)}")
            e(f"s_bitcmp0_b32 {sW}, 0\ns_cselect_b32 s88, -1, 0xffff\ns_cselect_b32 s89, -1, 0")
            skip = e.newlabel("noconst")
            e(f"s_cmp_gt_u32 {sW}, 1\ns_cbranch_scc1 {skip}")
            s0 = e.begin_region()
            e(f"s_mov_b64 exec, {sEX}")
            lre, lim, ldt = WK, WK + 1, WK + 2
            t = WK + 4
            for r in (lre, lim, ldt):
                e(f"v_lshlrev_b32 {v(r)}, 16, {v(r)}")
            log2e = "0x3fb8aa3b"
            e(f"v_mul_f32 {v(ldt)}, {log2e}, {v(ldt)}\nv_exp_f32 {v(ldt)}, {v(ldt)}")
            self.round_bf16(ldt)
            e(f"v_mul_f32 {v(t)}, {v(ldt)}, {v(lre)}\nv_mul_f32 {v(t+1)}, {v(ldt)}, {v(lim)}")
            e(f"v_mul_f32 {v(t)}, {log2e}, {v(t)}\nv_exp_f32 {v(t)}, {v(t)}")
            e(f"v_mul_f32 {v(t+1)}, 0.15915494, {v(t+1)}\nv_rndne_f32 {v(t+2)}, {v(t+1)}")
            e(f"v_sub_f32 {v(t+1)}, {v(t+1)}, {v(t+2)}")
            e(f"v_cos_f32 {v(t+2)}, {v(t+1)}\nv_sin_f32 {v(t+3)}, {v(t+1)}")
            L1 = WK + 8
            e(f"v_mul_f32 {v(L1)}, {v(t)}, {v(t+2)}\nv_mul_f32 {v(L1+1)}, {v(t)}, {v(t+3)}")
            e(f"v_mul_f32 {v(t)}, {v(lre)}, {v(lre)}\nv_fma_f32 {v(t)}, {v(lim)}, {v(lim)}, {v(t)}")
            e(f"v_rcp_f32 {v(t)}, {v(t)}\nv_add_f32 {v(t+1)}, -1.0, {v(L1)}\nv_add_f32 {v(t)}, {v(t)}, {v(t)}")
            e(f"v_mul_f32 {v(t+2)}, {v(t+1)}, {v(lre)}\nv_fma_f32 {v(t+2)}, {v(L1+1)}, {v(lim)}, {v(t+2)}")
            e(f"v_mul_f32 {v(t+3)}, {v(L1+1)}, {v(lre)}\nv_fma_f32 {v(t+3)}, -{v(t+1)}, {v(lim)}, {v(t+3)}")
            e(f"v_mul_f32 {v(vSCL)}, {v(t+2)}, {v(t)}\nv_mul_f32 {v(vSCL+1)}, {v(t+3)}, {v(t)}")
            L2, L4 = WK + 10, WK + 12
            self.cmul(L2, L1, L1)
            self.cmul(L4, L2, L2)
            self.cmul(vL8, L4, L4)
            e(f"ds_write_b64 {v(vCH8)}, {v(L1,2)} offset:10240")
            e(f"ds_write_b64 {v(vCH8)}, {v(L4,2)} offset:10880")
            e(f"ds_write_b64 {v(vCH8)}, {v(vSCL,2)} offset:11520")
            e(f"ds_write_b64 {v(vCH8)}, {v(vSCL,2)}")
            prev = vSCL
            for s in range(1, 16):
                d = WK + 14 + 2 * (s & 1)
                self.cmul(d, vL8, prev)
                e(f"ds_write_b64 {v(vCH8)}, {v(d,2)} offset:{640*s}")
                prev = d
            self.cmul(L1, vL8, vL8)
            self.cmul(L2, L1, L1)
            self.cmul(L1, L2, L2)
            self.cmul(vL128, L1, L1)
            e(f"ds_write_b64 {v(vCH8)}, {v(vL128,2)} offset:12160")
            e("s_mov_b64 exec, -1")
            e.wait_lg()
            e.end_region(s0, skip)

        SXN, SXR, SXP, SPF, SPR = SK, SK + 16, SK + 32, SK + 48, SK + 56
        vDS, vXM, vXP = 250, 94, 95
        sK = ["s90", "s91", "s96", "s97"]
        one = lambda *ins: [(i_, None) for i_ in ins]
        skip_ld = [one(f"buffer_load_dwordx4 {a(SXN + 8*f + 4*m,4)}, {v(vA1 if m else vL16B)}, {srd(R_WS)}, {sK[0]} "
                       f"offen offset:{1024*f} sc1") for f in range(2) for m in range(2)]
        skip_ld += [one("s_mov_b32 exec_hi, 0", f"buffer_load_dwordx4 {a(SPF + 4*m,4)}, {v(vA1 if m else vL16B)}, "
                        f"{srd(R_WS)}, {sK[1]} offen sc1", "s_mov_b64 exec, -1") for m in range(2)]
        skip_ld += [one(f"buffer_load_dwordx4 {a(SXR + 8*f + 4*m,4)}, {v(vXM)}, {srd(R_X)}, {sK[2]} "
                        f"offen offset:{2560*m + 64*f}") for m in range(2) for f in range(2)]
        skip_ld += [one("s_mov_b32 exec_lo, 0", f"buffer_load_dwordx4 {a(SPR + 4*m,4)}, {v(vXP)}, {srd(R_X)}, {sK[3]} "
                        f"offen offset:{2560*m}", "s_mov_b64 exec, -1") for m in range(2)]

        e(f"v_and_b32 v12, 15, {v(vLANE)}\nv_lshrrev_b32 v13, 4, {v(vLANE)}\nv_lshrrev_b32 v14, 1, v12")
        e("v_xor_b32 v15, v13, v14\nv_lshlrev_b32 v15, 4, v15\nv_lshl_add_u32 v15, v12, 7, v15")
        for k in range(3):
            e(f"v_add_u32 {v(vRB+2*k)}, {61440*k}, v15\nv_xor_b32 {v(vRB+2*k+1)}, 64, {v(vRB+2*k)}")
        e("v_and_b32 v15, 1, v13\nv_xor_b32 v15, v15, v14\nv_lshlrev_b32 v15, 4, v15\nv_lshl_add_u32 v15, v12, 7, v15")
        e("v_lshrrev_b32 v14, 1, v13\nv_mul_u32_u24 v14, 0x2800, v14\nv_add_u32 v15, v15, v14")
        for k in range(3):
            e(f"v_add_u32 {v(vRC+4*k)}, {61440*k}, v15")
            for st in range(1, 4):
                e(f"v_xor_b32 {v(vRC+4*k+st)}, {32*st}, {v(vRC+4*k)}")
        e(f"v_lshlrev_b32 {v(vTC)}, 3, v12\nv_add_u32 {v(vTC)}, {SCR}, {v(vTC)}")
        e(f"v_lshl_add_u32 v14, {sW}, 2, v13\nv_mul_u32_u24 v14, 0x280, v14\nv_add_u32 {v(vTW)}, v14, {v(vTC)}")
        e(f"v_add_u32 {v(vA1)}, 20480, {v(vL16B)}")
        e(f"s_mul_i32 {sABEG}, {sRB}, 163840\ns_mul_i32 {sT0}, {sW}, 40960\ns_add_u32 {sABEG}, {sABEG}, {sT0}")
        e(f"s_add_u32 {sABEG}, {sABEG}, {XNS}\ns_add_u32 {sAEND}, {sABEG}, 20480")
        self.rot_init(sA, 10, 2048, True)
        e(f"s_add_u32 {sA}, {sA}, {sABEG}")

        def late_setup(e):

            def rowoff(d, i):
                e(f"v_lshrrev_b32 {v(d)}, 2, {v(i)}\nv_lshlrev_b32 {v(d)}, 3, {v(d)}\nv_and_b32 v15, 1, {v(i)}")
                e(f"v_lshl_add_u32 {v(d)}, v15, 2, {v(d)}\nv_bfe_u32 v15, {v(i)}, 1, 1\nv_add_u32 {v(d)}, {v(d)}, v15")
                e(f"v_mul_u32_u24 {v(d)}, 0x500, {v(d)}")
            e(f"s_lshl_b32 {sK[0]}, {sJ}, 11\ns_add_u32 {sK[0]}, {sK[0]}, {sABEG}")
            e(f"s_lshl_b32 {sK[1]}, {sJ}, 9\ns_add_u32 {sK[1]}, {sK[1]}, {sABEG}\ns_add_u32 {sK[1]}, {sK[1]}, 16384")
            e(f"v_lshrrev_b32 v12, 2, {v(vLANE)}")
            rowoff(vXM, 12)
            e(f"v_and_b32 v15, 3, {v(vLANE)}\nv_lshl_add_u32 {v(vXM)}, v15, 4, {v(vXM)}")
            e(f"v_bfe_u32 v12, {v(vLANE)}, 1, 4")
            rowoff(vXP, 12)
            e(f"v_and_b32 v15, 1, {v(vLANE)}\nv_lshl_add_u32 {v(vXP)}, v15, 4, {v(vXP)}")
            e(f"s_lshl_b32 {sT0}, {sRB}, 2\ns_add_u32 {sT0}, {sT0}, {sW}\ns_mul_i32 {sT0}, {sT0}, 40960")
            e(f"s_lshl_b32 {sK[2]}, {sJ}, 7\ns_add_u32 {sK[2]}, {sK[2]}, {sT0}")
            e(f"s_lshl_b32 {sK[3]}, {sJ}, 5\ns_add_u32 {sK[3]}, {sK[3]}, {sT0}\ns_add_u32 {sK[3]}, {sK[3]}, 1024")
            self.mk_srd(R_TMP, P_DSK, 1280)
            e(f"v_and_b32 v12, 15, {v(vLANE)}\nv_lshlrev_b32 v12, 1, v12")
            e(f"s_lshl_b32 {sT1}, {sJ}, 7\ns_lshl_b32 {sT2}, {sJ}, 5\ns_add_u32 {sT2}, {sT2}, 1024")
            for T in range(5):
                so, imm = (sT1, 32 * T) if T < 4 else (sT2, 0)
                e(f"buffer_load_ushort {v(vDS+T)}, v12, {srd(R_TMP)}, {so} offen offset:{imm}")
            e(f"v_and_b32 v12, 15, {v(vLANE)}\nv_lshrrev_b32 v13, 4, {v(vLANE)}")
            e("v_lshrrev_b32 v14, 3, v12\nv_lshlrev_b32 v14, 2, v14\nv_xor_b32 v14, v14, v12\nv_lshlrev_b32 v14, 5, v14")
            e("v_lshrrev_b32 v15, 2, v12\nv_xor_b32 v15, v15, v13\nv_lshl_add_u32 v14, v15, 3, v14")
            e(f"s_lshl_b32 {sT0}, {sW}, 11\ns_add_u32 {sT0}, {sT0}, {SCR + 12288}\nv_add_u32 {v(vTRW)}, {sT0}, v14")
            for j2 in range(2):
                e(f"v_and_b32 v14, 1, v13\nv_xor_b32 v14, {j2}, v14\nv_lshlrev_b32 v14, 2, v14")
                e(f"v_lshl_add_u32 v14, v13, 3, v14\nv_bfe_u32 v15, {v(vLANE)}, 2, 2\nv_add_u32 v14, v14, v15")
                e(f"v_lshlrev_b32 v14, 5, v14\nv_lshlrev_b32 v15, 1, v13\nv_add_u32 v15, {j2}, v15")
                e(f"v_xor_b32 v15, v15, {v(vLANE)}\nv_and_b32 v15, 3, v15\nv_lshl_add_u32 v14, v15, 3, v14")
                e(f"v_add_u32 {v(vTRR+j2)}, {sT0}, v14")

        self.stamp(1)
        toks = lambda r: [(i, ("dma", b)) for b in r for i in dma(b)]
        self.ln_compute(X, U, 6 * SLOT, toks(range(pa, pa + pl)), consts)
        self.stamp(2)
        self.issue_dma(dma, range(pa + pl, pa + pl + pb))

        visible = {0}
        for g in range(5):
            e(f"ds_read_b64 {v(vL+2*g,2)}, {v(vTC)} offset:{10240 + 128*g}")
            e(f"ds_read_b64 {v(vL4+2*g,2)}, {v(vTC)} offset:{10880 + 128*g}")
            e(f"ds_read_b64 {v(vSC+2*g,2)}, {v(vTC)} offset:{11520 + 128*g}")
            e(f"ds_read_b64 {v(vWP+2*g,2)}, {v(vTW)} offset:{128*g}")
        e(f"ds_read_b64 {v(vL128,2)}, {v(vCH8)} offset:12160")
        self.stamp(3)
        self.poll(2, TAG_XN, "xn", 12, 13)
        self.stamp(4)

        acc = lambda g, cp, m: ACC + ((g * 2 + cp) * 2 + m) * 4

        def aload1(gs):
            st = gs & 1
            r = AR + (gs % 8) * 8
            out = [f"buffer_load_dwordx4 {a(r,4)}, {v(vL16B)}, {srd(R_WS)}, {sA} offen offset:{1024*st} sc1",
                   f"buffer_load_dwordx4 {a(r+4,4)}, {v(vA1)}, {srd(R_WS)}, {sA} offen offset:{1024*st} sc1"]
            return out + (self.adv(sA, 2048, sAEND, sABEG) if st else [])

        def bread1(n, st):
            slot = n % NS
            base, off = vRB + 2 * (slot // 3) + st, (slot % 3) * SLOT
            return [f"ds_read_b128 {a(BB + 40*st + 4*(2*g+cp),4)}, {v(base)} offset:{off + cp*10240 + g*2048}"
                    for g in range(5) for cp in range(2)]

        def mfma1(n, st):
            gs = 2 * n + st
            return [f"v_mfma_f32_16x16x32_bf16 {v(acc(g,cp,m),4)}, {a(AR + (gs%8)*8 + 4*m,4)}, "
                    f"{a(BB + 40*st + 4*(2*g+cp),4)}, {v(acc(g,cp,m),4) if gs else 0}"
                    for g in range(5) for cp in range(2) for m in range(2)]

        steps = self.mk_steps(0, 10, 2, mfma1, bread1)
        items = self.a_items(aload1, c["a_pre"], 20, lambda g: g - 7, lambda g: g)
        late = self.record(late_setup)
        for n, g in enumerate(late):
            steps[1 + n * 8 // len(late)]["alu"].append(g)
        for n, g in enumerate(skip_ld):
            steps[c["skip_at"] + n // 2]["vm"].append(g)
        for gs in range(c["a_pre"]):
            e("\n".join(aload1(gs)))
        lazy = {10 + n: c["lazy0"] + c["lazy_gap"] * n for n in range(7)}
        upto = 10 + NS - c["defer"]
        rest = self.pipeline(steps, dma, NS, min(upto, 9 + NS), range(pa + pl + pb, NS), visible, items, lazy, keep=True)
        if not c["defer"]:
            rest += self.groups(dma(9 + NS), ("dma", 9 + NS))
        self.stamp(5)

        pair = lambda g, cp, jj: acc(g, cp, jj >> 1) + 2 * (jj & 1)
        LR = "op_sel:[0,0,0] op_sel_hi:[0,1,1]"
        LI = "op_sel:[1,0,0] op_sel_hi:[1,1,1]"
        NEG = "neg_lo:[1,0,0] neg_hi:[1,0,0]"
        for g in range(5):
            Lg = v(vL + 2 * g, 2)
            sre, sim = pair(g, 0, 0), pair(g, 1, 0)
            for jj in range(1, 4):
                dre, dim = (WK, WK + 2) if jj == 2 else (SP + 4 * g, SP + 4 * g + 2)
                e(f"v_pk_fma_f32 {v(dre,2)}, {Lg}, {v(sre,2)}, {v(pair(g,0,jj),2)} {LR}")
                e(f"v_pk_fma_f32 {v(dim,2)}, {Lg}, {v(sim,2)}, {v(pair(g,1,jj),2)} {LR}")
                e(f"v_pk_fma_f32 {v(dre,2)}, {Lg}, {v(sim,2)}, {v(dre,2)} {LI} {NEG}")
                e(f"v_pk_fma_f32 {v(dim,2)}, {Lg}, {v(sre,2)}, {v(dim,2)} {LI}")
                sre, sim = dre, dim
            l4r, l4i, d = vL4 + 2 * g, vL4 + 2 * g + 1, WK + 4 + 2 * (g & 1)
            e(f"v_fma_f32 {v(d)}, {v(l4r)}, {v(sre)}, {v(sre+1)}")
            e(f"v_fma_f32 {v(d+1)}, {v(l4r)}, {v(sim)}, {v(sim+1)}")
            e(f"v_fma_f32 {v(d)}, -{v(l4i)}, {v(sim)}, {v(d)}")
            e(f"v_fma_f32 {v(d+1)}, {v(l4i)}, {v(sre)}, {v(d+1)}")
            e(f"ds_write_b64 {v(vTW)}, {v(d,2)} offset:{128*g}")
        e.wait_lg()
        e("s_barrier")
        self.stamp(6)

        skip = e.newlabel("nocomb")
        e(f"s_cmp_gt_u32 {sW}, 1\ns_cbranch_scc1 {skip}")
        s0 = e.begin_region()
        e(f"s_mov_b64 exec, {sEX}")
        SL = WK
        for s in range(16):
            e(f"ds_read_b64 {v(SL+2*s,2)}, {v(vCH8)} offset:{640*s}")
        for s in range(1, 16):
            e(f"v_pk_fma_f32 {v(SL+2*s,2)}, {v(vL8,2)}, {v(SL+2*s-2,2)}, {v(SL+2*s,2)} {LR}")
            e(f"v_pk_fma_f32 {v(SL+2*s,2)}, {v(vL8,2)}, {v(SL+2*s-2,2)}, {v(SL+2*s,2)} "
              "op_sel:[1,1,0] op_sel_hi:[1,0,1] neg_lo:[1,0,0]")
        MSG = SL + 30
        e(f"v_subrev_u32 v12, {SCR}, {v(vCH8)}\nv_lshlrev_b32 v12, 1, v12")
        e(f"s_add_u32 {sT0}, {sEC}, {TAG_CARRY}\nv_mov_b32 {v(MSG+2)}, {sT0}\nv_mov_b32 {v(MSG+3)}, {sT0}")
        e(f"s_lshl_b32 {sT1}, {sJ}, 4\ns_sub_u32 {sT1}, {sT1}, {sRB}\ns_mul_i32 {sT1}, {sT1}, 1280")
        e(f"s_add_u32 {sT1}, {sT1}, {CARRY + 15*1280}")
        e(f"buffer_store_dwordx4 {v(MSG,4)}, v12, {srd(R_WS)}, {sT1} offen sc1")
        e(f"v_mov_b32 v14, 0\nv_mov_b32 v15, 0\nds_write_b64 {v(vCH8)}, v[14:15]")
        for s in range(1, 16):
            d = WK + 36 + 2 * (s & 1)
            self.cmul(d, vSCL, SL + 2 * s - 2)
            e(f"ds_write_b64 {v(vCH8)}, {v(d,2)} offset:{640*s}")
        e("s_mov_b64 exec, -1")
        e.end_region(s0, skip)
        self.emit_groups(rest)
        self.stamp(7)

        def scale_pairs(g, re, im):
            Sg = v(vSC + 2 * g, 2)
            e(f"v_pk_mul_f32 v[14:15], {Sg}, {v(im,2)} op_sel:[1,0] op_sel_hi:[1,1] neg_lo:[1,0] neg_hi:[1,0]")
            e(f"v_pk_mul_f32 {v(im,2)}, {Sg}, {v(im,2)} op_sel:[0,0] op_sel_hi:[0,1]")
            e(f"v_pk_fma_f32 {v(im,2)}, {Sg}, {v(re,2)}, {v(im,2)} {LI}")
            e(f"v_pk_fma_f32 {v(re,2)}, {Sg}, {v(re,2)}, v[14:15] {LR}")
        for g in range(5):
            scale_pairs(g, SP + 4 * g, SP + 4 * g + 2)
            for jj in range(4):
                scale_pairs(g, pair(g, 0, jj), pair(g, 1, jj))
        self.stamp(8)

        skip = e.newlabel("nocarry")
        e(f"s_cmp_lt_u32 {sW}, 2\ns_cbranch_scc1 {skip}")
        s0 = e.begin_region()
        e(f"s_lshl_b32 {sT0}, {sJ}, 4\ns_sub_u32 {sT0}, {sT0}, {sRB}\ns_mul_i32 {sT0}, {sT0}, 1280")
        e(f"s_add_u32 {sT0}, {sT0}, {CARRY + 16*1280}")
        e(f"s_add_u32 s{R_TMP}, s{P_WS}, {sT0}\ns_addc_u32 s{R_TMP+1}, s{P_WS+1}, 0")
        e(f"s_mul_i32 s{R_TMP+2}, {sRB}, 1280\ns_mov_b32 s{R_TMP+3}, 0x20000")
        e(f"s_add_u32 {sT1}, {sEC}, {TAG_CARRY}\ns_mul_i32 {sT1}, {sT1}, {sRB}")
        e(f"s_mov_b64 exec, {sEX}")
        MG = 196
        vMA = [10, 11, 12, 13, 14]
        e(f"v_subrev_u32 v10, {SCR}, {v(vCH8)}\nv_lshlrev_b32 v10, 1, v10")
        for k in range(1, 5):
            e(f"v_add_u32 v{10+k}, {3840*k}, v10")
        lp, out = e.newlabel("cpoll"), e.newlabel("cpolled")
        e.label(lp)
        mreg = lambda dl: MG + 4 * dl if dl < 13 else (vDB, vRB)[dl - 13]
        for dl in range(15):
            e(f"buffer_load_dwordx3 {v(mreg(dl),3)}, v{vMA[dl//3]}, {srd(R_TMP)}, 0 offen offset:{1280*(dl%3)} sc1")
        e(f"s_cmp_eq_u32 {sSPIN}, 0")
        e.wait_all(lg=False)
        e(f"s_cbranch_scc1 {out}\ns_sub_u32 {sSPIN}, {sSPIN}, 1")
        e(f"v_add3_u32 v15, {v(mreg(0)+2)}, {v(mreg(1)+2)}, {v(mreg(2)+2)}")
        for k in range(3, 15, 2):
            e(f"v_add3_u32 v15, v15, {v(mreg(k)+2)}, {v(mreg(k+1)+2)}")
        e(f"v_cmp_eq_u32 vcc, {sT1}, v15")
        e(f"s_cmp_eq_u64 vcc, exec\ns_cbranch_scc0 {lp}")
        e.label(out)
        for dl in range(13, -1, -1):
            x, y = mreg(dl), mreg(dl + 1)
            e(f"v_pk_fma_f32 {v(x,2)}, {v(vL128,2)}, {v(y,2)}, {v(x,2)} {LR}")
            e(f"v_pk_fma_f32 {v(x,2)}, {v(vL128,2)}, {v(y,2)}, {v(x,2)} op_sel:[1,1,0] op_sel_hi:[1,0,1] neg_lo:[1,0,0]")
        e(f"ds_write_b64 {v(vCH8)}, {v(mreg(0),2)} offset:10240")
        e("s_mov_b64 exec, -1")
        e.end_region(s0, skip)
        e.wait_all(vm=False)
        e("s_barrier")
        self.stamp(9)

        PG = WK
        for g in range(5):
            e(f"ds_read_b64 {v(PG+4*g,2)}, {v(vTW)} offset:{128*g}")
            e(f"ds_read_b64 {v(PG+4*g+2,2)}, {v(vTC)} offset:{10240 + 128*g}")
        e(f"s_mul_i32 {sABEG}, {sRB}, 327680\ns_mul_i32 {sT0}, {sW}, 81920\ns_add_u32 {sABEG}, {sABEG}, {sT0}")
        e(f"s_add_u32 {sABEG}, {sABEG}, {HS}\ns_add_u32 {sAEND}, {sABEG}, 40960")
        e(f"s_mul_i32 {sT2}, {sJ}, 5120\ns_add_u32 {sT2}, {sT2}, {sABEG}")
        e(f"v_add_u32 {v(vA1)}, 40960, {v(vL16B)}")
        HF = WK + 20
        CV = 12

        def pass2():
            for g in range(5):
                p, gg, w_ = PG + 4 * g, PG + 4 * g + 2, vWP + 2 * g
                hre, him = SP + 4 * g, SP + 4 * g + 2
                l4r, l4i = vL4 + 2 * g, vL4 + 2 * g + 1
                e(f"v_fma_f32 {v(p)}, {v(w_)}, {v(gg)}, {v(p)}\nv_fma_f32 {v(p+1)}, {v(w_)}, {v(gg+1)}, {v(p+1)}")
                e(f"v_fma_f32 {v(p)}, -{v(w_+1)}, {v(gg+1)}, {v(p)}\nv_fma_f32 {v(p+1)}, {v(w_+1)}, {v(gg)}, {v(p+1)}")
                e(f"v_fma_f32 {v(hre+1)}, {v(l4r)}, {v(p)}, {v(hre)}\nv_fma_f32 {v(him+1)}, {v(l4r)}, {v(p+1)}, {v(him)}")
                e(f"v_fma_f32 {v(hre+1)}, -{v(l4i)}, {v(p+1)}, {v(hre+1)}\nv_fma_f32 {v(him+1)}, {v(l4i)}, {v(p)}, {v(him+1)}")
                e(f"v_mov_b32 {v(hre)}, {v(p)}\nv_mov_b32 {v(him)}, {v(p+1)}")
                Lg = v(vL + 2 * g, 2)
                for jj in range(4):
                    ur, ui = pair(g, 0, jj), pair(g, 1, jj)
                    e(f"v_pk_fma_f32 {v(ur,2)}, {Lg}, {v(hre,2)}, {v(ur,2)} {LR}")
                    e(f"v_pk_fma_f32 {v(ui,2)}, {Lg}, {v(him,2)}, {v(ui,2)} {LR}")
                    e(f"v_pk_fma_f32 {v(ur,2)}, {Lg}, {v(him,2)}, {v(ur,2)} {LI} {NEG}")
                    e(f"v_pk_fma_f32 {v(ui,2)}, {Lg}, {v(hre,2)}, {v(ui,2)} {LI}")
                    hre, him = ur, ui
                for m in range(2):
                    for cp in range(2):
                        r, sg, d = acc(g, cp, m), "-" if cp else "", CV + 2 * cp
                        e(f"v_cvt_pk_bf16_f32 {v(d)}, {sg}{v(r)}, {sg}{v(r+1)}")
                        e(f"v_cvt_pk_bf16_f32 {v(d+1)}, {sg}{v(r+2)}, {sg}{v(r+3)}")
                        e(f"ds_write_b64 {v(vTRW)}, {v(d,2)} offset:{1024*m + 512*cp}")
                hf = HF + 8 * (g & 1)
                for m in range(2):
                    for j2 in range(2):
                        e(f"ds_read_b64_tr_b16 {v(hf + 4*m + 2*j2,2)}, {v(vTRR+j2)} offset:{1024*m}")
                if g:
                    store_h(g - 1)
            store_h(4)

        def store_h(g):
            hf = HF + 8 * (g & 1)
            if g == 4:
                e(f"s_add_u32 {sT2}, {sT2}, 4096")
            for m in range(2):
                e(f"buffer_store_dwordx4 {v(hf+4*m,4)}, {v(vA1 if m else vL16B)}, {srd(R_WS)}, {sT2} offen offset:{1024*(g&3)} sc1", tok="h")
        e.wait_lg()
        pass2()
        self.stamp(10)
        e(f"v_and_b32 v12, 15, {v(vLANE)}\nv_lshrrev_b32 v13, 4, {v(vLANE)}")
        e("v_lshl_add_u32 v14, v12, 2, v13\nv_lshlrev_b32 v14, 2, v14")
        e("v_and_b32 v13, 1, v13\nv_lshl_add_u32 v13, v12, 1, v13\nv_lshlrev_b32 v13, 2, v13\nv_add_u32 v13, 0x80, v13")
        for k in range(16):
            e(f"ds_bpermute_b32 {a(SXP+k)}, v14, {a(SXR+k)}")
        e("s_mov_b32 exec_lo, 0")
        for k in range(8):
            e(f"ds_bpermute_b32 {a(SPF+k)}, v13, {a(SPR+k)}")
        e("s_mov_b64 exec, -1")
        e.wait_tok("h", ("dma", 10))
        e.wait_lg()
        e("s_barrier")
        self.send_flags(3, TAG_HID, "0xff", sJ)
        visible.add(10)

        acc2 = lambda T, m: ACC + (T * 2 + m) * 4
        e(f"v_and_b32 v12, 15, {v(vLANE)}\nv_lshrrev_b32 v13, 1, v12\nv_bfe_u32 v14, {v(vLANE)}, 4, 1")
        e("v_lshlrev_b32 v14, 2, v14\nv_sub_u32 v13, v13, v14\nv_and_b32 v12, 1, v12\nv_lshlrev_b32 v12, 4, v12")
        for k in range(4):
            e(f"v_cmp_eq_u32 {sMSK[k]}, {k}, v13")
        e(f"v_cmp_gt_u32 vcc, 32, {v(vLANE)}\nv_mov_b32 v15, 0x3f80")
        SEL = WK
        pick = [(v(vDS+T), "0") if T % 2 == 0 else ("0", v(vDS+T)) for T in range(4)]
        pick += [(v(vDS+4), "v15"), ("v15", "0"), ("0", "v15")]
        for n, (lo, hi) in enumerate(pick):
            e(f"v_cndmask_b32 v14, {hi}, {lo}, vcc\nv_lshlrev_b32 v14, v12, v14")
            for k in range(4):
                e(f"v_cndmask_b32 {v(SEL+4*n+k)}, 0, v14, {sMSK[k]}")
        for T in range(5):
            for m in range(2):
                src = SXN + 8 * (T >> 1) + 4 * m if T < 4 else SPF + 4 * m
                e(f"v_mfma_f32_16x16x32_bf16 {v(acc2(T,m),4)}, {a(src,4)}, {v(SEL+4*T,4)}, 0")
        for T in range(4):
            for m in range(2):
                e(f"v_mfma_f32_16x16x32_bf16 {v(acc2(T,m),4)}, {a(SXP + 8*(T>>1) + 4*m,4)}, {v(SEL+20+4*(T&1),4)}, {v(acc2(T,m),4)}")
        self.rot_init(sA, 10, 4096, False)
        e(f"s_add_u32 {sA}, {sA}, {sABEG}")
        self.poll(3, TAG_HID, "hid", 12, 13)
        self.stamp(11)

        areg = lambda gs: (SK if gs & 8 else AR) + (gs % 8) * 8

        def aload2(gs):
            st, r = gs & 3, areg(gs)
            out = [f"buffer_load_dwordx4 {a(r,4)}, {v(vL16B)}, {srd(R_WS)}, {sA} offen offset:{1024*st} sc1",
                   f"buffer_load_dwordx4 {a(r+4,4)}, {v(vA1)}, {srd(R_WS)}, {sA} offen offset:{1024*st} sc1"]
            return out + (self.adv(sA, 4096, sAEND, sABEG) if st == 3 else [])

        def step2(k, blk, last, work):
            rd, mf = [], []
            for n, (T, gs) in enumerate(work):
                slot, f = (10 + gs // 4) % NS, BB + 20 * (k & 1) + 4 * n
                rd.append(f"ds_read_b128 {a(f,4)}, {v(vRC + 4*(slot//3) + (gs&3))} offset:{(slot%3)*SLOT + T*2048}")
                mf += [f"v_mfma_f32_16x16x32_bf16 {v(acc2(T,m),4)}, {a(areg(gs) + 4*m,4)}, {a(f,4)}, {v(acc2(T,m),4)}"
                       for m in range(2)]
            return dict(blk=blk, last=last, mf=mf, rd=rd, vm=[], alu=[])

        nb = c["tail_s"]
        u0 = 40 - 4 * nb
        steps = [step2(gs, 10 + gs // 4, gs & 3 == 3, [(T, gs) for T in range(5)]) for gs in range(u0)]
        for T in range(5):
            for b in range(nb):
                steps.append(step2(len(steps), 19, False, [(T, u0 + 4 * b + st) for st in range(4)]))
        items = self.a_items(aload2, c["a_pre2"], 40, lambda g: g - 15, lambda g: min(g, u0 + (g - u0) // 4))
        for gs in range(c["a_pre2"]):
            e("\n".join(aload2(gs)))
        PL, sPA, sPB = 176, "s93", "s1"
        part_ld = [f"buffer_load_dwordx4 {v(PL+4*k,4)}, {v(vL16B)}, {srd(R_WS)}, {sPB if k >= 4 else sPA} "
                   f"offen offset:{1024*(k&3)} sc1" for k in range(8)]

        def out_setup():
            self.out_setup(rows)
            e(f"s_lshl_b32 {sPA}, {sOWN}, 5\ns_lshl_b32 {sT0}, {sW}, 13\ns_add_u32 {sPA}, {sPA}, {sT0}")
            e(f"s_add_u32 {sPA}, {sPA}, {PART}\ns_add_u32 {sPB}, {sPA}, 4096")

        finish_tile = lambda T: self.finish_tile(T, acc2(T, 0), [PL + 4 * k for k in ([T] if T < 4 else range(4, 8))], rows)

        def spread(groups, first, n):
            for k, g in enumerate(groups):
                steps[first + k * n // len(groups)]["alu"].append(g)
        rows = ["s88", "s89", "s90", "s91", "s94", "s95", "s96", "s97"]
        steps[u0 - 2]["pre"] = out_setup
        tb = u0 + c["p_test"]
        issue, test = self.check_flags(4, TAG_PART, 10, 11, "part")
        steps[tb - c["p_lead"]]["vm"] += self.groups(issue)
        steps[tb]["pre"] = lambda: (test(), e("\n".join(part_ld)))
        done, first = [], u0 + c["e0"]
        for T in range(4):
            first = max(first, u0 + nb * (T + 1), tb + 1)
            if first + 2 > len(steps):
                break
            spread(finish_tile(T), first, 2)
            done.append(T)
            first += 2
        self.pipeline(steps, dma, NS, 20, range(upto, 10 + NS), visible, items, due={b: u0 - 1 for b in range(21 - nb, 20)})
        self.stamp(12)
        for T in range(5):
            if T not in done:
                self.emit_groups(finish_tile(T))
        self.stamp(13)
        self.epoch_bump()
        self.stamp(14)
        self.finish()

    def out_setup(self, rows):
        e = self.e
        self.mk_srd(R_OUT, P_OUT, 2048 * 2560)
        e(f"v_lshrrev_b32 v8, 4, {v(vLANE)}\nv_mul_u32_u24 v8, 0x5000, v8\nv_and_b32 v9, 15, {v(vLANE)}")
        e(f"v_lshl_add_u32 v8, v9, 2, v8\ns_mul_i32 {sT0}, {sJ}, 192\ns_sub_u32 {sT0}, 2048, {sT0}")
        e(f"v_add_u32 v9, {sT0}, v8")
        e(f"s_lshl_b32 {sT0}, {sRB}, 2\ns_add_u32 {sT0}, {sT0}, {sW}\ns_mul_i32 {sT0}, {sT0}, 81920")
        e(f"s_lshl_b32 {sT1}, {sJ}, 8\ns_add_u32 {sT0}, {sT0}, {sT1}")
        for m in range(2):
            for r in range(4):
                e(f"s_add_u32 {rows[4*m+r]}, {sT0}, {(4*(r&1) + 2*m + (r>>1)) * 2560}")

    @staticmethod
    def finish_tile(T, acc, parts, rows):
        out = []
        for p in parts:
            for i in range(4):
                d, t0 = acc + 2 * i, 12 + 2 * (i & 1)
                out += [f"v_lshlrev_b32 {v(t0)}, 16, {v(p+i)}", f"v_and_b32 {v(t0+1)}, 0xffff0000, {v(p+i)}",
                        f"v_add_f32 {v(d)}, {v(d)}, {v(t0)}", f"v_add_f32 {v(d+1)}, {v(d+1)}, {v(t0+1)}"]
                if p == parts[-1]:
                    out += [f"buffer_store_dword {v(d+r)}, {'v8' if T < 4 else 'v9'}, {srd(R_OUT)}, {rows[2*i+r]} "
                            f"offen offset:{64*T if T < 4 else 0} sc1" for r in range(2)]
        return [[(x, None)] for x in out]

    def epoch_bump(self):
        e = self.e
        skip = e.newlabel("nobump")
        e("s_barrier")
        e(f"s_cmp_lg_u32 {sW}, 0\ns_cbranch_scc1 {skip}")
        s0 = e.begin_region()
        e(f"s_add_u32 {sT0}, {sE}, 0x100\nv_mov_b32 v12, {sT0}\nv_mov_b32 v13, 0\ns_mov_b64 exec, 1")
        e(f"buffer_store_dword v12, v13, {srd(R_WS)}, {sOWN} offen sc1")
        e("s_mov_b64 exec, -1")
        e.end_region(s0, skip)

    def finish(self):
        e = self.e
        if self.c["diag"]:
            e.wait_all()
            self.stamp(15)
            self.flush_stamp()
            e(f"s_lshr_b32 {sT0}, {sOWN}, 10\ns_lshl_b32 {sT0}, {sT0}, 2\ns_add_u32 {sT0}, {sT0}, {sW}")
            e(f"s_lshl_b32 {sT0}, {sT0}, 8\ns_add_u32 {sT0}, {sT0}, {STAMP}")
            e(f"v_lshlrev_b32 v12, 2, {v(vLANE)}")
            e(f"buffer_store_dword {v(vSTAMP)}, v12, {srd(R_WS)}, {sT0} offen")
        e("s_endpgm")

    def check_flags(self, line, tag, tmp, tmp2, kind="hid"):
        e = self.e
        issue = self.word_addr(kind, tmp2) + [
                 f"s_add_u32 s46, {sOWN}, {INBOX + 128*line}",
                 f"buffer_load_dword {v(tmp)}, {v(tmp2)}, {srd(R_WS)}, s46 offen sc1"]

        def test():
            ok = e.newlabel("ready")
            e(f"s_add_u32 {sT1}, {sE}, {tag}\nv_cmp_eq_u32 vcc, {sT1}, {v(tmp)}")
            e(f"s_cmp_eq_u64 vcc, exec\ns_cbranch_scc1 {ok}")
            s0 = e.begin_region()
            self.poll(line, tag, kind, tmp, tmp2)
            e.end_region(s0, ok)
        return issue, test

    def mlp(self):
        e, c = self.e, self.c
        NS, SLOT, NSTREAM = 8, 20480, 27
        vD1, vD2 = 16, 20
        vR1, vR2 = 26, 30
        vA1, vA2 = 34, 36
        ACC1, ACC, WK = 96, 128, 192
        X, U = 96, 116
        XA, BB = 0, 160
        sM0C, sH, sHS, sR2 = "s15", "s89", "s90", "s91"
        LINES, TAGS = (3, 5, 6), (TAG_HID, TAG_HID2, TAG_HID3)

        self.mk_srd(R_1A, P_W1, 640 * 3072)
        self.mk_srd(R_2A, P_W2, 1536 * 1280)
        e(f"s_bfe_u32 s93, {sOWN}, 0x7000a\ns_lshl_b32 s93, s93, 2\ns_add_u32 s93, s93, {sW}")
        e(f"s_mul_i32 s93, s93, 3840\nv_min_u32 v247, 29, {v(vLANE)}\nv_lshlrev_b32 v247, 7, v247")
        e(f"s_lshl_b32 {sM0B}, {sW}, 12\ns_lshl_b32 {sM0C}, {sW}, 10\ns_add_u32 {sM0C}, {sM0C}, 16384")
        e(f"v_lshrrev_b32 v12, 3, {v(vLANE)}\nv_and_b32 v13, 7, {v(vLANE)}\nv_and_b32 v14, 2, v12")
        e("v_xor_b32 v14, v13, v14\nv_lshlrev_b32 v14, 4, v14\nv_mul_u32_u24 v15, 0xc00, v12\nv_add_u32 v14, v14, v15")
        e(f"s_and_b32 {sT0}, {sW}, 1\ns_mul_i32 {sT0}, {sT0}, 98304\ns_mul_i32 {sT1}, {sJ}, 384")
        e(f"s_add_u32 {sT0}, {sT0}, {sT1}")
        for i in range(4):
            e(f"s_add_u32 {sT2}, {sT0}, {23552*i}\nv_add_u32 {v(vD1+i)}, {sT2}, v14")
            if i & 1:
                e(f"v_xor_b32 {v(vD1+i)}, 64, {v(vD1+i)}")
        self.rot_init(sA, 10, 2048, True)
        e(f"s_lshr_b32 {sT2}, {sW}, 1\ns_lshl_b32 {sT2}, {sT2}, 11\ns_add_u32 {sWO1}, {sA}, {sT2}")
        e(f"s_cmp_eq_u32 {sWO1}, 20480\ns_cselect_b32 {sWO1}, 0, {sWO1}\ns_mul_i32 {sWO1}, {sWO1}, 96")

        def wrap(reg, inc):
            return [f"s_add_u32 {reg}, {reg}, {inc}", f"s_sub_u32 {sT3}, {reg}, 1966080", f"s_cselect_b32 {reg}, {reg}, {sT3}"]

        def dma(b):
            base = (b % NS) * SLOT
            ld = lambda r, d, so, imm: f"buffer_load_dwordx4 {v(r)}, {srd(d)}, {so} offen offset:{imm} lds"
            if b < 15:
                return ([f"s_add_u32 m0, {sM0B}, {base}"] + [ld(vD1 + i, R_1A, sWO1, 1024 * i) for i in range(4)]
                        + wrap(sWO1, 393216 + (128 if b % 5 == 4 else 0)))
            return ([f"s_add_u32 m0, {sM0B}, {base}"] + [ld(vD2 + i, R_2A, sWO2, 1024 * i) for i in range(4)]
                    + [f"s_add_u32 m0, {sM0C}, {base}", ld(vD2 + 4, R_2A, sWO2, 0)]
                    + wrap(sWO2, 491520 + (81920 if (b - 15) % 4 == 3 else 0)))

        e(f"s_bfe_u32 {sT0}, {sOWN}, 0x7000a\ns_lshl_b32 {sT0}, {sT0}, 2\ns_add_u32 {sT0}, {sT0}, {sW}\ns_mul_i32 {sT0}, {sT0}, 10")
        e(f"v_and_b32 v12, 15, {v(vLANE)}\nv_min_u32 v12, 9, v12\nv_add_u32 v12, {sT0}, v12\nv_lshrrev_b32 v13, 3, v12")
        e("v_and_b32 v12, 7, v12\nv_mul_u32_u24 v12, 0x180, v12\nv_mul_u32_u24 v13, 0xc00, v13\nv_add_u32 v246, v12, v13")
        e(f"v_bfe_u32 v12, {v(vLANE)}, 4, 1\nv_lshlrev_b32 v12, 7, v12\nv_sub_u32 v246, v246, v12")
        e("v_add_u32 v246, 0x100, v246")
        pa, pl, pb = c["mpre_a"], c["mpre_st"], c["mpre_b"]
        self.issue_dma(dma, range(pa))
        e(f"buffer_load_dword v255, v246, {srd(R_1A)}, 0 offen", tok="junk")
        e(f"v_lshrrev_b32 v12, 3, {v(vLANE)}\nv_and_b32 v13, 7, {v(vLANE)}")
        e("v_and_b32 v14, 6, v12\nv_xor_b32 v14, v13, v14\nv_lshlrev_b32 v14, 4, v14")
        e("v_mul_u32_u24 v15, 0x500, v12\nv_add_u32 v14, v14, v15")

        def row0(sub):
            e(f"s_and_b32 {sT3}, {sub}, 1\ns_lshl_b32 {sT3}, {sT3}, 5\ns_bfe_u32 {sub}, {sub}, 0x10001")
            e(f"s_mul_i32 {sub}, {sub}, 192\ns_add_u32 {sub}, {sub}, {sT3}")
        e(f"s_add_u32 {sT0}, {sJ}, {sW}")
        row0(sT0)
        e(f"s_mul_i32 {sT0}, {sT0}, 1280\ns_lshl_b32 {sT1}, {sJ}, 7\ns_add_u32 {sT0}, {sT0}, {sT1}")
        for i in range(4):
            e(f"s_add_u32 {sT1}, {sT0}, {9216*i}\nv_add_u32 {v(vD2+i)}, {sT1}, v14")
        e(f"s_mov_b32 {sT0}, {sJ}")
        row0(sT0)
        e(f"s_lshl_b32 {sT1}, {sW}, 3\ns_add_u32 {sT0}, {sT0}, {sT1}\ns_mul_i32 {sT0}, {sT0}, 1280")
        e(f"s_lshr_b32 {sT1}, {sJ}, 2\ns_lshl_b32 {sT1}, {sT1}, 7\ns_add_u32 {sT0}, {sT0}, {sT1}")
        e(f"s_add_u32 {sT0}, {sT0}, 1024\nv_add_u32 {v(vD2+4)}, {sT0}, v14")
        self.rot_init(sR2, 4, 4096, False)
        e(f"s_mul_i32 {sWO2}, {sR2}, 120")
        e(f"v_bfe_u32 v12, {v(vLANE)}, 2, 2\nv_lshrrev_b32 v13, 4, {v(vLANE)}\nv_and_b32 v14, 3, {v(vLANE)}")
        e("v_lshlrev_b32 v14, 3, v14\nv_and_b32 v10, 1, v13\nv_lshrrev_b32 v11, 1, v12\nv_lshl_add_u32 v10, v10, 1, v11")
        e("v_lshl_add_u32 v14, v10, 5, v14")
        for r, sh in ((vR1, 3), (vR2, 2)):
            e(f"v_lshl_add_u32 v15, v13, {sh}, v12\nv_lshl_add_u32 v15, v15, 7, v14")
            for f in range(4):
                e(f"v_xor_b32 {v(r+f)}, {32*f}, v15")
        for p in range(4):
            e(f"s_add_u32 {sT0}, {sJ}, {p}\ns_and_b32 {sT0}, {sT0}, 3\ns_lshl_b32 {sT0}, {sT0}, 10")
            e(f"v_add_u32 {v(vA2+2*p)}, {sT0}, {v(vL16B)}\nv_add_u32 {v(vA2+2*p+1)}, 49152, {v(vA2+2*p)}")
        e(f"v_add_u32 {v(vA1)}, 20480, {v(vL16B)}\nv_add_u32 {v(vA1+1)}, 49152, {v(vL16B)}")
        e(f"s_mul_i32 {sABEG}, {sRB}, 163840\ns_mul_i32 {sT0}, {sW}, 40960\ns_add_u32 {sABEG}, {sABEG}, {sT0}")
        e(f"s_add_u32 {sABEG}, {sABEG}, {XNS}\ns_add_u32 {sAEND}, {sABEG}, 20480\ns_add_u32 {sA}, {sA}, {sABEG}")
        e(f"s_mul_i32 {sH}, {sRB}, 393216\ns_mul_i32 {sT0}, {sW}, 98304\ns_add_u32 {sH}, {sH}, {sT0}")
        e(f"s_add_u32 {sH}, {sH}, {HM}\ns_lshl_b32 {sHS}, {sJ}, 11\ns_add_u32 {sHS}, {sHS}, {sH}")
        self.stamp(1)
        toks = lambda r: [(i, ("dma", b)) for b in r for i in dma(b)]
        self.ln_compute(X, U, SCR, toks(range(pa, pa + pl)))
        self.stamp(2)
        self.issue_dma(dma, range(pa + pl, pa + pl + pb))
        visible = {0}
        self.stamp(3)
        self.poll(2, TAG_XN, "xn", 12, 13)
        self.stamp(4)

        cur = {vR1: 0, vR2: 0}
        par = [0]

        def step(b, last, reg, offs, mk, tile=None):
            want = (b % NS) // 3
            d, cur[reg] = (want - cur[reg]) * 61440, want
            rd = [f"v_add_u32 {v(reg+f)}, {d & 0xFFFFFFFF}, {v(reg+f)}" for f in range(4)] if d else []
            so = (b % NS) % 3 * SLOT
            par[0] ^= 1
            bb = BB + 32 * par[0]
            rd += [f"ds_read_b64_tr_b16 {a(bb + 4*n + 2*j2,2)}, {v(reg + (n & 3 if tile is None else tile))} offset:{so + o + dj*j2}"
                   for n, (o, dj) in enumerate(offs) for j2 in range(2)]
            mf = [mk(n, m, bb + 4 * n) for n in range(len(offs)) for m in range(2)]
            return dict(blk=b, last=last, mf=mf, rd=rd, vm=[], alu=[])

        mf16 = lambda d, x, y, first: f"v_mfma_f32_16x16x32_bf16 {v(d,4)}, {a(x,4)}, {a(y,4)}, {0 if first else v(d,4)}"
        steps = []
        for r in range(3):
            acc = ACC1 + 32 * (r & 1)
            for gs in range(20):
                steps.append(step(5 * r + gs // 4, gs & 3 == 3, vR1, [((gs & 3) * 4096, 512)] * 4,
                                  lambda n, m, w_: mf16(acc + 8 * n + 4 * m, w_, XA + 8 * gs + 4 * m, gs == 0)))
        nb = c["tail_m"]
        u0 = 108 - 4 * nb
        for gs in range(u0 - 60):
            p = gs & 3
            offs = [(p * 4096, 2048)] * 4 + ([(16384, 2048)] * 4 if p == 0 else [])
            steps.append(step(15 + gs // 4, p == 3, vR2, offs,
                              lambda n, m, w_: mf16(ACC + 8 * n + 4 * m, XA + 8 * (gs % 16) + 4 * m, w_, gs == 0)))
        for T in (4, 0, 1, 2, 3):
            for b in range(27 - nb, 27):
                xa = XA + 8 * (4 * (b - 15) % 16)
                if T == 4:
                    steps.append(step(b, False, vR2, [(16384, 2048)] * 4,
                                      lambda n, m, w_: mf16(ACC + 32 + 8 * n + 4 * m, xa + 4 * m, w_, False)))
                else:
                    steps.append(step(b, False, vR2, [(p * 4096, 2048) for p in range(4)],
                                      lambda n, m, w_: mf16(ACC + 8 * T + 4 * m, xa + 8 * n + 4 * m, w_, False), tile=T))
        for st in steps[u0:]:
            st["blk"] = 26

        def aload1(gs):
            out = [f"buffer_load_dwordx4 {a(XA + 8*gs + 4*m,4)}, {v(vA1 if m else vL16B)}, {srd(R_WS)}, {sA} "
                   f"offen offset:{1024*(gs&1)} sc1" for m in range(2)]
            return out + (self.adv(sA, 2048, sAEND, sABEG) if gs & 1 else [])

        def aload2(gs):
            out = []
            if gs % 16 == 0:
                out += [f"s_add_u32 {sABEG}, {sH}, {1024*gs}", f"s_add_u32 {sAEND}, {sABEG}, 16384", f"s_add_u32 {sA}, {sR2}, {sABEG}"]
            out += [f"buffer_load_dwordx4 {a(XA + 8*(gs%16) + 4*m,4)}, {v(vA2 + 2*(gs&3) + m)}, {srd(R_WS)}, {sA} "
                    f"offen sc1" for m in range(2)]
            return out + (self.adv(sA, 4096, sAEND, sABEG) if gs & 3 == 3 else [])

        def relu_store(r, u, m):
            acc, d = ACC1 + 32 * (r & 1), WK + 4 * (2 * u + m)
            src = [acc + 8 * (2 * u + h) + 4 * m + 2 * k for h in range(2) for k in range(2)]
            out = [[(f"v_cvt_pk_bf16_f32 {v(d+k)}, {v(src[k])}, {v(src[k]+1)}", None)] for k in range(4)]
            out += [[(f"v_pk_max_i16 {v(d+k)}, {v(d+k)}, 0", None)] for k in range(4)]
            out[-1].append((f"buffer_store_dwordx4 {v(d,4)}, {v(vA1+1 if m else vL16B)}, {srd(R_WS)}, {sHS} "
                            f"offen offset:{1024*u} sc1", ("h", r)))
            if u and m:
                out[-1].append((f"s_add_u32 {sHS}, {sHS}, 16384", None))
            return out

        apre = c["ma_pre"]
        items = self.a_items(aload1, apre, 20, lambda g: 0, lambda g: g)
        steps[c["warm_m"]]["vm"].append([(f"buffer_load_dword v255, v247, {srd(R_2A)}, s93 offen", "junk")])
        for k in range(c["warm_m"] + 2, c["warm_m"] + 2 + c["quiet"]):
            steps[k]["quiet"] = True
        tests = (40 + c["test0"], 60 + c["test1"], 60 + c["test2"])
        for r in range(3):
            base = 20 * (r + 1)
            for n in range(4):
                steps[base + 1 + 2 * n]["alu"] += relu_store(r, n >> 1, n & 1)
            fl = steps[base + (c["flag01"] if r < 2 else c["flag2"])]
            assert fl["last"]
            fl["pre"] = lambda r=r: e.wait_tok(("h", r))
            fl["post"] = lambda r=r: self.send_flags(LINES[r], TAGS[r], "0xff00", sJ)
            issue, test = self.check_flags(LINES[r], TAGS[r], 10, 11)
            steps[tests[r] - c["lead"]]["vm"] += self.groups(issue)
            assert "pre" not in steps[tests[r]]
            steps[tests[r]]["pre"] = test
        items += self.a_items(aload2, 0, 48, lambda g: max(tests[g // 16], 41 + g if g < 16 else 45 + g), lambda g: min(60 + g, u0 + (g + 60 - u0) // 4))
        sPM, sPX, sPW = "s96", "s97", "s88"

        def part_store(T):
            d = WK + 4 * (T & 3)
            out = [[(f"v_cvt_pk_bf16_f32 {v(d+k)}, {v(ACC + 8*T + 2*k)}, {v(ACC + 8*T + 2*k + 1)}", None)] for k in range(4)]
            if T < 4:
                out[-1].append((f"buffer_store_dwordx4 {v(d,4)}, {v(vL16B)}, {srd(R_WS)}, {sPM} offen offset:{1024*T} sc1", None))
            else:
                out[-1].append((f"buffer_store_dwordx4 {v(d,4)}, {v(vL16B)}, {srd(R_WS)}, {sPX} offen sc1", None))
                out[-1].append((f"s_add_u32 {sPX}, {sPX}, 32768", None))
            return out

        def part_setup():
            e(f"s_lshl_b32 {sT0}, {sRB}, 18\ns_lshl_b32 {sT1}, {sW}, 13\ns_add_u32 {sT0}, {sT0}, {sT1}\ns_add_u32 {sT0}, {sT0}, {PART}")
            e(f"s_lshl_b32 {sPM}, {sJ}, 15\ns_add_u32 {sPM}, {sPM}, {sT0}")
            e(f"s_and_b32 {sPX}, {sJ}, 4\ns_lshl_b32 {sPX}, {sPX}, 15\ns_add_u32 {sPX}, {sPX}, {sT0}")
            e(f"s_and_b32 {sT1}, {sJ}, 3\ns_lshl_b32 {sT1}, {sT1}, 10\ns_add_u32 {sPX}, {sPX}, {sT1}")
            e(f"s_add_u32 {sPX}, {sPX}, 4096\ns_and_b32 {sPW}, {sJ}, 3\ns_and_b32 {sT1}, {sJ}, 4")
            e(f"s_lshl_b32 s92, 15, {sT1}\ns_mov_b32 s93, 0")
        steps[90]["pre"] = part_setup
        for n in range(4):
            steps[u0 + nb + n // 2 * (nb > 1)]["alu"] += part_store(4 + n)
        for T in range(3):
            steps[u0 + nb * (T + 2)]["alu"] += part_store(T)
        for gs in range(apre):
            e("\n".join(aload1(gs)))
        self.pipeline(steps, dma, NS, NSTREAM, range(pa + pl + pb, NS), visible, items, due={b: u0 - 1 for b in range(28 - nb, 27)})
        self.stamp(12)

        self.emit_groups(part_store(3))
        self.stamp(13)
        e.wait_all()
        self.send_wave(4, TAG_PART, "s[92:93]", sPW, 2)
        self.stamp(14)
        self.epoch_bump()
        self.finish()

    def build(self):
        e = self.e
        self.entry()
        snap = e.begin_region()
        pend, nst = self.pending_stamp, self.nstamp
        self.chain = 0
        self.ssm()
        self.chain = 1
        e.vm, e.lg, e.hist = list(snap["vm"]), list(snap["lg"]), []
        self.pending_stamp, self.nstamp = pend, nst
        e.label("L_mlp")
        self.mlp()
        e.label("L_end")
        e("s_endpgm")
        ref = open(f"cdna_kernels/{NAME}.s.ref").read()
        head = ref.split("; Override launch")[0]
        out = head
        out += HEADER
        out += f"; @launch grid=(256,1,1) block=(256,1,1) lds={LDS_BYTES}\n"
        out += '.amdgcn_target "amdgcn-amd-amdhsa--gfx950"\n.text\n'
        out += f".globl {KERNEL}\n.p2align 8\n.type {KERNEL},@function\n{KERNEL}:\n"
        out += e.text()
        out += f""".section .rodata,"a"
.p2align 6
.amdhsa_kernel {KERNEL}
  .amdhsa_next_free_vgpr 512
  .amdhsa_next_free_sgpr 102
  .amdhsa_accum_offset 256
  .amdhsa_group_segment_fixed_size 0
  .amdhsa_kernarg_size 120
  .amdhsa_user_sgpr_count 2
  .amdhsa_user_sgpr_kernarg_segment_ptr 1
  .amdhsa_system_sgpr_workgroup_id_x 1
  .amdhsa_float_denorm_mode_32 3
.end_amdhsa_kernel
"""
        return out


def parse_cfg(args):
    cfg = {}
    for s in args:
        k, val = s.split("=")
        cfg[k] = type(DEFAULTS[k])(int(val))
    return cfg


if __name__ == "__main__":
    path = sys.argv[1]
    g = Gen(**parse_cfg(sys.argv[2:]))
    open(path, "w").write(g.build())
    print(path, "lines", len(g.e.lines), "nop slots", g.e.nops)
```
